```python
import torch

def _softmax(x, axis=-1):
    return torch.softmax(x, dim=axis)
def _gelu(x):
    return torch.nn.functional.gelu(x, approximate="tanh")
def _silu(x):
    return torch.nn.functional.silu(x)
def _sigmoid(x):
    return torch.sigmoid(x)
def _layernorm(x, axis=-1, eps=1e-5):
    m = x.mean(dim=axis, keepdim=True)
    v = x.var(dim=axis, keepdim=True, unbiased=False)
    return (x - m) / torch.sqrt(v + eps)
def _scatter_add(tgt, idx, src, axis=0):
    return tgt.clone().index_add_(axis, idx, src)
def _segment_sum(src, seg, n):
    out = torch.zeros((n,) + src.shape[1:], dtype=src.dtype)
    return out.index_add_(0, seg, src)
def _pad(x, pw):
    flat = tuple(v for pair in reversed(pw) for v in pair)
    return torch.nn.functional.pad(x, flat)

kernel_name = 'sequential_preLN__linear_kernel_hedgehog__glu_gated_glu__prompt'

def setup_inputs():

    _w = (lambda a: (lambda t: t.to(torch.bfloat16) if t.is_floating_point() else t)(torch.as_tensor(a)))
    def _A_setup():
        B, S, D, H = 1, 2048, 448, 16
        Dh = D // H
        return {
            "x": _w((lambda *s: torch.randn(*s, dtype=torch.bfloat16) * 0.05)(B, S, D)),
            "wqkv": _w((lambda *s: torch.randn(*s, dtype=torch.bfloat16) * 0.2)(D, 3 * D)),
            "w_phi": _w((lambda *s: torch.randn(*s, dtype=torch.bfloat16) * 0.2)(H, Dh, Dh) * (Dh ** -0.5)),
            "wo": _w((lambda *s: torch.randn(*s, dtype=torch.bfloat16) * 0.05)(D, D)),
        }
    _A_in = _A_setup()

    def _B_setup():
        B, S, D, F = 1, 2048, 448, 1792
        return {
            "x": _w((lambda *s: torch.randn(*s, dtype=torch.bfloat16) * 0.05)(B, S, D)),
            "w_gate": _w((lambda *s: torch.randn(*s, dtype=torch.bfloat16) * 0.05)(D, F)),
            "w_up": _w((lambda *s: torch.randn(*s, dtype=torch.bfloat16) * 0.05)(D, F)),
            "w_down": _w((lambda *s: torch.randn(*s, dtype=torch.bfloat16) * 0.05)(F, D)),
        }
    _B_in = _B_setup()

    return {
        "A_x": _A_in["x"],
        "A_wqkv": _A_in["wqkv"],
        "A_w_phi": _A_in["w_phi"],
        "A_wo": _A_in["wo"],
        "B_x": _B_in["x"],
        "B_w_gate": _B_in["w_gate"],
        "B_w_up": _B_in["w_up"],
        "B_w_down": _B_in["w_down"],
    }

def reference(A_x, A_wqkv, A_w_phi, A_wo, B_x, B_w_gate, B_w_up, B_w_down):
    def _A_ref(x, wqkv, w_phi, wo):
        B, S, D = x.shape
        H = 16; Dh = D // H
        qkv = (lambda x, *d: x.permute(*d))((x @ wqkv).reshape(B, S, 3, H, Dh), 2, 0, 3, 1, 4)
        q, k, v = qkv[0], qkv[1], qkv[2]
        pq = torch.einsum("bhsd,hdf->bhsf", q, w_phi)
        pk = torch.einsum("bhsd,hdf->bhsf", k, w_phi)
        phi_q = torch.concatenate([_softmax(pq, axis=-1), _softmax(-pq, axis=-1)], axis=-1)
        phi_k = torch.concatenate([_softmax(pk, axis=-1), _softmax(-pk, axis=-1)], axis=-1)
        kv = torch.einsum("bhsf,bhsd->bhfd", phi_k, v)
        z  = torch.einsum("bhsf->bhf", phi_k)
        num = torch.einsum("bhqf,bhfd->bhqd", phi_q, kv)
        den = torch.einsum("bhqf,bhf->bhq", phi_q, z)[..., None] + 1e-6
        o = num / den
        return (lambda x, *d: x.permute(*d))(o, 0, 2, 1, 3).reshape(B, S, D) @ wo

    def _B_ref(x, w_gate, w_up, w_down):
        g = torch.einsum("bsd,df->bsf", x, w_gate)
        u = torch.einsum("bsd,df->bsf", x, w_up)
        h = _sigmoid(g) * u
        return torch.einsum("bsf,fd->bsd", h, w_down)

    x = A_x
    h = x + _A_ref(_layernorm(x, axis=-1), A_wqkv, A_w_phi, A_wo)
    h2 = h + _B_ref(_layernorm(h, axis=-1), B_w_gate, B_w_up, B_w_down)
    return h2
```

```python
import re

TRANS = ("v_exp_f32", "v_log_f32", "v_rcp_f32", "v_rsq_f32", "v_sqrt_f32", "v_sin_f32", "v_cos_f32", "v_rcp_iflag_f32")
REG_RE = re.compile(r"^(-?)(abs\()?([vas])(\d+)\)?$|^(-?)([vas])\[(\d+):(\d+)\]$")

def parse_reg(tok):
    tok = tok.strip()
    if tok in ("vcc", "exec", "m0", "scc"):
        if tok == "vcc": return {("s", 106), ("s", 107)}
        if tok == "exec": return {("s", 126), ("s", 127)}
        if tok == "m0": return {("s", 124)}
        return set()
    if tok in ("vcc_lo",): return {("s", 106)}
    if tok in ("vcc_hi",): return {("s", 107)}
    m = REG_RE.match(tok)
    if not m: return set()
    if m.group(3):
        return {(m.group(3), int(m.group(4)))}
    k = m.group(6); a = int(m.group(7)); b = int(m.group(8))
    return {(k, i) for i in range(a, b + 1)}

def split_ops(s):
    ops = []; depth = 0; cur = ""
    for ch in s:
        if ch in "[(": depth += 1
        if ch in "])": depth -= 1
        if ch == "," and depth == 0:
            ops.append(cur.strip()); cur = ""
        else:
            cur += ch
    if cur.strip(): ops.append(cur.strip())
    return ops

class Ins:
    __slots__ = ("text", "mn", "cls", "wr", "rd", "passes", "srcc", "srcab", "nops", "label", "target", "dpp", "wide_store", "dot")
    def __init__(self, text):
        self.text = text
        self.label = None; self.target = None
        self.wr = set(); self.rd = set(); self.passes = 0; self.srcc = set(); self.srcab = set(); self.nops = 1
        self.dpp = False; self.wide_store = set(); self.dot = False
        t = text.split(";")[0].strip()
        if t.endswith(":"):
            self.label = t[:-1]; self.mn = ""; self.cls = "label"; self.nops = 0; return
        if t.startswith(".") or t == "":
            self.mn = ""; self.cls = "dir"; self.nops = 0; return
        parts = t.split(None, 1)
        mn = parts[0]; self.mn = mn
        rest = parts[1] if len(parts) > 1 else ""
        ops = split_ops(rest)
        mods = ""
        if ops:
            lp = ops[-1].split(None, 1)
            if len(lp) > 1 and not lp[0].startswith("vmcnt") and not lp[0].startswith("lgkmcnt"):
                ops[-1] = lp[0]; mods = lp[1]
        regs = [parse_reg(o) for o in ops]
        if mn.startswith("v_mfma"):
            self.cls = "mfma"
            self.passes = 8 if "32x32x16" in mn else 4 if "16x16x32" in mn else 16
            self.wr = regs[0]; self.srcab = regs[1] | regs[2]; self.srcc = regs[3]
            self.rd = self.srcab | self.srcc
        elif mn.startswith("v_"):
            self.cls = "trans" if mn.replace("_e32", "").replace("_e64", "") in TRANS else "valu"
            if "dpp" in mods or "row_" in mods or "quad_perm" in mods: self.dpp = True
            if mn.startswith("v_permlane"):
                self.wr = regs[0] | regs[1]; self.rd = regs[0] | regs[1]
            elif mn.startswith("v_add_co") or mn.startswith("v_sub_co") or mn.startswith("v_addc_co") or mn.startswith("v_subb_co"):
                self.wr = regs[0] | regs[1]
                for r in regs[2:]: self.rd |= r
            else:
                self.wr = regs[0]
                for r in regs[1:]: self.rd |= r
                if mn.startswith("v_fmac") or mn.startswith("v_dot2c") or mn.startswith("v_pk_fmac") or mn.startswith("v_writelane"):
                    self.rd |= regs[0]
            if mn.startswith("v_dot"): self.dot = True
        elif mn.startswith("buffer_") or mn.startswith("global_"):
            self.cls = "vmem"
            lds = " lds" in (" " + mods) or "_lds_" in mn
            if lds:
                for r in regs: self.rd |= r
                self.rd |= {("s", 124)}
                self.cls = "vmem_lds"
            elif "load" in mn:
                self.wr = regs[0]
                for r in regs[1:]: self.rd |= r
            else:
                for r in regs: self.rd |= r
                if "atomic" in mn and "sc0" in mods:
                    self.wr = regs[0] if mn.startswith("buffer_") else regs[0]
                if "dwordx4" in mn or "dwordx3" in mn:
                    self.wide_store = regs[0] if mn.startswith("buffer_") else regs[1]
        elif mn.startswith("ds_"):
            self.cls = "ds"
            if "read" in mn or "permute" in mn or "swizzle" in mn or "rtn" in mn:
                self.wr = regs[0]
                for r in regs[1:]: self.rd |= r
            else:
                for r in regs: self.rd |= r
        elif mn.startswith("s_"):
            self.cls = "salu"
            if mn == "s_nop":
                self.nops = int(ops[0], 0) + 1
            elif mn.startswith("s_cbranch") or mn == "s_branch":
                self.target = ops[0]
            elif mn.startswith("s_cmp") or mn in ("s_waitcnt", "s_barrier", "s_endpgm", "s_setprio", "s_sleep"):
                for r in regs: self.rd |= r
            elif mn.startswith("s_load"):
                self.cls = "smem"; self.wr = regs[0]
                for r in regs[1:]: self.rd |= r
            else:
                self.wr = regs[0] if regs else set()
                for r in regs[1:]: self.rd |= r
                if "saveexec" in mn: self.wr |= {("s", 126), ("s", 127)}
        else:
            raise ValueError("unknown instr " + text)

def isv(s): return {r for r in s if r[0] in "va"}
def iss(s): return {r for r in s if r[0] == "s"}

MF_AB = {2: 5, 4: 8, 8: 12, 16: 20}
MF_COV = {2: 4, 4: 6, 8: 10, 16: 18}
MF_WARC = {2: 1, 4: 3, 8: 7, 16: 15}

def need(p, c):
    n = 0
    pv = p.cls in ("valu", "trans")
    cv = c.cls in ("valu", "trans")
    if pv:
        w = isv(p.wr)
        if w:
            if c.cls == "mfma" and (w & c.rd): n = max(n, 2)
            if p.cls == "trans" and c.cls == "valu" and (w & c.rd): n = max(n, 1)
            if cv and c.mn.startswith(("v_readlane", "v_readfirstlane")) and (w & c.rd): n = max(n, 1)
            if cv and (c.mn.startswith("v_permlane") or c.dpp) and (w & c.rd): n = max(n, 2)
            if p.dot and (w & (c.rd | c.wr)):
                if c.dot and c.mn == p.mn:
                    ops = split_ops(c.text.split(";")[0].split(None, 1)[1])
                    ab = parse_reg(ops[1]) | parse_reg(ops[2])
                    if w & ab: n = max(n, 3)
                else:
                    n = max(n, 3)
        ws = iss(p.wr)
        if ws:
            if cv and (ws & c.rd): n = max(n, 4 if c.mn.startswith(("v_readlane", "v_writelane")) else 2)
            if c.cls in ("vmem", "vmem_lds") and (ws & c.rd): n = max(n, 5)
            if c.cls == "mfma" and (ws & {("s", 126), ("s", 127)}): n = max(n, 4)
    if p.cls == "mfma":
        d = p.wr
        if c.cls == "mfma":
            if d & c.srcab: n = max(n, MF_AB[p.passes])
            if d & c.srcc:
                if c.srcc == d and c.passes == p.passes: n = max(n, 2 if p.passes == 2 else 0)
                else: n = max(n, MF_COV[p.passes])
            elif d & c.wr: n = max(n, MF_COV[p.passes])
        elif c.cls in ("valu", "trans", "vmem", "vmem_lds", "ds"):
            if d & (c.rd | c.wr): n = max(n, MF_AB[p.passes])
        if cv and (p.srcc & c.wr): n = max(n, MF_WARC[p.passes])
    if p.cls == "salu" and ("s", 124) in p.wr and c.cls == "vmem_lds": n = max(n, 1)
    if p.wide_store and (p.wide_store & c.wr): n = max(n, 2 if cv else 1)
    return n

class Asm:
    def __init__(self):
        self.ins = []
    def __call__(self, text):
        for line in text.strip().split("\n"):
            line = line.strip()
            if line: self.ins.append(Ins(line))
    def raw(self, text):
        i = Ins("."); i.text = text; self.ins.append(i)
    def fix_hazards(self):
        out = []
        LOOK = 24
        def required(prev, c):
            dist = 0; add = 0
            for p in reversed(prev[-64:]):
                if p.cls in ("label", "dir"): continue
                nn = need(p, c)
                if nn > dist: add = max(add, nn - dist)
                dist += p.nops
                if dist > LOOK: break
            return add
        labels = {}
        for c in self.ins:
            if c.cls == "label": labels[c.label] = len(out)
            if c.cls not in ("label", "dir"):
                add = required(out, c)
                while add > 0:
                    k = min(add, 16)
                    out.append(Ins("s_nop %d" % (k - 1))); add -= k
                if c.target is not None and c.target in labels:
                    head = [x for x in out[labels[c.target]:] if x.cls not in ("label", "dir")][:LOOK]
                    worst = 0
                    seq = out + [c]
                    for k, hins in enumerate(head):
                        a = required(seq + head[:k], hins)
                        worst = max(worst, a)
                    while worst > 0:
                        k = min(worst, 16)
                        out.append(Ins("s_nop %d" % (k - 1))); worst -= k
            out.append(c)
        pos = {x.label: i for i, x in enumerate(out) if x.cls == "label"}
        for i, c in enumerate(out):
            if c.target is not None and c.target in pos and pos[c.target] > i:
                head = [x for x in out[pos[c.target]:] if x.cls not in ("label", "dir")][:LOOK]
                seq = out[:i + 1]
                for k, hins in enumerate(head):
                    a = required(seq + head[:k], hins)
                    if a > 0:
                        raise RuntimeError("hazard across forward branch %s -> %s needs %d" % (c.text, hins.text, a))
        self.ins = out
    def text(self):
        lines = []
        for c in self.ins:
            if c.cls == "label" or c.cls == "dir": lines.append(c.text)
            else: lines.append("    " + c.text)
        return "\n".join(lines)
```

```python
from asmfw import Asm
import gen
from gen import *

WS_HF = WS_H

K2_KV  = 0
K2_WO  = 65536
K2_RED = 0
K2_LDS = K2_WO + 456 * 128

def gen_k2():
    a = Asm()
    head(a, "k2_kernel")
    a("s_cmp_ge_u32 s2, 256")
    a("s_cbranch_scc1 K2_END")
    stamp_init(a); stamp(a, 0, real=True); stamp(a, 1)
    a("s_load_dwordx2 s[4:5], s[0:1], 0")
    a("s_load_dwordx2 s[6:7], s[0:1], 24")
    a("s_load_dwordx4 s[8:11], s[0:1], 40")
    a("s_load_dwordx2 s[14:15], s[0:1], 80")
    LANE, M, HF, I16, G = 1, 2, 3, 4, 5
    a(f"v_and_b32 v{LANE}, 63, v0")
    a(f"v_lshrrev_b32 v6, 6, v0")
    a(f"v_readfirstlane_b32 s38, v6")
    a(f"v_and_b32 v{M}, 31, v{LANE}")
    a(f"v_lshrrev_b32 v{HF}, 5, v{LANE}")
    a(f"v_and_b32 v{I16}, 15, v{LANE}")
    a(f"v_lshrrev_b32 v{G}, 4, v{LANE}")
    a("s_mov_b32 s42, 0")
    a("s_mov_b32 s43, -1")
    a("s_mov_b32 s41, 0xffff0000")
    a("s_cmp_ge_u32 s2, 224")
    a("s_cbranch_scc1 K2_CS")
    a("s_mul_i32 s36, s2, 9363")
    a("s_lshr_b32 s36, s36, 16")
    a("s_mul_i32 s37, s36, 7")
    a("s_sub_u32 s37, s2, s37")
    a("s_and_b32 s39, s38, 1")
    a("s_lshr_b32 s40, s38, 1")
    a(f"v_lshlrev_b32 v10, 4, v{LANE}")
    a("s_waitcnt lgkmcnt(0)")
    srd(a, 16, 4, 1835008)
    srd(a, 20, 6, 401408)
    srd(a, 32, 14, WS_SIZE)
    vm = VM(a)
    a("s_lshl_b32 s50, s38, 14")
    KR = 100
    for i in range(16):
        a(f"s_add_u32 s51, s50, {WS_KV + i*1024}")
        a(f"buffer_load_dwordx4 v[{KR+4*i}:{KR+4*i+3}], v10, s[32:35], s51 offen")
        vm.issue("kv")
    a("s_lshl_b32 s50, s36, 1")
    a("s_add_u32 s50, s50, s39")
    a("s_lshl_b32 s50, s50, 4")
    a("s_lshl_b32 s51, s40, 2")
    a("s_add_u32 s50, s50, s51")
    a("s_lshl_b32 s50, s50, 12")
    a(f"s_add_u32 s50, s50, {WS_PHIQ}")
    PQ = 164
    for i in range(16):
        a(f"s_add_u32 s51, s50, {i*1024}")
        a(f"buffer_load_dwordx4 v[{PQ+4*i}:{PQ+4*i+3}], v10, s[32:35], s51 offen")
        vm.issue("pq")
    a(f"v_lshrrev_b32 v7, 3, v{LANE}")
    a(f"v_and_b32 v8, 7, v{LANE}")
    a(f"v_lshrrev_b32 v9, 1, v7")
    a(f"v_and_b32 v9, 1, v9")
    a(f"v_lshlrev_b32 v9, 2, v9")
    a(f"v_xor_b32 v8, v8, v9")
    a(f"v_mul_u32_u24 v7, 896, v7")
    a(f"v_lshl_add_u32 v11, v8, 4, v7")
    a("s_mul_i32 s50, s38, 50176")
    a("s_lshl_b32 s51, s37, 7")
    a("s_add_u32 s50, s50, s51")
    a("s_mul_i32 s52, s38, 7168")
    for i in range(7):
        a(f"s_add_u32 m0, s52, {K2_WO + i*1024}")
        a(f"s_add_u32 s51, s50, {i*8*896}")
        a(f"buffer_load_dwordx4 v11, s[20:23], s51 offen lds")
        vm.issue("wo")
    a(f"s_mov_b32 m0, {K2_WO + 448*128}")
    a(f"s_mov_b32 s51, {448*896}")
    a(f"buffer_load_dwordx4 v11, s[20:23], s51 offen lds")
    vm.issue("wo")
    a("s_lshl_b32 s50, s36, 6")
    a(f"v_add_u32 v7, s50, v{LANE}")
    a(f"v_mul_u32_u24 v7, 896, v7")
    a("s_lshl_b32 s50, s37, 7")
    a("s_lshl_b32 s51, s38, 4")
    a("s_add_u32 s50, s50, s51")
    a(f"buffer_load_dwordx4 v[12:15], v7, s[16:19], s50 offen")
    vm.issue("x")
    stamp(a, 2)
    a(f"v_lshrrev_b32 v7, 2, v{I16}")
    a(f"v_lshlrev_b32 v7, 10, v7")
    a(f"v_and_b32 v8, 1, v{I16}")
    a(f"v_lshl_add_u32 v7, v8, 9, v7")
    a(f"v_lshrrev_b32 v8, 1, v{I16}")
    a(f"v_and_b32 v8, 1, v8")
    a(f"v_lshl_add_u32 v7, v8, 3, v7")
    a(f"v_lshl_add_u32 v7, v{G}, 4, v7")
    a("s_lshl_b32 s50, s38, 13")
    a(f"v_add_u32 v7, s50, v7")
    for i in range(16):
        a(f"s_waitcnt vmcnt({len(vm.ops) - 1 - i})")
        a(f"v_cvt_pk_bf16_f32 v{KR+4*i}, v{KR+4*i}, v{KR+4*i+1}")
        a(f"v_cvt_pk_bf16_f32 v{KR+4*i+1}, v{KR+4*i+2}, v{KR+4*i+3}")
        a(f"ds_write_b64 v7, v[{KR+4*i}:{KR+4*i+1}] offset:{K2_KV + (i>>3)*4096 + (i&7)*64}")
    a(f"v_lshrrev_b32 v7, 2, v{I16}")
    a(f"v_lshl_add_u32 v8, v{HF}, 2, v7")
    a(f"v_lshrrev_b32 v7, 1, v7")
    a(f"v_lshlrev_b32 v7, 3, v7")
    a(f"v_and_b32 v9, 1, v{G}")
    a(f"v_lshl_add_u32 v7, v9, 2, v7")
    a(f"v_and_b32 v9, 3, v{I16}")
    a(f"v_add_u32 v7, v7, v9")
    a(f"v_lshlrev_b32 v7, 3, v7")
    a(f"v_lshl_add_u32 v7, v8, 7, v7")
    a("s_mul_i32 s50, s40, 14336")
    a(f"s_add_u32 s50, s50, {K2_WO}")
    a(f"v_add_u32 v16, s50, v7")
    a(f"v_xor_b32 v17, 64, v16")
    a("s_lshl_b32 s50, s40, 14")
    a(f"v_add_u32 v18, s50, v10")
    vm.wait("wo")
    a("s_waitcnt lgkmcnt(0)")
    a("s_barrier")
    stamp(a, 3)
    KF = 100
    for hh in range(4):
        for s_ in range(4):
            a(f"ds_read_b128 v[{KF+16*hh+4*s_}:{KF+16*hh+4*s_+3}], v18 offset:{K2_KV + hh*4096 + s_*1024}")
    NUM = 20
    for hh in range(4):
        for s_ in range(4):
            a(f"s_waitcnt lgkmcnt({min(15, 15 - (4*hh+s_))})")
            c = "0" if s_ == 0 else f"v[{NUM+16*hh}:{NUM+16*hh+15}]"
            a(f"v_mfma_f32_32x32x16_bf16 v[{NUM+16*hh}:{NUM+16*hh+15}], v[{KF+16*hh+4*s_}:{KF+16*hh+4*s_+3}], v[{PQ+16*hh+4*s_}:{PQ+16*hh+4*s_+3}], {c}")
    OF = 164
    for hh in range(4):
        N = NUM + 16 * hh
        a(f"v_mov_b32 v84, v{N+12}")
        a(f"v_mov_b32 v85, v{N+12}")
        a(f"v_permlane32_swap_b32 v84, v85")
        bf16r(a, 85, 85)
        a(f"v_add_f32 v85, 0x358637bd, v85")
        bf16r(a, 85, 85)
        a(f"v_rcp_f32 v85, v85")
        for i in range(8):
            a(f"v_mul_f32 v{N+2*i}, v{N+2*i}, v85")
            a(f"v_mul_f32 v{N+2*i+1}, v{N+2*i+1}, v85")
            a(f"v_cvt_pk_bf16_f32 v{OF+8*hh+i}, v{N+2*i}, v{N+2*i+1}")
        a(f"v_cndmask_b32 v{OF+8*hh+6}, v{OF+8*hh+6}, 0, s[42:43]")
        a(f"v_cndmask_b32 v{OF+8*hh+7}, v{OF+8*hh+7}, 0, s[42:43]")
        for s_ in range(2):
            for n2 in range(2):
                b = KF + 16*hh + 8*s_ + 4*n2
                for e in range(2):
                    a(f"ds_read_b64_tr_b16 v[{b+2*e}:{b+2*e+1}], v{16+n2} offset:{(hh*28 + 16*s_ + 8*e)*128}")
    stamp(a, 4)
    AT = 200
    a("s_waitcnt lgkmcnt(0)")
    for hh in range(4):
        for s_ in range(2):
            for n2 in range(2):
                b = KF + 16*hh + 8*s_ + 4*n2
                c = "0" if (hh == 0 and s_ == 0) else f"v[{AT+16*n2}:{AT+16*n2+15}]"
                a(f"v_mfma_f32_32x32x16_bf16 v[{AT+16*n2}:{AT+16*n2+15}], v[{b}:{b+3}], v[{OF+8*hh+4*s_}:{OF+8*hh+4*s_+3}], {c}")
    a("s_barrier")
    a("s_lshl_b32 s50, s39, 5")
    a(f"v_add_u32 v7, s50, v{M}")
    a(f"v_mul_u32_u24 v7, 272, v7")
    a(f"v_lshl_add_u32 v7, v{HF}, 4, v7")
    a("s_mul_i32 s50, s40, 17408")
    a(f"v_add_u32 v7, s50, v7")
    for n2 in range(2):
        for q in range(4):
            a(f"ds_write_b128 v7, v[{AT+16*n2+4*q}:{AT+16*n2+4*q+3}] offset:{K2_RED + n2*128 + q*32}")
    a("s_waitcnt lgkmcnt(0)")
    a("s_barrier")
    stamp(a, 5)
    a(f"v_mul_u32_u24 v7, 272, v{LANE}")
    a("s_lshl_b32 s50, s38, 5")
    a(f"v_add_u32 v7, s50, v7")
    for hg in range(4):
        for e in range(2):
            a(f"ds_read_b128 v[{20+8*hg+4*e}:{20+8*hg+4*e+3}], v7 offset:{K2_RED + hg*17408 + e*16}")
    a("s_waitcnt lgkmcnt(0)")
    for j in range(8):
        a(f"v_add_f32 v{20+j}, v{20+j}, v{28+j}")
        a(f"v_add_f32 v{36+j}, v{36+j}, v{44+j}")
    for j in range(8):
        a(f"v_add_f32 v{20+j}, v{20+j}, v{36+j}")
    vm.wait("x")
    for i in range(4):
        a(f"v_cvt_pk_bf16_f32 v28, v{20+2*i}, v{20+2*i+1}")
        a(f"v_lshlrev_b32 v29, 16, v28")
        a(f"v_and_b32 v30, s41, v28")
        a(f"v_lshlrev_b32 v31, 16, v{12+i}")
        a(f"v_and_b32 v32, s41, v{12+i}")
        a(f"v_add_f32 v29, v29, v31")
        a(f"v_add_f32 v30, v30, v32")
        a(f"v_cvt_pk_bf16_f32 v{36+i}, v29, v30")
    a("s_lshl_b32 s50, s36, 1")
    a("s_mul_i32 s50, s50, 28")
    a("s_lshl_b32 s51, s37, 2")
    a("s_add_u32 s50, s50, s51")
    a("s_lshr_b32 s51, s38, 1")
    a("s_add_u32 s50, s50, s51")
    a("s_lshl_b32 s50, s50, 10")
    a("s_and_b32 s51, s38, 1")
    a("s_lshl_b32 s51, s51, 9")
    a("s_add_u32 s50, s50, s51")
    a(f"s_add_u32 s50, s50, {WS_HF}")
    a(f"v_mul_u32_u24 v7, 28672, v{HF}")
    a(f"v_lshl_add_u32 v7, v{M}, 4, v7")
    a(f"buffer_store_dwordx4 v[36:39], v7, s[32:35], s50 offen")
    a("s_branch K2_FIN")

    a("K2_CS:")
    a("s_sub_u32 s36, s2, 224")
    a("s_lshr_b32 s37, s36, 4")
    a("s_and_b32 s36, s36, 15")
    a("s_waitcnt lgkmcnt(0)")
    a("s_cmp_eq_u32 s37, 0")
    a("s_cselect_b32 s20, s8, s10")
    a("s_cselect_b32 s21, s9, s11")
    a("s_mov_b32 s22, 1605632")
    a("s_mov_b32 s23, 0x00020000")
    srd(a, 32, 14, WS_SIZE)
    a("v_mul_u32_u24 v7, 4682, v0")
    a("v_lshrrev_b32 v7, 16, v7")
    a("v_mul_u32_u24 v8, 14, v7")
    a("v_sub_u32 v8, v0, v8")
    a("v_mul_u32_u24 v9, 3584, v7")
    a("v_lshl_add_u32 v9, v8, 4, v9")
    a("v_cmp_gt_u32 vcc, 36, v7")
    a("v_mov_b32 v10, 0x7ffff000")
    a("v_cndmask_b32 v9, v10, v9, vcc")
    a("s_mul_i32 s50, s36, 224")
    for i in range(13):
        a(f"s_add_u32 s51, s50, {i*36*3584}")
        a(f"buffer_load_dwordx4 v[{20+4*i}:{20+4*i+3}], v9, s[20:23], s51 offen")
    for j in range(8): a(f"v_mov_b32 v{80+j}, 0")
    for i in range(13):
        a(f"s_waitcnt vmcnt({12-i})")
        for r in range(4):
            a(f"v_lshlrev_b32 v11, 16, v{20+4*i+r}")
            a(f"v_and_b32 v12, s41, v{20+4*i+r}")
            a(f"v_add_f32 v{80+2*r}, v{80+2*r}, v11")
            a(f"v_add_f32 v{80+2*r+1}, v{80+2*r+1}, v12")
    a("v_mul_u32_u24 v11, 448, v7")
    a("v_lshl_add_u32 v11, v8, 5, v11")
    a("ds_write_b128 v11, v[80:83]")
    a("ds_write_b128 v11, v[84:87] offset:16")
    a("s_waitcnt lgkmcnt(0)")
    a("s_barrier")
    a("v_cmp_gt_u32 vcc, 112, v0")
    a("s_and_saveexec_b64 s[54:55], vcc")
    a("s_cbranch_execz K2_FIN")
    a("v_lshlrev_b32 v11, 2, v0")
    for i in range(36):
        a(f"ds_read_b32 v{20+i}, v11 offset:{i*448}")
    a("s_waitcnt lgkmcnt(0)")
    for i in range(1, 36):
        a(f"v_add_f32 v20, v20, v{20+i}")
    a("s_mul_i32 s50, s37, 7168")
    a("s_mul_i32 s51, s36, 448")
    a("s_add_u32 s50, s50, s51")
    a(f"s_add_u32 s50, s50, {WS_CS}")
    a("buffer_store_dword v20, v11, s[32:35], s50 offen")
    a("K2_FIN:")
    if STAMPS:
        a("s_mov_b64 exec, -1")
        a("s_waitcnt vmcnt(0)")
    stamp(a, 9)
    stamp_flush(a, 38, 32, 1)
    a("K2_END:")
    a("s_endpgm")
    a.fix_hazards()
    return a.text(), kd("k2_kernel", 232)

import gen3
def kernels():
    return [("k2", gen_k2, 256, 512, K2_LDS)] + gen3.kernels()
```

```python
from asmfw import Asm
import gen
from gen import *
WS_HF = WS_H

K3_CS   = 0
K3_RING = 1024
K3_SLOT = 32768
K3_NS   = 4
K3_LDS  = K3_RING + K3_NS * K3_SLOT

def gen_k3():
    a = Asm()
    head(a, "k3_kernel")
    a("s_cmp_ge_u32 s2, 224")
    a("s_cbranch_scc1 K3_END")
    stamp_init(a); stamp(a, 0, real=True); stamp(a, 1)
    a("s_load_dwordx4 s[8:11], s[0:1], 40")
    a("s_load_dwordx2 s[14:15], s[0:1], 80")
    LANE, M, HF, I16, G = 1, 2, 3, 4, 5
    a(f"v_and_b32 v{LANE}, 63, v0")
    a(f"v_lshrrev_b32 v6, 6, v0")
    a(f"v_readfirstlane_b32 s38, v6")
    a(f"v_and_b32 v{M}, 31, v{LANE}")
    a(f"v_lshrrev_b32 v{HF}, 5, v{LANE}")
    a(f"v_and_b32 v{I16}, 15, v{LANE}")
    a(f"v_lshrrev_b32 v{G}, 4, v{LANE}")
    a("s_mov_b32 s41, 0xffff0000")
    a("s_mul_i32 s36, s2, 4682")
    a("s_lshr_b32 s36, s36, 16")
    a("s_mul_i32 s37, s36, 14")
    a("s_sub_u32 s37, s2, s37")
    a("s_and_b32 s39, s38, 1")
    a("s_lshr_b32 s40, s38, 1")
    a(f"v_lshlrev_b32 v7, 1, v{G}")
    a(f"v_add_u32 v7, s39, v7")
    a(f"v_lshlrev_b32 v7, 1, v7")
    a(f"v_xor_b32 v7, v7, v{I16}")
    a(f"v_mul_u32_u24 v8, 3584, v{G}")
    a(f"v_lshl_add_u32 v10, v7, 4, v8")
    a(f"v_lshlrev_b32 v11, 4, v{LANE}")
    a("s_waitcnt lgkmcnt(0)")
    a("s_cmp_eq_u32 s39, 0")
    a("s_cselect_b32 s20, s8, s10")
    a("s_cselect_b32 s21, s9, s11")
    a("s_mov_b32 s22, 1605632")
    a("s_mov_b32 s23, 0x00020000")
    srd(a, 32, 14, WS_SIZE)
    a("s_mul_i32 s46, s40, 114688")
    a("s_lshl_b32 s47, s37, 8")
    a("s_add_u32 s46, s46, s47")
    a("s_lshl_b32 s47, s39, 14")
    a("s_lshl_b32 s48, s40, 13")
    a("s_add_u32 s47, s47, s48")
    a("s_lshl_b32 s48, s36, 2")
    a("s_add_u32 s48, s48, s38")
    a("s_mul_i32 s49, s48, 28672")
    a(f"s_add_u32 s49, s49, {WS_HF}")
    vm = VM(a)
    def dma(c):
        for i in range(8):
            a(f"s_add_u32 m0, s47, {K3_RING + (c % K3_NS)*K3_SLOT + i*1024}")
            a(f"s_add_u32 s50, s46, {(c*64 + i*4)*3584}")
            a(f"buffer_load_dwordx4 v10, s[20:23], s50 offen lds")
            vm.issue(f"c{c}")
    HFR = 140
    def hload(kk, tag):
        a(f"s_add_u32 s50, s49, {kk*1024}")
        a(f"buffer_load_dwordx4 v[{HFR+4*kk}:{HFR+4*kk+3}], v11, s[32:35], s50 offen")
        vm.issue(tag)
    for c in range(4):
        dma(c)
        if c == 0:
            a(f"v_mul_u32_u24 v7, 7168, v{HF}")
            a(f"v_lshl_add_u32 v7, v{M}, 4, v7")
            a("s_lshl_b32 s50, s37, 9")
            a(f"s_add_u32 s50, s50, {WS_CS}")
            a(f"s_mov_b32 m0, {K3_CS}")
            a(f"buffer_load_dwordx4 v7, s[32:35], s50 offen lds")
            vm.issue("c0")
        for kk in range(4*c, 4*c+4): hload(kk, f"c{c}")
    for kk in range(16, 24): hload(kk, "c4")
    TM = 12
    a(f"v_and_b32 v7, 1, v{G}")
    a(f"v_lshrrev_b32 v8, 2, v{I16}")
    a(f"v_lshl_add_u32 v9, v8, 1, v7")
    a(f"v_lshl_add_u32 v8, v{HF}, 3, v8")
    a(f"v_lshlrev_b32 v8, 8, v8")
    a(f"v_lshl_add_u32 v8, v7, 14, v8")
    a(f"v_and_b32 v7, 3, v{I16}")
    a(f"v_lshl_add_u32 v8, v7, 3, v8")
    a(f"v_lshl_add_u32 v8, v9, 5, v8")
    for t in range(8):
        a(f"v_xor_b32 v{TM+t}, {t*32}, v8")
    def setbase(c):
        w = 20 + (c & 1) * 8
        for t in range(8):
            a(f"v_add_u32 v{w+t}, {K3_RING + (c % K3_NS)*K3_SLOT}, v{TM+t}")
    ACC = 256
    WF = 36
    SS, SQ = 100, 102
    for r in range(4): a(f"v_mov_b32 v{SS+r}, 0")
    def acc(t): return f"a[{16*t}:{16*t+15}]"
    def rd(kk, t, dst):
        c = kk // 4; w = 20 + (c & 1) * 8
        for e in range(2):
            a(f"ds_read_b64_tr_b16 v[{dst+2*e}:{dst+2*e+1}], v{w+t} offset:{(kk%4)*4096 + e*1024}")
    def stats(kk, r):
        x = HFR + 4*kk + r
        a(f"v_lshlrev_b32 v104, 16, v{x}")
        a(f"v_and_b32 v105, s41, v{x}")
        a(f"v_add_f32 v{SS}, v{SS}, v104")
        a(f"v_add_f32 v{SS+1}, v{SS+1}, v105")
        a(f"v_fmac_f32 v{SQ}, v104, v104")
        a(f"v_fmac_f32 v{SQ+1}, v105, v105")
    setbase(0)
    stamp(a, 2)
    vm.wait("c0")
    a("s_barrier")
    stamp(a, 3)
    for t in range(8): rd(0, t, WF + 4*t)
    NK = 20
    for kk in range(NK):
        nk = kk + 1
        cur = WF + (kk & 1) * 32; nxt = WF + (nk & 1) * 32
        if nk % 4 == 0:
            c = nk // 4
            setbase(c)
            vm.wait(f"c{c}")
            a("s_barrier")
            if c == 2:
                dma(4)
                for k2 in range(24, 28): hload(k2, "c5")
            if c == 3: dma(5)
            if c == 4: dma(6)
        for t in range(8):
            if nk < NK: rd(nk, t, nxt + 4*t)
            if nk < NK: a(f"s_waitcnt lgkmcnt(15)" if t < 7 else "s_waitcnt lgkmcnt(15)")
            else: a(f"s_waitcnt lgkmcnt({(7-t)*2})")
            c_ = "0" if kk == 0 else acc(t)
            a(f"v_mfma_f32_32x32x16_bf16 {acc(t)}, v[{cur+4*t}:{cur+4*t+3}], v[{HFR+4*kk}:{HFR+4*kk+3}], {c_}")
            if t % 2 == 0: stats(kk, t // 2)
    stamp(a, 4)
    setbase(6)
    vm.wait("c6")
    a("s_barrier")
    stamp(a, 5)
    for k2 in range(8): rd(20 + k2, 0, WF + 4*k2)
    for kk in range(20, 28):
        for r in range(4): stats(kk, r)
    a(f"v_add_f32 v{SS}, v{SS}, v{SS+1}")
    a(f"v_add_f32 v{SQ}, v{SQ}, v{SQ+1}")
    xhalf(a, "v_add_f32", SS, SS, 104, 105)
    xhalf(a, "v_add_f32", SQ, SQ, 104, 105)
    NM, RS, SD, NSC = 106, 107, 108, 109
    stats_finish(a, SS, SQ, NM, RS, SD)
    a(f"v_mul_f32 v{NSC}, 0xbfb8aa3b, v{RS}")
    a(f"v_lshlrev_b32 v110, 4, v{HF}")
    a("s_mul_i32 s50, s48, 114688")
    a("s_lshl_b32 s51, s37, 13")
    a("s_add_u32 s50, s50, s51")
    a(f"s_add_u32 s50, s50, {WS_HH}")
    CSV = 112
    EP = 128
    def epilogue(t, mf):
        ops = []
        for q in range(2):
            ops.append(f"ds_read_b128 v[{CSV+4*q}:{CSV+4*q+3}], v110 offset:{K3_CS + t*64 + q*32}")
            ops.append(f"ds_read_b128 v[{CSV+8+4*q}:{CSV+8+4*q+3}], v110 offset:{K3_CS + 512 + t*64 + q*32}")
        return ops
    for t in range(9):
        cur = WF + (t & 1) * 32; nxt = WF + ((t + 1) & 1) * 32
        ep = []
        if t >= 1:
            tt = t - 1
            for o in epilogue(tt, None): a(o)
        if t + 1 < 8:
            for k2 in range(8): rd(20 + k2, t + 1, nxt + 4*k2)
        a(f"s_waitcnt lgkmcnt({15 if t + 1 < 8 else 0})")
        if t + 1 < 8 and t >= 1:
            pass
        if t >= 1:
            tt = t - 1
            for r in range(8):
                g_, u_ = EP + (r & 1) * 2, EP + (r & 1) * 2 + 1
                ep.append([
                    f"v_accvgpr_read_b32 v{g_}, a{16*tt+r}",
                    f"v_accvgpr_read_b32 v{u_}, a{16*tt+8+r}",
                    f"v_fmac_f32 v{g_}, v{CSV+r}, v{NM}",
                    f"v_fmac_f32 v{u_}, v{CSV+8+r}, v{NM}",
                    f"v_mul_f32 v{g_}, v{NSC}, v{g_}",
                    f"v_exp_f32 v{g_}, v{g_}",
                    f"v_mul_f32 v{u_}, v{RS}, v{u_}",
                    f"v_add_f32 v{g_}, 1.0, v{g_}",
                    f"v_rcp_f32 v{g_}, v{g_}",
                    f"v_mul_f32 v{EP+4+(r&1)}, v{u_}, v{g_}"] +
                    ([f"v_cvt_pk_bf16_f32 v{EP+8+(r>>1)}, v{EP+4}, v{EP+5}"] if r & 1 else []))
        for k2 in range(8):
            if t < 8:
                a(f"v_mfma_f32_32x32x16_bf16 {acc(t)}, v[{cur+4*k2}:{cur+4*k2+3}], v[{HFR+4*(20+k2)}:{HFR+4*(20+k2)+3}], {acc(t)}")
            if ep:
                for o in ep[k2]: a(o)
        if t >= 1:
            a(f"buffer_store_dwordx4 v[{EP+8}:{EP+11}], v11, s[32:35], s50 offen offset:{((t-1)&3)*1024}")
            if t == 4: a("s_add_u32 s50, s50, 4096")
    if STAMPS: a("s_waitcnt vmcnt(0)")
    stamp(a, 9)
    stamp_flush(a, 38, 32, 2)
    a("K3_END:")
    a("s_endpgm")
    a.fix_hazards()
    k = kd("k3_kernel", 256).replace("next_free_vgpr 256", "next_free_vgpr 384")
    return a.text(), k

K4_WREG = 40960
K4_LDS = 4 * K4_WREG

def gen_k4():
    a = Asm()
    head(a, "k4_kernel")
    a("s_cmp_ge_u32 s2, 224")
    a("s_cbranch_scc1 K4_END")
    stamp_init(a); stamp(a, 0, real=True); stamp(a, 1)
    a("s_load_dwordx4 s[8:11], s[0:1], 56")
    a("s_load_dwordx2 s[14:15], s[0:1], 80")
    LANE, M, HF, I16, G = 1, 2, 3, 4, 5
    a(f"v_and_b32 v{LANE}, 63, v0")
    a(f"v_lshrrev_b32 v6, 6, v0")
    a(f"v_readfirstlane_b32 s38, v6")
    a(f"v_and_b32 v{M}, 31, v{LANE}")
    a(f"v_lshrrev_b32 v{HF}, 5, v{LANE}")
    a(f"v_and_b32 v{I16}, 15, v{LANE}")
    a(f"v_lshrrev_b32 v{G}, 4, v{LANE}")
    a("s_mov_b32 s41, 0xffff0000")
    a("s_mul_i32 s36, s2, 9363")
    a("s_lshr_b32 s36, s36, 16")
    a("s_mul_i32 s37, s36, 7")
    a("s_sub_u32 s37, s2, s37")
    a(f"v_lshrrev_b32 v7, 3, v{LANE}")
    a(f"v_and_b32 v8, 7, v{LANE}")
    a(f"v_lshrrev_b32 v9, 1, v7")
    a(f"v_and_b32 v9, 1, v9")
    a(f"v_lshlrev_b32 v9, 2, v9")
    a(f"v_xor_b32 v8, v8, v9")
    a(f"v_mul_u32_u24 v7, 896, v7")
    a(f"v_lshl_add_u32 v10, v8, 4, v7")
    a(f"v_lshlrev_b32 v11, 4, v{LANE}")
    a("s_waitcnt lgkmcnt(0)")
    srd(a, 20, 8, 1605632)
    srd(a, 24, 10, 1835008)
    srd(a, 32, 14, WS_SIZE)
    a("s_mul_i32 s46, s38, 401408")
    a("s_lshl_b32 s47, s37, 7")
    a("s_add_u32 s46, s46, s47")
    a(f"s_mul_i32 s47, s38, {K4_WREG}")
    a("s_mul_i32 s48, s36, 229376")
    a("s_mul_i32 s49, s38, 28672")
    a("s_add_u32 s48, s48, s49")
    a(f"s_add_u32 s48, s48, {WS_HH}")
    vm = VM(a)
    HH = 28
    def dma(ks):
        for i in range(2):
            a(f"s_add_u32 m0, s47, {(ks % 20)*2048 + i*1024}")
            a(f"s_add_u32 s50, s46, {(ks*16 + i*8)*896}")
            a(f"buffer_load_dwordx4 v10, s[20:23], s50 offen lds")
            vm.issue(f"k{ks}")
    def hload(ks):
        for m2 in range(2):
            a(f"s_add_u32 s50, s48, {m2*114688 + ks*1024}")
            a(f"buffer_load_dwordx4 v[{HH+8*ks+4*m2}:{HH+8*ks+4*m2+3}], v11, s[32:35], s50 offen")
            vm.issue(f"k{ks}")
    PRE = 15
    for ks in range(PRE):
        dma(ks); hload(ks)
    a(f"v_lshrrev_b32 v7, 2, v{I16}")
    a(f"v_lshl_add_u32 v8, v{HF}, 2, v7")
    a(f"v_lshrrev_b32 v7, 1, v7")
    a(f"v_lshlrev_b32 v7, 3, v7")
    a(f"v_and_b32 v9, 1, v{G}")
    a(f"v_lshl_add_u32 v7, v9, 2, v7")
    a(f"v_and_b32 v9, 3, v{I16}")
    a(f"v_add_u32 v7, v7, v9")
    a(f"v_lshlrev_b32 v7, 3, v7")
    a(f"v_lshl_add_u32 v7, v8, 7, v7")
    a(f"v_add_u32 v12, s47, v7")
    a(f"v_xor_b32 v13, 64, v12")
    WF = 14
    def acc(n2, m2): return f"a[{32*n2+16*m2}:{32*n2+16*m2+15}]"
    def wf(ks, n2):
        b = 64 + (ks & 1) * 8 + 4 * n2
        return b
    def rd(ks):
        for n2 in range(2):
            b = wf(ks, n2)
            for e in range(2):
                a(f"ds_read_b64_tr_b16 a[{b+2*e}:{b+2*e+1}], v{12+n2} offset:{(ks % 20)*2048 + e*1024}")
    stamp(a, 2)
    vm.wait("k0")
    stamp(a, 3)
    rd(0)
    for ks in range(28):
        if ks + 1 < 28:
            vm.wait(f"k{ks+1}")
            rd(ks + 1)
            a("s_waitcnt lgkmcnt(4)")
        else:
            a("s_waitcnt lgkmcnt(0)")
        for n2 in range(2):
            for m2 in range(2):
                b = wf(ks, n2)
                c_ = "0" if ks == 0 else acc(n2, m2)
                a(f"v_mfma_f32_32x32x16_bf16 {acc(n2,m2)}, a[{b}:{b+3}], v[{HH+8*ks+4*m2}:{HH+8*ks+4*m2+3}], {c_}")
        nk = ks + PRE
        if nk < 28:
            dma(nk); hload(nk)
    stamp(a, 4)
    a("s_lshl_b32 s50, s36, 1")
    a("s_mul_i32 s50, s50, 28")
    a("s_lshl_b32 s51, s37, 2")
    a("s_add_u32 s50, s50, s51")
    a("s_add_u32 s50, s50, s38")
    a("s_lshl_b32 s50, s50, 10")
    a(f"s_add_u32 s50, s50, {WS_HF}")
    a(f"v_mul_u32_u24 v7, 28672, v{HF}")
    a(f"v_lshl_add_u32 v7, v{M}, 4, v7")
    a(f"buffer_load_dwordx4 v[14:17], v7, s[32:35], s50 offen")
    a(f"buffer_load_dwordx4 v[18:21], v7, s[32:35], s50 offen offset:512")
    a(f"v_mul_u32_u24 v7, 272, v{M}")
    a(f"v_lshl_add_u32 v7, v{HF}, 4, v7")
    a(f"v_add_u32 v7, s47, v7")
    for n2 in range(2):
        for m2 in range(2):
            for q in range(4):
                b = 32*n2 + 16*m2 + 4*q
                a(f"ds_write_b128 v7, a[{b}:{b+3}] offset:{m2*32*272 + n2*128 + q*32}")
    a("s_waitcnt lgkmcnt(0)")
    a("s_barrier")
    stamp(a, 5)
    a(f"v_mul_u32_u24 v7, 272, v{LANE}")
    a("s_lshl_b32 s50, s38, 6")
    a(f"v_add_u32 v7, s50, v7")
    a(f"v_add_u32 v8, {2*K4_WREG}, v7")
    for w in range(4):
        for e in range(4):
            base = 7 if w < 2 else 8
            a(f"ds_read_b128 v[{28+16*w+4*e}:{28+16*w+4*e+3}], v{base} offset:{(w&1)*K4_WREG + e*16}")
    a("s_waitcnt lgkmcnt(0)")
    for j in range(16):
        a(f"v_add_f32 v{28+j}, v{28+j}, v{44+j}")
        a(f"v_add_f32 v{60+j}, v{60+j}, v{76+j}")
    for j in range(16):
        a(f"v_add_f32 v{28+j}, v{28+j}, v{60+j}")
    a("s_waitcnt vmcnt(0)")
    for i in range(8):
        a(f"v_cvt_pk_bf16_f32 v44, v{28+2*i}, v{28+2*i+1}")
        a(f"v_lshlrev_b32 v45, 16, v44")
        a(f"v_and_b32 v46, s41, v44")
        a(f"v_lshlrev_b32 v47, 16, v{14+i}")
        a(f"v_and_b32 v48, s41, v{14+i}")
        a(f"v_add_f32 v45, v45, v47")
        a(f"v_add_f32 v46, v46, v48")
        a(f"v_cvt_pk_bf16_f32 v{60+i}, v45, v46")
    a("s_lshl_b32 s50, s36, 6")
    a(f"v_add_u32 v7, s50, v{LANE}")
    a(f"v_mul_u32_u24 v7, 896, v7")
    a("s_lshl_b32 s50, s37, 7")
    a("s_lshl_b32 s51, s38, 5")
    a("s_add_u32 s50, s50, s51")
    a(f"buffer_store_dwordx4 v[60:63], v7, s[24:27], s50 offen")
    a(f"buffer_store_dwordx4 v[64:67], v7, s[24:27], s50 offen offset:16")
    if STAMPS: a("s_waitcnt vmcnt(0)")
    stamp(a, 9)
    stamp_flush(a, 38, 32, 3)
    a("K4_END:")
    a("s_endpgm")
    a.fix_hazards()
    k = kd("k4_kernel", 256).replace("next_free_vgpr 256", "next_free_vgpr 336")
    return a.text(), k

def kernels():
    return [("k3", gen_k3, 224, 256, K3_LDS), ("k4", gen_k4, 224, 256, K4_LDS)]
```

```python
import sys
from asmfw import Asm

WS_KV   = 0
WS_CS   = 512 * 1024
WS_PHIQ = 1 << 20
WS_H    = 8 << 20
WS_HH   = 16 << 20
WS_SIZE = 268435456
LOG2E = 0x3fb8aa3b

class VM:
    def __init__(self, a): self.a = a; self.ops = []
    def issue(self, tag): self.ops.append(tag)
    def wait(self, tag, extra=0):
        idx = max(i for i, t in enumerate(self.ops) if t == tag)
        n = len(self.ops) - 1 - idx + extra
        assert n <= 63
        self.a("s_waitcnt vmcnt(%d)" % n)
    def copy(self):
        v = VM(self.a); v.ops = list(self.ops); return v

def srd(a, d, ptr, size):
    a(f"s_mov_b32 s{d}, s{ptr}")
    a(f"s_mov_b32 s{d+1}, s{ptr+1}")
    a(f"s_mov_b32 s{d+2}, {size}")
    a(f"s_mov_b32 s{d+3}, 0x00020000")

def bf16r(a, dst, src, tmp=None):
    a(f"v_cvt_pk_bf16_f32 v{dst}, v{src}, v{src}")
    a(f"v_and_b32 v{dst}, 0xffff0000, v{dst}")

def xhalf(a, op, dst, src, t1, t2):
    a(f"v_mov_b32 v{t1}, v{src}")
    a(f"v_mov_b32 v{t2}, v{src}")
    a(f"v_permlane32_swap_b32 v{t1}, v{t2}")
    a(f"{op} v{dst}, v{t1}, v{t2}")

def ln_stats_finish(a, vs, vq, v_mr, v_rstd, t1, t2, t3):
    xhalf(a, "v_add_f32", vs, vs, t1, t2)
    xhalf(a, "v_add_f32", vq, vq, t1, t2)
    a(f"v_mul_f32 v{vs}, 0x3b124925, v{vs}")
    a(f"v_mul_f32 v{vq}, 0x3b124925, v{vq}")
    a(f"v_fma_f32 v{vq}, -v{vs}, v{vs}, v{vq}")
    a(f"v_max_f32 v{vq}, 0, v{vq}")
    bf16r(a, vs, vs)
    bf16r(a, vq, vq)
    a(f"v_add_f32 v{vq}, 0x3727c5ac, v{vq}")
    bf16r(a, vq, vq)
    a(f"v_sqrt_f32 v{vq}, v{vq}")
    bf16r(a, vq, vq)
    a(f"v_rcp_f32 v{v_rstd}, v{vq}")
    a(f"v_mul_f32 v{v_mr}, v{vs}, v{v_rstd}")

def softmax_pm(a, P, E, F, OP, ON, T, s_hi, SC, OSC=None):
    for r in range(12, 16):
        a(f"v_cndmask_b32 v{P+r}, v{P+r}, v{P}, s[{s_hi}:{s_hi+1}]")
    mx, mn, t1, t2, se, sf = T, T+1, T+2, T+3, T+4, T+5
    a(f"v_max3_f32 v{mx}, v{P}, v{P+1}, v{P+2}")
    a(f"v_min3_f32 v{mn}, v{P}, v{P+1}, v{P+2}")
    for r in range(3, 15, 2):
        a(f"v_max3_f32 v{mx}, v{mx}, v{P+r}, v{P+r+1}")
        a(f"v_min3_f32 v{mn}, v{mn}, v{P+r}, v{P+r+1}")
    a(f"v_max_f32 v{mx}, v{mx}, v{P+15}")
    a(f"v_min_f32 v{mn}, v{mn}, v{P+15}")
    a(f"v_mov_b32 v{t1}, v{mx}")
    a(f"v_mov_b32 v{se}, v{mn}")
    a(f"v_permlane32_swap_b32 v{t1}, v{mx}")
    a(f"v_permlane32_swap_b32 v{se}, v{mn}")
    a(f"v_max_f32 v{mx}, v{t1}, v{mx}")
    a(f"v_min_f32 v{mn}, v{se}, v{mn}")
    a(f"v_mul_f32 v{mx}, v{SC}, v{mx}")
    a(f"v_mul_f32 v{mn}, v{SC}, v{mn}")
    for r in range(16):
        a(f"v_fma_f32 v{E+r}, v{P+r}, v{SC}, -v{mx}")
        a(f"v_fma_f32 v{F+r}, -v{P+r}, v{SC}, v{mn}")
        if r >= 1:
            a(f"v_exp_f32 v{E+r-1}, v{E+r-1}")
            a(f"v_exp_f32 v{F+r-1}, v{F+r-1}")
    a(f"v_exp_f32 v{E+15}, v{E+15}")
    a(f"v_exp_f32 v{F+15}, v{F+15}")
    a(f"v_add_f32 v{se}, v{E}, v{E+1}")
    a(f"v_add_f32 v{sf}, v{F}, v{F+1}")
    a(f"v_add_f32 v{t1}, v{E+2}, v{E+3}")
    a(f"v_add_f32 v{t2}, v{F+2}, v{F+3}")
    for r in range(4, 12, 2):
        a(f"v_add_f32 v{se}, v{se}, v{E+r}")
        a(f"v_add_f32 v{sf}, v{sf}, v{F+r}")
        a(f"v_add_f32 v{t1}, v{t1}, v{E+r+1}")
        a(f"v_add_f32 v{t2}, v{t2}, v{F+r+1}")
    for r in range(12, 16):
        a(f"v_cndmask_b32 v{E+r}, v{E+r}, 0, s[{s_hi}:{s_hi+1}]")
        a(f"v_cndmask_b32 v{F+r}, v{F+r}, 0, s[{s_hi}:{s_hi+1}]")
    for r in range(12, 16, 2):
        a(f"v_add_f32 v{se}, v{se}, v{E+r}")
        a(f"v_add_f32 v{sf}, v{sf}, v{F+r}")
        a(f"v_add_f32 v{t1}, v{t1}, v{E+r+1}")
        a(f"v_add_f32 v{t2}, v{t2}, v{F+r+1}")
    a(f"v_add_f32 v{se}, v{se}, v{t1}")
    a(f"v_add_f32 v{sf}, v{sf}, v{t2}")
    a(f"v_mov_b32 v{t1}, v{se}")
    a(f"v_mov_b32 v{t2}, v{sf}")
    a(f"v_permlane32_swap_b32 v{t1}, v{se}")
    a(f"v_permlane32_swap_b32 v{t2}, v{sf}")
    a(f"v_add_f32 v{se}, v{t1}, v{se}")
    a(f"v_add_f32 v{sf}, v{t2}, v{sf}")
    a(f"v_rcp_f32 v{se}, v{se}")
    a(f"v_rcp_f32 v{sf}, v{sf}")
    if OSC is not None:
        a(f"v_mul_f32 v{se}, v{se}, v{OSC}")
        a(f"v_mul_f32 v{sf}, v{sf}, v{OSC}")
    for i in range(8):
        a(f"v_mul_f32 v{E+2*i}, v{E+2*i}, v{se}")
        a(f"v_mul_f32 v{E+2*i+1}, v{E+2*i+1}, v{se}")
        a(f"v_cvt_pk_bf16_f32 v{OP+i}, v{E+2*i}, v{E+2*i+1}")
    for i in range(8):
        a(f"v_mul_f32 v{F+2*i}, v{F+2*i}, v{sf}")
        a(f"v_mul_f32 v{F+2*i+1}, v{F+2*i+1}, v{sf}")
        a(f"v_cvt_pk_bf16_f32 v{ON+i}, v{F+2*i}, v{F+2*i+1}")

def stats_finish(a, vs, vq, v_nmean, v_rstd, v_sd):
    a(f"v_mul_f32 v{vs}, 0x3b124925, v{vs}")
    a(f"v_mul_f32 v{vq}, 0x3b124925, v{vq}")
    a(f"v_fma_f32 v{vq}, -v{vs}, v{vs}, v{vq}")
    a(f"v_max_f32 v{vq}, 0, v{vq}")
    a(f"v_cvt_pk_bf16_f32 v{vs}, v{vq}, v{vs}")
    a(f"v_lshlrev_b32 v{vq}, 16, v{vs}")
    a(f"v_and_b32 v{vs}, 0xffff0000, v{vs}")
    a(f"v_add_f32 v{vq}, 0x3727c5ac, v{vq}")
    a(f"v_xor_b32 v{v_nmean}, 0x80000000, v{vs}")
    bf16r(a, vq, vq)
    a(f"v_sqrt_f32 v{vq}, v{vq}")
    bf16r(a, v_sd, vq)
    a(f"v_rcp_f32 v{v_rstd}, v{v_sd}")

def kd(name, vgpr, sgpr=96):
    acc = (vgpr + 3) // 4 * 4
    return f""".p2align 6
.amdhsa_kernel {name}
  .amdhsa_next_free_vgpr {vgpr}
  .amdhsa_next_free_sgpr {sgpr}
  .amdhsa_accum_offset {min(acc,256)}
  .amdhsa_group_segment_fixed_size 0
  .amdhsa_kernarg_size 88
  .amdhsa_user_sgpr_count 2
  .amdhsa_user_sgpr_kernarg_segment_ptr 1
  .amdhsa_system_sgpr_workgroup_id_x 1
.end_amdhsa_kernel"""

WS_STAMP = 64 << 20
import os
STAMPS = bool(int(os.environ.get("STAMPS", "0")))
def stamp(a, idx, real=False):
    if not STAMPS: return
    a(f"s_memrealtime s[{70+2*idx}:{71+2*idx}]" if real else f"s_memtime s[{70+2*idx}:{71+2*idx}]")

def stamp_init(a):
    if not STAMPS: return
    for i in range(70, 90): a(f"s_mov_b32 s{i}, 0")

def stamp_flush(a, s_wave, ws_srd, koff=0):
    if not STAMPS: return
    a("s_waitcnt lgkmcnt(0)")
    a("s_lshl_b32 s90, s2, 3")
    a(f"s_add_u32 s90, s90, s{s_wave}")
    a("s_lshl_b32 s90, s90, 6")
    a(f"s_add_u32 s90, s90, {WS_STAMP + koff*(1<<20)}")
    a("v_mov_b32 v1, s90")
    for i in range(10):
        a(f"v_mov_b32 v0, s{70+2*i}")
        a(f"buffer_store_dword v0, v1, s[{ws_srd}:{ws_srd+3}], 0 offen offset:{i*4}")

def head(a, name):
    a.raw(f".globl {name}\n.p2align 8\n.type {name},@function")
    a(f"{name}:")

K1_CS   = 0
K1_SQ   = 512
K1_SM   = 1024
K1_WP   = 1536
K1_RING = 3584
K1_SLOT = 28672
K1_LDS  = K1_RING + 5 * K1_SLOT
K1_PHIK = K1_RING
K1_V    = K1_PHIK + 16384

def gen_k1():
    a = Asm()
    head(a, "k1_kernel")
    a("s_cmp_ge_u32 s2, 256")
    a("s_cbranch_scc1 K1_END")
    stamp_init(a)
    stamp(a, 0, real=True)
    stamp(a, 1)
    a("s_load_dwordx4 s[4:7], s[0:1], 0")
    a("s_load_dwordx2 s[8:9], s[0:1], 16")
    a("s_load_dwordx4 s[12:15], s[0:1], 72")
    LANE, M, HF, I16, G = 1, 2, 3, 4, 5
    a(f"v_and_b32 v{LANE}, 63, v0")
    a(f"v_lshrrev_b32 v6, 6, v0")
    a(f"v_readfirstlane_b32 s38, v6")
    a(f"v_and_b32 v{M}, 31, v{LANE}")
    a(f"v_lshrrev_b32 v{HF}, 5, v{LANE}")
    a(f"v_and_b32 v{I16}, 15, v{LANE}")
    a(f"v_lshrrev_b32 v{G}, 4, v{LANE}")
    a("s_and_b32 s36, s2, 15")
    a("s_lshr_b32 s37, s2, 4")
    a("s_and_b32 s39, s38, 3")
    a("s_lshr_b32 s40, s38, 2")
    a("s_mov_b32 s42, 0")
    a("s_mov_b32 s43, -1")
    a(f"s_mov_b32 s44, {LOG2E}")
    a("s_mov_b32 s45, 0x3f803f80")
    a("s_mov_b32 s41, 0xffff0000")
    a("s_cmp_eq_u32 s40, 1")
    a("s_cbranch_scc1 K1_Q")

    PAT = 30
    def common_setup_early():
        a("s_waitcnt lgkmcnt(0)")
        srd(a, 16, 4, 1835008)
        srd(a, 20, 6, 1204224)
        srd(a, 24, 8, 25088)
        srd(a, 28, 12, 256)
        srd(a, 32, 14, WS_SIZE)
    XV = 200; TB = 212
    def common_setup_late():
        a("v_lshlrev_b32 v7, 2, v0")
        a("v_mov_b32 v8, 0")
        a("v_cmp_gt_u32 vcc, 256, v0")
        a("s_and_saveexec_b64 s[54:55], vcc")
        a(f"ds_write_b32 v7, v8 offset:{K1_CS}")
        a("s_mov_b64 exec, s[54:55]")
        a(f"v_lshrrev_b32 v7, 2, v{I16}")
        a(f"v_lshl_add_u32 v7, v{HF}, 3, v7")
        a(f"v_mul_u32_u24 v7, 192, v7")
        a(f"v_and_b32 v8, 1, v{G}")
        a(f"v_lshlrev_b32 v8, 2, v8")
        a(f"v_and_b32 v9, 3, v{I16}")
        a(f"v_add_u32 v8, v8, v9")
        a(f"v_lshl_add_u32 v7, v8, 3, v7")
        a("s_and_b32 s50, s37, 1")
        a("s_lshl_b32 s50, s50, 3")
        a(f"s_add_u32 s50, s50, {K1_RING + 16384}")
        a(f"v_add_u32 v10, s50, v7")
        a("s_lshl_b32 s50, s39, 5")
        a(f"v_add_u32 v7, s50, v{M}")
        a(f"v_lshrrev_b32 v8, 1, v7")
        a(f"v_and_b32 v8, 7, v8")
        a(f"v_xor_b32 v8, v8, v{HF}")
        a(f"v_lshlrev_b32 v8, 4, v8")
        a(f"v_lshl_add_u32 v11, v7, 7, v8")
        for p in range(4):
            a(f"s_add_u32 s50, s39, {p}")
            a("s_and_b32 s50, s50, 3")
            a("s_lshl_b32 s51, s50, 5")
            a("s_mul_i32 s50, s50, 3072")
            a(f"v_xor_b32 v7, s51, v11")
            for st in range(3):
                a(f"v_add_u32 v{XV+4*st+p}, {K1_RING + 2*st*K1_SLOT}, v7")
            a(f"v_add_u32 v{TB+p}, s50, v10")
            for st in range(1, 3):
                a(f"v_add_u32 v{TB+4*st+p}, {2*st*K1_SLOT}, v{TB+p}")

    LA = 2
    def mainloop(segs, ACC, XFb, WF, CS, SQ, qrole, vm, dma):
        ns = len(segs)
        NB = LA + 1
        for ac in ACC:
            for r in range(16): a(f"v_mov_b32 v{ac+r}, 0")
        for i in range(ns): a(f"v_mov_b32 v{CS+i}, 0")
        a(f"v_mov_b32 v{SQ}, 0"); a(f"v_mov_b32 v{SQ+1}, 0")
        nr = 1 + 2 * ns
        def reads(kk):
            c = kk // 4; slot = c % 5; p = kk % 4
            st = slot // 2; so = slot % 2
            xb = XFb + (kk % NB) * 4
            a(f"ds_read_b128 v[{xb}:{xb+3}], v{XV+4*st+p} offset:{so*K1_SLOT}")
            b = WF + (kk % NB) * ns * 4
            for i, sg in enumerate(segs):
                off = so * K1_SLOT + sg * 64
                a(f"ds_read_b64_tr_b16 v[{b+4*i}:{b+4*i+1}], v{TB+4*st+p} offset:{off}")
                a(f"ds_read_b64_tr_b16 v[{b+4*i+2}:{b+4*i+3}], v{TB+4*st+p} offset:{off+768}")
        stamp(a, 2)
        vm.wait("c0")
        a("s_barrier")
        stamp(a, 3)
        for kk in range(LA): reads(kk)
        for kk in range(28):
            nk = kk + LA
            if nk < 28:
                if nk % 4 == 0:
                    c = nk // 4
                    vm.wait(f"c{c}")
                    a("s_barrier")
                    if c in (2, 4): stamp(a, 3 + c // 2)
                    if c in (2, 3): dma(c + 3)
                reads(nk)
            out = min(28 - 1 - kk, LA) * nr
            a(f"s_waitcnt lgkmcnt({out})")
            b = WF + (kk % NB) * ns * 4
            xb = XFb + (kk % NB) * 4
            if qrole:
                for r in range(4):
                    a(f"v_cndmask_b32 v{qrole+r}, v{b+r}, v{qrole+4}, s[52:53]")
                a(f"v_lshlrev_b32 v10, 16, v{xb}")
                a(f"v_and_b32 v11, s41, v{xb}")
                a(f"v_mfma_f32_32x32x16_bf16 v[{ACC[0]}:{ACC[0]+15}], v[{qrole}:{qrole+3}], v[{xb}:{xb+3}], v[{ACC[0]}:{ACC[0]+15}]")
                a(f"v_fmac_f32 v{SQ}, v10, v10")
                a(f"v_fmac_f32 v{SQ+1}, v11, v11")
                a(f"v_lshlrev_b32 v10, 16, v{xb+1}")
                a(f"v_and_b32 v11, s41, v{xb+1}")
                a(f"v_fmac_f32 v{SQ}, v10, v10")
                a(f"v_fmac_f32 v{SQ+1}, v11, v11")
            else:
                for i in range(ns):
                    a(f"v_mfma_f32_32x32x16_bf16 v[{ACC[i]}:{ACC[i]+15}], v[{b+4*i}:{b+4*i+3}], v[{xb}:{xb+3}], v[{ACC[i]}:{ACC[i]+15}]")
                    a(f"v_lshlrev_b32 v10, 16, v{xb+2+i}")
                    a(f"v_and_b32 v11, s41, v{xb+2+i}")
                    a(f"v_fmac_f32 v{SQ}, v10, v10")
                    a(f"v_fmac_f32 v{SQ+1}, v11, v11")
            if kk % 4 == 0:
                for i in range(ns):
                    for r in range(4):
                        a(f"v_lshlrev_b32 v10, 16, v{b+4*i+r}")
                        a(f"v_and_b32 v11, s41, v{b+4*i+r}")
                        a(f"v_add_f32 v{CS+i}, v{CS+i}, v10")
                        a(f"v_add_f32 v{CS+i}, v{CS+i}, v11")
        stamp(a, 6)
        a(f"v_lshlrev_b32 v7, 2, v{M}")
        for i, sg in enumerate(segs):
            a(f"ds_add_f32 v7, v{CS+i} offset:{K1_CS + sg*128}")
        a(f"v_add_f32 v{SQ}, v{SQ}, v{SQ+1}")
        a("s_lshl_b32 s50, s39, 7")
        a(f"v_add_u32 v9, s50, v7")
        a(f"ds_add_f32 v9, v{SQ} offset:{K1_SQ}")

    def post_reads(segs, dsts, WPF, ST):
        a(f"v_lshlrev_b32 v8, 4, v{HF}")
        a(f"ds_read_b32 v{ST}, v9 offset:{K1_SM}")
        a(f"ds_read_b32 v{ST+1}, v9 offset:{K1_SQ}")
        for sg, dst in zip(segs, dsts):
            for q in range(4):
                a(f"ds_read_b128 v[{dst+4*q}:{dst+4*q+3}], v8 offset:{K1_CS + sg*128 + q*32}")
        for s_ in range(2):
            for e in range(2):
                a(f"ds_read_b64_tr_b16 v[{WPF+4*s_+2*e}:{WPF+4*s_+2*e+1}], v12 offset:{K1_WP + (16*s_+8*e)*56}")

    def wp_addr():
        a(f"v_lshrrev_b32 v7, 2, v{I16}")
        a(f"v_lshl_add_u32 v7, v{HF}, 2, v7")
        a(f"v_mul_u32_u24 v7, 56, v7")
        a(f"v_and_b32 v8, 1, v{G}")
        a(f"v_lshlrev_b32 v8, 2, v8")
        a(f"v_and_b32 v9, 3, v{I16}")
        a(f"v_add_u32 v8, v8, v9")
        a(f"v_lshl_add_u32 v12, v8, 3, v7")

    def center_pack(ACC, CSV, NM, OUT):
        for i in range(8):
            a(f"v_fmac_f32 v{ACC+2*i}, v{CSV+2*i}, v{NM}")
            a(f"v_fmac_f32 v{ACC+2*i+1}, v{CSV+2*i+1}, v{NM}")
            a(f"v_cvt_pk_bf16_f32 v{OUT+i}, v{ACC+2*i}, v{ACC+2*i+1}")

    vmk = VM(a)
    for t in range(3):
        a(f"v_add_u32 v7, {t*64}, v{LANE}")
        a(f"v_mul_u32_u24 v8, 171, v7")
        a(f"v_lshrrev_b32 v8, 11, v8")
        a(f"v_mul_u32_u24 v9, 12, v8")
        a(f"v_sub_u32 v9, v7, v9")
        a(f"v_mul_u32_u24 v8, 2688, v8")
        a(f"v_lshrrev_b32 v7, 2, v9")
        a(f"v_mul_u32_u24 v7, 896, v7")
        a(f"v_and_b32 v9, 3, v9")
        a(f"v_lshlrev_b32 v9, 4, v9")
        a(f"v_add3_u32 v{PAT+t}, v7, v8, v9")
    a("s_mul_i32 s47, s37, 56")
    a("s_and_b32 s47, s47, 0xfffffff0")
    a("s_mul_i32 s48, s39, 43008")
    a("s_add_u32 s47, s47, s48")
    a("s_mul_i32 s49, s39, 3072")
    common_setup_early()
    def dma_w(c):
        for t in range(3):
            a(f"s_add_u32 m0, s49, {K1_RING + (c%5)*K1_SLOT + 16384 + t*1024}")
            a(f"s_add_u32 s50, s47, {c*64*2688}")
            a(f"buffer_load_dwordx4 v{PAT+t}, s[20:23], s50 offen lds")
            vmk.issue(f"c{c}")
    dma_w(0)
    a("s_mul_i32 s50, s37, 1568")
    a("s_and_b32 s51, s39, 1")
    a("s_lshl_b32 s51, s51, 10")
    a("s_add_u32 s50, s50, s51")
    a(f"s_add_u32 m0, s51, {K1_WP}")
    a(f"v_lshlrev_b32 v7, 4, v{LANE}")
    a("buffer_load_dwordx4 v7, s[24:27], s50 offen lds")
    vmk.issue("c0")
    for c in range(1, 5): dma_w(c)
    common_setup_late()
    wp_addr()
    AK, AV = 100, 116
    mainloop([1, 2], [AK, AV], 34, 46, 70, 72, None, vmk, dma_w)
    a("s_waitcnt lgkmcnt(0)")
    a("s_barrier")
    stamp(a, 7)
    CK, CV = 34, 50
    post_reads([1, 2], [CK, CV], 92, 66)
    a("s_lshl_b32 s50, s37, 2")
    a("s_add_u32 s50, s50, 64")
    a("v_mov_b32 v13, s50")
    a("buffer_load_dword v14, v13, s[28:31], 0 offen sc1")
    a("s_lshl_b32 s50, s39, 5")
    a(f"v_add_u32 v7, s50, v{M}")
    a(f"v_lshrrev_b32 v8, 1, v7")
    a(f"v_and_b32 v8, 7, v8")
    a(f"v_xor_b32 v8, v8, v{HF}")
    a(f"v_lshlrev_b32 v8, 3, v8")
    a(f"v_lshl_add_u32 v74, v7, 6, v8")
    a(f"v_lshrrev_b32 v8, 1, v7")
    a(f"v_and_b32 v8, 1, v8")
    a(f"v_lshlrev_b32 v8, 3, v8")
    a(f"v_and_b32 v9, 1, v7")
    a(f"v_or_b32 v8, v8, v9")
    a(f"v_lshrrev_b32 v9, 2, v7")
    a(f"v_and_b32 v9, 3, v9")
    a(f"v_lshl_or_b32 v8, v9, 1, v8")
    a(f"v_xor_b32 v8, v8, v{HF}")
    a(f"v_lshlrev_b32 v8, 3, v8")
    a(f"v_lshl_add_u32 v75, v7, 7, v8")
    a("s_waitcnt lgkmcnt(12)")
    stats_finish(a, 66, 67, 68, 69, 70)
    a("s_waitcnt lgkmcnt(0)")
    KFR, VFR = 132, 140
    center_pack(AK, CK, 68, KFR)
    a(f"v_cndmask_b32 v{KFR+6}, v{KFR+6}, 0, s[42:43]")
    a(f"v_cndmask_b32 v{KFR+7}, v{KFR+7}, 0, s[42:43]")
    PK = 148
    a(f"v_mfma_f32_32x32x16_bf16 v[{PK}:{PK+15}], v[92:95], v[{KFR}:{KFR+3}], 0")
    a(f"v_mfma_f32_32x32x16_bf16 v[{PK}:{PK+15}], v[96:99], v[{KFR+4}:{KFR+7}], v[{PK}:{PK+15}]")
    center_pack(AV, CV, 68, VFR)
    a(f"v_lshrrev_b32 v9, 16, v70")
    a(f"v_mul_f32 v71, s44, v69")
    a(f"v_cndmask_b32 v{VFR+6}, v{VFR+6}, v9, s[42:43]")
    a(f"v_cndmask_b32 v{VFR+7}, v{VFR+7}, 0, s[42:43]")
    for q in range(4):
        a(f"v_xor_b32 v9, {q*16}, v74")
        a(f"ds_write_b64 v9, v[{VFR+2*q}:{VFR+2*q+1}] offset:{K1_V}")
    E, F, OP, ON, T = 164, 180, 34, 42, 50
    softmax_pm(a, PK, E, F, OP, ON, T, 42, 71, 69)
    for t, src in ((0, OP), (1, ON)):
        for q in range(4):
            a(f"v_xor_b32 v9, {(8*t+2*q)*8}, v75")
            a(f"ds_write_b64 v9, v[{src+2*q}:{src+2*q+1}] offset:{K1_PHIK}")
    a(f"v_lshrrev_b32 v7, 2, v{I16}")
    a(f"v_lshl_add_u32 v7, v{HF}, 3, v7")
    a(f"v_and_b32 v8, 1, v{G}")
    a(f"v_lshlrev_b32 v8, 2, v8")
    a(f"v_and_b32 v9, 3, v{I16}")
    a(f"v_add_u32 v8, v8, v9")
    for e in range(2):
        a(f"v_add_u32 v9, {4*e}, v7")
        a(f"v_lshrrev_b32 v10, 1, v9")
        a(f"v_xor_b32 v10, v10, v8")
        a(f"v_lshlrev_b32 v10, 3, v10")
        a(f"v_lshl_add_u32 v{70+e}, v9, 6, v10")
        a(f"v_lshrrev_b32 v10, 1, v9")
        a(f"v_and_b32 v10, 1, v10")
        a(f"v_lshlrev_b32 v10, 3, v10")
        a(f"v_and_b32 v11, 1, v9")
        a(f"v_or_b32 v10, v10, v11")
        a(f"v_lshrrev_b32 v11, 2, v9")
        a(f"v_lshl_or_b32 v10, v11, 1, v10")
        a(f"v_xor_b32 v10, v10, v8")
        a(f"s_lshl_b32 s50, s39, 3")
        a(f"v_xor_b32 v10, s50, v10")
        a(f"v_lshlrev_b32 v10, 3, v10")
        a(f"v_lshl_add_u32 v{72+e}, v9, 7, v10")
    a("s_lshl_b32 s50, s37, 13")
    a("s_lshl_b32 s51, s39, 7")
    a("s_add_u32 s50, s50, s51")
    a(f"v_lshlrev_b32 v7, 10, v{HF}")
    a(f"v_lshl_add_u32 v7, v{M}, 2, v7")
    a(f"v_add_u32 v7, s50, v7")
    a(f"v_add_u32 v8, 4096, v7")
    a("s_waitcnt lgkmcnt(0)")
    a("s_barrier")
    stamp(a, 8)
    a("s_cmp_ge_u32 s39, 2")
    a("s_cbranch_scc1 K1_FIN")
    KV = 16
    for ks in range(8):
        b = 100 + ks * 8
        for e in range(2):
            a(f"ds_read_b64_tr_b16 v[{b+2*e}:{b+2*e+1}], v{70+e} offset:{K1_V + ks*1024}")
        for e in range(2):
            a(f"ds_read_b64_tr_b16 v[{b+4+2*e}:{b+4+2*e+1}], v{72+e} offset:{K1_PHIK + ks*2048}")
    for ks in range(8):
        b = 100 + ks * 8
        a(f"s_waitcnt lgkmcnt({min(15, (7-ks)*4)})")
        c = "0" if ks == 0 else f"v[{KV}:{KV+15}]"
        a(f"v_mfma_f32_32x32x16_bf16 v[{KV}:{KV+15}], v[{b}:{b+3}], v[{b+4}:{b+7}], {c}")
    a("s_waitcnt vmcnt(0)")
    a("v_readfirstlane_b32 s51, v14")
    a("s_cmp_lg_u32 s51, 0")
    a("s_cbranch_scc1 K1_GO")
    a("K1_POLL:")
    a("buffer_load_dword v14, v13, s[28:31], 0 offen sc1")
    a("s_waitcnt vmcnt(0)")
    a("v_readfirstlane_b32 s51, v14")
    a("s_cmp_eq_u32 s51, 0")
    a("s_cbranch_scc1 K1_POLL")
    a("K1_GO:")
    a("s_nop 7")
    for r in range(16):
        d = (r & 3) + 8 * (r >> 2)
        off = d * 256
        base = 7
        if off >= 4096: off -= 4096; base = 8
        a(f"buffer_atomic_add_f32 v{KV+r}, v{base}, s[32:35], 0 offen offset:{WS_KV + off}")
    a("s_branch K1_FIN")

    a("K1_Q:")
    vmq = VM(a)
    a(f"v_lshrrev_b32 v7, 3, v{LANE}")
    a(f"v_and_b32 v8, 7, v{LANE}")
    a(f"v_lshrrev_b32 v9, 1, v7")
    a(f"v_xor_b32 v8, v8, v9")
    a(f"v_mul_u32_u24 v7, 896, v7")
    a(f"v_lshl_add_u32 v30, v8, 4, v7")
    a(f"v_xor_b32 v31, 64, v30")
    a("s_lshl_b32 s46, s36, 7")
    a("s_lshl_b32 s47, s39, 5")
    a("s_add_u32 s46, s46, s47")
    a("s_mul_i32 s47, s46, 896")
    a("s_lshl_b32 s49, s39, 12")
    common_setup_early()
    def dma_x(c):
        for i in range(4):
            a(f"s_add_u32 m0, s49, {K1_RING + (c%5)*K1_SLOT + i*1024}")
            a(f"s_add_u32 s50, s47, {i*8*896 + c*128}")
            a(f"buffer_load_dwordx4 v{30+(i&1)}, s[16:19], s50 offen lds")
            vmq.issue(f"c{c}")
    for c in range(5): dma_x(c)
    common_setup_late()
    wp_addr()
    a(f"v_cmp_eq_u32 s[52:53], 28, v{M}")
    a("v_mov_b32 v64, s45")
    a("s_or_b32 s51, s36, s39")
    a("s_cmp_lg_u32 s51, 0")
    a("s_cbranch_scc1 K1_Q2")
    a("s_lshl_b32 s50, s37, 13")
    a(f"v_lshl_add_u32 v7, v{LANE}, 4, s50")
    for r in range(4): a(f"v_mov_b32 v{34+r}, 0")
    a("v_add_u32 v8, 4096, v7")
    for i in range(4):
        a(f"buffer_store_dwordx4 v[34:37], v7, s[32:35], 0 offen offset:{WS_KV + i*1024} sc1")
        a(f"buffer_store_dwordx4 v[34:37], v8, s[32:35], 0 offen offset:{WS_KV + i*1024} sc1")
    a("s_waitcnt vmcnt(0)")
    a("s_lshl_b32 s50, s37, 2")
    a("s_add_u32 s50, s50, 64")
    a("v_mov_b32 v7, s50")
    a("v_mov_b32 v8, 1")
    a("s_mov_b64 exec, 1")
    a("buffer_store_dword v8, v7, s[28:31], 0 offen sc1")
    a("s_mov_b64 exec, -1")
    a("s_waitcnt vmcnt(0)")
    a("K1_Q2:")
    AQ = 100
    mainloop([0], [AQ], 34, 46, 70, 72, 60, vmq, dma_x)
    a("s_mov_b64 exec, s[42:43]")
    a(f"ds_write_b32 v9, v{AQ+12} offset:{K1_SM}")
    a("s_mov_b64 exec, -1")
    a("s_waitcnt lgkmcnt(0)")
    a("s_barrier")
    stamp(a, 7)
    CQ = 34
    post_reads([0], [CQ], 92, 66)
    a("s_waitcnt lgkmcnt(8)")
    stats_finish(a, 66, 67, 68, 69, 70)
    a("s_waitcnt lgkmcnt(0)")
    QFR = 132
    center_pack(AQ, CQ, 68, QFR)
    a(f"v_cndmask_b32 v{QFR+6}, v{QFR+6}, 0, s[42:43]")
    a(f"v_cndmask_b32 v{QFR+7}, v{QFR+7}, 0, s[42:43]")
    PQ = 148
    a(f"v_mfma_f32_32x32x16_bf16 v[{PQ}:{PQ+15}], v[92:95], v[{QFR}:{QFR+3}], 0")
    a(f"v_mfma_f32_32x32x16_bf16 v[{PQ}:{PQ+15}], v[96:99], v[{QFR+4}:{QFR+7}], v[{PQ}:{PQ+15}]")
    a(f"v_mul_f32 v71, s44, v69")
    a("s_lshl_b32 s50, s36, 2")
    a("s_add_u32 s50, s50, s39")
    a("s_lshl_b32 s50, s50, 4")
    a("s_add_u32 s50, s50, s37")
    a("s_lshl_b32 s50, s50, 12")
    a(f"s_add_u32 s50, s50, {WS_PHIQ}")
    a(f"v_lshlrev_b32 v7, 4, v{LANE}")
    softmax_pm(a, PQ, 164, 180, 36, 44, 52, 42, 71)
    for s_ in range(4):
        a(f"buffer_store_dwordx4 v[{36+4*s_}:{36+4*s_+3}], v7, s[32:35], s50 offen offset:{s_*1024}")
    stamp(a, 8)
    a("s_barrier")
    a("K1_FIN:")
    if STAMPS: a("s_waitcnt vmcnt(0)")
    stamp(a, 9)
    stamp_flush(a, 38, 32)
    a("K1_END:")
    a("s_endpgm")
    a.fix_hazards()
    return a.text(), kd("k1_kernel", 224)

def main():
    parts = []
    hdr = open("sequential_preLN__linear_kernel_hedgehog__glu_gated_glu__prompt.s.ref").read().split("; Override launch")[0]
    ks = [("k1", gen_k1, 256, 512, K1_LDS)]
    import gen2
    ks += gen2.kernels()
    out = [hdr.rstrip()]
    for nm, fn, g, b, lds in ks:
        out.append(f"; @launch kernel={nm}_kernel grid=({g},1,1) block=({b},1,1) lds={lds}")
    out.append('.amdgcn_target "amdgcn-amd-amdhsa--gfx950"')
    out.append(".text")
    kds = []
    for nm, fn, g, b, lds in ks:
        t, k = fn()
        out.append(t); kds.append(k)
    out.append('.section .rodata,"a"')
    out += kds
    open(sys.argv[1], "w").write("\n".join(out) + "\n")

if __name__ == "__main__":
    main()
```

```python
from asmfw import Asm
import gen
from gen import *

WS_HF = WS_H

K2_KV  = 0
K2_WO  = 69632
K2_RED = 0
K2_LDS = K2_WO + 456 * 128

def gen_k2():
    a = Asm()
    head(a, "k2_kernel")
    a("s_cmp_ge_u32 s2, 256")
    a("s_cbranch_scc1 K2_END")
    stamp_init(a); stamp(a, 0, real=True); stamp(a, 1)
    a("s_load_dwordx2 s[4:5], s[0:1], 0")
    a("s_load_dwordx2 s[6:7], s[0:1], 24")
    a("s_load_dwordx4 s[8:11], s[0:1], 40")
    a("s_load_dwordx2 s[14:15], s[0:1], 80")
    LANE, M, HF, I16, G = 1, 2, 3, 4, 5
    a(f"v_and_b32 v{LANE}, 63, v0")
    a(f"v_lshrrev_b32 v6, 6, v0")
    a(f"v_readfirstlane_b32 s38, v6")
    a(f"v_and_b32 v{M}, 31, v{LANE}")
    a(f"v_lshrrev_b32 v{HF}, 5, v{LANE}")
    a(f"v_and_b32 v{I16}, 15, v{LANE}")
    a(f"v_lshrrev_b32 v{G}, 4, v{LANE}")
    a("s_mov_b32 s42, 0")
    a("s_mov_b32 s43, -1")
    a("s_mov_b32 s41, 0xffff0000")
    a("s_cmp_ge_u32 s2, 224")
    a("s_cbranch_scc1 K2_CS")
    a("s_and_b32 s36, s2, 7")
    a("s_lshl_b32 s36, s36, 2")
    a("s_bfe_u32 s37, s2, 0x20003")
    a("s_add_u32 s36, s36, s37")
    a("s_lshr_b32 s37, s2, 5")
    a("s_and_b32 s39, s38, 1")
    a("s_lshr_b32 s40, s38, 1")
    a(f"v_lshlrev_b32 v10, 4, v{LANE}")
    a("s_lshl_b32 s44, s38, 14")
    a("s_lshl_b32 s50, s36, 1")
    a("s_add_u32 s50, s50, s39")
    a("s_lshl_b32 s50, s50, 4")
    a("s_lshl_b32 s51, s40, 2")
    a("s_add_u32 s50, s50, s51")
    a("s_lshl_b32 s45, s50, 12")
    a(f"s_add_u32 s45, s45, {WS_PHIQ}")
    a(f"v_lshrrev_b32 v7, 2, v{I16}")
    a(f"v_mul_u32_u24 v7, 1056, v7")
    a(f"v_and_b32 v8, 1, v{I16}")
    a(f"v_mul_u32_u24 v8, 528, v8")
    a(f"v_add_u32 v7, v7, v8")
    a(f"v_lshrrev_b32 v8, 1, v{I16}")
    a(f"v_and_b32 v8, 1, v8")
    a(f"v_lshl_add_u32 v7, v8, 3, v7")
    a(f"v_lshl_add_u32 v7, v{G}, 4, v7")
    a("s_mul_i32 s50, s38, 8448")
    a(f"v_add_u32 v19, s50, v7")
    a(f"v_lshrrev_b32 v7, 3, v{LANE}")
    a(f"v_and_b32 v8, 7, v{LANE}")
    a(f"v_lshrrev_b32 v9, 1, v7")
    a(f"v_and_b32 v9, 1, v9")
    a(f"v_lshlrev_b32 v9, 2, v9")
    a(f"v_xor_b32 v9, v8, v9")
    a(f"v_mul_u32_u24 v7, 896, v7")
    a(f"v_lshl_add_u32 v11, v9, 4, v7")
    a(f"v_lshl_add_u32 v86, v8, 4, v7")
    a("s_waitcnt lgkmcnt(0)")
    srd(a, 16, 4, 1835008)
    srd(a, 20, 6, 401408)
    srd(a, 32, 14, WS_SIZE)
    vm = VM(a)
    KR = 100
    a("s_lshr_b32 s56, s2, 3")
    for i in range(16):
        a(f"s_add_u32 s57, s56, {i}")
        a("s_and_b32 s57, s57, 15")
        a("s_lshl_b32 s51, s57, 10")
        a(f"s_add_u32 s51, s51, s44")
        a(f"buffer_load_dwordx4 v[{KR+4*i}:{KR+4*i+3}], v10, s[32:35], s51 offen offset:{WS_KV}")
        vm.issue(f"kv{i}")
    PQ = 164
    def pq_load(i):
        a(f"s_add_u32 s51, s45, {i*1024}")
        a(f"buffer_load_dwordx4 v[{PQ+4*i}:{PQ+4*i+3}], v10, s[32:35], s51 offen")
        vm.issue(f"pq{i>>2}")
    stamp(a, 2)
    for i in range(16):
        pq_load(i)
        vm.wait(f"kv{i}")
        a(f"v_cvt_pk_bf16_f32 v{KR+4*i}, v{KR+4*i}, v{KR+4*i+1}")
        a(f"v_cvt_pk_bf16_f32 v{KR+4*i+1}, v{KR+4*i+2}, v{KR+4*i+3}")
        a(f"s_add_u32 s57, s56, {i}")
        a("s_bfe_u32 s58, s57, 0x10003")
        a("s_mul_i32 s58, s58, 4224")
        a("s_and_b32 s57, s57, 7")
        a("s_lshl_b32 s57, s57, 6")
        a("s_add_u32 s57, s57, s58")
        a("v_add_u32 v87, s57, v19")
        a(f"ds_write_b64 v87, v[{KR+4*i}:{KR+4*i+1}] offset:{K2_KV}")
    a("s_mul_i32 s50, s38, 50176")
    a("s_lshl_b32 s51, s37, 7")
    a("s_add_u32 s50, s50, s51")
    a("s_mul_i32 s52, s38, 7168")
    wo_ops = []
    for i in range(7):
        wo_ops.append([f"s_add_u32 m0, s52, {K2_WO + i*1024}", f"s_add_u32 s51, s50, {i*8*896}", f"buffer_load_dwordx4 v11, s[20:23], s51 offen lds"])
    wo_ops.append([f"s_mov_b32 m0, {K2_WO + 448*128}", f"s_mov_b32 s51, {448*896}", f"buffer_load_dwordx4 v11, s[20:23], s51 offen lds"])
    wo_ops.append(["s_lshl_b32 s53, s36, 6", "s_lshl_b32 s51, s38, 3", "s_add_u32 s53, s53, s51", "s_mul_i32 s53, s53, 896", "s_lshl_b32 s51, s37, 7", "s_add_u32 s53, s53, s51",
                   "buffer_load_dwordx4 v[12:15], v86, s[16:19], s53 offen"])
    def emit_wo():
        if wo_ops:
            for t_ in wo_ops.pop(0): a(t_)
            vm.issue("wo")
    a(f"v_lshrrev_b32 v7, 2, v{I16}")
    a(f"v_lshl_add_u32 v8, v{HF}, 2, v7")
    a(f"v_lshrrev_b32 v7, 1, v7")
    a(f"v_lshlrev_b32 v7, 3, v7")
    a(f"v_and_b32 v9, 1, v{G}")
    a(f"v_lshl_add_u32 v7, v9, 2, v7")
    a(f"v_and_b32 v9, 3, v{I16}")
    a(f"v_add_u32 v7, v7, v9")
    a(f"v_lshlrev_b32 v7, 3, v7")
    a(f"v_lshl_add_u32 v7, v8, 7, v7")
    a("s_mul_i32 s51, s40, 14336")
    a(f"s_add_u32 s51, s51, {K2_WO}")
    a(f"v_add_u32 v16, s51, v7")
    a(f"v_xor_b32 v17, 64, v16")
    a("s_mul_i32 s51, s40, 16896")
    a(f"v_mul_u32_u24 v7, 528, v{HF}")
    a(f"v_lshl_add_u32 v7, v{M}, 4, v7")
    a(f"v_add_u32 v18, s51, v7")
    a("s_waitcnt lgkmcnt(0)")
    a("s_barrier")
    stamp(a, 3)
    KF = 100
    for hh in range(4):
        for s_ in range(4):
            a(f"ds_read_b128 v[{KF+16*hh+4*s_}:{KF+16*hh+4*s_+3}], v18 offset:{K2_KV + hh*4224 + s_*1056}")
    for _ in range(3): emit_wo()
    NUM = 20
    OF = 164
    def num_mfma(hh):
        vm.wait(f"pq{hh}")
        for s_ in range(4):
            if hh == 0 or True: a(f"s_waitcnt lgkmcnt({15 - (4*hh+s_)})")
            c = "0" if s_ == 0 else f"v[{NUM+16*hh}:{NUM+16*hh+15}]"
            a(f"v_mfma_f32_32x32x16_bf16 v[{NUM+16*hh}:{NUM+16*hh+15}], v[{KF+16*hh+4*s_}:{KF+16*hh+4*s_+3}], v[{PQ+16*hh+4*s_}:{PQ+16*hh+4*s_+3}], {c}")
    def o_valu(hh):
        N = NUM + 16 * hh
        a(f"v_mov_b32 v84, v{N+12}")
        a(f"v_mov_b32 v85, v{N+12}")
        a(f"v_permlane32_swap_b32 v84, v85")
        bf16r(a, 85, 85)
        a(f"v_add_f32 v85, 0x358637bd, v85")
        bf16r(a, 85, 85)
        a(f"v_rcp_f32 v85, v85")
        for i in range(8):
            a(f"v_mul_f32 v{N+2*i}, v{N+2*i}, v85")
            a(f"v_mul_f32 v{N+2*i+1}, v{N+2*i+1}, v85")
            a(f"v_cvt_pk_bf16_f32 v{OF+16*hh+i}, v{N+2*i}, v{N+2*i+1}")
        a(f"v_cndmask_b32 v{OF+16*hh+6}, v{OF+16*hh+6}, 0, s[42:43]")
        a(f"v_cndmask_b32 v{OF+16*hh+7}, v{OF+16*hh+7}, 0, s[42:43]")
    num_mfma(0)
    for hh in range(4):
        if hh + 1 < 4: num_mfma(hh + 1)
        emit_wo(); emit_wo()
        o_valu(hh)
    while wo_ops: emit_wo()
    stamp(a, 4)
    a("s_waitcnt vmcnt(1)")
    a("s_barrier")
    a("s_lshr_b32 s60, s2, 3")
    a("s_lshl_b32 s60, s60, 3")
    a("s_add_u32 s60, s60, s38")
    a(f"v_lshlrev_b32 v88, 7, v{LANE}")
    a(f"v_mov_b32 v89, 0x7fff0000")
    a(f"v_cmp_gt_u32 vcc, 20, v{LANE}")
    a(f"v_cndmask_b32 v90, v89, v88, vcc")
    srd(a, 64, 8, 1605632)
    a("s_mul_i32 s61, s60, 2560")
    a("s_add_u32 s61, s61, 1048576")
    a("buffer_load_dword v91, v90, s[64:67], s61 offen")
    a(f"v_cmp_gt_u32 vcc, 56, v{LANE}")
    a(f"v_cndmask_b32 v90, v89, v88, vcc")
    srd(a, 64, 10, 1605632)
    a("s_mul_i32 s61, s60, 7168")
    a("buffer_load_dword v92, v90, s[64:67], s61 offen")
    for hh in range(4):
        for s_ in range(2):
            for n2 in range(2):
                b = KF + 16*hh + 8*s_ + 4*n2
                for e in range(2):
                    a(f"ds_read_b64_tr_b16 v[{b+2*e}:{b+2*e+1}], v{16+n2} offset:{(hh*28 + 16*s_ + 8*e)*128}")
    a("s_lshl_b32 s50, s39, 5")
    a(f"v_add_u32 v7, s50, v{M}")
    a(f"v_mul_u32_u24 v7, 272, v7")
    a(f"v_lshl_add_u32 v7, v{HF}, 4, v7")
    a("s_mul_i32 s50, s40, 17408")
    a(f"v_add_u32 v7, s50, v7")
    AT = 20
    k = 0
    for hh in range(4):
        for s_ in range(2):
            for n2 in range(2):
                b = KF + 16*hh + 8*s_ + 4*n2
                k += 1
                a(f"s_waitcnt lgkmcnt({min(15, 32 - 2*k)})")
                c = "0" if (hh == 0 and s_ == 0) else f"v[{AT+16*n2}:{AT+16*n2+15}]"
                a(f"v_mfma_f32_32x32x16_bf16 v[{AT+16*n2}:{AT+16*n2+15}], v[{b}:{b+3}], v[{OF+16*hh+4*s_}:{OF+16*hh+4*s_+3}], {c}")
    for n2 in range(2):
        for q in range(4):
            a(f"ds_write_b128 v7, v[{AT+16*n2+4*q}:{AT+16*n2+4*q+3}] offset:{K2_RED + n2*128 + q*32}")
    a(f"v_lshrrev_b32 v8, 3, v{LANE}")
    a("s_lshl_b32 s50, s38, 3")
    a(f"v_add_u32 v8, s50, v8")
    a(f"v_and_b32 v9, 7, v{LANE}")
    a(f"v_mul_u32_u24 v60, 272, v8")
    a(f"v_lshl_add_u32 v60, v9, 5, v60")
    a(f"v_lshrrev_b32 v61, 5, v8")
    a(f"v_mul_u32_u24 v61, 28, v61")
    a(f"v_lshrrev_b32 v62, 1, v9")
    a(f"v_add_u32 v61, v61, v62")
    a(f"v_lshlrev_b32 v61, 10, v61")
    a(f"v_and_b32 v62, 1, v9")
    a(f"v_lshl_add_u32 v61, v62, 9, v61")
    a(f"v_and_b32 v62, 31, v8")
    a(f"v_lshl_add_u32 v61, v62, 4, v61")
    a(f"v_lshlrev_b32 v62, 6, v8")
    a(f"v_cmp_eq_u32 s[54:55], 0, v9")
    a("s_mul_i32 s50, s36, 57344")
    a("s_lshl_b32 s51, s37, 12")
    a("s_add_u32 s50, s50, s51")
    a(f"s_add_u32 s50, s50, {WS_HF}")
    a("s_lshl_b32 s51, s37, 3")
    a("s_lshl_b32 s52, s36, 12")
    a("s_add_u32 s51, s51, s52")
    a(f"s_add_u32 s51, s51, {WS_ST}")
    a("s_waitcnt lgkmcnt(0)")
    a("s_barrier")
    stamp(a, 5)
    for hg in range(4):
        for e in range(2):
            a(f"ds_read_b128 v[{20+8*hg+4*e}:{20+8*hg+4*e+3}], v60 offset:{K2_RED + hg*17408 + e*16}")
    a("s_waitcnt lgkmcnt(4)")
    for j in range(8): a(f"v_add_f32 v{20+j}, v{20+j}, v{28+j}")
    a("s_waitcnt lgkmcnt(0)")
    for j in range(8): a(f"v_add_f32 v{36+j}, v{36+j}, v{44+j}")
    for j in range(8): a(f"v_add_f32 v{20+j}, v{20+j}, v{36+j}")
    a("s_waitcnt vmcnt(2)")
    for i in range(4):
        a(f"v_cvt_pk_bf16_f32 v{28+i}, v{20+2*i}, v{20+2*i+1}")
    for i in range(4):
        a(f"v_lshlrev_b32 v{20+2*i}, 16, v{28+i}")
        a(f"v_and_b32 v{20+2*i+1}, s41, v{28+i}")
        a(f"v_lshlrev_b32 v{36+2*i}, 16, v{12+i}")
        a(f"v_and_b32 v{36+2*i+1}, s41, v{12+i}")
    for j in range(8): a(f"v_add_f32 v{20+j}, v{20+j}, v{36+j}")
    for i in range(4):
        a(f"v_cvt_pk_bf16_f32 v{28+i}, v{20+2*i}, v{20+2*i+1}")
    a(f"buffer_store_dwordx4 v[28:31], v61, s[32:35], s50 offen")
    a("v_add_f32 v36, v20, v21")
    a("v_mul_f32 v37, v20, v20")
    a("v_add_f32 v38, v22, v23")
    a("v_mul_f32 v39, v21, v21")
    for j in range(4, 8, 2):
        a(f"v_add_f32 v36, v36, v{20+j}")
        a(f"v_add_f32 v38, v38, v{20+j+1}")
    for j in range(2, 8, 2):
        a(f"v_fmac_f32 v37, v{20+j}, v{20+j}")
        a(f"v_fmac_f32 v39, v{20+j+1}, v{20+j+1}")
    a("v_add_f32 v36, v36, v38")
    a("v_add_f32 v37, v37, v39")
    for dpp in ("quad_perm:[1,0,3,2]", "quad_perm:[2,3,0,1]", "row_half_mirror"):
        a(f"v_add_f32_dpp v36, v36, v36 {dpp} row_mask:0xf bank_mask:0xf")
        a(f"v_add_f32_dpp v37, v37, v37 {dpp} row_mask:0xf bank_mask:0xf")
    a("s_mov_b64 exec, s[54:55]")
    a(f"buffer_store_dwordx2 v[36:37], v62, s[32:35], s51 offen")
    a("s_branch K2_FIN")

    a("K2_CS:")
    a("s_sub_u32 s36, s2, 224")
    a("s_lshr_b32 s37, s36, 4")
    a("s_and_b32 s36, s36, 15")
    a("s_waitcnt lgkmcnt(0)")
    a("s_cmp_eq_u32 s37, 0")
    a("s_cselect_b32 s20, s8, s10")
    a("s_cselect_b32 s21, s9, s11")
    a("s_mov_b32 s22, 1605632")
    a("s_mov_b32 s23, 0x00020000")
    srd(a, 32, 14, WS_SIZE)
    a("v_mul_u32_u24 v7, 4682, v0")
    a("v_lshrrev_b32 v7, 16, v7")
    a("v_mul_u32_u24 v8, 14, v7")
    a("v_sub_u32 v8, v0, v8")
    a("v_mul_u32_u24 v9, 3584, v7")
    a("v_lshl_add_u32 v9, v8, 4, v9")
    a("v_cmp_gt_u32 vcc, 36, v7")
    a("v_mov_b32 v10, 0x7ffff000")
    a("v_cndmask_b32 v9, v10, v9, vcc")
    a("s_mul_i32 s50, s36, 224")
    for i in range(13):
        a(f"s_add_u32 s51, s50, {i*36*3584}")
        a(f"buffer_load_dwordx4 v[{20+4*i}:{20+4*i+3}], v9, s[20:23], s51 offen")
    for j in range(8): a(f"v_mov_b32 v{80+j}, 0")
    for i in range(13):
        a(f"s_waitcnt vmcnt({12-i})")
        for r in range(4):
            a(f"v_lshlrev_b32 v11, 16, v{20+4*i+r}")
            a(f"v_and_b32 v12, s41, v{20+4*i+r}")
            a(f"v_add_f32 v{80+2*r}, v{80+2*r}, v11")
            a(f"v_add_f32 v{80+2*r+1}, v{80+2*r+1}, v12")
    a("v_mul_u32_u24 v11, 448, v7")
    a("v_lshl_add_u32 v11, v8, 5, v11")
    a("ds_write_b128 v11, v[80:83]")
    a("ds_write_b128 v11, v[84:87] offset:16")
    a("s_waitcnt lgkmcnt(0)")
    a("s_barrier")
    a("v_cmp_gt_u32 vcc, 112, v0")
    a("s_and_saveexec_b64 s[54:55], vcc")
    a("s_cbranch_execz K2_FIN")
    a("v_lshlrev_b32 v11, 2, v0")
    for i in range(36):
        a(f"ds_read_b32 v{20+i}, v11 offset:{i*448}")
    a("s_waitcnt lgkmcnt(0)")
    for i in range(1, 36):
        a(f"v_add_f32 v20, v20, v{20+i}")
    a("v_cvt_pk_bf16_f32 v21, v20, v20")
    a("v_and_b32 v22, s41, v21")
    a("v_sub_f32 v22, v20, v22")
    a("v_cvt_pk_bf16_f32 v22, v22, v22")
    a("s_mul_i32 s50, s36, 112")
    a("v_add_u32 v11, s50, v0")
    a("v_lshrrev_b32 v12, 7, v11")
    a("v_lshlrev_b32 v12, 11, v12")
    a("v_bfe_u32 v13, v11, 4, 3")
    a("v_lshl_add_u32 v12, v13, 3, v12")
    a("v_and_b32 v13, 15, v11")
    a("v_lshl_add_u32 v11, v13, 6, v12")
    a("s_lshl_b32 s50, s37, 10")
    a(f"s_add_u32 s50, s50, {WS_CS}")
    a("v_mov_b32 v24, v21")
    a("v_mov_b32 v25, v22")
    a("buffer_store_dwordx2 v[24:25], v11, s[32:35], s50 offen")
    a("K2_FIN:")
    if STAMPS:
        a("s_mov_b64 exec, -1")
        a("s_waitcnt vmcnt(0)")
    stamp(a, 9)
    stamp_flush(a, 38, 32, 1)
    a("K2_END:")
    a("s_endpgm")
    a.fix_hazards()
    return a.text(), kd("k2_kernel", 232)

import gen3
def kernels():
    return [("k2", gen_k2, 256, 512, K2_LDS)] + gen3.kernels()
```

```python
from asmfw import Asm
import gen
from gen import *
WS_HF = WS_H

K3_SLOT = 16384
K3_NS   = 9
K3_LDS  = K3_NS * K3_SLOT

def gen_k3():
    a = Asm()
    head(a, "k3_kernel")
    a("s_cmp_ge_u32 s2, 224")
    a("s_cbranch_scc1 K3_END")
    stamp_init(a); stamp(a, 0, real=True); stamp(a, 1)
    a("s_load_dwordx4 s[8:11], s[0:1], 40")
    a("s_load_dwordx2 s[12:13], s[0:1], 56")
    a("s_load_dwordx2 s[14:15], s[0:1], 80")
    LANE, M, HF, I16, G = 1, 2, 3, 4, 5
    a(f"v_and_b32 v{LANE}, 63, v0")
    a(f"v_lshrrev_b32 v6, 6, v0")
    a(f"v_readfirstlane_b32 s38, v6")
    a(f"v_and_b32 v{M}, 31, v{LANE}")
    a(f"v_lshrrev_b32 v{HF}, 5, v{LANE}")
    a(f"v_and_b32 v{I16}, 15, v{LANE}")
    a(f"v_lshrrev_b32 v{G}, 4, v{LANE}")
    a("s_and_b32 s36, s2, 7")
    a("s_lshl_b32 s36, s36, 1")
    a("s_bfe_u32 s37, s2, 0x10003")
    a("s_add_u32 s36, s36, s37")
    a("s_lshr_b32 s37, s2, 4")
    a("s_and_b32 s39, s38, 1")
    a("s_lshr_b32 s40, s38, 1")
    a(f"v_lshrrev_b32 v7, 3, v{LANE}")
    a(f"v_and_b32 v8, 2, v7")
    a(f"v_add_u32 v8, s39, v8")
    a(f"v_lshlrev_b32 v8, 1, v8")
    a(f"v_and_b32 v9, 7, v{LANE}")
    a(f"v_xor_b32 v8, v8, v9")
    a(f"v_mul_u32_u24 v7, 3584, v7")
    a(f"v_lshl_add_u32 v10, v8, 4, v7")
    a(f"v_lshlrev_b32 v11, 4, v{LANE}")
    a("s_mul_i32 s46, s40, 114688")
    a("s_lshl_b32 s47, s37, 8")
    a("s_add_u32 s46, s46, s47")
    a("s_and_b32 s57, s36, 1")
    a("s_lshl_b32 s58, s57, 7")
    a("s_xor_b32 s59, s58, 128")
    a("s_add_u32 s56, s46, s59")
    a("s_add_u32 s46, s46, s58")
    a("s_lshl_b32 s47, s39, 13")
    a("s_lshl_b32 s48, s40, 12")
    a("s_add_u32 s47, s47, s48")
    a("s_lshl_b32 s48, s36, 2")
    a("s_add_u32 s48, s48, s38")
    a("s_mul_i32 s49, s48, 28672")
    a(f"s_add_u32 s49, s49, {WS_HF}")
    a("s_waitcnt lgkmcnt(0)")
    a("s_cmp_eq_u32 s39, 0")
    a("s_cselect_b32 s20, s8, s10")
    a("s_cselect_b32 s21, s9, s11")
    a("s_mov_b32 s22, 1605632")
    a("s_mov_b32 s23, 0x00020000")
    srd(a, 32, 14, WS_SIZE)
    vm = VM(a)
    def dma_ops(C):
        ph, c = C // 7, C % 7
        return [(f"c{C}", [f"s_add_u32 m0, s47, {(C % K3_NS)*K3_SLOT + i*1024}",
                           f"s_add_u32 s50, s{56 if ph else 46}, {(c*64 + i*8)*3584}",
                           f"buffer_load_dwordx4 v10, s[20:23], s50 offen lds"]) for i in range(4)]
    def h_ops(kk, tag):
        return [(tag, [f"s_add_u32 s50, s49, {kk*1024}",
                       f"buffer_load_dwordx4 a[{4*kk}:{4*kk+3}], v11, s[32:35], s50 offen"])]
    def emit(op):
        for t_ in op[1]: a(t_)
        vm.issue(op[0])
    def chunk_ops(C):
        d = dma_ops(C)
        if C >= 7: return d
        out = []
        for i in range(4): out += [d[i]] + h_ops(4*C + i, f"c{C}")
        return out
    for C in range(3):
        for op in chunk_ops(C): emit(op)
    TM = 12
    a(f"v_and_b32 v7, 1, v{G}")
    a(f"v_lshrrev_b32 v8, 2, v{I16}")
    a(f"v_and_b32 v9, 2, v8")
    a(f"v_add_u32 v9, v9, v7")
    a(f"v_lshl_add_u32 v8, v{HF}, 3, v8")
    a(f"v_lshlrev_b32 v8, 7, v8")
    a(f"v_lshl_add_u32 v8, v7, 13, v8")
    a(f"v_and_b32 v7, 3, v{I16}")
    a(f"v_lshl_add_u32 v8, v7, 3, v8")
    a(f"v_lshl_add_u32 v8, v9, 5, v8")
    for t in range(4):
        a(f"v_xor_b32 v{TM+t}, {t*32}, v8")
        a(f"v_add_u32 v{TM+4+t}, 0x10000, v{TM+t}")
        a(f"v_add_u32 v{TM+8+t}, 0x20000, v{TM+t}")
    WF = 36
    def acc(t): return f"v[{128+16*t}:{128+16*t+15}]"
    def rd_ops(ph, kk, t, dst):
        C = ph * 7 + kk // 4; slot = C % K3_NS
        return [f"ds_read_b64_tr_b16 v[{dst+2*e}:{dst+2*e+1}], v{TM + 4*(slot//4) + t} offset:{(slot%4)*K3_SLOT + (kk%4)*2048 + e*512}" for e in range(2)]
    a(f"v_lshlrev_b32 v9, 6, v{M}")
    a(f"v_lshl_add_u32 v118, v{HF}, 5, v9")
    a(f"v_accvgpr_write_b32 a128, 0")
    a(f"v_accvgpr_write_b32 a129, 0")
    a("s_lshl_b32 s52, s48, 11")
    a(f"s_add_u32 s52, s52, {WS_ST}")
    a("s_lshl_b32 s53, s37, 11")
    a(f"s_add_u32 s53, s53, {WS_CS}")
    a("s_lshl_b32 s58, s57, 5")
    a("s_xor_b32 s59, s58, 32")
    a("s_add_u32 s55, s53, s59")
    a("s_add_u32 s53, s53, s58")
    misc = []
    for j in range(2):
        misc.append(("ms", [f"buffer_load_dwordx4 v[{100+4*j}:{100+4*j+3}], v118, s[32:35], s52 offen offset:{j*16}"]))
    for j in range(4):
        misc.append(("ms", [f"buffer_load_dwordx4 a[{112+4*j}:{112+4*j+3}], v9, s[32:35], s{55 if j >= 2 else 53} offen offset:{(j&1)*16}"]))
    a("s_mul_i32 s54, s48, 114688")
    a("s_lshl_b32 s51, s37, 13")
    a("s_add_u32 s54, s54, s51")
    a(f"s_add_u32 s54, s54, {WS_HH}")
    a("s_lshl_b32 s58, s57, 12")
    a("s_xor_b32 s59, s58, 4096")
    a("s_add_u32 s62, s54, s59")
    a("s_add_u32 s54, s54, s58")
    NM, RS, SD, NSC = 114, 115, 116, 117
    fin = Asm()
    fin(f"v_cmp_gt_u32 vcc, 32, v{LANE}")
    fin(f"v_cndmask_b32 v106, 0, v106, vcc")
    fin(f"v_cndmask_b32 v107, 0, v107, vcc")
    for j in range(1, 4):
        fin(f"v_add_f32 v100, v100, v{100+2*j}")
        fin(f"v_add_f32 v101, v101, v{100+2*j+1}")
    xhalf(fin, "v_add_f32", 100, 100, 102, 103)
    xhalf(fin, "v_add_f32", 101, 101, 104, 105)
    stats_finish(fin, 100, 101, NM, RS, SD)
    fin(f"v_mul_f32 v{NSC}, 0xbfb8aa3b, v{RS}")
    fin(f"v_lshrrev_b32 v104, 16, v{NM}")
    fin(f"v_cmp_gt_u32 vcc, 32, v{LANE}")
    fin(f"v_cndmask_b32 v104, 0, v104, vcc")
    fin(f"v_mov_b32 v105, v104")
    fin(f"v_mov_b32 v106, 0")
    fin(f"v_mov_b32 v107, 0")
    fin_ops = [i.text for i in fin.ins]
    def ep_ops(t):
        A_ = 128 + 16 * t
        OUT = 120 + (t & 1) * 4
        ep = [f"v_mul_f32 v{A_+r}, v{NSC}, v{A_+r}" for r in range(8)]
        ep += [f"v_exp_f32 v{A_+r}, v{A_+r}" for r in range(8)]
        ep += [f"v_fma_f32 v{A_+r}, v{A_+r}, v{SD}, v{SD}" for r in range(8)]
        ep += [f"v_rcp_f32 v{A_+r}, v{A_+r}" for r in range(8)]
        ep += [f"v_mul_f32 v{A_+8+r}, v{A_+8+r}, v{A_+r}" for r in range(8)]
        ep += [f"v_cvt_pk_bf16_f32 v{OUT+i}, v{A_+8+2*i}, v{A_+8+2*i+1}" for i in range(4)]
        ep += [("ST", f"s_add_u32 s50, s{62 if t >= 4 else 54}, {(t&3)*1024}", f"buffer_store_dwordx4 v[{OUT}:{OUT+3}], v11, s[32:35], s50 offen")]
        return ep
    def emit_valu(vq, n):
        for _ in range(n):
            if not vq: return
            o = vq.pop(0)
            if isinstance(o, tuple):
                a(o[1]); a(o[2]); vm.issue("st")
            else: a(o)
    stamp(a, 2)
    vm.wait("c0")
    a("s_barrier")
    stamp(a, 3)
    NK1 = 20
    seq = [(0, kk, t) for kk in range(28) for t in range(4)] + [(1, kk, t) for kk in range(NK1) for t in range(4)]
    seq += [(1, kk, t) for t in range(4) for kk in range(NK1, 28)]
    LAH = 7
    NBUF = 16
    queue = chunk_ops(3) + chunk_ops(4) + chunk_ops(5) + chunk_ops(6) + misc + chunk_ops(7) + chunk_ops(8)
    late = []
    ready = {0}
    vq = []
    def need_chunk(C):
        nonlocal queue, late
        if C in ready: return
        if any(op[0] == f"c{C}" for op in late):
            queue += late; late = []
        while any(op[0] == f"c{C}" for op in queue): emit(queue.pop(0))
        vm.wait(f"c{C}")
        a("s_barrier")
        ready.add(C)
        if 9 <= C + 7 <= 13: late += chunk_ops(C + 7)
    def issue_reads(i):
        ph, kk, t = seq[i]
        need_chunk(ph * 7 + kk // 4)
        for o in rd_ops(ph, kk, t, WF + 4 * (i % NBUF)): a(o)
    for i in range(LAH): issue_reads(i)
    for i, (ph, kk, t) in enumerate(seq):
        if i + LAH < len(seq):
            issue_reads(i + LAH)
            a(f"s_waitcnt lgkmcnt({2*LAH})")
        else:
            a(f"s_waitcnt lgkmcnt({2*(len(seq)-1-i)})")
        T = ph * 4 + t
        b = WF + 4 * (i % NBUF)
        c_ = "0" if kk == 0 else acc(T)
        a(f"v_mfma_f32_32x32x16_bf16 {acc(T)}, v[{b}:{b+3}], a[{4*kk}:{4*kk+3}], {c_}")
        if kk == 27:
            a(f"v_mfma_f32_32x32x16_bf16 {acc(T)}, a[{112+2*T}:{112+2*T+3}], v[104:107], {acc(T)}")
            vq += ep_ops(T)
        if ph == 0 and kk == 22 and t == 0:
            vm.wait("ms")
            vq += fin_ops
        if i == 112: stamp(a, 4)
        if i == 112 + 4 * NK1:
            stamp(a, 5)
        if i == 112 + 40:
            srd(a, 64, 12, 1605632)
            a("s_lshr_b32 s60, s2, 3")
            a("s_lshl_b32 s60, s60, 2")
            a("s_add_u32 s60, s60, s38")
            a("s_mul_i32 s61, s60, 14336")
            a(f"v_lshlrev_b32 v108, 7, v{LANE}")
            a(f"v_mov_b32 v109, 0x7fff0000")
            a(f"v_cmp_gt_u32 vcc, 56, v{LANE}")
            a(f"v_cndmask_b32 v108, v109, v108, vcc")
            late.append(("pf", ["buffer_load_dword v110, v108, s[64:67], s61 offen"]))
            late.append(("pf", ["s_add_u32 s61, s61, 7168", "buffer_load_dword v111, v108, s[64:67], s61 offen"]))
        if i % 2 == 0:
            if queue: emit(queue.pop(0))
            elif late: emit(late.pop(0))
        if not (kk == 27): emit_valu(vq, 3 if i < 112 + 4 * NK1 else 6)
    emit_valu(vq, 10000)
    if STAMPS: a("s_waitcnt vmcnt(0)")
    stamp(a, 9)
    stamp_flush(a, 38, 32, 2)
    a("K3_END:")
    a("s_endpgm")
    a.fix_hazards()
    k = kd("k3_kernel", 256).replace("next_free_vgpr 256", "next_free_vgpr 400")
    return a.text(), k

K4_WREG = 40960
K4_LDS = 4 * K4_WREG

def gen_k4():
    a = Asm()
    head(a, "k4_kernel")
    a("s_cmp_ge_u32 s2, 224")
    a("s_cbranch_scc1 K4_END")
    stamp_init(a); stamp(a, 0, real=True); stamp(a, 1)
    a("s_load_dwordx4 s[8:11], s[0:1], 56")
    a("s_load_dwordx2 s[14:15], s[0:1], 80")
    LANE, M, HF, I16, G = 1, 2, 3, 4, 5
    a(f"v_and_b32 v{LANE}, 63, v0")
    a(f"v_lshrrev_b32 v6, 6, v0")
    a(f"v_readfirstlane_b32 s38, v6")
    a(f"v_and_b32 v{M}, 31, v{LANE}")
    a(f"v_lshrrev_b32 v{HF}, 5, v{LANE}")
    a(f"v_and_b32 v{I16}, 15, v{LANE}")
    a(f"v_lshrrev_b32 v{G}, 4, v{LANE}")
    a("s_mov_b32 s41, 0xffff0000")
    a("s_and_b32 s36, s2, 7")
    a("s_lshl_b32 s36, s36, 2")
    a("s_bfe_u32 s37, s2, 0x20003")
    a("s_add_u32 s36, s36, s37")
    a("s_lshr_b32 s37, s2, 5")
    a(f"v_lshrrev_b32 v7, 3, v{LANE}")
    a(f"v_and_b32 v8, 7, v{LANE}")
    a(f"v_lshrrev_b32 v9, 1, v7")
    a(f"v_and_b32 v9, 1, v9")
    a(f"v_lshlrev_b32 v9, 2, v9")
    a(f"v_xor_b32 v8, v8, v9")
    a(f"v_mul_u32_u24 v7, 896, v7")
    a(f"v_lshl_add_u32 v10, v8, 4, v7")
    a(f"v_lshlrev_b32 v11, 4, v{LANE}")
    a("s_waitcnt lgkmcnt(0)")
    srd(a, 20, 8, 1605632)
    srd(a, 24, 10, 1835008)
    srd(a, 32, 14, WS_SIZE)
    a("s_mul_i32 s46, s38, 401408")
    a("s_lshl_b32 s47, s37, 7")
    a("s_add_u32 s46, s46, s47")
    a(f"s_mul_i32 s47, s38, {K4_WREG}")
    a("s_mul_i32 s48, s36, 229376")
    a("s_mul_i32 s49, s38, 28672")
    a("s_add_u32 s48, s48, s49")
    a(f"s_add_u32 s48, s48, {WS_HH}")
    vm = VM(a)
    HH = 28
    a("s_bfe_u32 s52, s2, 0x20003")
    for g_ in range(4):
        a(f"s_add_u32 s53, s52, {g_}")
        a("s_and_b32 s53, s53, 3")
        a(f"s_mul_i32 s{56+g_}, s53, {7*16*896}")
        a(f"s_add_u32 s{56+g_}, s{56+g_}, s46")
        a(f"s_mul_i32 s{60+g_}, s53, 7168")
        a(f"s_add_u32 s{60+g_}, s{60+g_}, s48")
    def dma(ks):
        for i in range(2):
            a(f"s_add_u32 m0, s47, {(ks % 20)*2048 + i*1024}")
            a(f"s_add_u32 s50, s{56+ks//7}, {((ks%7)*16 + i*8)*896}")
            a(f"buffer_load_dwordx4 v10, s[20:23], s50 offen lds")
            vm.issue(f"k{ks}")
    def hload(ks):
        for m2 in range(2):
            a(f"s_add_u32 s50, s{60+ks//7}, {m2*114688 + (ks%7)*1024}")
            a(f"buffer_load_dwordx4 v[{HH+8*ks+4*m2}:{HH+8*ks+4*m2+3}], v11, s[32:35], s50 offen")
            vm.issue(f"k{ks}")
    PRE = 15
    for ks in range(PRE):
        dma(ks); hload(ks)
    a(f"v_lshrrev_b32 v7, 2, v{I16}")
    a(f"v_lshl_add_u32 v8, v{HF}, 2, v7")
    a(f"v_lshrrev_b32 v7, 1, v7")
    a(f"v_lshlrev_b32 v7, 3, v7")
    a(f"v_and_b32 v9, 1, v{G}")
    a(f"v_lshl_add_u32 v7, v9, 2, v7")
    a(f"v_and_b32 v9, 3, v{I16}")
    a(f"v_add_u32 v7, v7, v9")
    a(f"v_lshlrev_b32 v7, 3, v7")
    a(f"v_lshl_add_u32 v7, v8, 7, v7")
    a(f"v_add_u32 v12, s47, v7")
    a(f"v_xor_b32 v13, 64, v12")
    WF = 14
    def acc(n2, m2): return f"a[{32*n2+16*m2}:{32*n2+16*m2+15}]"
    def wf(ks, n2):
        b = 64 + (ks & 1) * 8 + 4 * n2
        return b
    def rd(ks):
        for n2 in range(2):
            b = wf(ks, n2)
            for e in range(2):
                a(f"ds_read_b64_tr_b16 a[{b+2*e}:{b+2*e+1}], v{12+n2} offset:{(ks % 20)*2048 + e*1024}")
    stamp(a, 2)
    vm.wait("k0")
    stamp(a, 3)
    rd(0)
    for ks in range(28):
        if ks + 1 < 28:
            vm.wait(f"k{ks+1}")
            rd(ks + 1)
            a("s_waitcnt lgkmcnt(4)")
        else:
            a("s_waitcnt lgkmcnt(0)")
        for n2 in range(2):
            for m2 in range(2):
                b = wf(ks, n2)
                c_ = "0" if ks == 0 else acc(n2, m2)
                a(f"v_mfma_f32_32x32x16_bf16 {acc(n2,m2)}, a[{b}:{b+3}], v[{HH+8*ks+4*m2}:{HH+8*ks+4*m2+3}], {c_}")
        nk = ks + PRE
        if nk < 28:
            dma(nk); hload(nk)
    stamp(a, 4)
    a("s_lshl_b32 s50, s36, 1")
    a("s_mul_i32 s50, s50, 28")
    a("s_lshl_b32 s51, s37, 2")
    a("s_add_u32 s50, s50, s51")
    a("s_add_u32 s50, s50, s38")
    a("s_lshl_b32 s50, s50, 10")
    a(f"s_add_u32 s50, s50, {WS_HF}")
    a(f"v_mul_u32_u24 v7, 28672, v{HF}")
    a(f"v_lshl_add_u32 v7, v{M}, 4, v7")
    a(f"buffer_load_dwordx4 v[14:17], v7, s[32:35], s50 offen")
    a(f"buffer_load_dwordx4 v[18:21], v7, s[32:35], s50 offen offset:512")
    a(f"v_mul_u32_u24 v7, 272, v{M}")
    a(f"v_lshl_add_u32 v7, v{HF}, 4, v7")
    a(f"v_add_u32 v7, s47, v7")
    for n2 in range(2):
        for m2 in range(2):
            for q in range(4):
                b = 32*n2 + 16*m2 + 4*q
                a(f"ds_write_b128 v7, a[{b}:{b+3}] offset:{m2*32*272 + n2*128 + q*32}")
    a("s_waitcnt lgkmcnt(0)")
    a("s_barrier")
    stamp(a, 5)
    a(f"v_mul_u32_u24 v7, 272, v{LANE}")
    a("s_lshl_b32 s50, s38, 6")
    a(f"v_add_u32 v7, s50, v7")
    a(f"v_add_u32 v8, {2*K4_WREG}, v7")
    for w in range(4):
        for e in range(4):
            base = 7 if w < 2 else 8
            a(f"ds_read_b128 v[{28+16*w+4*e}:{28+16*w+4*e+3}], v{base} offset:{(w&1)*K4_WREG + e*16}")
    a("s_waitcnt lgkmcnt(0)")
    for j in range(16):
        a(f"v_add_f32 v{28+j}, v{28+j}, v{44+j}")
        a(f"v_add_f32 v{60+j}, v{60+j}, v{76+j}")
    for j in range(16):
        a(f"v_add_f32 v{28+j}, v{28+j}, v{60+j}")
    a("s_waitcnt vmcnt(0)")
    for i in range(8):
        a(f"v_cvt_pk_bf16_f32 v44, v{28+2*i}, v{28+2*i+1}")
        a(f"v_lshlrev_b32 v45, 16, v44")
        a(f"v_and_b32 v46, s41, v44")
        a(f"v_lshlrev_b32 v47, 16, v{14+i}")
        a(f"v_and_b32 v48, s41, v{14+i}")
        a(f"v_add_f32 v45, v45, v47")
        a(f"v_add_f32 v46, v46, v48")
        a(f"v_cvt_pk_bf16_f32 v{60+i}, v45, v46")
    a("s_lshl_b32 s50, s36, 6")
    a(f"v_add_u32 v7, s50, v{LANE}")
    a(f"v_mul_u32_u24 v7, 896, v7")
    a("s_lshl_b32 s50, s37, 7")
    a("s_lshl_b32 s51, s38, 5")
    a("s_add_u32 s50, s50, s51")
    a(f"buffer_store_dwordx4 v[60:63], v7, s[24:27], s50 offen")
    a(f"buffer_store_dwordx4 v[64:67], v7, s[24:27], s50 offen offset:16")
    if STAMPS: a("s_waitcnt vmcnt(0)")
    stamp(a, 9)
    stamp_flush(a, 38, 32, 3)
    a("K4_END:")
    a("s_endpgm")
    a.fix_hazards()
    k = kd("k4_kernel", 256).replace("next_free_vgpr 256", "next_free_vgpr 336")
    return a.text(), k

def kernels():
    return [("k3", gen_k3, 224, 256, K3_LDS), ("k4", gen_k4, 224, 256, K4_LDS)]
```

```python
import sys
from asmfw import Asm

WS_KV   = 0
WS_CS   = 512 * 1024
WS_ST   = 640 * 1024
WS_PHIQ = 1 << 20
WS_H    = 8 << 20
WS_HH   = 16 << 20
WS_SIZE = 268435456
LOG2E = 0x3fb8aa3b

class VM:
    def __init__(self, a): self.a = a; self.ops = []
    def issue(self, tag): self.ops.append(tag)
    def wait(self, tag, extra=0):
        idx = max(i for i, t in enumerate(self.ops) if t == tag)
        n = len(self.ops) - 1 - idx + extra
        assert n <= 63
        self.a("s_waitcnt vmcnt(%d)" % n)
    def copy(self):
        v = VM(self.a); v.ops = list(self.ops); return v

def srd(a, d, ptr, size):
    a(f"s_mov_b32 s{d}, s{ptr}")
    a(f"s_mov_b32 s{d+1}, s{ptr+1}")
    a(f"s_mov_b32 s{d+2}, {size}")
    a(f"s_mov_b32 s{d+3}, 0x00020000")

def bf16r(a, dst, src, tmp=None):
    a(f"v_cvt_pk_bf16_f32 v{dst}, v{src}, v{src}")
    a(f"v_and_b32 v{dst}, 0xffff0000, v{dst}")

def xhalf(a, op, dst, src, t1, t2):
    a(f"v_mov_b32 v{t1}, v{src}")
    a(f"v_mov_b32 v{t2}, v{src}")
    a(f"v_permlane32_swap_b32 v{t1}, v{t2}")
    a(f"{op} v{dst}, v{t1}, v{t2}")

def ln_stats_finish(a, vs, vq, v_mr, v_rstd, t1, t2, t3):
    xhalf(a, "v_add_f32", vs, vs, t1, t2)
    xhalf(a, "v_add_f32", vq, vq, t1, t2)
    a(f"v_mul_f32 v{vs}, 0x3b124925, v{vs}")
    a(f"v_mul_f32 v{vq}, 0x3b124925, v{vq}")
    a(f"v_fma_f32 v{vq}, -v{vs}, v{vs}, v{vq}")
    a(f"v_max_f32 v{vq}, 0, v{vq}")
    bf16r(a, vs, vs)
    bf16r(a, vq, vq)
    a(f"v_add_f32 v{vq}, 0x3727c5ac, v{vq}")
    bf16r(a, vq, vq)
    a(f"v_sqrt_f32 v{vq}, v{vq}")
    bf16r(a, vq, vq)
    a(f"v_rcp_f32 v{v_rstd}, v{vq}")
    a(f"v_mul_f32 v{v_mr}, v{vs}, v{v_rstd}")

def softmax_pm(a, P, E, F, OP, ON, T, s_hi, SC, OSC=None):
    for r in range(12, 16):
        a(f"v_cndmask_b32 v{P+r}, v{P+r}, v{P}, s[{s_hi}:{s_hi+1}]")
    mx, mn, t1, t2, se, sf = T, T+1, T+2, T+3, T+4, T+5
    a(f"v_max3_f32 v{mx}, v{P}, v{P+1}, v{P+2}")
    a(f"v_min3_f32 v{mn}, v{P}, v{P+1}, v{P+2}")
    for r in range(3, 15, 2):
        a(f"v_max3_f32 v{mx}, v{mx}, v{P+r}, v{P+r+1}")
        a(f"v_min3_f32 v{mn}, v{mn}, v{P+r}, v{P+r+1}")
    a(f"v_max_f32 v{mx}, v{mx}, v{P+15}")
    a(f"v_min_f32 v{mn}, v{mn}, v{P+15}")
    a(f"v_mov_b32 v{t1}, v{mx}")
    a(f"v_mov_b32 v{se}, v{mn}")
    a(f"v_permlane32_swap_b32 v{t1}, v{mx}")
    a(f"v_permlane32_swap_b32 v{se}, v{mn}")
    a(f"v_max_f32 v{mx}, v{t1}, v{mx}")
    a(f"v_min_f32 v{mn}, v{se}, v{mn}")
    a(f"v_mul_f32 v{mx}, v{SC}, v{mx}")
    a(f"v_mul_f32 v{mn}, v{SC}, v{mn}")
    for r in range(16):
        a(f"v_fma_f32 v{E+r}, v{P+r}, v{SC}, -v{mx}")
        a(f"v_fma_f32 v{F+r}, -v{P+r}, v{SC}, v{mn}")
        if r >= 1:
            a(f"v_exp_f32 v{E+r-1}, v{E+r-1}")
            a(f"v_exp_f32 v{F+r-1}, v{F+r-1}")
    a(f"v_exp_f32 v{E+15}, v{E+15}")
    a(f"v_exp_f32 v{F+15}, v{F+15}")
    a(f"v_add_f32 v{se}, v{E}, v{E+1}")
    a(f"v_add_f32 v{sf}, v{F}, v{F+1}")
    a(f"v_add_f32 v{t1}, v{E+2}, v{E+3}")
    a(f"v_add_f32 v{t2}, v{F+2}, v{F+3}")
    for r in range(4, 12, 2):
        a(f"v_add_f32 v{se}, v{se}, v{E+r}")
        a(f"v_add_f32 v{sf}, v{sf}, v{F+r}")
        a(f"v_add_f32 v{t1}, v{t1}, v{E+r+1}")
        a(f"v_add_f32 v{t2}, v{t2}, v{F+r+1}")
    for r in range(12, 16):
        a(f"v_cndmask_b32 v{E+r}, v{E+r}, 0, s[{s_hi}:{s_hi+1}]")
        a(f"v_cndmask_b32 v{F+r}, v{F+r}, 0, s[{s_hi}:{s_hi+1}]")
    for r in range(12, 16, 2):
        a(f"v_add_f32 v{se}, v{se}, v{E+r}")
        a(f"v_add_f32 v{sf}, v{sf}, v{F+r}")
        a(f"v_add_f32 v{t1}, v{t1}, v{E+r+1}")
        a(f"v_add_f32 v{t2}, v{t2}, v{F+r+1}")
    a(f"v_add_f32 v{se}, v{se}, v{t1}")
    a(f"v_add_f32 v{sf}, v{sf}, v{t2}")
    a(f"v_mov_b32 v{t1}, v{se}")
    a(f"v_mov_b32 v{t2}, v{sf}")
    a(f"v_permlane32_swap_b32 v{t1}, v{se}")
    a(f"v_permlane32_swap_b32 v{t2}, v{sf}")
    a(f"v_add_f32 v{se}, v{t1}, v{se}")
    a(f"v_add_f32 v{sf}, v{t2}, v{sf}")
    a(f"v_rcp_f32 v{se}, v{se}")
    a(f"v_rcp_f32 v{sf}, v{sf}")
    if OSC is not None:
        a(f"v_mul_f32 v{se}, v{se}, v{OSC}")
        a(f"v_mul_f32 v{sf}, v{sf}, v{OSC}")
    for i in range(8):
        a(f"v_mul_f32 v{E+2*i}, v{E+2*i}, v{se}")
        a(f"v_mul_f32 v{E+2*i+1}, v{E+2*i+1}, v{se}")
        a(f"v_cvt_pk_bf16_f32 v{OP+i}, v{E+2*i}, v{E+2*i+1}")
    for i in range(8):
        a(f"v_mul_f32 v{F+2*i}, v{F+2*i}, v{sf}")
        a(f"v_mul_f32 v{F+2*i+1}, v{F+2*i+1}, v{sf}")
        a(f"v_cvt_pk_bf16_f32 v{ON+i}, v{F+2*i}, v{F+2*i+1}")

def stats_finish(a, vs, vq, v_nmean, v_rstd, v_sd):
    a(f"v_mul_f32 v{vs}, 0x3b124925, v{vs}")
    a(f"v_mul_f32 v{vq}, 0x3b124925, v{vq}")
    a(f"v_fma_f32 v{vq}, -v{vs}, v{vs}, v{vq}")
    a(f"v_max_f32 v{vq}, 0, v{vq}")
    a(f"v_cvt_pk_bf16_f32 v{vs}, v{vq}, v{vs}")
    a(f"v_lshlrev_b32 v{vq}, 16, v{vs}")
    a(f"v_and_b32 v{vs}, 0xffff0000, v{vs}")
    a(f"v_add_f32 v{vq}, 0x3727c5ac, v{vq}")
    a(f"v_xor_b32 v{v_nmean}, 0x80000000, v{vs}")
    bf16r(a, vq, vq)
    a(f"v_sqrt_f32 v{vq}, v{vq}")
    bf16r(a, v_sd, vq)
    a(f"v_rcp_f32 v{v_rstd}, v{v_sd}")

def kd(name, vgpr, sgpr=96):
    acc = (vgpr + 3) // 4 * 4
    return f""".p2align 6
.amdhsa_kernel {name}
  .amdhsa_next_free_vgpr {vgpr}
  .amdhsa_next_free_sgpr {sgpr}
  .amdhsa_accum_offset {min(acc,256)}
  .amdhsa_group_segment_fixed_size 0
  .amdhsa_kernarg_size 88
  .amdhsa_user_sgpr_count 2
  .amdhsa_user_sgpr_kernarg_segment_ptr 1
  .amdhsa_system_sgpr_workgroup_id_x 1
.end_amdhsa_kernel"""

WS_STAMP = 64 << 20
import os
STAMPS = bool(int(os.environ.get("STAMPS", "0")))
def stamp(a, idx, real=False):
    if not STAMPS: return
    a(f"s_memrealtime s[{70+2*idx}:{71+2*idx}]" if real else f"s_memtime s[{70+2*idx}:{71+2*idx}]")

def stamp_init(a):
    if not STAMPS: return
    for i in range(70, 90): a(f"s_mov_b32 s{i}, 0")

def stamp_flush(a, s_wave, ws_srd, koff=0):
    if not STAMPS: return
    a("s_waitcnt lgkmcnt(0)")
    a("s_lshl_b32 s90, s2, 3")
    a(f"s_add_u32 s90, s90, s{s_wave}")
    a("s_lshl_b32 s90, s90, 6")
    a(f"s_add_u32 s90, s90, {WS_STAMP + koff*(1<<20)}")
    a("v_mov_b32 v1, s90")
    for i in range(10):
        a(f"v_mov_b32 v0, s{70+2*i}")
        a(f"buffer_store_dword v0, v1, s[{ws_srd}:{ws_srd+3}], 0 offen offset:{i*4}")

def head(a, name):
    a.raw(f".globl {name}\n.p2align 8\n.type {name},@function")
    a(f"{name}:")

K1_CS   = 0
K1_SQ   = 512
K1_SM   = 1536
K1_WP   = 2048
K1_RING = 4096
K1_SLOT = 28672
K1_LDS  = K1_RING + 5 * K1_SLOT
K1_PHIK = K1_RING
K1_V    = K1_PHIK + 16384

def gen_k1():
    a = Asm()
    head(a, "k1_kernel")
    a("s_cmp_ge_u32 s2, 256")
    a("s_cbranch_scc1 K1_END")
    stamp_init(a)
    stamp(a, 0, real=True)
    stamp(a, 1)
    a("s_load_dwordx4 s[4:7], s[0:1], 0")
    a("s_load_dwordx4 s[8:11], s[0:1], 16")
    a("s_load_dwordx4 s[12:15], s[0:1], 72")
    a("s_load_dwordx4 s[56:59], s[0:1], 40")
    LANE, M, HF, I16, G = 1, 2, 3, 4, 5
    a(f"v_and_b32 v{LANE}, 63, v0")
    a(f"v_lshrrev_b32 v6, 6, v0")
    a(f"v_readfirstlane_b32 s38, v6")
    a(f"v_and_b32 v{M}, 31, v{LANE}")
    a(f"v_lshrrev_b32 v{HF}, 5, v{LANE}")
    a(f"v_and_b32 v{I16}, 15, v{LANE}")
    a(f"v_lshrrev_b32 v{G}, 4, v{LANE}")
    a("s_and_b32 s36, s2, 7")
    a("s_lshl_b32 s36, s36, 1")
    a("s_bfe_u32 s37, s2, 0x10003")
    a("s_add_u32 s36, s36, s37")
    a("s_lshr_b32 s37, s2, 4")
    a("s_and_b32 s39, s38, 3")
    a("s_lshr_b32 s40, s38, 2")
    a("s_mov_b32 s42, 0")
    a("s_mov_b32 s43, -1")
    a(f"s_mov_b32 s44, {LOG2E}")
    a("s_mov_b32 s45, 0x3f803f80")
    a("s_mov_b32 s41, 0xffff0000")
    a("s_cmp_eq_u32 s40, 1")
    a("s_cbranch_scc1 K1_Q")

    PAT = 30
    def common_setup_early(vm):
        a("s_waitcnt lgkmcnt(0)")
        srd(a, 16, 4, 1835008)
        srd(a, 20, 6, 1204224)
        srd(a, 24, 8, 25088)
        srd(a, 28, 12, 256)
        srd(a, 32, 14, WS_SIZE)
        pass
    def rot_table(mult):
        a("s_and_b32 s60, s36, 1")
        a("s_mul_i32 s60, s60, 3")
        a("s_add_u32 s60, s60, s37")
        for _ in range(2):
            a("s_cmp_ge_u32 s60, 7")
            a("s_cselect_b32 s61, 7, 0")
            a("s_sub_u32 s60, s60, s61")
        a("s_mov_b32 s67, s60")
        for c in range(7):
            a(f"s_mul_i32 s{60+c}, s67, {mult}")
            a(f"s_add_u32 s{60+c}, s{60+c}, s47")
            if c < 6:
                a("s_add_u32 s67, s67, 1")
                a("s_cmp_ge_u32 s67, 7")
                a("s_cselect_b32 s67, 0, s67")
    def tail_prefetch():
        srd(a, 64, 10, 401408)
        a("s_lshr_b32 s60, s2, 3")
        a("s_lshl_b32 s60, s60, 2")
        a("s_add_u32 s60, s60, s39")
        a(f"v_lshlrev_b32 v226, 7, v{LANE}")
        a(f"v_mov_b32 v227, 0x7fff0000")
        a(f"v_cmp_gt_u32 vcc, 25, v{LANE}")
        a(f"v_cndmask_b32 v228, v227, v226, vcc")
        a("s_mul_i32 s61, s60, 3200")
        a("buffer_load_dword v229, v228, s[64:67], s61 offen")
        srd(a, 64, 56, 1605632)
        a("s_lshl_b32 s61, s60, 13")
        a("buffer_load_dword v230, v226, s[64:67], s61 offen")
    XV = 200; TB = 212
    def common_setup_late():
        a(f"v_lshrrev_b32 v7, 2, v{I16}")
        a(f"v_lshl_add_u32 v7, v{HF}, 3, v7")
        a(f"v_mul_u32_u24 v7, 192, v7")
        a(f"v_and_b32 v8, 1, v{G}")
        a(f"v_lshlrev_b32 v8, 2, v8")
        a(f"v_and_b32 v9, 3, v{I16}")
        a(f"v_add_u32 v8, v8, v9")
        a(f"v_lshl_add_u32 v7, v8, 3, v7")
        a("s_and_b32 s50, s37, 1")
        a("s_lshl_b32 s50, s50, 3")
        a(f"s_add_u32 s50, s50, {K1_RING + 16384}")
        a(f"v_add_u32 v{TB}, s50, v7")
        a(f"v_add_u32 v{TB+1}, {2*K1_SLOT}, v{TB}")
        a(f"v_add_u32 v{TB+2}, {4*K1_SLOT}, v{TB}")
        a("s_min_u32 s50, s39, 2")
        a("s_lshl_b32 s50, s50, 6")
        for st in range(3):
            a(f"v_add_u32 v{TB+3+st}, s50, v{TB+st}")
        a("s_lshl_b32 s50, s39, 5")
        a(f"v_add_u32 v7, s50, v{M}")
        a(f"v_lshrrev_b32 v8, 1, v7")
        a(f"v_and_b32 v8, 7, v8")
        a(f"v_xor_b32 v8, v8, v{HF}")
        a(f"v_lshlrev_b32 v8, 4, v8")
        a(f"v_lshl_add_u32 v11, v7, 7, v8")
        for p in range(4):
            a(f"v_xor_b32 v7, {p*32}, v11")
            for st in range(3):
                a(f"v_add_u32 v{XV+4*st+p}, {K1_RING + 2*st*K1_SLOT}, v7")

    LA = 2
    def mainloop(segs, ACC, XFb, WF, SQ, qrole, vm, dma_ops):
        ns = len(segs)
        NB = LA + 1
        a(f"v_mov_b32 v{SQ}, 0"); a(f"v_mov_b32 v{SQ+1}, 0")
        nr = 1 + 2 * ns
        def emit(op):
            for t_ in op[1]: a(t_)
            vm.issue(op[0])
        def reads(kk):
            c = kk // 4; slot = c % 5; p = kk % 4
            st = slot // 2; so = slot % 2
            xb = XFb + (kk % NB) * 4
            a(f"ds_read_b128 v[{xb}:{xb+3}], v{XV+4*st+p} offset:{so*K1_SLOT}")
            b = WF + (kk % NB) * ns * 4
            for i, sg in enumerate(segs):
                off = so * K1_SLOT + p * 3072 + (0 if sg == "cs" else sg * 64)
                tb = TB + st + (3 if sg == "cs" else 0)
                a(f"ds_read_b64_tr_b16 v[{b+4*i}:{b+4*i+1}], v{tb} offset:{off}")
                a(f"ds_read_b64_tr_b16 v[{b+4*i+2}:{b+4*i+3}], v{tb} offset:{off+768}")
        stamp(a, 2)
        for c in (2, 3, 4):
            for op in dma_ops(c): emit(op)
        vm.wait("c0")
        a("s_barrier")
        stamp(a, 3)
        queue = []
        for kk in range(LA): reads(kk)
        for kk in range(28):
            nk = kk + LA
            if nk < 28:
                if nk % 4 == 0:
                    c = nk // 4
                    while any(op[0] == f"c{c}" for op in queue): emit(queue.pop(0))
                    vm.wait(f"c{c}")
                    a("s_barrier")
                    if c in (2, 4): stamp(a, 3 + c // 2)
                    if c in (2, 3): queue += dma_ops(c + 3)
                reads(nk)
            out = min(28 - 1 - kk, LA) * nr
            a(f"s_waitcnt lgkmcnt({out})")
            b = WF + (kk % NB) * ns * 4
            xb = XFb + (kk % NB) * 4
            c0 = "0" if kk == 0 else None
            if qrole:
                for r in range(4):
                    a(f"v_cndmask_b32 v{qrole+r}, v{b+r}, v{qrole+4}, s[52:53]")
                a(f"v_mfma_f32_32x32x16_bf16 v[{ACC[1]}:{ACC[1]+15}], v[{b+4}:{b+7}], v[{qrole+4}:{qrole+7}], " + (c0 or f"v[{ACC[1]}:{ACC[1]+15}]"))
                a(f"v_lshlrev_b32 v10, 16, v{xb}")
                a(f"v_and_b32 v11, s41, v{xb}")
                a(f"v_fmac_f32 v{SQ}, v10, v10")
                a(f"v_fmac_f32 v{SQ+1}, v11, v11")
                a(f"v_mfma_f32_32x32x16_bf16 v[{ACC[0]}:{ACC[0]+15}], v[{qrole}:{qrole+3}], v[{xb}:{xb+3}], " + (c0 or f"v[{ACC[0]}:{ACC[0]+15}]"))
                a(f"v_lshlrev_b32 v10, 16, v{xb+1}")
                a(f"v_and_b32 v11, s41, v{xb+1}")
                a(f"v_fmac_f32 v{SQ}, v10, v10")
                a(f"v_fmac_f32 v{SQ+1}, v11, v11")
            else:
                for i in range(ns):
                    a(f"v_mfma_f32_32x32x16_bf16 v[{ACC[i]}:{ACC[i]+15}], v[{b+4*i}:{b+4*i+3}], v[{xb}:{xb+3}], " + (c0 or f"v[{ACC[i]}:{ACC[i]+15}]"))
                    a(f"v_lshlrev_b32 v10, 16, v{xb+2+i}")
                    a(f"v_and_b32 v11, s41, v{xb+2+i}")
                    a(f"v_fmac_f32 v{SQ}, v10, v10")
                    a(f"v_fmac_f32 v{SQ+1}, v11, v11")
            if queue: emit(queue.pop(0))
            if queue: emit(queue.pop(0))
        stamp(a, 6)
        a(f"v_add_f32 v{SQ}, v{SQ}, v{SQ+1}")
        a(f"v_lshlrev_b32 v7, 2, v{M}")
        a("s_lshl_b32 s50, s39, 7")
        a(f"v_add_u32 v9, s50, v7")
        xhalf(a, "v_add_f32", SQ, SQ, 10, 11)
        a(f"ds_write_b32 v9, v{SQ} offset:{K1_SQ + (512 if qrole else 0)}")

    def post_reads(segs, dsts, WPF, ST):
        a(f"v_lshlrev_b32 v8, 4, v{HF}")
        a(f"ds_read_b32 v{ST}, v9 offset:{K1_SM}")
        a(f"ds_read_b32 v{ST+1}, v9 offset:{K1_SQ}")
        a(f"ds_read_b32 v{ST+2}, v9 offset:{K1_SQ+512}")
        for sg, dst in zip(segs, dsts):
            for q in range(4):
                a(f"ds_read_b128 v[{dst+4*q}:{dst+4*q+3}], v8 offset:{K1_CS + sg*128 + q*32}")
        for s_ in range(2):
            for e in range(2):
                a(f"ds_read_b64_tr_b16 v[{WPF+4*s_+2*e}:{WPF+4*s_+2*e+1}], v12 offset:{K1_WP + (16*s_+8*e)*56}")

    def wp_addr():
        a(f"v_lshrrev_b32 v7, 2, v{I16}")
        a(f"v_lshl_add_u32 v7, v{HF}, 2, v7")
        a(f"v_mul_u32_u24 v7, 56, v7")
        a(f"v_and_b32 v8, 1, v{G}")
        a(f"v_lshlrev_b32 v8, 2, v8")
        a(f"v_and_b32 v9, 3, v{I16}")
        a(f"v_add_u32 v8, v8, v9")
        a(f"v_lshl_add_u32 v12, v8, 3, v7")

    def center_pack(ACC, CSV, NM, OUT):
        for i in range(8):
            a(f"v_fmac_f32 v{ACC+2*i}, v{CSV+2*i}, v{NM}")
            a(f"v_fmac_f32 v{ACC+2*i+1}, v{CSV+2*i+1}, v{NM}")
            a(f"v_cvt_pk_bf16_f32 v{OUT+i}, v{ACC+2*i}, v{ACC+2*i+1}")

    vmk = VM(a)
    for t in range(3):
        a(f"v_add_u32 v7, {t*64}, v{LANE}")
        a(f"v_mul_u32_u24 v8, 171, v7")
        a(f"v_lshrrev_b32 v8, 11, v8")
        a(f"v_mul_u32_u24 v9, 12, v8")
        a(f"v_sub_u32 v9, v7, v9")
        a(f"v_mul_u32_u24 v8, 2688, v8")
        a(f"v_lshrrev_b32 v7, 2, v9")
        a(f"v_mul_u32_u24 v7, 896, v7")
        a(f"v_and_b32 v9, 3, v9")
        a(f"v_lshlrev_b32 v9, 4, v9")
        a(f"v_add3_u32 v{PAT+t}, v7, v8, v9")
    a("s_mul_i32 s47, s37, 56")
    a("s_and_b32 s47, s47, 0xfffffff0")
    a("s_mul_i32 s48, s39, 43008")
    a("s_add_u32 s47, s47, s48")
    a("s_mul_i32 s49, s39, 3072")
    rot_table(64*2688)
    common_setup_early(vmk)
    def dma_w(c):
        return [(f"c{c}", [f"s_add_u32 m0, s49, {K1_RING + (c%5)*K1_SLOT + 16384 + t*1024}",
                           f"buffer_load_dwordx4 v{PAT+t}, s[20:23], s{60+c} offen lds"]) for t in range(3)]
    for c in range(2):
        for op in dma_w(c):
            for t_ in op[1]: a(t_)
            vmk.issue(op[0])
    a("s_mul_i32 s50, s37, 1568")
    a("s_and_b32 s51, s39, 1")
    a("s_lshl_b32 s51, s51, 10")
    a("s_add_u32 s50, s50, s51")
    a(f"s_add_u32 m0, s51, {K1_WP}")
    a(f"v_lshlrev_b32 v7, 4, v{LANE}")
    a("buffer_load_dwordx4 v7, s[24:27], s50 offen lds")
    vmk.issue("c1")
    common_setup_late()
    wp_addr()
    AK, AV = 100, 116
    mainloop([1, 2], [AK, AV], 34, 46, 72, None, vmk, dma_w)
    a("s_waitcnt lgkmcnt(0)")
    a("s_barrier")
    stamp(a, 7)
    CK, CV = 34, 50
    post_reads([1, 2], [CK, CV], 92, 66)
    a("s_lshl_b32 s50, s37, 2")
    a("s_add_u32 s50, s50, 64")
    a("v_mov_b32 v13, s50")
    a("buffer_load_dword v14, v13, s[28:31], 0 offen sc1")
    a("s_lshl_b32 s50, s39, 5")
    a(f"v_add_u32 v7, s50, v{M}")
    a(f"v_lshrrev_b32 v8, 1, v7")
    a(f"v_and_b32 v8, 7, v8")
    a(f"v_xor_b32 v8, v8, v{HF}")
    a(f"v_lshlrev_b32 v8, 3, v8")
    a(f"v_lshl_add_u32 v74, v7, 6, v8")
    a(f"v_lshrrev_b32 v8, 1, v7")
    a(f"v_and_b32 v8, 1, v8")
    a(f"v_lshlrev_b32 v8, 3, v8")
    a(f"v_and_b32 v9, 1, v7")
    a(f"v_or_b32 v8, v8, v9")
    a(f"v_lshrrev_b32 v9, 2, v7")
    a(f"v_and_b32 v9, 3, v9")
    a(f"v_lshl_or_b32 v8, v9, 1, v8")
    a(f"v_xor_b32 v8, v8, v{HF}")
    a(f"v_lshlrev_b32 v8, 3, v8")
    a(f"v_lshl_add_u32 v75, v7, 7, v8")
    a("s_waitcnt lgkmcnt(12)")
    a("v_add_f32 v67, v67, v68")
    stats_finish(a, 66, 67, 68, 69, 70)
    a("s_waitcnt lgkmcnt(0)")
    KFR, VFR = 132, 140
    center_pack(AK, CK, 68, KFR)
    a(f"v_cndmask_b32 v{KFR+6}, v{KFR+6}, 0, s[42:43]")
    a(f"v_cndmask_b32 v{KFR+7}, v{KFR+7}, 0, s[42:43]")
    PK = 148
    a(f"v_mfma_f32_32x32x16_bf16 v[{PK}:{PK+15}], v[92:95], v[{KFR}:{KFR+3}], 0")
    a(f"v_mfma_f32_32x32x16_bf16 v[{PK}:{PK+15}], v[96:99], v[{KFR+4}:{KFR+7}], v[{PK}:{PK+15}]")
    center_pack(AV, CV, 68, VFR)
    a(f"v_lshrrev_b32 v9, 16, v70")
    a(f"v_mul_f32 v71, s44, v69")
    a(f"v_cndmask_b32 v{VFR+6}, v{VFR+6}, v9, s[42:43]")
    a(f"v_cndmask_b32 v{VFR+7}, v{VFR+7}, 0, s[42:43]")
    for q in range(4):
        a(f"v_xor_b32 v9, {q*16}, v74")
        a(f"ds_write_b64 v9, v[{VFR+2*q}:{VFR+2*q+1}] offset:{K1_V}")
    E, F, OP, ON, T = 164, 180, 34, 42, 50
    softmax_pm(a, PK, E, F, OP, ON, T, 42, 71, 69)
    for t, src in ((0, OP), (1, ON)):
        for q in range(4):
            a(f"v_xor_b32 v9, {(8*t+2*q)*8}, v75")
            a(f"ds_write_b64 v9, v[{src+2*q}:{src+2*q+1}] offset:{K1_PHIK}")
    a(f"v_lshrrev_b32 v7, 2, v{I16}")
    a(f"v_lshl_add_u32 v7, v{HF}, 3, v7")
    a(f"v_and_b32 v8, 1, v{G}")
    a(f"v_lshlrev_b32 v8, 2, v8")
    a(f"v_and_b32 v9, 3, v{I16}")
    a(f"v_add_u32 v8, v8, v9")
    for e in range(2):
        a(f"v_add_u32 v9, {4*e}, v7")
        a(f"v_lshrrev_b32 v10, 1, v9")
        a(f"v_xor_b32 v10, v10, v8")
        a(f"v_lshlrev_b32 v10, 3, v10")
        a(f"v_lshl_add_u32 v{70+e}, v9, 6, v10")
        a(f"v_lshrrev_b32 v10, 1, v9")
        a(f"v_and_b32 v10, 1, v10")
        a(f"v_lshlrev_b32 v10, 3, v10")
        a(f"v_and_b32 v11, 1, v9")
        a(f"v_or_b32 v10, v10, v11")
        a(f"v_lshrrev_b32 v11, 2, v9")
        a(f"v_lshl_or_b32 v10, v11, 1, v10")
        a(f"v_xor_b32 v10, v10, v8")
        a(f"s_lshl_b32 s50, s39, 3")
        a(f"v_xor_b32 v10, s50, v10")
        a(f"v_lshlrev_b32 v10, 3, v10")
        a(f"v_lshl_add_u32 v{72+e}, v9, 7, v10")
    a("s_lshl_b32 s50, s37, 13")
    a("s_lshl_b32 s51, s39, 7")
    a("s_add_u32 s50, s50, s51")
    a(f"v_lshlrev_b32 v7, 10, v{HF}")
    a(f"v_lshl_add_u32 v7, v{M}, 2, v7")
    a(f"v_add_u32 v7, s50, v7")
    a(f"v_add_u32 v8, 4096, v7")
    a("s_waitcnt lgkmcnt(0)")
    a("s_barrier")
    stamp(a, 8)
    a("s_cmp_ge_u32 s39, 2")
    a("s_cbranch_scc1 K1_FIN")
    KV = 16
    for ks in range(8):
        b = 100 + ks * 8
        for e in range(2):
            a(f"ds_read_b64_tr_b16 v[{b+2*e}:{b+2*e+1}], v{70+e} offset:{K1_V + ks*1024}")
        for e in range(2):
            a(f"ds_read_b64_tr_b16 v[{b+4+2*e}:{b+4+2*e+1}], v{72+e} offset:{K1_PHIK + ks*2048}")
    for ks in range(8):
        b = 100 + ks * 8
        a(f"s_waitcnt lgkmcnt({min(15, (7-ks)*4)})")
        c = "0" if ks == 0 else f"v[{KV}:{KV+15}]"
        a(f"v_mfma_f32_32x32x16_bf16 v[{KV}:{KV+15}], v[{b}:{b+3}], v[{b+4}:{b+7}], {c}")
    a("s_waitcnt vmcnt(0)")
    a("v_readfirstlane_b32 s51, v14")
    a("s_cmp_lg_u32 s51, 0")
    a("s_cbranch_scc1 K1_GO")
    a("K1_POLL:")
    a("buffer_load_dword v14, v13, s[28:31], 0 offen sc1")
    a("s_waitcnt vmcnt(0)")
    a("v_readfirstlane_b32 s51, v14")
    a("s_cmp_eq_u32 s51, 0")
    a("s_cbranch_scc1 K1_POLL")
    a("K1_GO:")
    a("s_nop 7")
    for r in range(16):
        d = (r & 3) + 8 * (r >> 2)
        off = d * 256
        base = 7
        if off >= 4096: off -= 4096; base = 8
        a(f"buffer_atomic_add_f32 v{KV+r}, v{base}, s[32:35], 0 offen offset:{WS_KV + off}")
    a("s_branch K1_FIN")

    a("K1_Q:")
    vmq = VM(a)
    a(f"v_lshrrev_b32 v7, 3, v{LANE}")
    a(f"v_and_b32 v8, 7, v{LANE}")
    a(f"v_lshrrev_b32 v9, 1, v7")
    a(f"v_xor_b32 v8, v8, v9")
    a(f"v_mul_u32_u24 v7, 896, v7")
    a(f"v_lshl_add_u32 v30, v8, 4, v7")
    a(f"v_xor_b32 v31, 64, v30")
    a("s_lshl_b32 s46, s36, 7")
    a("s_lshl_b32 s47, s39, 5")
    a("s_add_u32 s46, s46, s47")
    a("s_mul_i32 s47, s46, 896")
    a("s_lshl_b32 s49, s39, 12")
    rot_table(128)
    common_setup_early(vmq)
    def dma_x(c):
        return [(f"c{c}", [f"s_add_u32 m0, s49, {K1_RING + (c%5)*K1_SLOT + i*1024}",
                           f"s_add_u32 s50, s{60+c}, {i*8*896}",
                           f"buffer_load_dwordx4 v{30+(i&1)}, s[16:19], s50 offen lds"]) for i in range(4)]
    for c in range(2):
        for op in dma_x(c):
            for t_ in op[1]: a(t_)
            vmq.issue(op[0])
    common_setup_late()
    wp_addr()
    a(f"v_cmp_eq_u32 s[52:53], 28, v{M}")
    for r in range(4): a(f"v_mov_b32 v{80+r}, s45")
    a("s_or_b32 s51, s36, s39")
    a("s_cmp_lg_u32 s51, 0")
    a("s_cbranch_scc1 K1_Q2")
    a("s_lshl_b32 s50, s37, 13")
    a(f"v_lshl_add_u32 v7, v{LANE}, 4, s50")
    for r in range(4): a(f"v_mov_b32 v{34+r}, 0")
    a("v_add_u32 v8, 4096, v7")
    for i in range(4):
        a(f"buffer_store_dwordx4 v[34:37], v7, s[32:35], 0 offen offset:{WS_KV + i*1024} sc1")
        a(f"buffer_store_dwordx4 v[34:37], v8, s[32:35], 0 offen offset:{WS_KV + i*1024} sc1")
    a("s_waitcnt vmcnt(0)")
    a("s_lshl_b32 s50, s37, 2")
    a("s_add_u32 s50, s50, 64")
    a("v_mov_b32 v7, s50")
    a("v_mov_b32 v8, 1")
    a("s_mov_b64 exec, 1")
    a("buffer_store_dword v8, v7, s[28:31], 0 offen sc1")
    a("s_mov_b64 exec, -1")
    a("s_waitcnt vmcnt(0)")
    a("K1_Q2:")
    AQ = 100
    ACS = 116
    mainloop([0, "cs"], [AQ, ACS], 34, 46, 72, 76, vmq, dma_x)
    a("s_mov_b64 exec, s[42:43]")
    a(f"ds_write_b32 v9, v{AQ+12} offset:{K1_SM}")
    a("s_mov_b32 s54, 1")
    a("s_mov_b32 s55, 1")
    a("s_mov_b64 exec, s[54:55]")
    a("s_min_u32 s50, s39, 2")
    a("s_lshl_b32 s50, s50, 7")
    a(f"v_lshl_add_u32 v8, v{HF}, 4, s50")
    for q in range(4):
        a(f"ds_write_b128 v8, v[{ACS+4*q}:{ACS+4*q+3}] offset:{K1_CS + q*32}")
    a("s_mov_b64 exec, -1")
    a("s_waitcnt lgkmcnt(0)")
    a("s_barrier")
    stamp(a, 7)
    CQ = 34
    post_reads([0], [CQ], 92, 66)
    tail_prefetch()
    a("s_waitcnt lgkmcnt(8)")
    a("v_add_f32 v67, v67, v68")
    stats_finish(a, 66, 67, 68, 69, 70)
    a("s_waitcnt lgkmcnt(0)")
    QFR = 132
    center_pack(AQ, CQ, 68, QFR)
    a(f"v_cndmask_b32 v{QFR+6}, v{QFR+6}, 0, s[42:43]")
    a(f"v_cndmask_b32 v{QFR+7}, v{QFR+7}, 0, s[42:43]")
    PQ = 148
    a(f"v_mfma_f32_32x32x16_bf16 v[{PQ}:{PQ+15}], v[92:95], v[{QFR}:{QFR+3}], 0")
    a(f"v_mfma_f32_32x32x16_bf16 v[{PQ}:{PQ+15}], v[96:99], v[{QFR+4}:{QFR+7}], v[{PQ}:{PQ+15}]")
    a(f"v_mul_f32 v71, s44, v69")
    a("s_lshl_b32 s50, s36, 2")
    a("s_add_u32 s50, s50, s39")
    a("s_lshl_b32 s50, s50, 4")
    a("s_add_u32 s50, s50, s37")
    a("s_lshl_b32 s50, s50, 12")
    a(f"s_add_u32 s50, s50, {WS_PHIQ}")
    a(f"v_lshlrev_b32 v7, 4, v{LANE}")
    softmax_pm(a, PQ, 164, 180, 36, 44, 52, 42, 71)
    for s_ in range(4):
        a(f"buffer_store_dwordx4 v[{36+4*s_}:{36+4*s_+3}], v7, s[32:35], s50 offen offset:{s_*1024}")
    stamp(a, 8)
    a("s_barrier")
    a("K1_FIN:")
    if STAMPS: a("s_waitcnt vmcnt(0)")
    stamp(a, 9)
    stamp_flush(a, 38, 32)
    a("K1_END:")
    a("s_endpgm")
    a.fix_hazards()
    return a.text(), kd("k1_kernel", 232)

def main():
    parts = []
    hdr = open("sequential_preLN__linear_kernel_hedgehog__glu_gated_glu__prompt.s.ref").read().split("; Override launch")[0]
    ks = [("k1", gen_k1, 256, 512, K1_LDS)]
    import gen2
    ks += gen2.kernels()
    out = [hdr.rstrip()]
    for nm, fn, g, b, lds in ks:
        out.append(f"; @launch kernel={nm}_kernel grid=({g},1,1) block=({b},1,1) lds={lds}")
    out.append('.amdgcn_target "amdgcn-amd-amdhsa--gfx950"')
    out.append(".text")
    kds = []
    for nm, fn, g, b, lds in ks:
        t, k = fn()
        out.append(t); kds.append(k)
    out.append('.section .rodata,"a"')
    out += kds
    open(sys.argv[1], "w").write("\n".join(out) + "\n")

if __name__ == "__main__":
    main()
```

```python
from asmfw import Asm
import gen
from gen import *

WS_HF = WS_H

K2_KV  = 0
K2_WO  = 69632
K2_RED = 0
K2_LDS = K2_WO + 456 * 128

def gen_k2():
    a = Asm()
    head(a, "k2_kernel")
    a("s_cmp_ge_u32 s2, 256")
    a("s_cbranch_scc1 K2_END")
    stamp_init(a); stamp(a, 0, real=True); stamp(a, 1)
    a("s_load_dwordx2 s[4:5], s[0:1], 0")
    a("s_load_dwordx2 s[6:7], s[0:1], 24")
    a("s_load_dwordx4 s[8:11], s[0:1], 40")
    a("s_load_dwordx2 s[14:15], s[0:1], 80")
    LANE, M, HF, I16, G = 1, 2, 3, 4, 5
    a(f"v_and_b32 v{LANE}, 63, v0")
    a(f"v_lshrrev_b32 v6, 6, v0")
    a(f"v_readfirstlane_b32 s38, v6")
    a(f"v_and_b32 v{M}, 31, v{LANE}")
    a(f"v_lshrrev_b32 v{HF}, 5, v{LANE}")
    a(f"v_and_b32 v{I16}, 15, v{LANE}")
    a(f"v_lshrrev_b32 v{G}, 4, v{LANE}")
    a("s_mov_b32 s42, 0")
    a("s_mov_b32 s43, -1")
    a("s_mov_b32 s41, 0xffff0000")
    a("s_cmp_ge_u32 s2, 224")
    a("s_cbranch_scc1 K2_CS")
    a("s_and_b32 s36, s2, 7")
    a("s_lshl_b32 s36, s36, 2")
    a("s_bfe_u32 s37, s2, 0x20003")
    a("s_add_u32 s36, s36, s37")
    a("s_lshr_b32 s37, s2, 5")
    a("s_and_b32 s39, s38, 1")
    a("s_lshr_b32 s40, s38, 1")
    a(f"v_lshlrev_b32 v10, 4, v{LANE}")
    a("s_lshl_b32 s44, s38, 14")
    a("s_lshl_b32 s50, s36, 1")
    a("s_add_u32 s50, s50, s39")
    a("s_lshl_b32 s50, s50, 4")
    a("s_lshl_b32 s51, s40, 2")
    a("s_add_u32 s50, s50, s51")
    a("s_lshl_b32 s45, s50, 12")
    a(f"s_add_u32 s45, s45, {WS_PHIQ}")
    a(f"v_lshrrev_b32 v7, 2, v{I16}")
    a(f"v_mul_u32_u24 v7, 1056, v7")
    a(f"v_and_b32 v8, 1, v{I16}")
    a(f"v_mul_u32_u24 v8, 528, v8")
    a(f"v_add_u32 v7, v7, v8")
    a(f"v_lshrrev_b32 v8, 1, v{I16}")
    a(f"v_and_b32 v8, 1, v8")
    a(f"v_lshl_add_u32 v7, v8, 3, v7")
    a(f"v_lshl_add_u32 v7, v{G}, 4, v7")
    a("s_mul_i32 s50, s38, 8448")
    a(f"v_add_u32 v19, s50, v7")
    a(f"v_lshrrev_b32 v7, 3, v{LANE}")
    a(f"v_and_b32 v8, 7, v{LANE}")
    a(f"v_lshrrev_b32 v9, 1, v7")
    a(f"v_and_b32 v9, 1, v9")
    a(f"v_lshlrev_b32 v9, 2, v9")
    a(f"v_xor_b32 v9, v8, v9")
    a(f"v_mul_u32_u24 v7, 896, v7")
    a(f"v_lshl_add_u32 v11, v9, 4, v7")
    a(f"v_lshl_add_u32 v86, v8, 4, v7")
    a("s_waitcnt lgkmcnt(0)")
    srd(a, 16, 4, 1835008)
    srd(a, 20, 6, 401408)
    srd(a, 32, 14, WS_SIZE)
    vm = VM(a)
    KR = 100
    a("s_lshr_b32 s56, s2, 3")
    for i in range(16):
        a(f"s_add_u32 s57, s56, {i}")
        a("s_and_b32 s57, s57, 15")
        a("s_lshl_b32 s51, s57, 10")
        a(f"s_add_u32 s51, s51, s44")
        a(f"buffer_load_dwordx4 v[{KR+4*i}:{KR+4*i+3}], v10, s[32:35], s51 offen offset:{WS_KV}")
        vm.issue(f"kv{i}")
    PQ = 164
    def pq_load(i):
        a(f"s_add_u32 s51, s45, {i*1024}")
        a(f"buffer_load_dwordx4 v[{PQ+4*i}:{PQ+4*i+3}], v10, s[32:35], s51 offen")
        vm.issue(f"pq{i>>2}")
    stamp(a, 2)
    for i in range(16):
        pq_load(i)
        vm.wait(f"kv{i}")
        a(f"v_cvt_pk_bf16_f32 v{KR+4*i}, v{KR+4*i}, v{KR+4*i+1}")
        a(f"v_cvt_pk_bf16_f32 v{KR+4*i+1}, v{KR+4*i+2}, v{KR+4*i+3}")
        a(f"s_add_u32 s57, s56, {i}")
        a("s_bfe_u32 s58, s57, 0x10003")
        a("s_mul_i32 s58, s58, 4224")
        a("s_and_b32 s57, s57, 7")
        a("s_lshl_b32 s57, s57, 6")
        a("s_add_u32 s57, s57, s58")
        a("v_add_u32 v87, s57, v19")
        a(f"ds_write_b64 v87, v[{KR+4*i}:{KR+4*i+1}] offset:{K2_KV}")
    a("s_mul_i32 s50, s38, 50176")
    a("s_lshl_b32 s51, s37, 7")
    a("s_add_u32 s50, s50, s51")
    a("s_mul_i32 s52, s38, 7168")
    wo_ops = []
    for i in range(7):
        wo_ops.append([f"s_add_u32 m0, s52, {K2_WO + i*1024}", f"s_add_u32 s51, s50, {i*8*896}", f"buffer_load_dwordx4 v11, s[20:23], s51 offen lds"])
    wo_ops.append([f"s_mov_b32 m0, {K2_WO + 448*128}", f"s_mov_b32 s51, {448*896}", f"buffer_load_dwordx4 v11, s[20:23], s51 offen lds"])
    wo_ops.append(["s_lshl_b32 s53, s36, 6", "s_lshl_b32 s51, s38, 3", "s_add_u32 s53, s53, s51", "s_mul_i32 s53, s53, 896", "s_lshl_b32 s51, s37, 7", "s_add_u32 s53, s53, s51",
                   "buffer_load_dwordx4 v[12:15], v86, s[16:19], s53 offen"])
    def emit_wo():
        if wo_ops:
            for t_ in wo_ops.pop(0): a(t_)
            vm.issue("wo")
    a(f"v_lshrrev_b32 v7, 2, v{I16}")
    a(f"v_lshl_add_u32 v8, v{HF}, 2, v7")
    a(f"v_lshrrev_b32 v7, 1, v7")
    a(f"v_lshlrev_b32 v7, 3, v7")
    a(f"v_and_b32 v9, 1, v{G}")
    a(f"v_lshl_add_u32 v7, v9, 2, v7")
    a(f"v_and_b32 v9, 3, v{I16}")
    a(f"v_add_u32 v7, v7, v9")
    a(f"v_lshlrev_b32 v7, 3, v7")
    a(f"v_lshl_add_u32 v7, v8, 7, v7")
    a("s_mul_i32 s51, s40, 14336")
    a(f"s_add_u32 s51, s51, {K2_WO}")
    a(f"v_add_u32 v16, s51, v7")
    a(f"v_xor_b32 v17, 64, v16")
    a("s_mul_i32 s51, s40, 16896")
    a(f"v_mul_u32_u24 v7, 528, v{HF}")
    a(f"v_lshl_add_u32 v7, v{M}, 4, v7")
    a(f"v_add_u32 v18, s51, v7")
    a("s_waitcnt lgkmcnt(0)")
    a("s_barrier")
    stamp(a, 3)
    KF = 100
    for hh in range(4):
        for s_ in range(4):
            a(f"ds_read_b128 v[{KF+16*hh+4*s_}:{KF+16*hh+4*s_+3}], v18 offset:{K2_KV + hh*4224 + s_*1056}")
    for _ in range(3): emit_wo()
    NUM = 20
    OF = 164
    def num_mfma(hh):
        vm.wait(f"pq{hh}")
        for s_ in range(4):
            if hh == 0 or True: a(f"s_waitcnt lgkmcnt({15 - (4*hh+s_)})")
            c = "0" if s_ == 0 else f"v[{NUM+16*hh}:{NUM+16*hh+15}]"
            a(f"v_mfma_f32_32x32x16_bf16 v[{NUM+16*hh}:{NUM+16*hh+15}], v[{KF+16*hh+4*s_}:{KF+16*hh+4*s_+3}], v[{PQ+16*hh+4*s_}:{PQ+16*hh+4*s_+3}], {c}")
    def o_valu(hh):
        N = NUM + 16 * hh
        a(f"v_mov_b32 v84, v{N+12}")
        a(f"v_mov_b32 v85, v{N+12}")
        a(f"v_permlane32_swap_b32 v84, v85")
        bf16r(a, 85, 85)
        a(f"v_add_f32 v85, 0x358637bd, v85")
        bf16r(a, 85, 85)
        a(f"v_rcp_f32 v85, v85")
        for i in range(8):
            a(f"v_mul_f32 v{N+2*i}, v{N+2*i}, v85")
            a(f"v_mul_f32 v{N+2*i+1}, v{N+2*i+1}, v85")
            a(f"v_cvt_pk_bf16_f32 v{OF+16*hh+i}, v{N+2*i}, v{N+2*i+1}")
        a(f"v_cndmask_b32 v{OF+16*hh+6}, v{OF+16*hh+6}, 0, s[42:43]")
        a(f"v_cndmask_b32 v{OF+16*hh+7}, v{OF+16*hh+7}, 0, s[42:43]")
    num_mfma(0)
    for hh in range(4):
        if hh + 1 < 4: num_mfma(hh + 1)
        emit_wo(); emit_wo()
        o_valu(hh)
    while wo_ops: emit_wo()
    stamp(a, 4)
    a("s_waitcnt vmcnt(1)")
    a("s_barrier")
    for hh in range(4):
        for s_ in range(2):
            for n2 in range(2):
                b = KF + 16*hh + 8*s_ + 4*n2
                for e in range(2):
                    a(f"ds_read_b64_tr_b16 v[{b+2*e}:{b+2*e+1}], v{16+n2} offset:{(hh*28 + 16*s_ + 8*e)*128}")
    a("s_lshl_b32 s50, s39, 5")
    a(f"v_add_u32 v7, s50, v{M}")
    a(f"v_mul_u32_u24 v7, 272, v7")
    a(f"v_lshl_add_u32 v7, v{HF}, 4, v7")
    a("s_mul_i32 s50, s40, 17408")
    a(f"v_add_u32 v7, s50, v7")
    AT = 20
    k = 0
    for hh in range(4):
        for s_ in range(2):
            for n2 in range(2):
                b = KF + 16*hh + 8*s_ + 4*n2
                k += 1
                a(f"s_waitcnt lgkmcnt({min(15, 32 - 2*k)})")
                c = "0" if (hh == 0 and s_ == 0) else f"v[{AT+16*n2}:{AT+16*n2+15}]"
                a(f"v_mfma_f32_32x32x16_bf16 v[{AT+16*n2}:{AT+16*n2+15}], v[{b}:{b+3}], v[{OF+16*hh+4*s_}:{OF+16*hh+4*s_+3}], {c}")
    for n2 in range(2):
        for q in range(4):
            a(f"ds_write_b128 v7, v[{AT+16*n2+4*q}:{AT+16*n2+4*q+3}] offset:{K2_RED + n2*128 + q*32}")
    a(f"v_lshrrev_b32 v8, 3, v{LANE}")
    a("s_lshl_b32 s50, s38, 3")
    a(f"v_add_u32 v8, s50, v8")
    a(f"v_and_b32 v9, 7, v{LANE}")
    a(f"v_mul_u32_u24 v60, 272, v8")
    a(f"v_lshl_add_u32 v60, v9, 5, v60")
    a(f"v_lshrrev_b32 v61, 5, v8")
    a(f"v_mul_u32_u24 v61, 28, v61")
    a(f"v_lshrrev_b32 v62, 1, v9")
    a(f"v_add_u32 v61, v61, v62")
    a(f"v_lshlrev_b32 v61, 10, v61")
    a(f"v_and_b32 v62, 1, v9")
    a(f"v_lshl_add_u32 v61, v62, 9, v61")
    a(f"v_and_b32 v62, 31, v8")
    a(f"v_lshl_add_u32 v61, v62, 4, v61")
    a(f"v_lshlrev_b32 v62, 6, v8")
    a(f"v_cmp_eq_u32 s[54:55], 0, v9")
    a("s_mul_i32 s50, s36, 57344")
    a("s_lshl_b32 s51, s37, 12")
    a("s_add_u32 s50, s50, s51")
    a(f"s_add_u32 s50, s50, {WS_HF}")
    a("s_lshl_b32 s51, s37, 3")
    a("s_lshl_b32 s52, s36, 12")
    a("s_add_u32 s51, s51, s52")
    a(f"s_add_u32 s51, s51, {WS_ST}")
    a("s_waitcnt lgkmcnt(0)")
    a("s_barrier")
    stamp(a, 5)
    for hg in range(4):
        for e in range(2):
            a(f"ds_read_b128 v[{20+8*hg+4*e}:{20+8*hg+4*e+3}], v60 offset:{K2_RED + hg*17408 + e*16}")
    a("s_waitcnt lgkmcnt(4)")
    for j in range(8): a(f"v_add_f32 v{20+j}, v{20+j}, v{28+j}")
    a("s_waitcnt lgkmcnt(0)")
    for j in range(8): a(f"v_add_f32 v{36+j}, v{36+j}, v{44+j}")
    for j in range(8): a(f"v_add_f32 v{20+j}, v{20+j}, v{36+j}")
    a("s_waitcnt vmcnt(0)")
    for i in range(4):
        a(f"v_cvt_pk_bf16_f32 v{28+i}, v{20+2*i}, v{20+2*i+1}")
    for i in range(4):
        a(f"v_lshlrev_b32 v{20+2*i}, 16, v{28+i}")
        a(f"v_and_b32 v{20+2*i+1}, s41, v{28+i}")
        a(f"v_lshlrev_b32 v{36+2*i}, 16, v{12+i}")
        a(f"v_and_b32 v{36+2*i+1}, s41, v{12+i}")
    for j in range(8): a(f"v_add_f32 v{20+j}, v{20+j}, v{36+j}")
    for i in range(4):
        a(f"v_cvt_pk_bf16_f32 v{28+i}, v{20+2*i}, v{20+2*i+1}")
    a(f"buffer_store_dwordx4 v[28:31], v61, s[32:35], s50 offen")
    a("v_add_f32 v36, v20, v21")
    a("v_mul_f32 v37, v20, v20")
    a("v_add_f32 v38, v22, v23")
    a("v_mul_f32 v39, v21, v21")
    for j in range(4, 8, 2):
        a(f"v_add_f32 v36, v36, v{20+j}")
        a(f"v_add_f32 v38, v38, v{20+j+1}")
    for j in range(2, 8, 2):
        a(f"v_fmac_f32 v37, v{20+j}, v{20+j}")
        a(f"v_fmac_f32 v39, v{20+j+1}, v{20+j+1}")
    a("v_add_f32 v36, v36, v38")
    a("v_add_f32 v37, v37, v39")
    for dpp in ("quad_perm:[1,0,3,2]", "quad_perm:[2,3,0,1]", "row_half_mirror"):
        a(f"v_add_f32_dpp v36, v36, v36 {dpp} row_mask:0xf bank_mask:0xf")
        a(f"v_add_f32_dpp v37, v37, v37 {dpp} row_mask:0xf bank_mask:0xf")
    a("s_mov_b64 exec, s[54:55]")
    a(f"buffer_store_dwordx2 v[36:37], v62, s[32:35], s51 offen")
    a("s_branch K2_FIN")

    a("K2_CS:")
    a("s_sub_u32 s36, s2, 224")
    a("s_lshr_b32 s37, s36, 4")
    a("s_and_b32 s36, s36, 15")
    a("s_waitcnt lgkmcnt(0)")
    a("s_cmp_eq_u32 s37, 0")
    a("s_cselect_b32 s20, s8, s10")
    a("s_cselect_b32 s21, s9, s11")
    a("s_mov_b32 s22, 1605632")
    a("s_mov_b32 s23, 0x00020000")
    srd(a, 32, 14, WS_SIZE)
    a("v_mul_u32_u24 v7, 4682, v0")
    a("v_lshrrev_b32 v7, 16, v7")
    a("v_mul_u32_u24 v8, 14, v7")
    a("v_sub_u32 v8, v0, v8")
    a("v_mul_u32_u24 v9, 3584, v7")
    a("v_lshl_add_u32 v9, v8, 4, v9")
    a("v_cmp_gt_u32 vcc, 36, v7")
    a("v_mov_b32 v10, 0x7ffff000")
    a("v_cndmask_b32 v9, v10, v9, vcc")
    a("s_mul_i32 s50, s36, 224")
    for i in range(13):
        a(f"s_add_u32 s51, s50, {i*36*3584}")
        a(f"buffer_load_dwordx4 v[{20+4*i}:{20+4*i+3}], v9, s[20:23], s51 offen")
    for j in range(8): a(f"v_mov_b32 v{80+j}, 0")
    a("s_sub_u32 s60, s2, 224")
    a("s_lshr_b32 s60, s60, 3")
    a("s_lshl_b32 s60, s60, 3")
    a("s_add_u32 s60, s60, s38")
    a("s_mul_i32 s61, s60, 12288")
    a("s_add_u32 s61, s61, 524288")
    a(f"v_lshlrev_b32 v90, 7, v{LANE}")
    a(f"v_cmp_gt_u32 vcc, 48, v{LANE}")
    a(f"v_cndmask_b32 v90, v10, v90, vcc")
    srd(a, 64, 8, 1605632)
    srd(a, 68, 10, 1605632)
    a("s_add_u32 s62, s61, 6144")
    a("buffer_load_dword v91, v90, s[64:67], s61 offen")
    a("buffer_load_dword v92, v90, s[68:71], s61 offen")
    a("buffer_load_dword v93, v90, s[64:67], s62 offen")
    a("buffer_load_dword v94, v90, s[68:71], s62 offen")
    for i in range(13):
        a(f"s_waitcnt vmcnt({16-i})")
        for r in range(4):
            a(f"v_lshlrev_b32 v11, 16, v{20+4*i+r}")
            a(f"v_and_b32 v12, s41, v{20+4*i+r}")
            a(f"v_add_f32 v{80+2*r}, v{80+2*r}, v11")
            a(f"v_add_f32 v{80+2*r+1}, v{80+2*r+1}, v12")
    a("v_mul_u32_u24 v11, 448, v7")
    a("v_lshl_add_u32 v11, v8, 5, v11")
    a("ds_write_b128 v11, v[80:83]")
    a("ds_write_b128 v11, v[84:87] offset:16")
    a("s_waitcnt lgkmcnt(0)")
    a("s_barrier")
    a("v_cmp_gt_u32 vcc, 112, v0")
    a("s_and_saveexec_b64 s[54:55], vcc")
    a("s_cbranch_execz K2_FIN")
    a("v_lshlrev_b32 v11, 2, v0")
    for i in range(36):
        a(f"ds_read_b32 v{20+i}, v11 offset:{i*448}")
    a("s_waitcnt lgkmcnt(0)")
    for i in range(1, 36):
        a(f"v_add_f32 v20, v20, v{20+i}")
    a("v_cvt_pk_bf16_f32 v21, v20, v20")
    a("v_and_b32 v22, s41, v21")
    a("v_sub_f32 v22, v20, v22")
    a("v_cvt_pk_bf16_f32 v22, v22, v22")
    a("s_mul_i32 s50, s36, 112")
    a("v_add_u32 v11, s50, v0")
    a("v_lshrrev_b32 v12, 7, v11")
    a("v_lshlrev_b32 v12, 11, v12")
    a("v_bfe_u32 v13, v11, 4, 3")
    a("v_lshl_add_u32 v12, v13, 3, v12")
    a("v_and_b32 v13, 15, v11")
    a("v_lshl_add_u32 v11, v13, 6, v12")
    a("s_lshl_b32 s50, s37, 10")
    a(f"s_add_u32 s50, s50, {WS_CS}")
    a("v_mov_b32 v24, v21")
    a("v_mov_b32 v25, v22")
    a("buffer_store_dwordx2 v[24:25], v11, s[32:35], s50 offen")
    a("K2_FIN:")
    if STAMPS:
        a("s_mov_b64 exec, -1")
        a("s_waitcnt vmcnt(0)")
    stamp(a, 9)
    stamp_flush(a, 38, 32, 1)
    a("K2_END:")
    a("s_endpgm")
    a.fix_hazards()
    return a.text(), kd("k2_kernel", 232)

import gen3
def kernels():
    return [("k2", gen_k2, 256, 512, K2_LDS)] + gen3.kernels()
```

```python
from asmfw import Asm
import os
import gen
from gen import *
WS_HF = WS_H

K3_SLOT = 16384
K3_NS   = 6
PFI = int(os.environ.get('PFI', '51'))
K3_LDS  = 163840
WS_FLAG = 768 * 1024

def gen_k3():
    a = Asm()
    head(a, "k3_kernel")
    a("s_cmp_ge_u32 s2, 256")
    a("s_cbranch_scc1 K3_END")
    stamp_init(a); stamp(a, 0, real=True); stamp(a, 1)
    a("s_load_dwordx4 s[8:11], s[0:1], 40")
    a("s_load_dwordx4 s[4:7], s[0:1], 56")
    a("s_load_dwordx2 s[14:15], s[0:1], 80")
    LANE, M, HF, I16, G = 1, 2, 3, 4, 5
    a(f"v_and_b32 v{LANE}, 63, v0")
    a(f"v_lshrrev_b32 v6, 6, v0")
    a(f"v_readfirstlane_b32 s38, v6")
    a(f"v_and_b32 v{M}, 31, v{LANE}")
    a(f"v_lshrrev_b32 v{HF}, 5, v{LANE}")
    a(f"v_and_b32 v{I16}, 15, v{LANE}")
    a(f"v_lshrrev_b32 v{G}, 4, v{LANE}")
    a("s_mov_b32 s41, 0xffff0000")
    a("s_cmp_ge_u32 s2, 224")
    a("s_cbranch_scc1 K3_PF")
    a("s_and_b32 s36, s2, 7")
    a("s_lshl_b32 s36, s36, 1")
    a("s_bfe_u32 s37, s2, 0x10003")
    a("s_add_u32 s36, s36, s37")
    a("s_lshr_b32 s37, s2, 4")
    a("s_and_b32 s39, s38, 1")
    a("s_lshr_b32 s40, s38, 1")
    a(f"v_lshrrev_b32 v7, 3, v{LANE}")
    a(f"v_and_b32 v8, 2, v7")
    a(f"v_add_u32 v8, s39, v8")
    a(f"v_lshlrev_b32 v8, 1, v8")
    a(f"v_and_b32 v9, 7, v{LANE}")
    a(f"v_xor_b32 v8, v8, v9")
    a(f"v_mul_u32_u24 v7, 3584, v7")
    a(f"v_lshl_add_u32 v10, v8, 4, v7")
    a(f"v_lshlrev_b32 v11, 4, v{LANE}")
    a("s_mul_i32 s46, s40, 114688")
    a("s_lshl_b32 s47, s37, 8")
    a("s_add_u32 s46, s46, s47")
    a("s_and_b32 s57, s36, 1")
    a("s_lshl_b32 s58, s57, 7")
    a("s_xor_b32 s59, s58, 128")
    a("s_add_u32 s56, s46, s59")
    a("s_add_u32 s46, s46, s58")
    a("s_lshl_b32 s47, s39, 13")
    a("s_lshl_b32 s48, s40, 12")
    a("s_add_u32 s47, s47, s48")
    a("s_lshl_b32 s48, s36, 2")
    a("s_add_u32 s48, s48, s38")
    a("s_mul_i32 s49, s48, 28672")
    a(f"s_add_u32 s49, s49, {WS_HF}")
    a("s_waitcnt lgkmcnt(0)")
    a("s_cmp_eq_u32 s39, 0")
    a("s_cselect_b32 s20, s8, s10")
    a("s_cselect_b32 s21, s9, s11")
    a("s_mov_b32 s22, 1605632")
    a("s_mov_b32 s23, 0x00020000")
    srd(a, 32, 14, WS_SIZE)
    vm = VM(a)
    def dma_ops(C):
        ph, c = C // 7, C % 7
        return [(f"c{C}", [f"s_add_u32 m0, s47, {(C % K3_NS)*K3_SLOT + i*1024}",
                           f"s_add_u32 s50, s{56 if ph else 46}, {(c*64 + i*8)*3584}",
                           f"buffer_load_dwordx4 v10, s[20:23], s50 offen lds"]) for i in range(4)]
    def h_ops(kk, tag):
        return [(tag, [f"s_add_u32 s50, s49, {kk*1024}",
                       f"buffer_load_dwordx4 a[{4*kk}:{4*kk+3}], v11, s[32:35], s50 offen"])]
    def emit(op):
        for t_ in op[1]: a(t_)
        vm.issue(op[0])
    def chunk_ops(C):
        d = dma_ops(C)
        if C >= 7: return d
        out = []
        for i in range(4): out += [d[i]] + h_ops(4*C + i, f"c{C}")
        return out
    for C in range(2):
        for op in chunk_ops(C): emit(op)
    TM = 12
    a(f"v_and_b32 v7, 1, v{G}")
    a(f"v_lshrrev_b32 v8, 2, v{I16}")
    a(f"v_and_b32 v9, 2, v8")
    a(f"v_add_u32 v9, v9, v7")
    a(f"v_lshl_add_u32 v8, v{HF}, 3, v8")
    a(f"v_lshlrev_b32 v8, 7, v8")
    a(f"v_lshl_add_u32 v8, v7, 13, v8")
    a(f"v_and_b32 v7, 3, v{I16}")
    a(f"v_lshl_add_u32 v8, v7, 3, v8")
    a(f"v_lshl_add_u32 v8, v9, 5, v8")
    for t in range(4):
        a(f"v_xor_b32 v{TM+t}, {t*32}, v8")
        a(f"v_add_u32 v{TM+4+t}, 0x10000, v{TM+t}")
        a(f"v_add_u32 v{TM+8+t}, 0x20000, v{TM+t}")
    WF = 36
    def acc(t): return f"v[{128+16*t}:{128+16*t+15}]"
    def rd_ops(ph, kk, t, dst):
        C = ph * 7 + kk // 4; slot = C % K3_NS
        return [f"ds_read_b64_tr_b16 v[{dst+2*e}:{dst+2*e+1}], v{TM + 4*(slot//4) + t} offset:{(slot%4)*K3_SLOT + (kk%4)*2048 + e*512}" for e in range(2)]
    a(f"v_lshlrev_b32 v9, 6, v{M}")
    a(f"v_lshl_add_u32 v118, v{HF}, 5, v9")
    a(f"v_accvgpr_write_b32 a128, 0")
    a(f"v_accvgpr_write_b32 a129, 0")
    a("s_lshl_b32 s52, s48, 11")
    a(f"s_add_u32 s52, s52, {WS_ST}")
    a("s_lshl_b32 s53, s37, 11")
    a(f"s_add_u32 s53, s53, {WS_CS}")
    a("s_lshl_b32 s58, s57, 5")
    a("s_xor_b32 s59, s58, 32")
    a("s_add_u32 s55, s53, s59")
    a("s_add_u32 s53, s53, s58")
    misc = []
    for j in range(2):
        misc.append(("ms", [f"buffer_load_dwordx4 v[{100+4*j}:{100+4*j+3}], v118, s[32:35], s52 offen offset:{j*16}"]))
    for j in range(4):
        misc.append(("ms", [f"buffer_load_dwordx4 a[{112+4*j}:{112+4*j+3}], v9, s[32:35], s{55 if j >= 2 else 53} offen offset:{(j&1)*16}"]))
    a("s_mul_i32 s54, s48, 114688")
    a("s_lshl_b32 s51, s37, 13")
    a("s_add_u32 s54, s54, s51")
    a(f"s_add_u32 s54, s54, {WS_HH}")
    a("s_lshl_b32 s58, s57, 12")
    a("s_xor_b32 s59, s58, 4096")
    a("s_add_u32 s62, s54, s59")
    a("s_add_u32 s54, s54, s58")
    NM, RS, SD, NSC = 114, 115, 116, 117
    fin = Asm()
    fin(f"v_cmp_gt_u32 vcc, 32, v{LANE}")
    fin(f"v_cndmask_b32 v106, 0, v106, vcc")
    fin(f"v_cndmask_b32 v107, 0, v107, vcc")
    for j in range(1, 4):
        fin(f"v_add_f32 v100, v100, v{100+2*j}")
        fin(f"v_add_f32 v101, v101, v{100+2*j+1}")
    xhalf(fin, "v_add_f32", 100, 100, 102, 103)
    xhalf(fin, "v_add_f32", 101, 101, 104, 105)
    stats_finish(fin, 100, 101, NM, RS, SD)
    fin(f"v_mul_f32 v{NSC}, 0xbfb8aa3b, v{RS}")
    fin(f"v_lshrrev_b32 v104, 16, v{NM}")
    fin(f"v_cmp_gt_u32 vcc, 32, v{LANE}")
    fin(f"v_cndmask_b32 v104, 0, v104, vcc")
    fin(f"v_mov_b32 v105, v104")
    fin(f"v_mov_b32 v106, 0")
    fin(f"v_mov_b32 v107, 0")
    fin_ops = [i.text for i in fin.ins]
    deferred = []
    def ep_ops(t):
        A_ = 128 + 16 * t
        OUT = A_
        ep = [f"v_mul_f32 v{A_+r}, v{NSC}, v{A_+r}" for r in range(8)]
        ep += [f"v_exp_f32 v{A_+r}, v{A_+r}" for r in range(8)]
        ep += [f"v_fma_f32 v{A_+r}, v{A_+r}, v{SD}, v{SD}" for r in range(8)]
        ep += [f"v_rcp_f32 v{A_+r}, v{A_+r}" for r in range(8)]
        ep += [f"v_mul_f32 v{A_+8+r}, v{A_+8+r}, v{A_+r}" for r in range(8)]
        ep += [f"v_cvt_pk_bf16_f32 v{OUT+i}, v{A_+8+2*i}, v{A_+8+2*i+1}" for i in range(4)]
        st_ = ("ST", f"s_add_u32 s50, s{62 if t >= 4 else 54}, {(t&3)*1024}", f"buffer_store_dwordx4 v[{OUT}:{OUT+3}], v11, s[32:35], s50 offen sc1")
        ep += [st_]
        return ep
    def emit_valu(vq, n):
        for _ in range(n):
            if not vq: return
            o = vq.pop(0)
            if isinstance(o, tuple):
                a(o[1]); a(o[2]); vm.issue("st")
            else: a(o)
    srd(a, 16, 4, 1605632)
    srd(a, 24, 6, 1835008)
    a("s_and_b32 s64, s37, 1")
    a("s_lshl_b32 s65, s36, 1")
    a("s_add_u32 s64, s64, s65")
    a("s_lshr_b32 s65, s37, 1")
    a(f"v_lshrrev_b32 v7, 3, v{LANE}")
    a(f"v_and_b32 v8, 7, v{LANE}")
    a(f"v_lshrrev_b32 v27, 1, v7")
    a(f"v_and_b32 v27, 1, v27")
    a(f"v_lshlrev_b32 v27, 2, v27")
    a(f"v_xor_b32 v27, v8, v27")
    a(f"v_mul_u32_u24 v32, 896, v7")
    a(f"v_lshl_add_u32 v27, v27, 4, v32")
    a(f"v_lshl_add_u32 v32, v8, 4, v32")
    a(f"v_lshrrev_b32 v26, 1, v8")
    a(f"v_lshlrev_b32 v26, 10, v26")
    a(f"v_and_b32 v31, 1, v8")
    a(f"v_lshl_add_u32 v26, v31, 9, v26")
    a(f"v_lshl_add_u32 v26, v7, 4, v26")
    a("s_mul_i32 s63, s64, 57344")
    a("s_lshl_b32 s66, s65, 12")
    a("s_add_u32 s63, s63, s66")
    a("s_lshr_b32 s66, s38, 1")
    a("s_mul_i32 s66, s66, 28672")
    a("s_add_u32 s63, s63, s66")
    a("s_and_b32 s66, s38, 1")
    a("s_lshl_b32 s66, s66, 8")
    a("s_add_u32 s63, s63, s66")
    a(f"s_add_u32 s63, s63, {WS_HF}")
    a("s_lshl_b32 s66, s38, 4")
    a(f"v_add_u32 v31, s66, v7")
    a(f"v_mul_u32_u24 v31, 272, v31")
    a(f"v_lshl_add_u32 v31, v8, 5, v31")
    a(f"v_add_u32 v33, 49152, v31")
    a("s_lshl_b32 s76, s64, 6")
    a("s_add_u32 s76, s76, s66")
    a("s_mul_i32 s76, s76, 896")
    a("s_lshl_b32 s66, s65, 7")
    a("s_add_u32 s76, s76, s66")
    a("s_mul_i32 s66, s38, 401408")
    a("s_lshl_b32 s67, s65, 7")
    a("s_add_u32 s66, s66, s67")
    a("s_mul_i32 s67, s64, 229376")
    a("s_mul_i32 s77, s38, 28672")
    a("s_add_u32 s67, s67, s77")
    a(f"s_add_u32 s67, s67, {WS_HH}")
    for g_ in range(4):
        a(f"s_add_u32 s77, s64, {g_}")
        a("s_and_b32 s77, s77, 3")
        a(f"s_mul_i32 s{68+g_}, s77, {7*16*896}")
        a(f"s_add_u32 s{68+g_}, s{68+g_}, s66")
        a(f"s_mul_i32 s{72+g_}, s77, 7168")
        a(f"s_add_u32 s{72+g_}, s{72+g_}, s67")
    a("s_mul_i32 s78, s38, 24576")
    a("s_lshl_b32 s79, s38, 14")
    a("s_add_u32 s79, s79, 98304")
    a(f"v_lshrrev_b32 v7, 2, v{I16}")
    a(f"v_lshl_add_u32 v8, v{HF}, 2, v7")
    a(f"v_lshrrev_b32 v7, 1, v7")
    a(f"v_lshlrev_b32 v7, 3, v7")
    a(f"v_and_b32 v30, 1, v{G}")
    a(f"v_lshl_add_u32 v7, v30, 2, v7")
    a(f"v_and_b32 v30, 3, v{I16}")
    a(f"v_add_u32 v7, v7, v30")
    a(f"v_lshlrev_b32 v7, 3, v7")
    a(f"v_lshl_add_u32 v7, v8, 7, v7")
    a(f"v_add_u32 v28, s78, v7")
    a(f"v_xor_b32 v29, 64, v28")
    a(f"v_add_u32 v24, s79, v7")
    a(f"v_xor_b32 v25, 64, v24")
    a(f"v_mul_u32_u24 v30, 272, v{M}")
    a(f"v_lshl_add_u32 v30, v{HF}, 4, v30")
    a(f"v_add_u32 v30, s78, v30")
    NREG = 8; NRES = 16
    def d_dma(ks):
        sb, lo = (79, (ks % 8) * 2048) if ks < NRES else (78, (ks - NRES) * 2048)
        return [(f"w{ks}", [f"s_add_u32 m0, s{sb}, {lo + i*1024}",
                            f"s_add_u32 s50, s{68+ks//7}, {((ks%7)*16 + i*8)*896}",
                            f"buffer_load_dwordx4 v27, s[16:19], s50 offen lds"]) for i in range(2)]
    def d_stage(ks):
        vm.wait(f"w{ks}")
        for n2 in range(2):
            for e in range(2):
                a(f"ds_read_b64_tr_b16 a[{130+8*ks+4*n2+2*e}:{130+8*ks+4*n2+2*e+1}], v{24+n2} offset:{(ks%8)*2048 + e*1024}")
    dstate = {"next_dma": 0, "next_stage": 0, "dma_at": {}, "stage_at": {}, "ops": []}
    def d_tick(i):
        st = dstate
        ks = st["next_stage"]
        if ks < NREG and 7 in st["dma_at"] and i >= 184:
            d_stage(ks); st["stage_at"][ks] = i; st["next_stage"] += 1
        if not st["ops"]:
            kd_ = st["next_dma"]
            if kd_ < NRES and (kd_ < 8 or (kd_ - 8 in st["stage_at"] and i - st["stage_at"][kd_ - 8] >= 9)):
                st["ops"] = d_dma(kd_); st["cur"] = kd_; st["next_dma"] += 1
        if st["ops"]:
            emit(st["ops"].pop(0))
            if not st["ops"]: st["dma_at"][st["cur"]] = i
    stamp(a, 2)
    vm.wait("c0")
    a("s_barrier")
    stamp(a, 3)
    NK1 = 20
    seq = [(0, kk, t) for kk in range(28) for t in range(4)] + [(1, kk, t) for kk in range(NK1) for t in range(4)]
    seq += [(1, kk, t) for t in range(4) for kk in range(NK1, 28)]
    LAH = 7
    NBUF = 16
    queue = chunk_ops(2) + chunk_ops(3) + chunk_ops(4) + chunk_ops(5)
    late = []
    ready = {0}
    vq = []
    def need_chunk(C):
        nonlocal queue, late
        if C in ready: return
        if any(op[0] == f"c{C}" for op in late):
            queue += late; late = []
        while any(op[0] == f"c{C}" for op in queue): emit(queue.pop(0))
        vm.wait(f"c{C}")
        a("s_barrier")
        ready.add(C)
        if 6 <= C + 4 <= 13: late += chunk_ops(C + 4)
        if C == 2: late += misc
    def issue_reads(i):
        ph, kk, t = seq[i]
        need_chunk(ph * 7 + kk // 4)
        for o in rd_ops(ph, kk, t, WF + 4 * (i % NBUF)): a(o)
    for i in range(LAH): issue_reads(i)
    for i, (ph, kk, t) in enumerate(seq):
        if i + LAH < len(seq):
            issue_reads(i + LAH)
            if i % 2 == 0: a(f"s_waitcnt lgkmcnt({2*LAH-2})")
        elif i % 2 == 0:
            a(f"s_waitcnt lgkmcnt({max(0, 2*(len(seq)-2-i))})")
        T = ph * 4 + t
        b = WF + 4 * (i % NBUF)
        c_ = "0" if kk == 0 else acc(T)
        a(f"v_mfma_f32_32x32x16_bf16 {acc(T)}, v[{b}:{b+3}], a[{4*kk}:{4*kk+3}], {c_}")
        if kk == 27:
            a(f"v_mfma_f32_32x32x16_bf16 {acc(T)}, a[{112+2*T}:{112+2*T+3}], v[104:107], {acc(T)}")
            vq += ep_ops(T)
        if ph == 0 and kk == 22 and t == 0:
            vm.wait("ms")
            vq += fin_ops
        if i == 112: stamp(a, 4)
        if i == 112 + 4 * NK1:
            stamp(a, 5)
        if i % 2 == 0 or i < 12:
            if queue: emit(queue.pop(0))
            elif late: emit(late.pop(0))
            elif 9 in ready: d_tick(i)
        if not (kk == 27): emit_valu(vq, 3 if i < 112 + 4 * NK1 else 6)
    emit_valu(vq, 10000)
    while late: emit(late.pop(0))
    print("D staging state at end of C:", dstate["next_dma"], dstate["next_stage"])
    stamp(a, 6)
    a("s_lshl_b32 s50, s2, 7")
    a("s_lshl_b32 s51, s38, 2")
    a("s_add_u32 s50, s50, s51")
    a(f"s_add_u32 s50, s50, {WS_FLAG}")
    a("v_mov_b32 v100, 1")
    a("v_mov_b32 v101, 0")
    a("s_and_b32 s51, s2, 15")
    a("s_lshl_b32 s51, s51, 7")
    a("s_and_b32 s52, s64, 1")
    a("s_lshl_b32 s52, s52, 3")
    a("s_add_u32 s51, s51, s52")
    a(f"s_add_u32 s51, s51, {WS_FLAG}")
    a(f"v_lshrrev_b32 v102, 1, v{LANE}")
    a(f"v_min_u32 v102, 13, v102")
    a(f"v_lshlrev_b32 v102, 11, v102")
    a(f"v_and_b32 v103, 1, v{LANE}")
    a(f"v_lshl_add_u32 v102, v103, 2, v102")
    a("s_waitcnt vmcnt(0)")
    a("s_mov_b64 exec, 1")
    a("buffer_store_dword v100, v101, s[32:35], s50 offen sc1")
    a("s_mov_b64 exec, -1")
    ii = 1000
    while dstate["next_dma"] < NRES or dstate["next_stage"] < NREG or dstate["ops"]:
        a("s_waitcnt lgkmcnt(0)")
        for _ in range(4):
            ii += 20; d_tick(ii)
            if dstate["stage_at"].get(dstate["next_stage"] - 1) == ii: break
    a("s_barrier")
    a("s_mov_b32 s53, 0")
    a("K3_POLL:")
    a("buffer_load_dword v103, v102, s[32:35], s51 offen sc1")
    a("s_add_u32 s53, s53, 1")
    a("s_waitcnt vmcnt(0)")
    a("v_cmp_ne_u32 vcc, 1, v103")
    a("s_cmp_gt_u32 s53, 0x400000")
    a("s_cbranch_scc1 K3_POLLX")
    a("s_cmp_lg_u64 vcc, 0")
    a("s_cbranch_scc1 K3_POLL")
    a("K3_POLLX:")
    stamp(a, 7)
    vm = VM(a)
    NH = 14
    def hh_ops(ks):
        return [(f"k{ks}", [f"s_add_u32 s50, s{72+ks//7}, {m2*114688 + (ks%7)*1024}",
                            f"buffer_load_dwordx4 a[{(ks%NH)*8+4*m2}:{(ks%NH)*8+4*m2+3}], v11, s[32:35], s50 offen sc1"]) for m2 in range(2)]
    for ks in range(NH):
        for op in hh_ops(ks): emit(op)
    def dacc(n2, m2): return f"v[{128+32*n2+16*m2}:{128+32*n2+16*m2+15}]"
    def drd(ks):
        if ks < NREG: return 0
        base, off = (24, (ks % 8) * 2048) if ks < NRES else (28, (ks - NRES) * 2048)
        for n2 in range(2):
            b = 36 + (ks & 1) * 8 + 4 * n2
            for e in range(2):
                a(f"ds_read_b64_tr_b16 v[{b+2*e}:{b+2*e+1}], v{base+n2} offset:{off + e*1024}")
        return 4
    for ks in range(28):
        n_ = 0
        if ks + 1 < 28:
            if ks + 1 >= NRES: vm.wait(f"w{ks+1}")
            n_ = drd(ks + 1)
        vm.wait(f"k{ks}")
        if ks >= NREG - 1: a(f"s_waitcnt lgkmcnt({n_})")
        for n2 in range(2):
            for m2 in range(2):
                wsrc = f"a[{130+8*ks+4*n2}:{130+8*ks+4*n2+3}]" if ks < NREG else f"v[{36+(ks&1)*8+4*n2}:{36+(ks&1)*8+4*n2+3}]"
                c_ = "0" if ks == 0 else dacc(n2, m2)
                a(f"v_mfma_f32_32x32x16_bf16 {dacc(n2,m2)}, {wsrc}, a[{(ks%NH)*8+4*m2}:{(ks%NH)*8+4*m2+3}], {c_}")
        nk = ks + NH
        if nk < 28:
            if nk >= NRES:
                for op in d_dma(nk): emit(op)
            for op in hh_ops(nk): emit(op)
        if nk == 28:
            a(f"buffer_load_dwordx4 v[52:55], v26, s[32:35], s63 offen")
            a(f"buffer_load_dwordx4 v[56:59], v26, s[32:35], s63 offen offset:128")
            vm.issue("res"); vm.issue("res")
    stamp(a, 8)
    for n2 in range(2):
        for m2 in range(2):
            for q in range(4):
                b = 128 + 32*n2 + 16*m2 + 4*q
                a(f"ds_write_b128 v30, v[{b}:{b+3}] offset:{m2*32*272 + n2*128 + q*32}")
    a("s_waitcnt lgkmcnt(0)")
    a("s_barrier")
    a("s_waitcnt vmcnt(0)")
    for g2 in range(2):
        for w in range(4):
            for e in range(2):
                a(f"ds_read_b128 v[{60+32*g2+8*w+4*e}:{60+32*g2+8*w+4*e+3}], v{31 if w < 2 else 33} offset:{(w&1)*24576 + g2*8*272 + e*16}")
    for g2 in range(2):
        B_ = 60 + 32 * g2
        a(f"s_waitcnt lgkmcnt({8 if g2 == 0 else 0})")
        for j in range(8):
            a(f"v_add_f32 v{B_+j}, v{B_+j}, v{B_+8+j}")
            a(f"v_add_f32 v{B_+16+j}, v{B_+16+j}, v{B_+24+j}")
        for j in range(8): a(f"v_add_f32 v{B_+j}, v{B_+j}, v{B_+16+j}")
        for i in range(4): a(f"v_cvt_pk_bf16_f32 v{B_+8+i}, v{B_+2*i}, v{B_+2*i+1}")
        for i in range(4):
            a(f"v_lshlrev_b32 v{B_+2*i}, 16, v{B_+8+i}")
            a(f"v_and_b32 v{B_+2*i+1}, s41, v{B_+8+i}")
            a(f"v_lshlrev_b32 v{B_+16+2*i}, 16, v{52+4*g2+i}")
            a(f"v_and_b32 v{B_+16+2*i+1}, s41, v{52+4*g2+i}")
        for j in range(8): a(f"v_add_f32 v{B_+j}, v{B_+j}, v{B_+16+j}")
        for i in range(4): a(f"v_cvt_pk_bf16_f32 v{B_+8+i}, v{B_+2*i}, v{B_+2*i+1}")
        a(f"s_add_u32 s50, s76, {g2*8*896}")
        a(f"buffer_store_dwordx4 v[{B_+8}:{B_+11}], v32, s[24:27], s50 offen")
    if STAMPS: a("s_waitcnt vmcnt(0)")
    stamp(a, 9)
    stamp_flush(a, 38, 32, 2)
    a("s_endpgm")
    a("K3_PF:")
    a("s_sub_u32 s60, s2, 224")
    a("s_lshr_b32 s60, s60, 3")
    a("s_lshl_b32 s60, s60, 2")
    a("s_add_u32 s60, s60, s38")
    a("s_mul_i32 s61, s60, 7168")
    a(f"v_lshlrev_b32 v10, 7, v{LANE}")
    a(f"v_mov_b32 v11, 0x7fff0000")
    a(f"v_cmp_gt_u32 vcc, 56, v{LANE}")
    a(f"v_cndmask_b32 v10, v11, v10, vcc")
    a("s_waitcnt lgkmcnt(0)")
    srd(a, 16, 4, 1605632)
    srd(a, 20, 8, 1605632)
    srd(a, 24, 10, 1605632)
    for i in range(6):
        a(f"s_add_u32 s62, s61, {7168*128 + i*16*7168}")
        a(f"buffer_load_dword v{12+2*i}, v10, s[20:23], s62 offen")
        a(f"buffer_load_dword v{13+2*i}, v10, s[24:27], s62 offen")
    for i in range(14):
        a(f"s_add_u32 s62, s61, {i*16*7168}")
        a(f"buffer_load_dword v{24+i}, v10, s[16:19], s62 offen")
    a("K3_END:")
    a("s_endpgm")
    a.fix_hazards()
    k = kd("k3_kernel", 256).replace("next_free_vgpr 256", "next_free_vgpr 506")
    return a.text(), k

K4_WREG = 40960
K4_LDS = 4 * K4_WREG

def gen_k4():
    a = Asm()
    head(a, "k4_kernel")
    a("s_cmp_ge_u32 s2, 224")
    a("s_cbranch_scc1 K4_END")
    stamp_init(a); stamp(a, 0, real=True); stamp(a, 1)
    a("s_load_dwordx4 s[8:11], s[0:1], 56")
    a("s_load_dwordx2 s[14:15], s[0:1], 80")
    LANE, M, HF, I16, G = 1, 2, 3, 4, 5
    a(f"v_and_b32 v{LANE}, 63, v0")
    a(f"v_lshrrev_b32 v6, 6, v0")
    a(f"v_readfirstlane_b32 s38, v6")
    a(f"v_and_b32 v{M}, 31, v{LANE}")
    a(f"v_lshrrev_b32 v{HF}, 5, v{LANE}")
    a(f"v_and_b32 v{I16}, 15, v{LANE}")
    a(f"v_lshrrev_b32 v{G}, 4, v{LANE}")
    a("s_mov_b32 s41, 0xffff0000")
    a("s_and_b32 s36, s2, 7")
    a("s_lshl_b32 s36, s36, 2")
    a("s_bfe_u32 s37, s2, 0x20003")
    a("s_add_u32 s36, s36, s37")
    a("s_lshr_b32 s37, s2, 5")
    a(f"v_lshrrev_b32 v7, 3, v{LANE}")
    a(f"v_and_b32 v8, 7, v{LANE}")
    a(f"v_lshrrev_b32 v9, 1, v7")
    a(f"v_and_b32 v9, 1, v9")
    a(f"v_lshlrev_b32 v9, 2, v9")
    a(f"v_xor_b32 v8, v8, v9")
    a(f"v_mul_u32_u24 v7, 896, v7")
    a(f"v_lshl_add_u32 v10, v8, 4, v7")
    a(f"v_lshlrev_b32 v11, 4, v{LANE}")
    a("s_waitcnt lgkmcnt(0)")
    srd(a, 20, 8, 1605632)
    srd(a, 24, 10, 1835008)
    srd(a, 32, 14, WS_SIZE)
    a("s_mul_i32 s46, s38, 401408")
    a("s_lshl_b32 s47, s37, 7")
    a("s_add_u32 s46, s46, s47")
    a(f"s_mul_i32 s47, s38, {K4_WREG}")
    a("s_mul_i32 s48, s36, 229376")
    a("s_mul_i32 s49, s38, 28672")
    a("s_add_u32 s48, s48, s49")
    a(f"s_add_u32 s48, s48, {WS_HH}")
    vm = VM(a)
    HH = 28
    a("s_bfe_u32 s52, s2, 0x20003")
    for g_ in range(4):
        a(f"s_add_u32 s53, s52, {g_}")
        a("s_and_b32 s53, s53, 3")
        a(f"s_mul_i32 s{56+g_}, s53, {7*16*896}")
        a(f"s_add_u32 s{56+g_}, s{56+g_}, s46")
        a(f"s_mul_i32 s{60+g_}, s53, 7168")
        a(f"s_add_u32 s{60+g_}, s{60+g_}, s48")
    def dma(ks):
        for i in range(2):
            a(f"s_add_u32 m0, s47, {(ks % 20)*2048 + i*1024}")
            a(f"s_add_u32 s50, s{56+ks//7}, {((ks%7)*16 + i*8)*896}")
            a(f"buffer_load_dwordx4 v10, s[20:23], s50 offen lds")
            vm.issue(f"k{ks}")
    def hload(ks):
        for m2 in range(2):
            a(f"s_add_u32 s50, s{60+ks//7}, {m2*114688 + (ks%7)*1024}")
            a(f"buffer_load_dwordx4 v[{HH+8*ks+4*m2}:{HH+8*ks+4*m2+3}], v11, s[32:35], s50 offen")
            vm.issue(f"k{ks}")
    PRE = 15
    for ks in range(PRE):
        dma(ks); hload(ks)
    a(f"v_lshrrev_b32 v7, 2, v{I16}")
    a(f"v_lshl_add_u32 v8, v{HF}, 2, v7")
    a(f"v_lshrrev_b32 v7, 1, v7")
    a(f"v_lshlrev_b32 v7, 3, v7")
    a(f"v_and_b32 v9, 1, v{G}")
    a(f"v_lshl_add_u32 v7, v9, 2, v7")
    a(f"v_and_b32 v9, 3, v{I16}")
    a(f"v_add_u32 v7, v7, v9")
    a(f"v_lshlrev_b32 v7, 3, v7")
    a(f"v_lshl_add_u32 v7, v8, 7, v7")
    a(f"v_add_u32 v12, s47, v7")
    a(f"v_xor_b32 v13, 64, v12")
    WF = 14
    def acc(n2, m2): return f"a[{32*n2+16*m2}:{32*n2+16*m2+15}]"
    def wf(ks, n2):
        b = 64 + (ks & 1) * 8 + 4 * n2
        return b
    def rd(ks):
        for n2 in range(2):
            b = wf(ks, n2)
            for e in range(2):
                a(f"ds_read_b64_tr_b16 a[{b+2*e}:{b+2*e+1}], v{12+n2} offset:{(ks % 20)*2048 + e*1024}")
    stamp(a, 2)
    vm.wait("k0")
    stamp(a, 3)
    rd(0)
    for ks in range(28):
        if ks + 1 < 28:
            vm.wait(f"k{ks+1}")
            rd(ks + 1)
            a("s_waitcnt lgkmcnt(4)")
        else:
            a("s_waitcnt lgkmcnt(0)")
        for n2 in range(2):
            for m2 in range(2):
                b = wf(ks, n2)
                c_ = "0" if ks == 0 else acc(n2, m2)
                a(f"v_mfma_f32_32x32x16_bf16 {acc(n2,m2)}, a[{b}:{b+3}], v[{HH+8*ks+4*m2}:{HH+8*ks+4*m2+3}], {c_}")
        nk = ks + PRE
        if nk < 28:
            dma(nk); hload(nk)
    stamp(a, 4)
    a("s_lshl_b32 s50, s36, 1")
    a("s_mul_i32 s50, s50, 28")
    a("s_lshl_b32 s51, s37, 2")
    a("s_add_u32 s50, s50, s51")
    a("s_add_u32 s50, s50, s38")
    a("s_lshl_b32 s50, s50, 10")
    a(f"s_add_u32 s50, s50, {WS_HF}")
    a(f"v_mul_u32_u24 v7, 28672, v{HF}")
    a(f"v_lshl_add_u32 v7, v{M}, 4, v7")
    a(f"buffer_load_dwordx4 v[14:17], v7, s[32:35], s50 offen")
    a(f"buffer_load_dwordx4 v[18:21], v7, s[32:35], s50 offen offset:512")
    a(f"v_mul_u32_u24 v7, 272, v{M}")
    a(f"v_lshl_add_u32 v7, v{HF}, 4, v7")
    a(f"v_add_u32 v7, s47, v7")
    for n2 in range(2):
        for m2 in range(2):
            for q in range(4):
                b = 32*n2 + 16*m2 + 4*q
                a(f"ds_write_b128 v7, a[{b}:{b+3}] offset:{m2*32*272 + n2*128 + q*32}")
    a("s_waitcnt lgkmcnt(0)")
    a("s_barrier")
    stamp(a, 5)
    a(f"v_mul_u32_u24 v7, 272, v{LANE}")
    a("s_lshl_b32 s50, s38, 6")
    a(f"v_add_u32 v7, s50, v7")
    a(f"v_add_u32 v8, {2*K4_WREG}, v7")
    for w in range(4):
        for e in range(4):
            base = 7 if w < 2 else 8
            a(f"ds_read_b128 v[{28+16*w+4*e}:{28+16*w+4*e+3}], v{base} offset:{(w&1)*K4_WREG + e*16}")
    a("s_waitcnt lgkmcnt(0)")
    for j in range(16):
        a(f"v_add_f32 v{28+j}, v{28+j}, v{44+j}")
        a(f"v_add_f32 v{60+j}, v{60+j}, v{76+j}")
    for j in range(16):
        a(f"v_add_f32 v{28+j}, v{28+j}, v{60+j}")
    a("s_waitcnt vmcnt(0)")
    for i in range(8):
        a(f"v_cvt_pk_bf16_f32 v44, v{28+2*i}, v{28+2*i+1}")
        a(f"v_lshlrev_b32 v45, 16, v44")
        a(f"v_and_b32 v46, s41, v44")
        a(f"v_lshlrev_b32 v47, 16, v{14+i}")
        a(f"v_and_b32 v48, s41, v{14+i}")
        a(f"v_add_f32 v45, v45, v47")
        a(f"v_add_f32 v46, v46, v48")
        a(f"v_cvt_pk_bf16_f32 v{60+i}, v45, v46")
    a("s_lshl_b32 s50, s36, 6")
    a(f"v_add_u32 v7, s50, v{LANE}")
    a(f"v_mul_u32_u24 v7, 896, v7")
    a("s_lshl_b32 s50, s37, 7")
    a("s_lshl_b32 s51, s38, 5")
    a("s_add_u32 s50, s50, s51")
    a(f"buffer_store_dwordx4 v[60:63], v7, s[24:27], s50 offen")
    a(f"buffer_store_dwordx4 v[64:67], v7, s[24:27], s50 offen offset:16")
    if STAMPS: a("s_waitcnt vmcnt(0)")
    stamp(a, 9)
    stamp_flush(a, 38, 32, 3)
    a("K4_END:")
    a("s_endpgm")
    a.fix_hazards()
    k = kd("k4_kernel", 256).replace("next_free_vgpr 256", "next_free_vgpr 336")
    return a.text(), k

def kernels():
    return [("k3", gen_k3, 256, 256, K3_LDS)]
```

```python
import sys
from asmfw import Asm

WS_KV   = 0
WS_CS   = 512 * 1024
WS_ST   = 640 * 1024
WS_PHIQ = 1 << 20
WS_H    = 8 << 20
WS_HH   = 16 << 20
WS_SIZE = 268435456
LOG2E = 0x3fb8aa3b

class VM:
    def __init__(self, a): self.a = a; self.ops = []
    def issue(self, tag): self.ops.append(tag)
    def wait(self, tag, extra=0):
        idx = max(i for i, t in enumerate(self.ops) if t == tag)
        n = len(self.ops) - 1 - idx + extra
        assert n <= 63
        self.a("s_waitcnt vmcnt(%d)" % n)
    def copy(self):
        v = VM(self.a); v.ops = list(self.ops); return v

def srd(a, d, ptr, size):
    a(f"s_mov_b32 s{d}, s{ptr}")
    a(f"s_mov_b32 s{d+1}, s{ptr+1}")
    a(f"s_mov_b32 s{d+2}, {size}")
    a(f"s_mov_b32 s{d+3}, 0x00020000")

def bf16r(a, dst, src, tmp=None):
    a(f"v_cvt_pk_bf16_f32 v{dst}, v{src}, v{src}")
    a(f"v_and_b32 v{dst}, 0xffff0000, v{dst}")

def xhalf(a, op, dst, src, t1, t2):
    a(f"v_mov_b32 v{t1}, v{src}")
    a(f"v_mov_b32 v{t2}, v{src}")
    a(f"v_permlane32_swap_b32 v{t1}, v{t2}")
    a(f"{op} v{dst}, v{t1}, v{t2}")

def ln_stats_finish(a, vs, vq, v_mr, v_rstd, t1, t2, t3):
    xhalf(a, "v_add_f32", vs, vs, t1, t2)
    xhalf(a, "v_add_f32", vq, vq, t1, t2)
    a(f"v_mul_f32 v{vs}, 0x3b124925, v{vs}")
    a(f"v_mul_f32 v{vq}, 0x3b124925, v{vq}")
    a(f"v_fma_f32 v{vq}, -v{vs}, v{vs}, v{vq}")
    a(f"v_max_f32 v{vq}, 0, v{vq}")
    bf16r(a, vs, vs)
    bf16r(a, vq, vq)
    a(f"v_add_f32 v{vq}, 0x3727c5ac, v{vq}")
    bf16r(a, vq, vq)
    a(f"v_sqrt_f32 v{vq}, v{vq}")
    bf16r(a, vq, vq)
    a(f"v_rcp_f32 v{v_rstd}, v{vq}")
    a(f"v_mul_f32 v{v_mr}, v{vs}, v{v_rstd}")

def softmax_pm(a, P, E, F, OP, ON, T, s_hi, SC, OSC=None):
    for r in range(12, 16):
        a(f"v_cndmask_b32 v{P+r}, v{P+r}, v{P}, s[{s_hi}:{s_hi+1}]")
    mx, mn, t1, t2, se, sf = T, T+1, T+2, T+3, T+4, T+5
    a(f"v_max3_f32 v{mx}, v{P}, v{P+1}, v{P+2}")
    a(f"v_min3_f32 v{mn}, v{P}, v{P+1}, v{P+2}")
    for r in range(3, 15, 2):
        a(f"v_max3_f32 v{mx}, v{mx}, v{P+r}, v{P+r+1}")
        a(f"v_min3_f32 v{mn}, v{mn}, v{P+r}, v{P+r+1}")
    a(f"v_max_f32 v{mx}, v{mx}, v{P+15}")
    a(f"v_min_f32 v{mn}, v{mn}, v{P+15}")
    a(f"v_mov_b32 v{t1}, v{mx}")
    a(f"v_mov_b32 v{se}, v{mn}")
    a(f"v_permlane32_swap_b32 v{t1}, v{mx}")
    a(f"v_permlane32_swap_b32 v{se}, v{mn}")
    a(f"v_max_f32 v{mx}, v{t1}, v{mx}")
    a(f"v_min_f32 v{mn}, v{se}, v{mn}")
    a(f"v_mul_f32 v{mx}, v{SC}, v{mx}")
    a(f"v_mul_f32 v{mn}, v{SC}, v{mn}")
    for r in range(16):
        a(f"v_fma_f32 v{E+r}, v{P+r}, v{SC}, -v{mx}")
        a(f"v_fma_f32 v{F+r}, -v{P+r}, v{SC}, v{mn}")
        if r >= 1:
            a(f"v_exp_f32 v{E+r-1}, v{E+r-1}")
            a(f"v_exp_f32 v{F+r-1}, v{F+r-1}")
    a(f"v_exp_f32 v{E+15}, v{E+15}")
    a(f"v_exp_f32 v{F+15}, v{F+15}")
    a(f"v_add_f32 v{se}, v{E}, v{E+1}")
    a(f"v_add_f32 v{sf}, v{F}, v{F+1}")
    a(f"v_add_f32 v{t1}, v{E+2}, v{E+3}")
    a(f"v_add_f32 v{t2}, v{F+2}, v{F+3}")
    for r in range(4, 12, 2):
        a(f"v_add_f32 v{se}, v{se}, v{E+r}")
        a(f"v_add_f32 v{sf}, v{sf}, v{F+r}")
        a(f"v_add_f32 v{t1}, v{t1}, v{E+r+1}")
        a(f"v_add_f32 v{t2}, v{t2}, v{F+r+1}")
    for r in range(12, 16):
        a(f"v_cndmask_b32 v{E+r}, v{E+r}, 0, s[{s_hi}:{s_hi+1}]")
        a(f"v_cndmask_b32 v{F+r}, v{F+r}, 0, s[{s_hi}:{s_hi+1}]")
    for r in range(12, 16, 2):
        a(f"v_add_f32 v{se}, v{se}, v{E+r}")
        a(f"v_add_f32 v{sf}, v{sf}, v{F+r}")
        a(f"v_add_f32 v{t1}, v{t1}, v{E+r+1}")
        a(f"v_add_f32 v{t2}, v{t2}, v{F+r+1}")
    a(f"v_add_f32 v{se}, v{se}, v{t1}")
    a(f"v_add_f32 v{sf}, v{sf}, v{t2}")
    a(f"v_mov_b32 v{t1}, v{se}")
    a(f"v_mov_b32 v{t2}, v{sf}")
    a(f"v_permlane32_swap_b32 v{t1}, v{se}")
    a(f"v_permlane32_swap_b32 v{t2}, v{sf}")
    a(f"v_add_f32 v{se}, v{t1}, v{se}")
    a(f"v_add_f32 v{sf}, v{t2}, v{sf}")
    a(f"v_rcp_f32 v{se}, v{se}")
    a(f"v_rcp_f32 v{sf}, v{sf}")
    if OSC is not None:
        a(f"v_mul_f32 v{se}, v{se}, v{OSC}")
        a(f"v_mul_f32 v{sf}, v{sf}, v{OSC}")
    for i in range(8):
        a(f"v_mul_f32 v{E+2*i}, v{E+2*i}, v{se}")
        a(f"v_mul_f32 v{E+2*i+1}, v{E+2*i+1}, v{se}")
        a(f"v_cvt_pk_bf16_f32 v{OP+i}, v{E+2*i}, v{E+2*i+1}")
    for i in range(8):
        a(f"v_mul_f32 v{F+2*i}, v{F+2*i}, v{sf}")
        a(f"v_mul_f32 v{F+2*i+1}, v{F+2*i+1}, v{sf}")
        a(f"v_cvt_pk_bf16_f32 v{ON+i}, v{F+2*i}, v{F+2*i+1}")

def stats_finish(a, vs, vq, v_nmean, v_rstd, v_sd):
    a(f"v_mul_f32 v{vs}, 0x3b124925, v{vs}")
    a(f"v_mul_f32 v{vq}, 0x3b124925, v{vq}")
    a(f"v_fma_f32 v{vq}, -v{vs}, v{vs}, v{vq}")
    a(f"v_max_f32 v{vq}, 0, v{vq}")
    a(f"v_cvt_pk_bf16_f32 v{vs}, v{vq}, v{vs}")
    a(f"v_lshlrev_b32 v{vq}, 16, v{vs}")
    a(f"v_and_b32 v{vs}, 0xffff0000, v{vs}")
    a(f"v_add_f32 v{vq}, 0x3727c5ac, v{vq}")
    a(f"v_xor_b32 v{v_nmean}, 0x80000000, v{vs}")
    bf16r(a, vq, vq)
    a(f"v_sqrt_f32 v{vq}, v{vq}")
    bf16r(a, v_sd, vq)
    a(f"v_rcp_f32 v{v_rstd}, v{v_sd}")

def kd(name, vgpr, sgpr=102):
    acc = (vgpr + 3) // 4 * 4
    return f""".p2align 6
.amdhsa_kernel {name}
  .amdhsa_next_free_vgpr {vgpr}
  .amdhsa_next_free_sgpr {sgpr}
  .amdhsa_accum_offset {min(acc,256)}
  .amdhsa_group_segment_fixed_size 0
  .amdhsa_kernarg_size 88
  .amdhsa_user_sgpr_count 2
  .amdhsa_user_sgpr_kernarg_segment_ptr 1
  .amdhsa_system_sgpr_workgroup_id_x 1
.end_amdhsa_kernel"""

WS_STAMP = 64 << 20
import os
STAMPS = bool(int(os.environ.get("STAMPS", "0")))
def stamp(a, idx, real=False):
    if not STAMPS: return
    a(f"s_memrealtime s[{80+2*idx}:{81+2*idx}]" if real else f"s_memtime s[{80+2*idx}:{81+2*idx}]")

def stamp_init(a):
    if not STAMPS: return
    for i in range(80, 100): a(f"s_mov_b32 s{i}, 0")

def stamp_flush(a, s_wave, ws_srd, koff=0):
    if not STAMPS: return
    a("s_waitcnt lgkmcnt(0)")
    a("s_lshl_b32 s3, s2, 3")
    a(f"s_add_u32 s3, s3, s{s_wave}")
    a("s_lshl_b32 s3, s3, 6")
    a(f"s_add_u32 s3, s3, {WS_STAMP + koff*(1<<20)}")
    a("v_mov_b32 v1, s3")
    for i in range(10):
        a(f"v_mov_b32 v0, s{80+2*i}")
        a(f"buffer_store_dword v0, v1, s[{ws_srd}:{ws_srd+3}], 0 offen offset:{i*4}")

def head(a, name):
    a.raw(f".globl {name}\n.p2align 8\n.type {name},@function")
    a(f"{name}:")

K1_CS   = 0
K1_FL   = 448
K1_SQ   = 512
K1_SM   = 1536
K1_WP   = 2048
K1_RING = 4096
K1_SLOT = 28672
K1_LDS  = K1_RING + 5 * K1_SLOT
K1_PHIK = K1_RING
K1_V    = K1_PHIK + 16384

def gen_k1():
    a = Asm()
    head(a, "k1_kernel")
    a("s_cmp_ge_u32 s2, 256")
    a("s_cbranch_scc1 K1_END")
    stamp_init(a)
    stamp(a, 0, real=True)
    stamp(a, 1)
    a("s_load_dwordx4 s[4:7], s[0:1], 0")
    a("s_load_dwordx4 s[8:11], s[0:1], 16")
    a("s_load_dwordx4 s[12:15], s[0:1], 72")
    a("s_load_dwordx4 s[56:59], s[0:1], 40")
    a("s_load_dwordx2 s[68:69], s[0:1], 56")
    LANE, M, HF, I16, G = 1, 2, 3, 4, 5
    a(f"v_and_b32 v{LANE}, 63, v0")
    a(f"v_lshrrev_b32 v6, 6, v0")
    a(f"v_readfirstlane_b32 s38, v6")
    a(f"v_and_b32 v{M}, 31, v{LANE}")
    a(f"v_lshrrev_b32 v{HF}, 5, v{LANE}")
    a(f"v_and_b32 v{I16}, 15, v{LANE}")
    a(f"v_lshrrev_b32 v{G}, 4, v{LANE}")
    a("s_and_b32 s36, s2, 7")
    a("s_lshl_b32 s36, s36, 1")
    a("s_bfe_u32 s37, s2, 0x10003")
    a("s_add_u32 s36, s36, s37")
    a("s_lshr_b32 s37, s2, 4")
    a("s_and_b32 s39, s38, 3")
    a("s_lshr_b32 s40, s38, 2")
    a("s_mov_b32 s42, 0")
    a("s_mov_b32 s43, -1")
    a(f"s_mov_b32 s44, {LOG2E}")
    a("s_mov_b32 s45, 0x3f803f80")
    a("s_mov_b32 s41, 0xffff0000")
    a("s_cmp_eq_u32 s40, 1")
    a("s_cbranch_scc1 K1_Q")

    PAT = 30
    def common_setup_early(vm):
        a("s_waitcnt lgkmcnt(0)")
        srd(a, 16, 4, 1835008)
        srd(a, 20, 6, 1204224)
        srd(a, 24, 8, 25088)
        srd(a, 28, 12, 256)
        srd(a, 32, 14, WS_SIZE)
        pass
    def rot_table(mult):
        a("s_and_b32 s60, s36, 1")
        a("s_mul_i32 s60, s60, 3")
        a("s_add_u32 s60, s60, s37")
        for _ in range(2):
            a("s_cmp_ge_u32 s60, 7")
            a("s_cselect_b32 s61, 7, 0")
            a("s_sub_u32 s60, s60, s61")
        a("s_mov_b32 s67, s60")
        for c in range(7):
            a(f"s_mul_i32 s{60+c}, s67, {mult}")
            a(f"s_add_u32 s{60+c}, s{60+c}, s47")
            if c < 6:
                a("s_add_u32 s67, s67, 1")
                a("s_cmp_ge_u32 s67, 7")
                a("s_cselect_b32 s67, 0, s67")
    def tail_prefetch():
        srd(a, 64, 10, 401408)
        a("s_lshr_b32 s60, s2, 3")
        a("s_lshl_b32 s60, s60, 2")
        a("s_add_u32 s60, s60, s39")
        a(f"v_lshlrev_b32 v226, 7, v{LANE}")
        a(f"v_mov_b32 v227, 0x7fff0000")
        a(f"v_cmp_gt_u32 vcc, 25, v{LANE}")
        a(f"v_cndmask_b32 v228, v227, v226, vcc")
        a("s_mul_i32 s61, s60, 3200")
        a("buffer_load_dword v229, v228, s[64:67], s61 offen")
        a(f"v_cmp_gt_u32 vcc, 32, v{LANE}")
        a(f"v_cndmask_b32 v228, v227, v226, vcc")
        a("s_lshl_b32 s61, s60, 12")
        srd(a, 64, 56, 1605632)
        a("buffer_load_dword v230, v228, s[64:67], s61 offen")
        srd(a, 64, 58, 1605632)
        a("buffer_load_dword v231, v228, s[64:67], s61 offen")
        a(f"v_cmp_gt_u32 vcc, 13, v{LANE}")
        a(f"v_cndmask_b32 v228, v227, v226, vcc")
        a("s_lshl_b32 s61, s2, 2")
        a("s_add_u32 s61, s61, s39")
        a("s_mul_i32 s61, s61, 1664")
        srd(a, 64, 68, 1605632)
        a("buffer_load_dword v225, v228, s[64:67], s61 offen")
    XV = 200; TB = 212
    def common_setup_late():
        a(f"v_lshrrev_b32 v7, 2, v{I16}")
        a(f"v_lshl_add_u32 v7, v{HF}, 3, v7")
        a(f"v_mul_u32_u24 v7, 192, v7")
        a(f"v_and_b32 v8, 1, v{G}")
        a(f"v_lshlrev_b32 v8, 2, v8")
        a(f"v_and_b32 v9, 3, v{I16}")
        a(f"v_add_u32 v8, v8, v9")
        a(f"v_lshl_add_u32 v7, v8, 3, v7")
        a("s_and_b32 s50, s37, 1")
        a("s_lshl_b32 s50, s50, 3")
        a(f"s_add_u32 s50, s50, {K1_RING + 16384}")
        a(f"v_add_u32 v{TB}, s50, v7")
        a(f"v_add_u32 v{TB+1}, {2*K1_SLOT}, v{TB}")
        a(f"v_add_u32 v{TB+2}, {4*K1_SLOT}, v{TB}")
        a("s_min_u32 s50, s39, 2")
        a("s_lshl_b32 s50, s50, 6")
        for st in range(3):
            a(f"v_add_u32 v{TB+3+st}, s50, v{TB+st}")
        a("s_lshl_b32 s50, s39, 5")
        a(f"v_add_u32 v7, s50, v{M}")
        a(f"v_lshrrev_b32 v8, 1, v7")
        a(f"v_and_b32 v8, 7, v8")
        a(f"v_xor_b32 v8, v8, v{HF}")
        a(f"v_lshlrev_b32 v8, 4, v8")
        a(f"v_lshl_add_u32 v11, v7, 7, v8")
        for p in range(4):
            a(f"v_xor_b32 v7, {p*32}, v11")
            for st in range(3):
                a(f"v_add_u32 v{XV+4*st+p}, {K1_RING + 2*st*K1_SLOT}, v7")

    LA = 2
    def mainloop(segs, ACC, XFb, WF, SQ, qrole, vm, dma_ops):
        ns = len(segs)
        NB = LA + 1
        a(f"v_mov_b32 v{SQ}, 0"); a(f"v_mov_b32 v{SQ+1}, 0")
        nr = 1 + 2 * ns
        def emit(op):
            for t_ in op[1]: a(t_)
            vm.issue(op[0])
        def reads(kk):
            c = kk // 4; slot = c % 5; p = kk % 4
            st = slot // 2; so = slot % 2
            xb = XFb + (kk % NB) * 4
            a(f"ds_read_b128 v[{xb}:{xb+3}], v{XV+4*st+p} offset:{so*K1_SLOT}")
            b = WF + (kk % NB) * ns * 4
            for i, sg in enumerate(segs):
                off = so * K1_SLOT + p * 3072 + (0 if sg == "cs" else sg * 64)
                tb = TB + st + (3 if sg == "cs" else 0)
                a(f"ds_read_b64_tr_b16 v[{b+4*i}:{b+4*i+1}], v{tb} offset:{off}")
                a(f"ds_read_b64_tr_b16 v[{b+4*i+2}:{b+4*i+3}], v{tb} offset:{off+768}")
        stamp(a, 2)
        for c in (2, 3, 4):
            for op in dma_ops(c): emit(op)
        vm.wait("c0")
        a("s_barrier")
        stamp(a, 3)
        queue = []
        for kk in range(LA): reads(kk)
        for kk in range(28):
            nk = kk + LA
            if nk < 28:
                if nk % 4 == 0:
                    c = nk // 4
                    while any(op[0] == f"c{c}" for op in queue): emit(queue.pop(0))
                    vm.wait(f"c{c}")
                    a("s_barrier")
                    if c in (2, 4): stamp(a, 3 + c // 2)
                    if c in (2, 3): queue += dma_ops(c + 3)
                reads(nk)
            out = min(28 - 1 - kk, LA) * nr
            a(f"s_waitcnt lgkmcnt({out})")
            b = WF + (kk % NB) * ns * 4
            xb = XFb + (kk % NB) * 4
            c0 = "0" if kk == 0 else None
            if qrole:
                for r in range(4):
                    a(f"v_cndmask_b32 v{qrole+r}, v{b+r}, v{qrole+4}, s[52:53]")
                a(f"v_mfma_f32_32x32x16_bf16 v[{ACC[1]}:{ACC[1]+15}], v[{b+4}:{b+7}], v[{qrole+4}:{qrole+7}], " + (c0 or f"v[{ACC[1]}:{ACC[1]+15}]"))
                a(f"v_lshlrev_b32 v10, 16, v{xb}")
                a(f"v_and_b32 v11, s41, v{xb}")
                a(f"v_fmac_f32 v{SQ}, v10, v10")
                a(f"v_fmac_f32 v{SQ+1}, v11, v11")
                a(f"v_mfma_f32_32x32x16_bf16 v[{ACC[0]}:{ACC[0]+15}], v[{qrole}:{qrole+3}], v[{xb}:{xb+3}], " + (c0 or f"v[{ACC[0]}:{ACC[0]+15}]"))
                a(f"v_lshlrev_b32 v10, 16, v{xb+1}")
                a(f"v_and_b32 v11, s41, v{xb+1}")
                a(f"v_fmac_f32 v{SQ}, v10, v10")
                a(f"v_fmac_f32 v{SQ+1}, v11, v11")
            else:
                for i in range(ns):
                    a(f"v_mfma_f32_32x32x16_bf16 v[{ACC[i]}:{ACC[i]+15}], v[{b+4*i}:{b+4*i+3}], v[{xb}:{xb+3}], " + (c0 or f"v[{ACC[i]}:{ACC[i]+15}]"))
                    a(f"v_lshlrev_b32 v10, 16, v{xb+2+i}")
                    a(f"v_and_b32 v11, s41, v{xb+2+i}")
                    a(f"v_fmac_f32 v{SQ}, v10, v10")
                    a(f"v_fmac_f32 v{SQ+1}, v11, v11")
            if queue: emit(queue.pop(0))
            if queue: emit(queue.pop(0))
        stamp(a, 6)
        a(f"v_add_f32 v{SQ}, v{SQ}, v{SQ+1}")
        a(f"v_lshlrev_b32 v7, 2, v{M}")
        a("s_lshl_b32 s50, s39, 7")
        a(f"v_add_u32 v9, s50, v7")
        xhalf(a, "v_add_f32", SQ, SQ, 10, 11)
        a(f"ds_write_b32 v9, v{SQ} offset:{K1_SQ + (512 if qrole else 0)}")

    def post_reads(segs, dsts, WPF, ST):
        a(f"v_lshlrev_b32 v8, 4, v{HF}")
        a(f"ds_read_b32 v{ST}, v9 offset:{K1_SM}")
        a(f"ds_read_b32 v{ST+1}, v9 offset:{K1_SQ}")
        a(f"ds_read_b32 v{ST+2}, v9 offset:{K1_SQ+512}")
        for sg, dst in zip(segs, dsts):
            for q in range(4):
                a(f"ds_read_b128 v[{dst+4*q}:{dst+4*q+3}], v8 offset:{K1_CS + sg*128 + q*32}")
        for s_ in range(2):
            for e in range(2):
                a(f"ds_read_b64_tr_b16 v[{WPF+4*s_+2*e}:{WPF+4*s_+2*e+1}], v12 offset:{K1_WP + (16*s_+8*e)*56}")

    def wp_addr():
        a(f"v_lshrrev_b32 v7, 2, v{I16}")
        a(f"v_lshl_add_u32 v7, v{HF}, 2, v7")
        a(f"v_mul_u32_u24 v7, 56, v7")
        a(f"v_and_b32 v8, 1, v{G}")
        a(f"v_lshlrev_b32 v8, 2, v8")
        a(f"v_and_b32 v9, 3, v{I16}")
        a(f"v_add_u32 v8, v8, v9")
        a(f"v_lshl_add_u32 v12, v8, 3, v7")

    def center_pack(ACC, CSV, NM, OUT):
        for i in range(8):
            a(f"v_fmac_f32 v{ACC+2*i}, v{CSV+2*i}, v{NM}")
            a(f"v_fmac_f32 v{ACC+2*i+1}, v{CSV+2*i+1}, v{NM}")
            a(f"v_cvt_pk_bf16_f32 v{OUT+i}, v{ACC+2*i}, v{ACC+2*i+1}")

    vmk = VM(a)
    for t in range(3):
        a(f"v_add_u32 v7, {t*64}, v{LANE}")
        a(f"v_mul_u32_u24 v8, 171, v7")
        a(f"v_lshrrev_b32 v8, 11, v8")
        a(f"v_mul_u32_u24 v9, 12, v8")
        a(f"v_sub_u32 v9, v7, v9")
        a(f"v_mul_u32_u24 v8, 2688, v8")
        a(f"v_lshrrev_b32 v7, 2, v9")
        a(f"v_mul_u32_u24 v7, 896, v7")
        a(f"v_and_b32 v9, 3, v9")
        a(f"v_lshlrev_b32 v9, 4, v9")
        a(f"v_add3_u32 v{PAT+t}, v7, v8, v9")
    a("s_mul_i32 s47, s37, 56")
    a("s_and_b32 s47, s47, 0xfffffff0")
    a("s_mul_i32 s48, s39, 43008")
    a("s_add_u32 s47, s47, s48")
    a("s_mul_i32 s49, s39, 3072")
    rot_table(64*2688)
    common_setup_early(vmk)
    def dma_w(c):
        return [(f"c{c}", [f"s_add_u32 m0, s49, {K1_RING + (c%5)*K1_SLOT + 16384 + t*1024}",
                           f"buffer_load_dwordx4 v{PAT+t}, s[20:23], s{60+c} offen lds"]) for t in range(3)]
    for c in range(2):
        for op in dma_w(c):
            for t_ in op[1]: a(t_)
            vmk.issue(op[0])
    a("s_mul_i32 s50, s37, 1568")
    a("s_and_b32 s51, s39, 1")
    a("s_lshl_b32 s51, s51, 10")
    a("s_add_u32 s50, s50, s51")
    a(f"s_add_u32 m0, s51, {K1_WP}")
    a(f"v_lshlrev_b32 v7, 4, v{LANE}")
    a("buffer_load_dwordx4 v7, s[24:27], s50 offen lds")
    vmk.issue("c1")
    common_setup_late()
    wp_addr()
    a("s_lshl_b32 s50, s39, 5")
    a(f"v_add_u32 v7, s50, v{M}")
    a(f"v_lshrrev_b32 v8, 1, v7")
    a(f"v_and_b32 v8, 7, v8")
    a(f"v_xor_b32 v8, v8, v{HF}")
    a(f"v_lshlrev_b32 v8, 3, v8")
    a(f"v_lshl_add_u32 v74, v7, 6, v8")
    a(f"v_lshrrev_b32 v8, 1, v7")
    a(f"v_and_b32 v8, 1, v8")
    a(f"v_lshlrev_b32 v8, 3, v8")
    a(f"v_and_b32 v9, 1, v7")
    a(f"v_or_b32 v8, v8, v9")
    a(f"v_lshrrev_b32 v9, 2, v7")
    a(f"v_and_b32 v9, 3, v9")
    a(f"v_lshl_or_b32 v8, v9, 1, v8")
    a(f"v_xor_b32 v8, v8, v{HF}")
    a(f"v_lshlrev_b32 v8, 3, v8")
    a(f"v_lshl_add_u32 v75, v7, 7, v8")
    a(f"v_lshrrev_b32 v7, 2, v{I16}")
    a(f"v_lshl_add_u32 v7, v{HF}, 3, v7")
    a(f"v_and_b32 v8, 1, v{G}")
    a(f"v_lshlrev_b32 v8, 2, v8")
    a(f"v_and_b32 v9, 3, v{I16}")
    a(f"v_add_u32 v8, v8, v9")
    for e in range(2):
        a(f"v_add_u32 v9, {4*e}, v7")
        a(f"v_lshrrev_b32 v10, 1, v9")
        a(f"v_xor_b32 v10, v10, v8")
        a(f"v_lshlrev_b32 v10, 3, v10")
        a(f"v_lshl_add_u32 v{76+e}, v9, 6, v10")
        a(f"v_lshrrev_b32 v10, 1, v9")
        a(f"v_and_b32 v10, 1, v10")
        a(f"v_lshlrev_b32 v10, 3, v10")
        a(f"v_and_b32 v11, 1, v9")
        a(f"v_or_b32 v10, v10, v11")
        a(f"v_lshrrev_b32 v11, 2, v9")
        a(f"v_lshl_or_b32 v10, v11, 1, v10")
        a(f"v_xor_b32 v10, v10, v8")
        a(f"s_lshl_b32 s50, s39, 3")
        a(f"v_xor_b32 v10, s50, v10")
        a(f"v_lshlrev_b32 v10, 3, v10")
        a(f"v_lshl_add_u32 v{78+e}, v9, 7, v10")
    a("s_lshl_b32 s50, s37, 13")
    a("s_lshl_b32 s51, s39, 7")
    a("s_add_u32 s50, s50, s51")
    a(f"v_lshlrev_b32 v80, 10, v{HF}")
    a(f"v_lshl_add_u32 v80, v{M}, 2, v80")
    a(f"v_add_u32 v80, s50, v80")
    a(f"v_add_u32 v81, 4096, v80")
    for r in range(4): a(f"v_mov_b32 v{82+r}, 0")
    a(f"ds_write_b128 v82, v[82:85] offset:{K1_FL}")
    a("s_lshl_b32 s50, s39, 2")
    a("v_mov_b32 v86, s50")
    a("v_mov_b32 v87, 1")
    a("s_waitcnt lgkmcnt(0)")
    AK, AV = 100, 116
    mainloop([1, 2], [AK, AV], 34, 46, 72, None, vmk, dma_w)
    a("s_waitcnt lgkmcnt(0)")
    a("s_barrier")
    stamp(a, 7)
    a("s_setprio 2")
    CK, CV = 34, 50
    post_reads([1, 2], [CK, CV], 92, 66)
    a("s_lshl_b32 s50, s2, 7")
    a(f"s_add_u32 s50, s50, {768*1024}")
    a("v_mov_b32 v13, 0")
    a(f"v_lshlrev_b32 v14, 2, v{LANE}")
    a("s_mov_b64 exec, 0xff")
    a("buffer_store_dword v13, v14, s[32:35], s50 offen")
    a("s_mov_b64 exec, -1")
    a("s_lshl_b32 s50, s37, 2")
    a("s_add_u32 s50, s50, 64")
    a("v_mov_b32 v13, s50")
    a("buffer_load_dword v14, v13, s[28:31], 0 offen sc1")
    a("s_waitcnt lgkmcnt(12)")
    a("v_add_f32 v67, v67, v68")
    stats_finish(a, 66, 67, 68, 69, 70)
    a("s_waitcnt lgkmcnt(0)")
    KFR, VFR = 132, 140
    center_pack(AK, CK, 68, KFR)
    a(f"v_cndmask_b32 v{KFR+6}, v{KFR+6}, 0, s[42:43]")
    a(f"v_cndmask_b32 v{KFR+7}, v{KFR+7}, 0, s[42:43]")
    PK = 148
    a(f"v_mfma_f32_32x32x16_bf16 v[{PK}:{PK+15}], v[92:95], v[{KFR}:{KFR+3}], 0")
    a(f"v_mfma_f32_32x32x16_bf16 v[{PK}:{PK+15}], v[96:99], v[{KFR+4}:{KFR+7}], v[{PK}:{PK+15}]")
    center_pack(AV, CV, 68, VFR)
    a(f"v_lshrrev_b32 v9, 16, v70")
    a(f"v_mul_f32 v71, s44, v69")
    a(f"v_cndmask_b32 v{VFR+6}, v{VFR+6}, v9, s[42:43]")
    a(f"v_cndmask_b32 v{VFR+7}, v{VFR+7}, 0, s[42:43]")
    for q in range(4):
        a(f"v_xor_b32 v9, {q*16}, v74")
        a(f"ds_write_b64 v9, v[{VFR+2*q}:{VFR+2*q+1}] offset:{K1_V}")
    E, F, OP, ON, T = 164, 180, 34, 42, 50
    softmax_pm(a, PK, E, F, OP, ON, T, 42, 71, 69)
    for t, src in ((0, OP), (1, ON)):
        for q in range(4):
            a(f"v_xor_b32 v9, {(8*t+2*q)*8}, v75")
            a(f"ds_write_b64 v9, v[{src+2*q}:{src+2*q+1}] offset:{K1_PHIK}")
    a("s_waitcnt lgkmcnt(0)")
    a(f"ds_write_b32 v86, v87 offset:{K1_FL}")
    a("s_cmp_ge_u32 s39, 2")
    a("s_cbranch_scc1 K1_FIN")
    a("K1_LPOLL:")
    a(f"ds_read_b128 v[88:91], v82 offset:{K1_FL}")
    a("s_waitcnt lgkmcnt(0)")
    a("v_and_b32 v88, v88, v89")
    a("v_and_b32 v90, v90, v91")
    a("v_and_b32 v88, v88, v90")
    a("v_readfirstlane_b32 s51, v88")
    a("s_cmp_eq_u32 s51, 0")
    a("s_cbranch_scc1 K1_LPOLL")
    stamp(a, 8)
    KV = 16
    for ks in range(8):
        b = 100 + ks * 8
        for e in range(2):
            a(f"ds_read_b64_tr_b16 v[{b+2*e}:{b+2*e+1}], v{76+e} offset:{K1_V + ks*1024}")
        for e in range(2):
            a(f"ds_read_b64_tr_b16 v[{b+4+2*e}:{b+4+2*e+1}], v{78+e} offset:{K1_PHIK + ks*2048}")
    for ks in range(8):
        b = 100 + ks * 8
        a(f"s_waitcnt lgkmcnt({min(15, (7-ks)*4)})")
        c = "0" if ks == 0 else f"v[{KV}:{KV+15}]"
        a(f"v_mfma_f32_32x32x16_bf16 v[{KV}:{KV+15}], v[{b}:{b+3}], v[{b+4}:{b+7}], {c}")
    a("s_waitcnt vmcnt(0)")
    a("v_readfirstlane_b32 s51, v14")
    a("s_cmp_lg_u32 s51, 0")
    a("s_cbranch_scc1 K1_GO")
    a("K1_POLL:")
    a("buffer_load_dword v14, v13, s[28:31], 0 offen sc1")
    a("s_waitcnt vmcnt(0)")
    a("v_readfirstlane_b32 s51, v14")
    a("s_cmp_eq_u32 s51, 0")
    a("s_cbranch_scc1 K1_POLL")
    a("K1_GO:")
    a("s_nop 7")
    for r in range(16):
        d = (r & 3) + 8 * (r >> 2)
        off = d * 256
        base = 80
        if off >= 4096: off -= 4096; base = 81
        a(f"buffer_atomic_add_f32 v{KV+r}, v{base}, s[32:35], 0 offen offset:{WS_KV + off}")
    a("s_branch K1_FIN")

    a("K1_Q:")
    vmq = VM(a)
    a(f"v_lshrrev_b32 v7, 3, v{LANE}")
    a(f"v_and_b32 v8, 7, v{LANE}")
    a(f"v_lshrrev_b32 v9, 1, v7")
    a(f"v_xor_b32 v8, v8, v9")
    a(f"v_mul_u32_u24 v7, 896, v7")
    a(f"v_lshl_add_u32 v30, v8, 4, v7")
    a(f"v_xor_b32 v31, 64, v30")
    a("s_lshl_b32 s46, s36, 7")
    a("s_lshl_b32 s47, s39, 5")
    a("s_add_u32 s46, s46, s47")
    a("s_mul_i32 s47, s46, 896")
    a("s_lshl_b32 s49, s39, 12")
    rot_table(128)
    common_setup_early(vmq)
    def dma_x(c):
        return [(f"c{c}", [f"s_add_u32 m0, s49, {K1_RING + (c%5)*K1_SLOT + i*1024}",
                           f"s_add_u32 s50, s{60+c}, {i*8*896}",
                           f"buffer_load_dwordx4 v{30+(i&1)}, s[16:19], s50 offen lds"]) for i in range(4)]
    for c in range(2):
        for op in dma_x(c):
            for t_ in op[1]: a(t_)
            vmq.issue(op[0])
    common_setup_late()
    wp_addr()
    a(f"v_cmp_eq_u32 s[52:53], 28, v{M}")
    for r in range(4): a(f"v_mov_b32 v{80+r}, s45")
    a("s_or_b32 s51, s36, s39")
    a("s_cmp_lg_u32 s51, 0")
    a("s_cbranch_scc1 K1_Q2")
    a("s_lshl_b32 s50, s37, 13")
    a(f"v_lshl_add_u32 v7, v{LANE}, 4, s50")
    for r in range(4): a(f"v_mov_b32 v{34+r}, 0")
    a("v_add_u32 v8, 4096, v7")
    for i in range(4):
        a(f"buffer_store_dwordx4 v[34:37], v7, s[32:35], 0 offen offset:{WS_KV + i*1024} sc1")
        a(f"buffer_store_dwordx4 v[34:37], v8, s[32:35], 0 offen offset:{WS_KV + i*1024} sc1")
    a("s_waitcnt vmcnt(0)")
    a("s_lshl_b32 s50, s37, 2")
    a("s_add_u32 s50, s50, 64")
    a("v_mov_b32 v7, s50")
    a("v_mov_b32 v8, 1")
    a("s_mov_b64 exec, 1")
    a("buffer_store_dword v8, v7, s[28:31], 0 offen sc1")
    a("s_mov_b64 exec, -1")
    a("s_waitcnt vmcnt(0)")
    a("K1_Q2:")
    AQ = 100
    ACS = 116
    mainloop([0, "cs"], [AQ, ACS], 34, 46, 72, 76, vmq, dma_x)
    a("s_mov_b64 exec, s[42:43]")
    a(f"ds_write_b32 v9, v{AQ+12} offset:{K1_SM}")
    a("s_mov_b32 s54, 1")
    a("s_mov_b32 s55, 1")
    a("s_mov_b64 exec, s[54:55]")
    a("s_min_u32 s50, s39, 2")
    a("s_lshl_b32 s50, s50, 7")
    a(f"v_lshl_add_u32 v8, v{HF}, 4, s50")
    for q in range(4):
        a(f"ds_write_b128 v8, v[{ACS+4*q}:{ACS+4*q+3}] offset:{K1_CS + q*32}")
    a("s_mov_b64 exec, -1")
    a("s_waitcnt lgkmcnt(0)")
    a("s_barrier")
    stamp(a, 7)
    CQ = 34
    post_reads([0], [CQ], 92, 66)
    tail_prefetch()
    a("s_waitcnt lgkmcnt(8)")
    a("v_add_f32 v67, v67, v68")
    stats_finish(a, 66, 67, 68, 69, 70)
    a("s_waitcnt lgkmcnt(0)")
    QFR = 132
    center_pack(AQ, CQ, 68, QFR)
    a(f"v_cndmask_b32 v{QFR+6}, v{QFR+6}, 0, s[42:43]")
    a(f"v_cndmask_b32 v{QFR+7}, v{QFR+7}, 0, s[42:43]")
    PQ = 148
    a(f"v_mfma_f32_32x32x16_bf16 v[{PQ}:{PQ+15}], v[92:95], v[{QFR}:{QFR+3}], 0")
    a(f"v_mfma_f32_32x32x16_bf16 v[{PQ}:{PQ+15}], v[96:99], v[{QFR+4}:{QFR+7}], v[{PQ}:{PQ+15}]")
    a(f"v_mul_f32 v71, s44, v69")
    a("s_lshl_b32 s50, s36, 2")
    a("s_add_u32 s50, s50, s39")
    a("s_lshl_b32 s50, s50, 4")
    a("s_add_u32 s50, s50, s37")
    a("s_lshl_b32 s50, s50, 12")
    a(f"s_add_u32 s50, s50, {WS_PHIQ}")
    a(f"v_lshlrev_b32 v7, 4, v{LANE}")
    softmax_pm(a, PQ, 164, 180, 36, 44, 52, 42, 71)
    for s_ in range(4):
        a(f"buffer_store_dwordx4 v[{36+4*s_}:{36+4*s_+3}], v7, s[32:35], s50 offen offset:{s_*1024}")
    stamp(a, 8)
    a("K1_FIN:")
    if STAMPS: a("s_waitcnt vmcnt(0)")
    stamp(a, 9)
    stamp_flush(a, 38, 32)
    a("K1_END:")
    a("s_endpgm")
    a.fix_hazards()
    return a.text(), kd("k1_kernel", 232)

def main():
    parts = []
    hdr = open("sequential_preLN__linear_kernel_hedgehog__glu_gated_glu__prompt.s.ref").read().split("; Override launch")[0]
    ks = [("k1", gen_k1, 256, 512, K1_LDS)]
    import gen2
    ks += gen2.kernels()
    out = [hdr.rstrip()]
    for nm, fn, g, b, lds in ks:
        out.append(f"; @launch kernel={nm}_kernel grid=({g},1,1) block=({b},1,1) lds={lds}")
    out.append('.amdgcn_target "amdgcn-amd-amdhsa--gfx950"')
    out.append(".text")
    kds = []
    for nm, fn, g, b, lds in ks:
        t, k = fn()
        out.append(t); kds.append(k)
    out.append('.section .rodata,"a"')
    out += kds
    open(sys.argv[1], "w").write("\n".join(out) + "\n")

if __name__ == "__main__":
    main()
```

```python
from asmfw import Asm
import gen
from gen import *

WS_HF = WS_H

K2_KV  = 0
K2_WO  = 69632
K2_RED = 0
K2_LDS = K2_WO + 456 * 128

def gen_k2():
    a = Asm()
    head(a, "k2_kernel")
    a("s_cmp_ge_u32 s2, 256")
    a("s_cbranch_scc1 K2_END")
    stamp_init(a); stamp(a, 0, real=True); stamp(a, 1)
    a("s_load_dwordx2 s[4:5], s[0:1], 0")
    a("s_load_dwordx2 s[6:7], s[0:1], 24")
    a("s_load_dwordx4 s[8:11], s[0:1], 40")
    a("s_load_dwordx2 s[14:15], s[0:1], 80")
    LANE, M, HF, I16, G = 1, 2, 3, 4, 5
    a(f"v_and_b32 v{LANE}, 63, v0")
    a(f"v_lshrrev_b32 v6, 6, v0")
    a(f"v_readfirstlane_b32 s38, v6")
    a(f"v_and_b32 v{M}, 31, v{LANE}")
    a(f"v_lshrrev_b32 v{HF}, 5, v{LANE}")
    a(f"v_and_b32 v{I16}, 15, v{LANE}")
    a(f"v_lshrrev_b32 v{G}, 4, v{LANE}")
    a("s_mov_b32 s42, 0")
    a("s_mov_b32 s43, -1")
    a("s_mov_b32 s41, 0xffff0000")
    a("s_cmp_ge_u32 s2, 224")
    a("s_cbranch_scc1 K2_CS")
    a("s_and_b32 s36, s2, 7")
    a("s_lshl_b32 s36, s36, 2")
    a("s_bfe_u32 s37, s2, 0x20003")
    a("s_add_u32 s36, s36, s37")
    a("s_lshr_b32 s37, s2, 5")
    a("s_and_b32 s39, s38, 1")
    a("s_lshr_b32 s40, s38, 1")
    a(f"v_lshlrev_b32 v10, 4, v{LANE}")
    a("s_lshl_b32 s44, s38, 14")
    a("s_lshl_b32 s50, s36, 1")
    a("s_add_u32 s50, s50, s39")
    a("s_lshl_b32 s50, s50, 4")
    a("s_lshl_b32 s51, s40, 2")
    a("s_add_u32 s50, s50, s51")
    a("s_lshl_b32 s45, s50, 12")
    a(f"s_add_u32 s45, s45, {WS_PHIQ}")
    a(f"v_lshrrev_b32 v7, 2, v{I16}")
    a(f"v_mul_u32_u24 v7, 1056, v7")
    a(f"v_and_b32 v8, 1, v{I16}")
    a(f"v_mul_u32_u24 v8, 528, v8")
    a(f"v_add_u32 v7, v7, v8")
    a(f"v_lshrrev_b32 v8, 1, v{I16}")
    a(f"v_and_b32 v8, 1, v8")
    a(f"v_lshl_add_u32 v7, v8, 3, v7")
    a(f"v_lshl_add_u32 v7, v{G}, 4, v7")
    a("s_mul_i32 s50, s38, 8448")
    a(f"v_add_u32 v19, s50, v7")
    a(f"v_lshrrev_b32 v7, 3, v{LANE}")
    a(f"v_and_b32 v8, 7, v{LANE}")
    a(f"v_lshrrev_b32 v9, 1, v7")
    a(f"v_and_b32 v9, 1, v9")
    a(f"v_lshlrev_b32 v9, 2, v9")
    a(f"v_xor_b32 v9, v8, v9")
    a(f"v_mul_u32_u24 v7, 896, v7")
    a(f"v_lshl_add_u32 v11, v9, 4, v7")
    a(f"v_lshl_add_u32 v86, v8, 4, v7")
    a("s_waitcnt lgkmcnt(0)")
    srd(a, 16, 4, 1835008)
    srd(a, 20, 6, 401408)
    srd(a, 32, 14, WS_SIZE)
    vm = VM(a)
    KR = 100
    a("s_lshr_b32 s56, s2, 3")
    for i in range(16):
        a(f"s_add_u32 s57, s56, {i}")
        a("s_and_b32 s57, s57, 15")
        a("s_lshl_b32 s51, s57, 10")
        a(f"s_add_u32 s51, s51, s44")
        a(f"buffer_load_dwordx4 v[{KR+4*i}:{KR+4*i+3}], v10, s[32:35], s51 offen offset:{WS_KV}")
        vm.issue(f"kv{i}")
    PQ = 164
    def pq_load(i):
        a(f"s_add_u32 s51, s45, {i*1024}")
        a(f"buffer_load_dwordx4 v[{PQ+4*i}:{PQ+4*i+3}], v10, s[32:35], s51 offen")
        vm.issue(f"pq{i>>2}")
    a("s_mul_i32 s50, s38, 50176")
    a("s_lshl_b32 s51, s37, 7")
    a("s_add_u32 s50, s50, s51")
    a("s_mul_i32 s52, s38, 7168")
    bg = []
    for i in range(16):
        bg.append((f"pq{i>>2}", [f"s_add_u32 s51, s45, {i*1024}", f"buffer_load_dwordx4 v[{PQ+4*i}:{PQ+4*i+3}], v10, s[32:35], s51 offen"]))
    for i in range(7):
        bg.append(("wo", [f"s_add_u32 m0, s52, {K2_WO + i*1024}", f"s_add_u32 s51, s50, {i*8*896}", f"buffer_load_dwordx4 v11, s[20:23], s51 offen lds"]))
    bg.append(("wo", [f"s_mov_b32 m0, {K2_WO + 448*128}", f"s_mov_b32 s51, {448*896}", f"buffer_load_dwordx4 v11, s[20:23], s51 offen lds"]))
    bg.append(("x", ["s_lshl_b32 s53, s36, 6", "s_lshl_b32 s51, s38, 3", "s_add_u32 s53, s53, s51", "s_mul_i32 s53, s53, 896", "s_lshl_b32 s51, s37, 7", "s_add_u32 s53, s53, s51",
                   "buffer_load_dwordx4 v[12:15], v86, s[16:19], s53 offen"]))
    def emit_bg(n=1):
        for _ in range(n):
            if bg:
                tag, ops = bg.pop(0)
                for t_ in ops: a(t_)
                vm.issue(tag)
    stamp(a, 2)
    for i in range(16):
        emit_bg()
        vm.wait(f"kv{i}")
        a(f"v_cvt_pk_bf16_f32 v{KR+4*i}, v{KR+4*i}, v{KR+4*i+1}")
        a(f"v_cvt_pk_bf16_f32 v{KR+4*i+1}, v{KR+4*i+2}, v{KR+4*i+3}")
        a(f"s_add_u32 s57, s56, {i}")
        a("s_bfe_u32 s58, s57, 0x10003")
        a("s_mul_i32 s58, s58, 4224")
        a("s_and_b32 s57, s57, 7")
        a("s_lshl_b32 s57, s57, 6")
        a("s_add_u32 s57, s57, s58")
        a("v_add_u32 v87, s57, v19")
        a(f"ds_write_b64 v87, v[{KR+4*i}:{KR+4*i+1}] offset:{K2_KV}")
    a(f"v_lshrrev_b32 v7, 2, v{I16}")
    a(f"v_lshl_add_u32 v8, v{HF}, 2, v7")
    a(f"v_lshrrev_b32 v7, 1, v7")
    a(f"v_lshlrev_b32 v7, 3, v7")
    a(f"v_and_b32 v9, 1, v{G}")
    a(f"v_lshl_add_u32 v7, v9, 2, v7")
    a(f"v_and_b32 v9, 3, v{I16}")
    a(f"v_add_u32 v7, v7, v9")
    a(f"v_lshlrev_b32 v7, 3, v7")
    a(f"v_lshl_add_u32 v7, v8, 7, v7")
    a("s_mul_i32 s51, s40, 14336")
    a(f"s_add_u32 s51, s51, {K2_WO}")
    a(f"v_add_u32 v16, s51, v7")
    a(f"v_xor_b32 v17, 64, v16")
    a("s_mul_i32 s51, s40, 16896")
    a(f"v_mul_u32_u24 v7, 528, v{HF}")
    a(f"v_lshl_add_u32 v7, v{M}, 4, v7")
    a(f"v_add_u32 v18, s51, v7")
    a("s_waitcnt lgkmcnt(0)")
    a("s_barrier")
    stamp(a, 3)
    KF = 100
    for hh in range(4):
        for s_ in range(4):
            a(f"ds_read_b128 v[{KF+16*hh+4*s_}:{KF+16*hh+4*s_+3}], v18 offset:{K2_KV + hh*4224 + s_*1056}")
    emit_bg(3)
    NUM = 20
    OF = 164
    AT = 20
    def num_mfma(hh):
        vm.wait(f"pq{hh}")
        for s_ in range(4):
            a(f"s_waitcnt lgkmcnt({15 - (4*hh+s_)})")
            c = "0" if s_ == 0 else f"v[{NUM+16*hh}:{NUM+16*hh+15}]"
            a(f"v_mfma_f32_32x32x16_bf16 v[{NUM+16*hh}:{NUM+16*hh+15}], v[{KF+16*hh+4*s_}:{KF+16*hh+4*s_+3}], v[{PQ+16*hh+4*s_}:{PQ+16*hh+4*s_+3}], {c}")
    def o_valu(hh):
        N = NUM + 16 * hh
        a(f"v_mov_b32 v84, v{N+12}")
        a(f"v_mov_b32 v85, v{N+12}")
        a(f"v_permlane32_swap_b32 v84, v85")
        bf16r(a, 85, 85)
        a(f"v_add_f32 v85, 0x358637bd, v85")
        bf16r(a, 85, 85)
        a(f"v_rcp_f32 v85, v85")
        for i in range(8):
            a(f"v_mul_f32 v{N+2*i}, v{N+2*i}, v85")
            a(f"v_mul_f32 v{N+2*i+1}, v{N+2*i+1}, v85")
            a(f"v_cvt_pk_bf16_f32 v{OF+16*hh+i}, v{N+2*i}, v{N+2*i+1}")
        a(f"v_cndmask_b32 v{OF+16*hh+6}, v{OF+16*hh+6}, 0, s[42:43]")
        a(f"v_cndmask_b32 v{OF+16*hh+7}, v{OF+16*hh+7}, 0, s[42:43]")
    num_mfma(0)
    for hh in range(4):
        if hh + 1 < 4: num_mfma(hh + 1)
        emit_bg(2)
        o_valu(hh)
    emit_bg(100)
    a("s_lshl_b32 s50, s39, 5")
    a(f"v_add_u32 v7, s50, v{M}")
    a(f"v_mul_u32_u24 v7, 272, v7")
    a(f"v_lshl_add_u32 v7, v{HF}, 4, v7")
    a("s_mul_i32 s50, s40, 17408")
    a(f"v_add_u32 v7, s50, v7")
    a(f"v_lshrrev_b32 v8, 3, v{LANE}")
    a("s_lshl_b32 s60, s38, 3")
    a(f"v_add_u32 v8, s60, v8")
    a(f"v_and_b32 v9, 7, v{LANE}")
    a(f"v_mul_u32_u24 v88, 272, v8")
    a(f"v_lshl_add_u32 v88, v9, 5, v88")
    a(f"v_lshrrev_b32 v89, 5, v8")
    a(f"v_mul_u32_u24 v89, 28, v89")
    a(f"v_lshrrev_b32 v90, 1, v9")
    a(f"v_add_u32 v89, v89, v90")
    a(f"v_lshlrev_b32 v89, 10, v89")
    a(f"v_and_b32 v90, 1, v9")
    a(f"v_lshl_add_u32 v89, v90, 9, v89")
    a(f"v_and_b32 v90, 31, v8")
    a(f"v_lshl_add_u32 v89, v90, 4, v89")
    a(f"v_lshlrev_b32 v90, 6, v8")
    a(f"v_cmp_eq_u32 s[54:55], 0, v9")
    a("s_mul_i32 s60, s36, 57344")
    a("s_lshl_b32 s61, s37, 12")
    a("s_add_u32 s60, s60, s61")
    a(f"s_add_u32 s60, s60, {WS_HF}")
    a("s_lshl_b32 s61, s37, 3")
    a("s_lshl_b32 s62, s36, 12")
    a("s_add_u32 s61, s61, s62")
    a(f"s_add_u32 s61, s61, {WS_ST}")
    stamp(a, 4)
    a("s_waitcnt vmcnt(1)")
    a("s_barrier")
    for hh in range(4):
        for s_ in range(2):
            for n2 in range(2):
                b = KF + 16*hh + 8*s_ + 4*n2
                for e in range(2):
                    a(f"ds_read_b64_tr_b16 v[{b+2*e}:{b+2*e+1}], v{16+n2} offset:{(hh*28 + 16*s_ + 8*e)*128}")
    k = 0
    for n2 in range(2):
        for hh in range(4):
            for s_ in range(2):
                b = KF + 16*hh + 8*s_ + 4*n2
                k += 1
                if n2 == 0: a(f"s_waitcnt lgkmcnt({min(15, 32 - 4*k)})")
                c = "0" if (hh == 0 and s_ == 0) else f"v[{AT+16*n2}:{AT+16*n2+15}]"
                a(f"v_mfma_f32_32x32x16_bf16 v[{AT+16*n2}:{AT+16*n2+15}], v[{b}:{b+3}], v[{OF+16*hh+4*s_}:{OF+16*hh+4*s_+3}], {c}")
                if n2 == 1 and hh >= 2:
                    q = (hh - 2) * 2 + s_
                    a(f"ds_write_b128 v7, v[{AT+4*q}:{AT+4*q+3}] offset:{K2_RED + q*32}")
    for n2 in range(1, 2):
        for q in range(4):
            a(f"ds_write_b128 v7, v[{AT+16*n2+4*q}:{AT+16*n2+4*q+3}] offset:{K2_RED + n2*128 + q*32}")
    a("s_waitcnt lgkmcnt(0)")
    a("s_barrier")
    stamp(a, 5)
    for hg in range(4):
        for e in range(2):
            a(f"ds_read_b128 v[{20+8*hg+4*e}:{20+8*hg+4*e+3}], v88 offset:{K2_RED + hg*17408 + e*16}")
    a("s_waitcnt lgkmcnt(4)")
    for j in range(8): a(f"v_add_f32 v{20+j}, v{20+j}, v{28+j}")
    a("s_waitcnt lgkmcnt(0)")
    for j in range(8): a(f"v_add_f32 v{36+j}, v{36+j}, v{44+j}")
    for j in range(8): a(f"v_add_f32 v{20+j}, v{20+j}, v{36+j}")
    a("s_waitcnt vmcnt(0)")
    for i in range(4):
        a(f"v_cvt_pk_bf16_f32 v{28+i}, v{20+2*i}, v{20+2*i+1}")
    for i in range(4):
        a(f"v_lshlrev_b32 v{20+2*i}, 16, v{28+i}")
        a(f"v_and_b32 v{20+2*i+1}, s41, v{28+i}")
        a(f"v_lshlrev_b32 v{36+2*i}, 16, v{12+i}")
        a(f"v_and_b32 v{36+2*i+1}, s41, v{12+i}")
    for j in range(8): a(f"v_add_f32 v{20+j}, v{20+j}, v{36+j}")
    for i in range(4):
        a(f"v_cvt_pk_bf16_f32 v{28+i}, v{20+2*i}, v{20+2*i+1}")
    a(f"buffer_store_dwordx4 v[28:31], v89, s[32:35], s60 offen")
    a("v_add_f32 v36, v20, v21")
    a("v_mul_f32 v37, v20, v20")
    a("v_add_f32 v38, v22, v23")
    a("v_mul_f32 v39, v21, v21")
    for j in range(4, 8, 2):
        a(f"v_add_f32 v36, v36, v{20+j}")
        a(f"v_add_f32 v38, v38, v{20+j+1}")
    for j in range(2, 8, 2):
        a(f"v_fmac_f32 v37, v{20+j}, v{20+j}")
        a(f"v_fmac_f32 v39, v{20+j+1}, v{20+j+1}")
    a("v_add_f32 v36, v36, v38")
    a("v_add_f32 v37, v37, v39")
    for dpp in ("quad_perm:[1,0,3,2]", "quad_perm:[2,3,0,1]", "row_half_mirror"):
        a(f"v_add_f32_dpp v36, v36, v36 {dpp} row_mask:0xf bank_mask:0xf")
        a(f"v_add_f32_dpp v37, v37, v37 {dpp} row_mask:0xf bank_mask:0xf")
    a("s_mov_b64 exec, s[54:55]")
    a(f"buffer_store_dwordx2 v[36:37], v90, s[32:35], s61 offen")
    a("s_branch K2_FIN")

    a("K2_CS:")
    a("s_sub_u32 s36, s2, 224")
    a("s_lshr_b32 s37, s36, 4")
    a("s_and_b32 s36, s36, 15")
    a("s_waitcnt lgkmcnt(0)")
    a("s_cmp_eq_u32 s37, 0")
    a("s_cselect_b32 s20, s8, s10")
    a("s_cselect_b32 s21, s9, s11")
    a("s_mov_b32 s22, 1605632")
    a("s_mov_b32 s23, 0x00020000")
    srd(a, 32, 14, WS_SIZE)
    a("v_mul_u32_u24 v7, 4682, v0")
    a("v_lshrrev_b32 v7, 16, v7")
    a("v_mul_u32_u24 v8, 14, v7")
    a("v_sub_u32 v8, v0, v8")
    a("v_mul_u32_u24 v9, 3584, v7")
    a("v_lshl_add_u32 v9, v8, 4, v9")
    a("v_cmp_gt_u32 vcc, 36, v7")
    a("v_mov_b32 v10, 0x7ffff000")
    a("v_cndmask_b32 v9, v10, v9, vcc")
    a("s_mul_i32 s50, s36, 224")
    for i in range(13):
        a(f"s_add_u32 s51, s50, {i*36*3584}")
        a(f"buffer_load_dwordx4 v[{20+4*i}:{20+4*i+3}], v9, s[20:23], s51 offen")
    for j in range(8): a(f"v_mov_b32 v{80+j}, 0")
    a("s_sub_u32 s60, s2, 224")
    a("s_lshr_b32 s60, s60, 3")
    a("s_lshl_b32 s60, s60, 3")
    a("s_add_u32 s60, s60, s38")
    a("s_mul_i32 s61, s60, 12288")
    a("s_add_u32 s61, s61, 524288")
    a(f"v_lshlrev_b32 v90, 7, v{LANE}")
    a(f"v_cmp_gt_u32 vcc, 48, v{LANE}")
    a(f"v_cndmask_b32 v90, v10, v90, vcc")
    srd(a, 64, 8, 1605632)
    srd(a, 68, 10, 1605632)
    a("s_add_u32 s62, s61, 6144")
    a("buffer_load_dword v91, v90, s[64:67], s61 offen")
    a("buffer_load_dword v92, v90, s[68:71], s61 offen")
    a("buffer_load_dword v93, v90, s[64:67], s62 offen")
    a("buffer_load_dword v94, v90, s[68:71], s62 offen")
    for i in range(13):
        a(f"s_waitcnt vmcnt({16-i})")
        for r in range(4):
            a(f"v_lshlrev_b32 v11, 16, v{20+4*i+r}")
            a(f"v_and_b32 v12, s41, v{20+4*i+r}")
            a(f"v_add_f32 v{80+2*r}, v{80+2*r}, v11")
            a(f"v_add_f32 v{80+2*r+1}, v{80+2*r+1}, v12")
    a("v_mul_u32_u24 v11, 448, v7")
    a("v_lshl_add_u32 v11, v8, 5, v11")
    a("ds_write_b128 v11, v[80:83]")
    a("ds_write_b128 v11, v[84:87] offset:16")
    a("s_waitcnt lgkmcnt(0)")
    a("s_barrier")
    a("v_cmp_gt_u32 vcc, 112, v0")
    a("s_and_saveexec_b64 s[54:55], vcc")
    a("s_cbranch_execz K2_FIN")
    a("v_lshlrev_b32 v11, 2, v0")
    for i in range(36):
        a(f"ds_read_b32 v{20+i}, v11 offset:{i*448}")
    a("s_waitcnt lgkmcnt(0)")
    for i in range(1, 36):
        a(f"v_add_f32 v20, v20, v{20+i}")
    a("v_cvt_pk_bf16_f32 v21, v20, v20")
    a("v_and_b32 v22, s41, v21")
    a("v_sub_f32 v22, v20, v22")
    a("v_cvt_pk_bf16_f32 v22, v22, v22")
    a("s_mul_i32 s50, s36, 112")
    a("v_add_u32 v11, s50, v0")
    a("v_lshrrev_b32 v12, 7, v11")
    a("v_lshlrev_b32 v12, 11, v12")
    a("v_bfe_u32 v13, v11, 4, 3")
    a("v_lshl_add_u32 v12, v13, 3, v12")
    a("v_and_b32 v13, 15, v11")
    a("v_lshl_add_u32 v11, v13, 6, v12")
    a("s_lshl_b32 s50, s37, 10")
    a(f"s_add_u32 s50, s50, {WS_CS}")
    a("v_mov_b32 v24, v21")
    a("v_mov_b32 v25, v22")
    a("buffer_store_dwordx2 v[24:25], v11, s[32:35], s50 offen")
    a("K2_FIN:")
    if STAMPS:
        a("s_mov_b64 exec, -1")
        a("s_waitcnt vmcnt(0)")
    stamp(a, 9)
    stamp_flush(a, 38, 32, 1)
    a("K2_END:")
    a("s_endpgm")
    a.fix_hazards()
    return a.text(), kd("k2_kernel", 232)

import gen3
def kernels():
    return gen3.kernels()
```

```python
from asmfw import Asm
import os
import gen
from gen import *
WS_HF = WS_H

K3_SLOT = 16384
K3_NS   = 6
PFI = int(os.environ.get('PFI', '51'))
K3_LDS  = 163840
WS_FLAG = 768 * 1024

def gen_k3():
    a = Asm()
    head(a, "k3_kernel")
    a("s_cmp_ge_u32 s2, 256")
    a("s_cbranch_scc1 K3_END")
    stamp_init(a); stamp(a, 0, real=True); stamp(a, 1)
    a("s_load_dwordx4 s[8:11], s[0:1], 40")
    a("s_load_dwordx4 s[4:7], s[0:1], 56")
    a("s_load_dwordx2 s[14:15], s[0:1], 80")
    a("s_load_dwordx2 s[12:13], s[0:1], 24")
    a("s_load_dwordx2 s[42:43], s[0:1], 0")
    LANE, M, HF, I16, G = 1, 2, 3, 4, 5
    a(f"v_and_b32 v{LANE}, 63, v0")
    a(f"v_lshrrev_b32 v6, 6, v0")
    a(f"v_readfirstlane_b32 s38, v6")
    a(f"v_and_b32 v{M}, 31, v{LANE}")
    a(f"v_lshrrev_b32 v{HF}, 5, v{LANE}")
    a(f"v_and_b32 v{I16}, 15, v{LANE}")
    a(f"v_lshrrev_b32 v{G}, 4, v{LANE}")
    a("s_mov_b32 s41, 0xffff0000")
    a("s_cmp_ge_u32 s2, 224")
    a("s_cbranch_scc1 K3_PF")
    a("s_and_b32 s36, s2, 7")
    a("s_lshl_b32 s36, s36, 1")
    a("s_bfe_u32 s37, s2, 0x10003")
    a("s_add_u32 s36, s36, s37")
    a("s_lshr_b32 s37, s2, 4")
    a("s_and_b32 s39, s38, 1")
    a("s_lshr_b32 s40, s38, 1")
    a(f"v_lshrrev_b32 v7, 3, v{LANE}")
    a(f"v_and_b32 v8, 2, v7")
    a(f"v_add_u32 v8, s39, v8")
    a(f"v_lshlrev_b32 v8, 1, v8")
    a(f"v_and_b32 v9, 7, v{LANE}")
    a(f"v_xor_b32 v8, v8, v9")
    a(f"v_mul_u32_u24 v7, 3584, v7")
    a(f"v_lshl_add_u32 v10, v8, 4, v7")
    a(f"v_lshlrev_b32 v11, 4, v{LANE}")
    a("s_mul_i32 s46, s40, 114688")
    a("s_lshl_b32 s47, s37, 8")
    a("s_add_u32 s46, s46, s47")
    a("s_and_b32 s57, s36, 1")
    a("s_lshl_b32 s58, s57, 7")
    a("s_xor_b32 s59, s58, 128")
    a("s_add_u32 s56, s46, s59")
    a("s_add_u32 s46, s46, s58")
    a("s_lshl_b32 s47, s39, 13")
    a("s_lshl_b32 s48, s40, 12")
    a("s_add_u32 s47, s47, s48")
    a("s_lshl_b32 s48, s36, 2")
    a("s_add_u32 s48, s48, s38")
    a("s_mul_i32 s49, s48, 28672")
    a(f"s_add_u32 s49, s49, {WS_HF}")
    a("s_waitcnt lgkmcnt(0)")
    a("s_cmp_eq_u32 s39, 0")
    a("s_cselect_b32 s20, s8, s10")
    a("s_cselect_b32 s21, s9, s11")
    a("s_mov_b32 s22, 1605632")
    a("s_mov_b32 s23, 0x00020000")
    srd(a, 32, 14, WS_SIZE)
    vm = VM(a)
    def dma_ops(C):
        ph, c = C // 7, C % 7
        return [(f"c{C}", [f"s_add_u32 m0, s47, {(C % K3_NS)*K3_SLOT + i*1024}",
                           f"s_add_u32 s50, s{56 if ph else 46}, {(c*64 + i*8)*3584}",
                           f"buffer_load_dwordx4 v10, s[20:23], s50 offen lds"]) for i in range(4)]
    def h_ops(kk, tag):
        return [(tag, [f"s_add_u32 s50, s49, {kk*1024}",
                       f"buffer_load_dwordx4 a[{4*kk}:{4*kk+3}], v11, s[32:35], s50 offen sc1"])]
    def emit(op):
        for t_ in op[1]: a(t_)
        vm.issue(op[0])
    def chunk_ops(C):
        d = dma_ops(C)
        if C >= 7: return d
        out = []
        for i in range(4): out += ([d[i]] if C >= 2 else []) + h_ops(4*C + i, f"c{C}")
        return out
    a("s_lshr_b32 s60, s2, 3")
    a("s_lshl_b32 s61, s38, 15")
    for i in range(32):
        a(f"s_add_u32 s50, s60, {i}")
        a("s_and_b32 s50, s50, 31")
        a("s_lshl_b32 s50, s50, 10")
        a("s_add_u32 s50, s50, s61")
        a(f"buffer_load_dwordx4 v[{128+4*i}:{128+4*i+3}], v11, s[32:35], s50 offen offset:{WS_KV}")
        vm.issue(f"kv{i}")
    TM = 12
    a(f"v_and_b32 v7, 1, v{G}")
    a(f"v_lshrrev_b32 v8, 2, v{I16}")
    a(f"v_and_b32 v9, 2, v8")
    a(f"v_add_u32 v9, v9, v7")
    a(f"v_lshl_add_u32 v8, v{HF}, 3, v8")
    a(f"v_lshlrev_b32 v8, 7, v8")
    a(f"v_lshl_add_u32 v8, v7, 13, v8")
    a(f"v_and_b32 v7, 3, v{I16}")
    a(f"v_lshl_add_u32 v8, v7, 3, v8")
    a(f"v_lshl_add_u32 v8, v9, 5, v8")
    for t in range(4):
        a(f"v_xor_b32 v{TM+t}, {t*32}, v8")
        a(f"v_add_u32 v{TM+4+t}, 0x10000, v{TM+t}")
        a(f"v_add_u32 v{TM+8+t}, 0x20000, v{TM+t}")
    WF = 36
    def acc(t): return f"v[{128+16*t}:{128+16*t+15}]"
    def rd_ops(ph, kk, t, dst):
        C = ph * 7 + kk // 4; slot = C % K3_NS
        return [f"ds_read_b64_tr_b16 v[{dst+2*e}:{dst+2*e+1}], v{TM + 4*(slot//4) + t} offset:{(slot%4)*K3_SLOT + (kk%4)*2048 + e*512}" for e in range(2)]
    a(f"v_lshlrev_b32 v9, 6, v{M}")
    a(f"v_lshl_add_u32 v118, v{HF}, 5, v9")
    a(f"v_accvgpr_write_b32 a128, 0")
    a(f"v_accvgpr_write_b32 a129, 0")
    a("s_lshl_b32 s52, s48, 11")
    a(f"s_add_u32 s52, s52, {WS_ST}")
    a("s_lshl_b32 s53, s37, 11")
    a(f"s_add_u32 s53, s53, {WS_CS}")
    a("s_lshl_b32 s58, s57, 5")
    a("s_xor_b32 s59, s58, 32")
    a("s_add_u32 s55, s53, s59")
    a("s_add_u32 s53, s53, s58")
    misc = []
    for j in range(2):
        misc.append(("ms", [f"buffer_load_dwordx4 v[{100+4*j}:{100+4*j+3}], v118, s[32:35], s52 offen offset:{j*16} sc1"]))
    for j in range(4):
        misc.append(("ms", [f"buffer_load_dwordx4 a[{112+4*j}:{112+4*j+3}], v9, s[32:35], s{55 if j >= 2 else 53} offen offset:{(j&1)*16} sc1"]))
    a("s_mul_i32 s54, s48, 114688")
    a("s_lshl_b32 s51, s37, 13")
    a("s_add_u32 s54, s54, s51")
    a(f"s_add_u32 s54, s54, {WS_HH}")
    a("s_lshl_b32 s58, s57, 12")
    a("s_xor_b32 s59, s58, 4096")
    a("s_add_u32 s62, s54, s59")
    a("s_add_u32 s54, s54, s58")
    NM, RS, SD, NSC = 114, 115, 116, 117
    fin = Asm()
    fin(f"v_cmp_gt_u32 vcc, 32, v{LANE}")
    fin(f"v_cndmask_b32 v106, 0, v106, vcc")
    fin(f"v_cndmask_b32 v107, 0, v107, vcc")
    for j in range(1, 4):
        fin(f"v_add_f32 v100, v100, v{100+2*j}")
        fin(f"v_add_f32 v101, v101, v{100+2*j+1}")
    xhalf(fin, "v_add_f32", 100, 100, 102, 103)
    xhalf(fin, "v_add_f32", 101, 101, 104, 105)
    stats_finish(fin, 100, 101, NM, RS, SD)
    fin(f"v_mul_f32 v{NSC}, 0xbfb8aa3b, v{RS}")
    fin(f"v_lshrrev_b32 v104, 16, v{NM}")
    fin(f"v_cmp_gt_u32 vcc, 32, v{LANE}")
    fin(f"v_cndmask_b32 v104, 0, v104, vcc")
    fin(f"v_mov_b32 v105, v104")
    fin(f"v_mov_b32 v106, 0")
    fin(f"v_mov_b32 v107, 0")
    fin_ops = [i.text for i in fin.ins]
    deferred = []
    def ep_ops(t):
        A_ = 128 + 16 * t
        OUT = A_
        ep = [f"v_mul_f32 v{A_+r}, v{NSC}, v{A_+r}" for r in range(8)]
        ep += [f"v_exp_f32 v{A_+r}, v{A_+r}" for r in range(8)]
        ep += [f"v_fma_f32 v{A_+r}, v{A_+r}, v{SD}, v{SD}" for r in range(8)]
        ep += [f"v_rcp_f32 v{A_+r}, v{A_+r}" for r in range(8)]
        ep += [f"v_mul_f32 v{A_+8+r}, v{A_+8+r}, v{A_+r}" for r in range(8)]
        ep += [f"v_cvt_pk_bf16_f32 v{OUT+i}, v{A_+8+2*i}, v{A_+8+2*i+1}" for i in range(4)]
        st_ = ("ST", f"s_add_u32 s50, s{62 if t >= 4 else 54}, {(t&3)*1024}", f"buffer_store_dwordx4 v[{OUT}:{OUT+3}], v11, s[32:35], s50 offen sc1")
        ep += [st_]
        return ep
    def emit_valu(vq, n):
        for _ in range(n):
            if not vq: return
            o = vq.pop(0)
            if isinstance(o, tuple):
                a(o[1]); a(o[2]); vm.issue("st")
            else: a(o)
    srd(a, 16, 12, 401408)
    srd(a, 28, 42, 1835008)
    srd(a, 24, 6, 1835008)
    a("s_and_b32 s64, s37, 1")
    a("s_lshl_b32 s65, s36, 1")
    a("s_add_u32 s64, s64, s65")
    a("s_lshr_b32 s65, s37, 1")
    a(f"v_lshrrev_b32 v7, 3, v{LANE}")
    a(f"v_and_b32 v8, 7, v{LANE}")
    a(f"v_lshrrev_b32 v27, 1, v7")
    a(f"v_and_b32 v27, 1, v27")
    a(f"v_lshlrev_b32 v27, 2, v27")
    a(f"v_xor_b32 v27, v8, v27")
    a(f"v_mul_u32_u24 v32, 896, v7")
    a(f"v_lshl_add_u32 v27, v27, 4, v32")
    a(f"v_lshl_add_u32 v32, v8, 4, v32")
    a(f"v_lshrrev_b32 v26, 1, v8")
    a(f"v_lshlrev_b32 v26, 10, v26")
    a(f"v_and_b32 v31, 1, v8")
    a(f"v_lshl_add_u32 v26, v31, 9, v26")
    a(f"v_lshl_add_u32 v26, v7, 4, v26")
    a("s_mul_i32 s63, s64, 57344")
    a("s_lshl_b32 s66, s65, 12")
    a("s_add_u32 s63, s63, s66")
    a("s_lshr_b32 s66, s38, 1")
    a("s_mul_i32 s66, s66, 28672")
    a("s_add_u32 s63, s63, s66")
    a("s_and_b32 s66, s38, 1")
    a("s_lshl_b32 s66, s66, 8")
    a("s_add_u32 s63, s63, s66")
    a(f"s_add_u32 s63, s63, {WS_HF}")
    a("s_lshl_b32 s66, s38, 4")
    a(f"v_add_u32 v31, s66, v7")
    a(f"v_mul_u32_u24 v31, 272, v31")
    a(f"v_lshl_add_u32 v31, v8, 5, v31")
    a(f"v_add_u32 v33, 49152, v31")
    a("s_lshl_b32 s76, s64, 6")
    a("s_add_u32 s76, s76, s66")
    a("s_mul_i32 s76, s76, 896")
    a("s_lshl_b32 s66, s65, 7")
    a("s_add_u32 s76, s76, s66")
    a("s_mul_i32 s66, s38, 401408")
    a("s_lshl_b32 s67, s65, 7")
    a("s_add_u32 s66, s66, s67")
    a("s_mul_i32 s67, s64, 229376")
    a("s_mul_i32 s77, s38, 28672")
    a("s_add_u32 s67, s67, s77")
    a(f"s_add_u32 s67, s67, {WS_HH}")
    for g_ in range(4):
        a(f"s_add_u32 s77, s64, {g_}")
        a("s_and_b32 s77, s77, 3")
        a(f"s_mul_i32 s{68+g_}, s77, {7*16*896}")
        a(f"s_add_u32 s{68+g_}, s{68+g_}, s66")
        a(f"s_mul_i32 s{72+g_}, s77, 7168")
        a(f"s_add_u32 s{72+g_}, s{72+g_}, s67")
    a("s_mul_i32 s78, s38, 24576")
    a("s_lshl_b32 s79, s38, 14")
    a("s_add_u32 s79, s79, 98304")
    a(f"v_lshrrev_b32 v7, 2, v{I16}")
    a(f"v_lshl_add_u32 v8, v{HF}, 2, v7")
    a(f"v_lshrrev_b32 v7, 1, v7")
    a(f"v_lshlrev_b32 v7, 3, v7")
    a(f"v_and_b32 v30, 1, v{G}")
    a(f"v_lshl_add_u32 v7, v30, 2, v7")
    a(f"v_and_b32 v30, 3, v{I16}")
    a(f"v_add_u32 v7, v7, v30")
    a(f"v_lshlrev_b32 v7, 3, v7")
    a(f"v_lshl_add_u32 v7, v8, 7, v7")
    a(f"v_add_u32 v28, s78, v7")
    a(f"v_xor_b32 v29, 64, v28")
    a(f"v_add_u32 v24, s79, v7")
    a(f"v_xor_b32 v25, 64, v24")
    a(f"v_mul_u32_u24 v30, 272, v{M}")
    a(f"v_lshl_add_u32 v30, v{HF}, 4, v30")
    a(f"v_add_u32 v30, s78, v30")
    NREG = 8; NRES = 16
    def d_dma(ks):
        sb, lo = (79, (ks % 8) * 2048) if ks < NRES else (78, (ks - NRES) * 2048)
        return [(f"w{ks}", [f"s_add_u32 m0, s{sb}, {lo + i*1024}",
                            f"s_add_u32 s50, s{68+ks//7}, {((ks%7)*16 + i*8)*896}",
                            f"buffer_load_dwordx4 v27, s[16:19], s50 offen lds"]) for i in range(2)]
    def d_stage(ks):
        vm.wait(f"w{ks}")
        for n2 in range(2):
            for e in range(2):
                a(f"ds_read_b64_tr_b16 a[{130+8*ks+4*n2+2*e}:{130+8*ks+4*n2+2*e+1}], v{24+n2} offset:{(ks%8)*2048 + e*1024}")
    dstate = {"next_dma": 0, "next_stage": 0, "dma_at": {}, "stage_at": {}, "ops": []}
    def d_tick(i):
        st = dstate
        ks = st["next_stage"]
        if ks < NREG and 7 in st["dma_at"] and i >= 184:
            d_stage(ks); st["stage_at"][ks] = i; st["next_stage"] += 1
        if not st["ops"]:
            kd_ = st["next_dma"]
            if kd_ < NRES and (kd_ < 8 or (kd_ - 8 in st["stage_at"] and i - st["stage_at"][kd_ - 8] >= 9)):
                st["ops"] = d_dma(kd_); st["cur"] = kd_; st["next_dma"] += 1
        if st["ops"]:
            emit(st["ops"].pop(0))
            if not st["ops"]: st["dma_at"][st["cur"]] = i
    B_KV, B_RED, B_WO = 0, 65536, 102400
    a("s_mov_b32 s44, 0")
    a("s_mov_b32 s45, -1")
    a(f"v_lshrrev_b32 v7, 2, v{I16}")
    a(f"v_mul_u32_u24 v7, 1056, v7")
    a(f"v_and_b32 v8, 1, v{I16}")
    a(f"v_mul_u32_u24 v8, 528, v8")
    a(f"v_add_u32 v7, v7, v8")
    a(f"v_lshrrev_b32 v8, 1, v{I16}")
    a(f"v_and_b32 v8, 1, v8")
    a(f"v_lshl_add_u32 v7, v8, 3, v7")
    a(f"v_lshl_add_u32 v7, v{G}, 4, v7")
    a("s_mul_i32 s50, s38, 16896")
    a(f"v_add_u32 v34, s50, v7")
    a("s_lshl_b32 s66, s64, 1")
    a("s_add_u32 s66, s66, s39")
    a("s_lshl_b32 s66, s66, 4")
    a("s_lshl_b32 s50, s40, 3")
    a("s_add_u32 s66, s66, s50")
    a("s_lshl_b32 s66, s66, 12")
    a(f"s_add_u32 s66, s66, {WS_PHIQ}")
    a("s_mul_i32 s67, s38, 100352")
    a("s_lshl_b32 s50, s65, 7")
    a("s_add_u32 s67, s67, s50")
    a("s_mul_i32 s77, s38, 14336")
    bg = []
    for i in range(32):
        bg.append((f"pq{i>>2}", [f"s_add_u32 s50, s66, {i*1024}", f"buffer_load_dwordx4 a[{4*i}:{4*i+3}], v11, s[32:35], s50 offen"]))
    for i in range(14):
        bg.append(("wo", [f"s_add_u32 m0, s77, {B_WO + i*1024}", f"s_add_u32 s50, s67, {i*8*896}", f"buffer_load_dwordx4 v27, s[16:19], s50 offen lds"]))
    bg.append(("wo", [f"s_mov_b32 m0, {B_WO + 448*128}", f"s_mov_b32 s50, {448*896}", f"buffer_load_dwordx4 v27, s[16:19], s50 offen lds"]))
    bg.append(("x", ["buffer_load_dwordx4 v[120:123], v32, s[28:31], s76 offen"]))
    bg.append(("x", [f"s_add_u32 s50, s76, {8*896}", "buffer_load_dwordx4 v[124:127], v32, s[28:31], s50 offen"]))
    def emit_bg(n=1):
        for _ in range(n):
            if bg: emit(bg.pop(0))
    for i in range(32):
        emit_bg()
        vm.wait(f"kv{i}")
        R = 128 + 4 * i
        a(f"v_cvt_pk_bf16_f32 v{R}, v{R}, v{R+1}")
        a(f"v_cvt_pk_bf16_f32 v{R+1}, v{R+2}, v{R+3}")
        a(f"s_add_u32 s50, s60, {i}")
        a("s_bfe_u32 s51, s50, 0x20003")
        a("s_mul_i32 s51, s51, 4224")
        a("s_and_b32 s50, s50, 7")
        a("s_lshl_b32 s50, s50, 6")
        a("s_add_u32 s50, s50, s51")
        a("v_add_u32 v35, s50, v34")
        a(f"ds_write_b64 v35, v[{R}:{R+1}] offset:{B_KV}")
    a("s_mul_i32 s50, s40, 33792")
    a(f"v_mul_u32_u24 v7, 528, v{HF}")
    a(f"v_lshl_add_u32 v7, v{M}, 4, v7")
    a(f"v_add_u32 v100, s50, v7")
    a("s_mul_i32 s50, s40, 28672")
    a(f"s_add_u32 s50, s50, {B_WO}")
    a("s_sub_u32 s50, s50, s78")
    a(f"v_add_u32 v101, s50, v28")
    a(f"v_xor_b32 v102, 64, v101")
    a("s_lshl_b32 s50, s39, 5")
    a(f"v_add_u32 v7, s50, v{M}")
    a(f"v_mul_u32_u24 v7, 272, v7")
    a(f"v_lshl_add_u32 v7, v{HF}, 4, v7")
    a("s_mul_i32 s50, s40, 17408")
    a(f"s_add_u32 s50, s50, {B_RED}")
    a(f"v_add_u32 v103, s50, v7")
    a(f"v_add_u32 v104, {B_RED}, v31")
    a(f"v_lshrrev_b32 v35, 3, v{LANE}")
    a(f"v_lshlrev_b32 v35, 6, v35")
    a("s_waitcnt lgkmcnt(0)")
    a("s_barrier")
    def kvf_reads(hh):
        for s_ in range(4):
            a(f"ds_read_b128 v[{128+16*hh+4*s_}:{128+16*hh+4*s_+3}], v100 offset:{B_KV + hh*4224 + s_*1056}")
    def num_mfma(hh, outst):
        N = 36 + 16 * (hh & 1)
        vm.wait(f"pq{hh}")
        a(f"s_waitcnt lgkmcnt({outst})")
        for s_ in range(4):
            c = "0" if s_ == 0 else f"v[{N}:{N+15}]"
            a(f"v_mfma_f32_32x32x16_bf16 v[{N}:{N+15}], v[{128+16*hh+4*s_}:{128+16*hh+4*s_+3}], a[{16*hh+4*s_}:{16*hh+4*s_+3}], {c}")
    def o_valu(hh):
        N = 36 + 16 * (hh & 1); O = 128 + 16 * hh
        a(f"v_mov_b32 v105, v{N+12}")
        a(f"v_mov_b32 v106, v{N+12}")
        a(f"v_permlane32_swap_b32 v105, v106")
        bf16r(a, 106, 106)
        a(f"v_add_f32 v106, 0x358637bd, v106")
        bf16r(a, 106, 106)
        a(f"v_rcp_f32 v106, v106")
        for i in range(8):
            a(f"v_mul_f32 v{N+2*i}, v{N+2*i}, v106")
            a(f"v_mul_f32 v{N+2*i+1}, v{N+2*i+1}, v106")
            a(f"v_cvt_pk_bf16_f32 v{O+i}, v{N+2*i}, v{N+2*i+1}")
        a(f"v_cndmask_b32 v{O+6}, v{O+6}, 0, s[44:45]")
        a(f"v_cndmask_b32 v{O+7}, v{O+7}, 0, s[44:45]")
    for hh in range(3): kvf_reads(hh)
    num_mfma(0, 8)
    for hh in range(8):
        if hh + 3 < 8: kvf_reads(hh + 3)
        if hh + 1 < 8: num_mfma(hh + 1, 4 * min(2, 8 - (hh + 2)))
        emit_bg(3)
        o_valu(hh)
    emit_bg(100)
    vm.wait("wo")
    a("s_barrier")
    wq = dma_ops(0) + dma_ops(1)
    def wo_reads(hh):
        for s_ in range(2):
            for n2 in range(2):
                b = 68 + 16 * (hh & 1) + 8*s_ + 4*n2
                for e in range(2):
                    a(f"ds_read_b64_tr_b16 v[{b+2*e}:{b+2*e+1}], v{101+n2} offset:{(hh*28 + 16*s_ + 8*e)*128}")
    wo_reads(0)
    for hh in range(8):
        if hh + 1 < 8: wo_reads(hh + 1)
        a(f"s_waitcnt lgkmcnt({8 if hh + 1 < 8 else 0})")
        for s_ in range(2):
            for n2 in range(2):
                b = 68 + 16 * (hh & 1) + 8*s_ + 4*n2
                c = "0" if (hh == 0 and s_ == 0) else f"a[{130+16*n2}:{130+16*n2+15}]"
                a(f"v_mfma_f32_32x32x16_bf16 a[{130+16*n2}:{130+16*n2+15}], v[{b}:{b+3}], v[{128+16*hh+4*s_}:{128+16*hh+4*s_+3}], {c}")
        emit(wq.pop(0))
    for n2 in range(2):
        for q in range(4):
            a(f"ds_write_b128 v103, a[{130+16*n2+4*q}:{130+16*n2+4*q+3}] offset:{n2*128 + q*32}")
    a("s_lshl_b32 s61, s64, 6")
    a("s_lshl_b32 s50, s38, 4")
    a("s_add_u32 s61, s61, s50")
    a("s_lshl_b32 s61, s61, 6")
    a("s_lshl_b32 s50, s65, 3")
    a("s_add_u32 s61, s61, s50")
    a(f"s_add_u32 s61, s61, {WS_ST}")
    a("s_lshl_b32 s60, s2, 7")
    a("s_lshl_b32 s50, s38, 2")
    a("s_add_u32 s60, s60, s50")
    a(f"s_add_u32 s60, s60, {WS_FLAG + 16}")
    a(f"v_lshrrev_b32 v7, 1, v{LANE}")
    a(f"v_lshlrev_b32 v105, 12, v7")
    a("s_lshl_b32 s50, s40, 11")
    a("s_and_b32 s51, s2, 15")
    a("s_lshl_b32 s51, s51, 7")
    a("s_add_u32 s50, s50, s51")
    a("s_lshl_b32 s51, s39, 3")
    a("s_add_u32 s50, s50, s51")
    a("s_add_u32 s50, s50, 16")
    a(f"v_add_u32 v105, s50, v105")
    a(f"v_min_u32 v7, 8, v7")
    a(f"v_subrev_u32 v7, 7, v7")
    a(f"v_mul_u32_u24 v7, 1792, v7")
    a("s_add_u32 s50, s37, 224")
    a("s_lshl_b32 s50, s50, 7")
    a(f"v_add_u32 v7, s50, v7")
    a(f"v_cmp_gt_u32 vcc, 14, v{LANE}")
    a(f"v_cndmask_b32 v105, v7, v105, vcc")
    a(f"v_and_b32 v7, 1, v{LANE}")
    a(f"v_lshl_add_u32 v105, v7, 2, v105")
    a("s_waitcnt lgkmcnt(0)")
    a("s_barrier")
    for g2 in range(2):
        for hp_ in range(2):
            for e in range(2):
                a(f"ds_read_b128 v[{36+16*g2+8*hp_+4*e}:{36+16*g2+8*hp_+4*e+3}], v104 offset:{hp_*17408 + g2*8*272 + e*16}")
    vm.wait("x")
    a("s_mov_b32 s50, 0x01010101")
    a("s_mov_b32 s51, 0x01010101")
    for g2 in range(2):
        B_ = 36 + 16 * g2; T_ = 68 + 16 * g2
        a(f"s_waitcnt lgkmcnt({4 if g2 == 0 else 0})")
        for j in range(8): a(f"v_add_f32 v{B_+j}, v{B_+j}, v{B_+8+j}")
        for i in range(4): a(f"v_cvt_pk_bf16_f32 v{B_+8+i}, v{B_+2*i}, v{B_+2*i+1}")
        for i in range(4):
            a(f"v_lshlrev_b32 v{B_+2*i}, 16, v{B_+8+i}")
            a(f"v_and_b32 v{B_+2*i+1}, s41, v{B_+8+i}")
            a(f"v_lshlrev_b32 v{T_+2*i}, 16, v{120+4*g2+i}")
            a(f"v_and_b32 v{T_+2*i+1}, s41, v{120+4*g2+i}")
        for j in range(8): a(f"v_add_f32 v{B_+j}, v{B_+j}, v{T_+j}")
        for i in range(4): a(f"v_cvt_pk_bf16_f32 v{B_+8+i}, v{B_+2*i}, v{B_+2*i+1}")
        a(f"buffer_store_dwordx4 v[{B_+8}:{B_+11}], v26, s[32:35], s63 offen offset:{g2*128} sc1")
        a(f"v_add_f32 v{T_}, v{B_}, v{B_+1}")
        a(f"v_mul_f32 v{T_+1}, v{B_}, v{B_}")
        a(f"v_add_f32 v{T_+2}, v{B_+2}, v{B_+3}")
        a(f"v_mul_f32 v{T_+3}, v{B_+1}, v{B_+1}")
        for j in range(4, 8, 2):
            a(f"v_add_f32 v{T_}, v{T_}, v{B_+j}")
            a(f"v_add_f32 v{T_+2}, v{T_+2}, v{B_+j+1}")
        for j in range(2, 8, 2):
            a(f"v_fmac_f32 v{T_+1}, v{B_+j}, v{B_+j}")
            a(f"v_fmac_f32 v{T_+3}, v{B_+j+1}, v{B_+j+1}")
        a(f"v_add_f32 v{T_}, v{T_}, v{T_+2}")
        a(f"v_add_f32 v{T_+1}, v{T_+1}, v{T_+3}")
        for dpp in ("quad_perm:[1,0,3,2]", "quad_perm:[2,3,0,1]", "row_half_mirror"):
            a(f"v_add_f32_dpp v{T_}, v{T_}, v{T_} {dpp} row_mask:0xf bank_mask:0xf")
            a(f"v_add_f32_dpp v{T_+1}, v{T_+1}, v{T_+1} {dpp} row_mask:0xf bank_mask:0xf")
        a("s_mov_b64 exec, s[50:51]")
        a(f"buffer_store_dwordx2 v[{T_}:{T_+1}], v35, s[32:35], s61 offen offset:{g2*512} sc1")
        a("s_mov_b64 exec, -1")
    a("v_mov_b32 v106, 1")
    a("v_mov_b32 v107, 0")
    srd(a, 16, 4, 1605632)
    a("s_waitcnt vmcnt(0)")
    a("s_mov_b64 exec, 1")
    a("buffer_store_dword v106, v107, s[32:35], s60 offen sc1")
    a("s_mov_b64 exec, -1")
    a(f"s_mov_b32 s51, {WS_FLAG}")
    a("s_mov_b32 s50, 0")
    a("K3_POLLB:")
    a("buffer_load_dword v107, v105, s[32:35], s51 offen sc1")
    a("s_add_u32 s50, s50, 1")
    a("s_waitcnt vmcnt(0)")
    a("v_cmp_ne_u32 vcc, 1, v107")
    a("s_cmp_gt_u32 s50, 0x400000")
    a("s_cbranch_scc1 K3_POLLBX")
    a("s_cmp_lg_u64 vcc, 0")
    a("s_cbranch_scc1 K3_POLLB")
    a("K3_POLLBX:")
    vm = VM(a)
    for C in range(3):
        for op in chunk_ops(C): emit(op)
    stamp(a, 2)
    vm.wait("c0")
    a("s_barrier")
    stamp(a, 3)
    NK1 = 20
    seq = [(0, kk, t) for kk in range(28) for t in range(4)] + [(1, kk, t) for kk in range(NK1) for t in range(4)]
    seq += [(1, kk, t) for t in range(4) for kk in range(NK1, 28)]
    LAH = 7
    NBUF = 16
    queue = chunk_ops(3) + chunk_ops(4) + chunk_ops(5)
    late = []
    ready = {0}
    vq = []
    def need_chunk(C):
        nonlocal queue, late
        if C in ready: return
        if any(op[0] == f"c{C}" for op in late):
            queue += late; late = []
        while any(op[0] == f"c{C}" for op in queue): emit(queue.pop(0))
        vm.wait(f"c{C}")
        a("s_barrier")
        ready.add(C)
        if 6 <= C + 4 <= 13: late += chunk_ops(C + 4)
        if C == 2: late += misc
    def issue_reads(i):
        ph, kk, t = seq[i]
        need_chunk(ph * 7 + kk // 4)
        for o in rd_ops(ph, kk, t, WF + 4 * (i % NBUF)): a(o)
    for i in range(LAH): issue_reads(i)
    for i, (ph, kk, t) in enumerate(seq):
        if i + LAH < len(seq):
            issue_reads(i + LAH)
            if i % 2 == 0: a(f"s_waitcnt lgkmcnt({2*LAH-2})")
        elif i % 2 == 0:
            a(f"s_waitcnt lgkmcnt({max(0, 2*(len(seq)-2-i))})")
        T = ph * 4 + t
        b = WF + 4 * (i % NBUF)
        c_ = "0" if kk == 0 else acc(T)
        a(f"v_mfma_f32_32x32x16_bf16 {acc(T)}, v[{b}:{b+3}], a[{4*kk}:{4*kk+3}], {c_}")
        if kk == 27:
            a(f"v_mfma_f32_32x32x16_bf16 {acc(T)}, a[{112+2*T}:{112+2*T+3}], v[104:107], {acc(T)}")
            vq += ep_ops(T)
        if ph == 0 and kk == 22 and t == 0:
            vm.wait("ms")
            vq += fin_ops
        if i == 112: stamp(a, 4)
        if i == 112 + 4 * NK1:
            stamp(a, 5)
        if i % 2 == 0 or i < 12:
            if queue: emit(queue.pop(0))
            elif late: emit(late.pop(0))
            elif 9 in ready: d_tick(i)
        if not (kk == 27): emit_valu(vq, 3 if i < 112 + 4 * NK1 else 6)
    emit_valu(vq, 10000)
    while late: emit(late.pop(0))
    print("D staging state at end of C:", dstate["next_dma"], dstate["next_stage"])
    stamp(a, 6)
    a("s_lshl_b32 s50, s2, 7")
    a("s_lshl_b32 s51, s38, 2")
    a("s_add_u32 s50, s50, s51")
    a(f"s_add_u32 s50, s50, {WS_FLAG}")
    a("v_mov_b32 v100, 1")
    a("v_mov_b32 v101, 0")
    a("s_and_b32 s51, s2, 15")
    a("s_lshl_b32 s51, s51, 7")
    a("s_and_b32 s52, s64, 1")
    a("s_lshl_b32 s52, s52, 3")
    a("s_add_u32 s51, s51, s52")
    a(f"s_add_u32 s51, s51, {WS_FLAG}")
    a(f"v_lshrrev_b32 v102, 1, v{LANE}")
    a(f"v_min_u32 v102, 13, v102")
    a(f"v_lshlrev_b32 v102, 11, v102")
    a(f"v_and_b32 v103, 1, v{LANE}")
    a(f"v_lshl_add_u32 v102, v103, 2, v102")
    a("s_waitcnt vmcnt(0)")
    a("s_mov_b64 exec, 1")
    a("buffer_store_dword v100, v101, s[32:35], s50 offen sc1")
    a("s_mov_b64 exec, -1")
    ii = 1000
    while dstate["next_dma"] < NRES or dstate["next_stage"] < NREG or dstate["ops"]:
        a("s_waitcnt lgkmcnt(0)")
        for _ in range(4):
            ii += 20; d_tick(ii)
            if dstate["stage_at"].get(dstate["next_stage"] - 1) == ii: break
    a("s_barrier")
    a("s_mov_b32 s53, 0")
    a("K3_POLL:")
    a("buffer_load_dword v103, v102, s[32:35], s51 offen sc1")
    a("s_add_u32 s53, s53, 1")
    a("s_waitcnt vmcnt(0)")
    a("v_cmp_ne_u32 vcc, 1, v103")
    a("s_cmp_gt_u32 s53, 0x400000")
    a("s_cbranch_scc1 K3_POLLX")
    a("s_cmp_lg_u64 vcc, 0")
    a("s_cbranch_scc1 K3_POLL")
    a("K3_POLLX:")
    stamp(a, 7)
    vm = VM(a)
    NH = 14
    def hh_ops(ks):
        return [(f"k{ks}", [f"s_add_u32 s50, s{72+ks//7}, {m2*114688 + (ks%7)*1024}",
                            f"buffer_load_dwordx4 a[{(ks%NH)*8+4*m2}:{(ks%NH)*8+4*m2+3}], v11, s[32:35], s50 offen sc1"]) for m2 in range(2)]
    for ks in range(NH):
        for op in hh_ops(ks): emit(op)
    def dacc(n2, m2): return f"v[{128+32*n2+16*m2}:{128+32*n2+16*m2+15}]"
    def drd(ks):
        if ks < NREG: return 0
        base, off = (24, (ks % 8) * 2048) if ks < NRES else (28, (ks - NRES) * 2048)
        for n2 in range(2):
            b = 36 + (ks & 1) * 8 + 4 * n2
            for e in range(2):
                a(f"ds_read_b64_tr_b16 v[{b+2*e}:{b+2*e+1}], v{base+n2} offset:{off + e*1024}")
        return 4
    for ks in range(28):
        n_ = 0
        if ks + 1 < 28:
            if ks + 1 >= NRES: vm.wait(f"w{ks+1}")
            n_ = drd(ks + 1)
        vm.wait(f"k{ks}")
        if ks >= NREG - 1: a(f"s_waitcnt lgkmcnt({n_})")
        for n2 in range(2):
            for m2 in range(2):
                wsrc = f"a[{130+8*ks+4*n2}:{130+8*ks+4*n2+3}]" if ks < NREG else f"v[{36+(ks&1)*8+4*n2}:{36+(ks&1)*8+4*n2+3}]"
                c_ = "0" if ks == 0 else dacc(n2, m2)
                a(f"v_mfma_f32_32x32x16_bf16 {dacc(n2,m2)}, {wsrc}, a[{(ks%NH)*8+4*m2}:{(ks%NH)*8+4*m2+3}], {c_}")
        nk = ks + NH
        if nk < 28:
            if nk >= NRES:
                for op in d_dma(nk): emit(op)
            for op in hh_ops(nk): emit(op)
        if nk == 28:
            a(f"buffer_load_dwordx4 v[52:55], v26, s[32:35], s63 offen sc1")
            a(f"buffer_load_dwordx4 v[56:59], v26, s[32:35], s63 offen offset:128 sc1")
            vm.issue("res"); vm.issue("res")
    stamp(a, 8)
    for n2 in range(2):
        for m2 in range(2):
            for q in range(4):
                b = 128 + 32*n2 + 16*m2 + 4*q
                a(f"ds_write_b128 v30, v[{b}:{b+3}] offset:{m2*32*272 + n2*128 + q*32}")
    a("s_waitcnt lgkmcnt(0)")
    a("s_barrier")
    a("s_waitcnt vmcnt(0)")
    for g2 in range(2):
        for w in range(4):
            for e in range(2):
                a(f"ds_read_b128 v[{60+32*g2+8*w+4*e}:{60+32*g2+8*w+4*e+3}], v{31 if w < 2 else 33} offset:{(w&1)*24576 + g2*8*272 + e*16}")
    for g2 in range(2):
        B_ = 60 + 32 * g2
        a(f"s_waitcnt lgkmcnt({8 if g2 == 0 else 0})")
        for j in range(8):
            a(f"v_add_f32 v{B_+j}, v{B_+j}, v{B_+8+j}")
            a(f"v_add_f32 v{B_+16+j}, v{B_+16+j}, v{B_+24+j}")
        for j in range(8): a(f"v_add_f32 v{B_+j}, v{B_+j}, v{B_+16+j}")
        for i in range(4): a(f"v_cvt_pk_bf16_f32 v{B_+8+i}, v{B_+2*i}, v{B_+2*i+1}")
        for i in range(4):
            a(f"v_lshlrev_b32 v{B_+2*i}, 16, v{B_+8+i}")
            a(f"v_and_b32 v{B_+2*i+1}, s41, v{B_+8+i}")
            a(f"v_lshlrev_b32 v{B_+16+2*i}, 16, v{52+4*g2+i}")
            a(f"v_and_b32 v{B_+16+2*i+1}, s41, v{52+4*g2+i}")
        for j in range(8): a(f"v_add_f32 v{B_+j}, v{B_+j}, v{B_+16+j}")
        for i in range(4): a(f"v_cvt_pk_bf16_f32 v{B_+8+i}, v{B_+2*i}, v{B_+2*i+1}")
        a(f"s_add_u32 s50, s76, {g2*8*896}")
        a(f"buffer_store_dwordx4 v[{B_+8}:{B_+11}], v32, s[24:27], s50 offen")
    if STAMPS: a("s_waitcnt vmcnt(0)")
    stamp(a, 9)
    stamp_flush(a, 38, 32, 2)
    a("s_endpgm")
    a("K3_PF:")
    a("s_sub_u32 s36, s2, 224")
    a("s_waitcnt lgkmcnt(0)")
    srd(a, 16, 4, 1605632)
    srd(a, 20, 8, 1605632)
    srd(a, 24, 10, 1605632)
    srd(a, 32, 14, WS_SIZE)
    a("s_cmp_ge_u32 s36, 28")
    a("s_cbranch_scc1 K3_PF2")
    a("s_cmp_ge_u32 s36, 14")
    a("s_cselect_b32 s37, 1, 0")
    a("s_cselect_b32 s28, s10, s8")
    a("s_cselect_b32 s29, s11, s9")
    a("s_mov_b32 s30, 1605632")
    a("s_mov_b32 s31, 0x00020000")
    a("s_mul_i32 s39, s37, 14")
    a("s_sub_u32 s39, s36, s39")
    a("v_lshrrev_b32 v7, 4, v0")
    a("v_and_b32 v8, 15, v0")
    a("v_mul_u32_u24 v9, 3584, v7")
    a("v_lshl_add_u32 v9, v8, 4, v9")
    a("s_lshl_b32 s50, s39, 8")
    for i in range(28):
        a(f"s_add_u32 s51, s50, {i*16*3584}")
        a(f"buffer_load_dwordx4 v[{20+4*i}:{20+4*i+3}], v9, s[28:31], s51 offen")
    for j in range(8): a(f"v_mov_b32 v{140+j}, 0")
    for i in range(28):
        a(f"s_waitcnt vmcnt({27-i})")
        for r in range(4):
            a(f"v_lshlrev_b32 v11, 16, v{20+4*i+r}")
            a(f"v_and_b32 v12, s41, v{20+4*i+r}")
            a(f"v_add_f32 v{140+2*r}, v{140+2*r}, v11")
            a(f"v_add_f32 v{140+2*r+1}, v{140+2*r+1}, v12")
    a("v_lshlrev_b32 v11, 9, v7")
    a("v_lshl_add_u32 v11, v8, 5, v11")
    a("ds_write_b128 v11, v[140:143]")
    a("ds_write_b128 v11, v[144:147] offset:16")
    a("s_waitcnt lgkmcnt(0)")
    a("s_barrier")
    a("s_cmp_ge_u32 s38, 2")
    a("s_cbranch_scc1 K3_PF2")
    a("v_lshlrev_b32 v11, 2, v0")
    for i in range(16):
        a(f"ds_read_b32 v{20+i}, v11 offset:{i*512}")
    a("s_waitcnt lgkmcnt(0)")
    for i in range(1, 16): a(f"v_add_f32 v20, v20, v{20+i}")
    a("v_cvt_pk_bf16_f32 v24, v20, v20")
    a("v_and_b32 v22, s41, v24")
    a("v_sub_f32 v22, v20, v22")
    a("v_cvt_pk_bf16_f32 v25, v22, v22")
    a("v_lshlrev_b32 v11, 6, v8")
    a("v_lshl_add_u32 v11, v7, 3, v11")
    a("s_lshl_b32 s50, s39, 11")
    a("s_lshl_b32 s51, s37, 10")
    a("s_add_u32 s50, s50, s51")
    a(f"s_add_u32 s50, s50, {WS_CS}")
    a("buffer_store_dwordx2 v[24:25], v11, s[32:35], s50 offen sc1")
    a("s_lshl_b32 s50, s2, 7")
    a("s_lshl_b32 s51, s38, 2")
    a("s_add_u32 s50, s50, s51")
    a(f"s_add_u32 s50, s50, {WS_FLAG}")
    a("v_mov_b32 v26, 1")
    a("v_mov_b32 v27, 0")
    a("s_waitcnt vmcnt(0)")
    a("s_mov_b64 exec, 1")
    a("buffer_store_dword v26, v27, s[32:35], s50 offen sc1")
    a("s_mov_b64 exec, -1")
    a("K3_PF2:")
    a("s_lshr_b32 s60, s36, 3")
    a("s_lshl_b32 s60, s60, 2")
    a("s_add_u32 s60, s60, s38")
    a("s_mul_i32 s61, s60, 7168")
    a(f"v_lshlrev_b32 v10, 7, v{LANE}")
    a(f"v_mov_b32 v11, 0x7fff0000")
    a(f"v_cmp_gt_u32 vcc, 56, v{LANE}")
    a(f"v_cndmask_b32 v10, v11, v10, vcc")
    for i in range(10):
        a(f"s_add_u32 s62, s61, {4096*128 + i*16*7168}")
        a(f"buffer_load_dword v{150+2*i}, v10, s[20:23], s62 offen")
        a(f"buffer_load_dword v{151+2*i}, v10, s[24:27], s62 offen")
    for i in range(14):
        a(f"s_add_u32 s62, s61, {i*16*7168}")
        a(f"buffer_load_dword v{170+i}, v10, s[16:19], s62 offen")
    a("K3_END:")
    a("s_endpgm")
    a.fix_hazards()
    k = kd("k3_kernel", 256).replace("next_free_vgpr 256", "next_free_vgpr 506")
    return a.text(), k

K4_WREG = 40960
K4_LDS = 4 * K4_WREG

def gen_k4():
    a = Asm()
    head(a, "k4_kernel")
    a("s_cmp_ge_u32 s2, 224")
    a("s_cbranch_scc1 K4_END")
    stamp_init(a); stamp(a, 0, real=True); stamp(a, 1)
    a("s_load_dwordx4 s[8:11], s[0:1], 56")
    a("s_load_dwordx2 s[14:15], s[0:1], 80")
    LANE, M, HF, I16, G = 1, 2, 3, 4, 5
    a(f"v_and_b32 v{LANE}, 63, v0")
    a(f"v_lshrrev_b32 v6, 6, v0")
    a(f"v_readfirstlane_b32 s38, v6")
    a(f"v_and_b32 v{M}, 31, v{LANE}")
    a(f"v_lshrrev_b32 v{HF}, 5, v{LANE}")
    a(f"v_and_b32 v{I16}, 15, v{LANE}")
    a(f"v_lshrrev_b32 v{G}, 4, v{LANE}")
    a("s_mov_b32 s41, 0xffff0000")
    a("s_and_b32 s36, s2, 7")
    a("s_lshl_b32 s36, s36, 2")
    a("s_bfe_u32 s37, s2, 0x20003")
    a("s_add_u32 s36, s36, s37")
    a("s_lshr_b32 s37, s2, 5")
    a(f"v_lshrrev_b32 v7, 3, v{LANE}")
    a(f"v_and_b32 v8, 7, v{LANE}")
    a(f"v_lshrrev_b32 v9, 1, v7")
    a(f"v_and_b32 v9, 1, v9")
    a(f"v_lshlrev_b32 v9, 2, v9")
    a(f"v_xor_b32 v8, v8, v9")
    a(f"v_mul_u32_u24 v7, 896, v7")
    a(f"v_lshl_add_u32 v10, v8, 4, v7")
    a(f"v_lshlrev_b32 v11, 4, v{LANE}")
    a("s_waitcnt lgkmcnt(0)")
    srd(a, 20, 8, 1605632)
    srd(a, 24, 10, 1835008)
    srd(a, 32, 14, WS_SIZE)
    a("s_mul_i32 s46, s38, 401408")
    a("s_lshl_b32 s47, s37, 7")
    a("s_add_u32 s46, s46, s47")
    a(f"s_mul_i32 s47, s38, {K4_WREG}")
    a("s_mul_i32 s48, s36, 229376")
    a("s_mul_i32 s49, s38, 28672")
    a("s_add_u32 s48, s48, s49")
    a(f"s_add_u32 s48, s48, {WS_HH}")
    vm = VM(a)
    HH = 28
    a("s_bfe_u32 s52, s2, 0x20003")
    for g_ in range(4):
        a(f"s_add_u32 s53, s52, {g_}")
        a("s_and_b32 s53, s53, 3")
        a(f"s_mul_i32 s{56+g_}, s53, {7*16*896}")
        a(f"s_add_u32 s{56+g_}, s{56+g_}, s46")
        a(f"s_mul_i32 s{60+g_}, s53, 7168")
        a(f"s_add_u32 s{60+g_}, s{60+g_}, s48")
    def dma(ks):
        for i in range(2):
            a(f"s_add_u32 m0, s47, {(ks % 20)*2048 + i*1024}")
            a(f"s_add_u32 s50, s{56+ks//7}, {((ks%7)*16 + i*8)*896}")
            a(f"buffer_load_dwordx4 v10, s[20:23], s50 offen lds")
            vm.issue(f"k{ks}")
    def hload(ks):
        for m2 in range(2):
            a(f"s_add_u32 s50, s{60+ks//7}, {m2*114688 + (ks%7)*1024}")
            a(f"buffer_load_dwordx4 v[{HH+8*ks+4*m2}:{HH+8*ks+4*m2+3}], v11, s[32:35], s50 offen")
            vm.issue(f"k{ks}")
    PRE = 15
    for ks in range(PRE):
        dma(ks); hload(ks)
    a(f"v_lshrrev_b32 v7, 2, v{I16}")
    a(f"v_lshl_add_u32 v8, v{HF}, 2, v7")
    a(f"v_lshrrev_b32 v7, 1, v7")
    a(f"v_lshlrev_b32 v7, 3, v7")
    a(f"v_and_b32 v9, 1, v{G}")
    a(f"v_lshl_add_u32 v7, v9, 2, v7")
    a(f"v_and_b32 v9, 3, v{I16}")
    a(f"v_add_u32 v7, v7, v9")
    a(f"v_lshlrev_b32 v7, 3, v7")
    a(f"v_lshl_add_u32 v7, v8, 7, v7")
    a(f"v_add_u32 v12, s47, v7")
    a(f"v_xor_b32 v13, 64, v12")
    WF = 14
    def acc(n2, m2): return f"a[{32*n2+16*m2}:{32*n2+16*m2+15}]"
    def wf(ks, n2):
        b = 64 + (ks & 1) * 8 + 4 * n2
        return b
    def rd(ks):
        for n2 in range(2):
            b = wf(ks, n2)
            for e in range(2):
                a(f"ds_read_b64_tr_b16 a[{b+2*e}:{b+2*e+1}], v{12+n2} offset:{(ks % 20)*2048 + e*1024}")
    stamp(a, 2)
    vm.wait("k0")
    stamp(a, 3)
    rd(0)
    for ks in range(28):
        if ks + 1 < 28:
            vm.wait(f"k{ks+1}")
            rd(ks + 1)
            a("s_waitcnt lgkmcnt(4)")
        else:
            a("s_waitcnt lgkmcnt(0)")
        for n2 in range(2):
            for m2 in range(2):
                b = wf(ks, n2)
                c_ = "0" if ks == 0 else acc(n2, m2)
                a(f"v_mfma_f32_32x32x16_bf16 {acc(n2,m2)}, a[{b}:{b+3}], v[{HH+8*ks+4*m2}:{HH+8*ks+4*m2+3}], {c_}")
        nk = ks + PRE
        if nk < 28:
            dma(nk); hload(nk)
    stamp(a, 4)
    a("s_lshl_b32 s50, s36, 1")
    a("s_mul_i32 s50, s50, 28")
    a("s_lshl_b32 s51, s37, 2")
    a("s_add_u32 s50, s50, s51")
    a("s_add_u32 s50, s50, s38")
    a("s_lshl_b32 s50, s50, 10")
    a(f"s_add_u32 s50, s50, {WS_HF}")
    a(f"v_mul_u32_u24 v7, 28672, v{HF}")
    a(f"v_lshl_add_u32 v7, v{M}, 4, v7")
    a(f"buffer_load_dwordx4 v[14:17], v7, s[32:35], s50 offen")
    a(f"buffer_load_dwordx4 v[18:21], v7, s[32:35], s50 offen offset:512")
    a(f"v_mul_u32_u24 v7, 272, v{M}")
    a(f"v_lshl_add_u32 v7, v{HF}, 4, v7")
    a(f"v_add_u32 v7, s47, v7")
    for n2 in range(2):
        for m2 in range(2):
            for q in range(4):
                b = 32*n2 + 16*m2 + 4*q
                a(f"ds_write_b128 v7, a[{b}:{b+3}] offset:{m2*32*272 + n2*128 + q*32}")
    a("s_waitcnt lgkmcnt(0)")
    a("s_barrier")
    stamp(a, 5)
    a(f"v_mul_u32_u24 v7, 272, v{LANE}")
    a("s_lshl_b32 s50, s38, 6")
    a(f"v_add_u32 v7, s50, v7")
    a(f"v_add_u32 v8, {2*K4_WREG}, v7")
    for w in range(4):
        for e in range(4):
            base = 7 if w < 2 else 8
            a(f"ds_read_b128 v[{28+16*w+4*e}:{28+16*w+4*e+3}], v{base} offset:{(w&1)*K4_WREG + e*16}")
    a("s_waitcnt lgkmcnt(0)")
    for j in range(16):
        a(f"v_add_f32 v{28+j}, v{28+j}, v{44+j}")
        a(f"v_add_f32 v{60+j}, v{60+j}, v{76+j}")
    for j in range(16):
        a(f"v_add_f32 v{28+j}, v{28+j}, v{60+j}")
    a("s_waitcnt vmcnt(0)")
    for i in range(8):
        a(f"v_cvt_pk_bf16_f32 v44, v{28+2*i}, v{28+2*i+1}")
        a(f"v_lshlrev_b32 v45, 16, v44")
        a(f"v_and_b32 v46, s41, v44")
        a(f"v_lshlrev_b32 v47, 16, v{14+i}")
        a(f"v_and_b32 v48, s41, v{14+i}")
        a(f"v_add_f32 v45, v45, v47")
        a(f"v_add_f32 v46, v46, v48")
        a(f"v_cvt_pk_bf16_f32 v{60+i}, v45, v46")
    a("s_lshl_b32 s50, s36, 6")
    a(f"v_add_u32 v7, s50, v{LANE}")
    a(f"v_mul_u32_u24 v7, 896, v7")
    a("s_lshl_b32 s50, s37, 7")
    a("s_lshl_b32 s51, s38, 5")
    a("s_add_u32 s50, s50, s51")
    a(f"buffer_store_dwordx4 v[60:63], v7, s[24:27], s50 offen")
    a(f"buffer_store_dwordx4 v[64:67], v7, s[24:27], s50 offen offset:16")
    if STAMPS: a("s_waitcnt vmcnt(0)")
    stamp(a, 9)
    stamp_flush(a, 38, 32, 3)
    a("K4_END:")
    a("s_endpgm")
    a.fix_hazards()
    k = kd("k4_kernel", 256).replace("next_free_vgpr 256", "next_free_vgpr 336")
    return a.text(), k

def kernels():
    return [("k3", gen_k3, 256, 256, K3_LDS)]
```

```python
import sys
from asmfw import Asm

WS_KV   = 0
WS_CS   = 512 * 1024
WS_ST   = 640 * 1024
WS_PHIQ = 1 << 20
WS_H    = 8 << 20
WS_HH   = 16 << 20
WS_SIZE = 268435456
LOG2E = 0x3fb8aa3b

class VM:
    def __init__(self, a): self.a = a; self.ops = []
    def issue(self, tag): self.ops.append(tag)
    def wait(self, tag, extra=0):
        idx = max(i for i, t in enumerate(self.ops) if t == tag)
        n = len(self.ops) - 1 - idx + extra
        assert n <= 63
        self.a("s_waitcnt vmcnt(%d)" % n)
    def copy(self):
        v = VM(self.a); v.ops = list(self.ops); return v

def srd(a, d, ptr, size):
    a(f"s_mov_b32 s{d}, s{ptr}")
    a(f"s_mov_b32 s{d+1}, s{ptr+1}")
    a(f"s_mov_b32 s{d+2}, {size}")
    a(f"s_mov_b32 s{d+3}, 0x00020000")

def bf16r(a, dst, src, tmp=None):
    a(f"v_cvt_pk_bf16_f32 v{dst}, v{src}, v{src}")
    a(f"v_and_b32 v{dst}, 0xffff0000, v{dst}")

def xhalf(a, op, dst, src, t1, t2):
    a(f"v_mov_b32 v{t1}, v{src}")
    a(f"v_mov_b32 v{t2}, v{src}")
    a(f"v_permlane32_swap_b32 v{t1}, v{t2}")
    a(f"{op} v{dst}, v{t1}, v{t2}")

def ln_stats_finish(a, vs, vq, v_mr, v_rstd, t1, t2, t3):
    xhalf(a, "v_add_f32", vs, vs, t1, t2)
    xhalf(a, "v_add_f32", vq, vq, t1, t2)
    a(f"v_mul_f32 v{vs}, 0x3b124925, v{vs}")
    a(f"v_mul_f32 v{vq}, 0x3b124925, v{vq}")
    a(f"v_fma_f32 v{vq}, -v{vs}, v{vs}, v{vq}")
    a(f"v_max_f32 v{vq}, 0, v{vq}")
    bf16r(a, vs, vs)
    bf16r(a, vq, vq)
    a(f"v_add_f32 v{vq}, 0x3727c5ac, v{vq}")
    bf16r(a, vq, vq)
    a(f"v_sqrt_f32 v{vq}, v{vq}")
    bf16r(a, vq, vq)
    a(f"v_rcp_f32 v{v_rstd}, v{vq}")
    a(f"v_mul_f32 v{v_mr}, v{vs}, v{v_rstd}")

def softmax_pm(a, P, E, F, OP, ON, T, s_hi, SC, OSC=None):
    for r in range(12, 16):
        a(f"v_cndmask_b32 v{P+r}, v{P+r}, v{P}, s[{s_hi}:{s_hi+1}]")
    mx, mn, t1, t2, se, sf = T, T+1, T+2, T+3, T+4, T+5
    a(f"v_max3_f32 v{mx}, v{P}, v{P+1}, v{P+2}")
    a(f"v_min3_f32 v{mn}, v{P}, v{P+1}, v{P+2}")
    for r in range(3, 15, 2):
        a(f"v_max3_f32 v{mx}, v{mx}, v{P+r}, v{P+r+1}")
        a(f"v_min3_f32 v{mn}, v{mn}, v{P+r}, v{P+r+1}")
    a(f"v_max_f32 v{mx}, v{mx}, v{P+15}")
    a(f"v_min_f32 v{mn}, v{mn}, v{P+15}")
    a(f"v_mov_b32 v{t1}, v{mx}")
    a(f"v_mov_b32 v{se}, v{mn}")
    a(f"v_permlane32_swap_b32 v{t1}, v{mx}")
    a(f"v_permlane32_swap_b32 v{se}, v{mn}")
    a(f"v_max_f32 v{mx}, v{t1}, v{mx}")
    a(f"v_min_f32 v{mn}, v{se}, v{mn}")
    a(f"v_mul_f32 v{mx}, v{SC}, v{mx}")
    a(f"v_mul_f32 v{mn}, v{SC}, v{mn}")
    for r in range(16):
        a(f"v_fma_f32 v{E+r}, v{P+r}, v{SC}, -v{mx}")
        a(f"v_fma_f32 v{F+r}, -v{P+r}, v{SC}, v{mn}")
        if r >= 1:
            a(f"v_exp_f32 v{E+r-1}, v{E+r-1}")
            a(f"v_exp_f32 v{F+r-1}, v{F+r-1}")
    a(f"v_exp_f32 v{E+15}, v{E+15}")
    a(f"v_exp_f32 v{F+15}, v{F+15}")
    a(f"v_add_f32 v{se}, v{E}, v{E+1}")
    a(f"v_add_f32 v{sf}, v{F}, v{F+1}")
    a(f"v_add_f32 v{t1}, v{E+2}, v{E+3}")
    a(f"v_add_f32 v{t2}, v{F+2}, v{F+3}")
    for r in range(4, 12, 2):
        a(f"v_add_f32 v{se}, v{se}, v{E+r}")
        a(f"v_add_f32 v{sf}, v{sf}, v{F+r}")
        a(f"v_add_f32 v{t1}, v{t1}, v{E+r+1}")
        a(f"v_add_f32 v{t2}, v{t2}, v{F+r+1}")
    for r in range(12, 16):
        a(f"v_cndmask_b32 v{E+r}, v{E+r}, 0, s[{s_hi}:{s_hi+1}]")
        a(f"v_cndmask_b32 v{F+r}, v{F+r}, 0, s[{s_hi}:{s_hi+1}]")
    for r in range(12, 16, 2):
        a(f"v_add_f32 v{se}, v{se}, v{E+r}")
        a(f"v_add_f32 v{sf}, v{sf}, v{F+r}")
        a(f"v_add_f32 v{t1}, v{t1}, v{E+r+1}")
        a(f"v_add_f32 v{t2}, v{t2}, v{F+r+1}")
    a(f"v_add_f32 v{se}, v{se}, v{t1}")
    a(f"v_add_f32 v{sf}, v{sf}, v{t2}")
    a(f"v_mov_b32 v{t1}, v{se}")
    a(f"v_mov_b32 v{t2}, v{sf}")
    a(f"v_permlane32_swap_b32 v{t1}, v{se}")
    a(f"v_permlane32_swap_b32 v{t2}, v{sf}")
    a(f"v_add_f32 v{se}, v{t1}, v{se}")
    a(f"v_add_f32 v{sf}, v{t2}, v{sf}")
    a(f"v_rcp_f32 v{se}, v{se}")
    a(f"v_rcp_f32 v{sf}, v{sf}")
    if OSC is not None:
        a(f"v_mul_f32 v{se}, v{se}, v{OSC}")
        a(f"v_mul_f32 v{sf}, v{sf}, v{OSC}")
    for i in range(8):
        a(f"v_mul_f32 v{E+2*i}, v{E+2*i}, v{se}")
        a(f"v_mul_f32 v{E+2*i+1}, v{E+2*i+1}, v{se}")
        a(f"v_cvt_pk_bf16_f32 v{OP+i}, v{E+2*i}, v{E+2*i+1}")
    for i in range(8):
        a(f"v_mul_f32 v{F+2*i}, v{F+2*i}, v{sf}")
        a(f"v_mul_f32 v{F+2*i+1}, v{F+2*i+1}, v{sf}")
        a(f"v_cvt_pk_bf16_f32 v{ON+i}, v{F+2*i}, v{F+2*i+1}")

def stats_finish(a, vs, vq, v_nmean, v_rstd, v_sd):
    a(f"v_mul_f32 v{vs}, 0x3b124925, v{vs}")
    a(f"v_mul_f32 v{vq}, 0x3b124925, v{vq}")
    a(f"v_fma_f32 v{vq}, -v{vs}, v{vs}, v{vq}")
    a(f"v_max_f32 v{vq}, 0, v{vq}")
    a(f"v_cvt_pk_bf16_f32 v{vs}, v{vq}, v{vs}")
    a(f"v_lshlrev_b32 v{vq}, 16, v{vs}")
    a(f"v_and_b32 v{vs}, 0xffff0000, v{vs}")
    a(f"v_add_f32 v{vq}, 0x3727c5ac, v{vq}")
    a(f"v_xor_b32 v{v_nmean}, 0x80000000, v{vs}")
    bf16r(a, vq, vq)
    a(f"v_sqrt_f32 v{vq}, v{vq}")
    bf16r(a, v_sd, vq)
    a(f"v_rcp_f32 v{v_rstd}, v{v_sd}")

def kd(name, vgpr, sgpr=102):
    acc = (vgpr + 3) // 4 * 4
    return f""".p2align 6
.amdhsa_kernel {name}
  .amdhsa_next_free_vgpr {vgpr}
  .amdhsa_next_free_sgpr {sgpr}
  .amdhsa_accum_offset {min(acc,256)}
  .amdhsa_group_segment_fixed_size 0
  .amdhsa_kernarg_size 88
  .amdhsa_user_sgpr_count 2
  .amdhsa_user_sgpr_kernarg_segment_ptr 1
  .amdhsa_system_sgpr_workgroup_id_x 1
.end_amdhsa_kernel"""

WS_STAMP = 64 << 20
import os
STAMPS = bool(int(os.environ.get("STAMPS", "0")))
def stamp(a, idx, real=False):
    if not STAMPS: return
    a(f"s_memrealtime s[{80+2*idx}:{81+2*idx}]" if real else f"s_memtime s[{80+2*idx}:{81+2*idx}]")

def stamp_init(a):
    if not STAMPS: return
    for i in range(80, 100): a(f"s_mov_b32 s{i}, 0")

def stamp_flush(a, s_wave, ws_srd, koff=0):
    if not STAMPS: return
    a("s_waitcnt lgkmcnt(0)")
    a("s_lshl_b32 s3, s2, 3")
    a(f"s_add_u32 s3, s3, s{s_wave}")
    a("s_lshl_b32 s3, s3, 6")
    a(f"s_add_u32 s3, s3, {WS_STAMP + koff*(1<<20)}")
    a("v_mov_b32 v1, s3")
    for i in range(10):
        a(f"v_mov_b32 v0, s{80+2*i}")
        a(f"buffer_store_dword v0, v1, s[{ws_srd}:{ws_srd+3}], 0 offen offset:{i*4}")

def head(a, name):
    a.raw(f".globl {name}\n.p2align 8\n.type {name},@function")
    a(f"{name}:")

K1_CS   = 0
K1_FL   = 448
K1_SQ   = 512
K1_SM   = 1536
K1_WP   = 2048
K1_RING = 4096
K1_SLOT = 28672
K1_LDS  = K1_RING + 5 * K1_SLOT
K1_PHIK = K1_RING
K1_V    = K1_PHIK + 16384

NPRE = int(os.environ.get('NPRE', '2'))
TLBW = int(os.environ.get('TLBW', '0'))
def gen_k1():
    a = Asm()
    head(a, "k1_kernel")
    a("s_cmp_ge_u32 s2, 256")
    a("s_cbranch_scc1 K1_END")
    stamp_init(a)
    stamp(a, 0, real=True)
    stamp(a, 1)
    a("s_load_dwordx4 s[4:7], s[0:1], 0")
    a("s_load_dwordx4 s[8:11], s[0:1], 16")
    a("s_load_dwordx4 s[12:15], s[0:1], 72")
    a("s_load_dwordx4 s[56:59], s[0:1], 40")
    a("s_load_dwordx4 s[68:71], s[0:1], 56")
    LANE, M, HF, I16, G = 1, 2, 3, 4, 5
    a(f"v_and_b32 v{LANE}, 63, v0")
    a(f"v_lshrrev_b32 v6, 6, v0")
    a(f"v_readfirstlane_b32 s38, v6")
    a(f"v_and_b32 v{M}, 31, v{LANE}")
    a(f"v_lshrrev_b32 v{HF}, 5, v{LANE}")
    a(f"v_and_b32 v{I16}, 15, v{LANE}")
    a(f"v_lshrrev_b32 v{G}, 4, v{LANE}")
    a("s_and_b32 s36, s2, 7")
    a("s_lshl_b32 s36, s36, 1")
    a("s_bfe_u32 s37, s2, 0x10003")
    a("s_add_u32 s36, s36, s37")
    a("s_lshr_b32 s37, s2, 4")
    a("s_and_b32 s39, s38, 3")
    a("s_lshr_b32 s40, s38, 2")
    a("s_mov_b32 s42, 0")
    a("s_mov_b32 s43, -1")
    a(f"s_mov_b32 s44, {LOG2E}")
    a("s_mov_b32 s45, 0x3f803f80")
    a("s_mov_b32 s41, 0xffff0000")
    a("s_cmp_eq_u32 s40, 1")
    a("s_cbranch_scc1 K1_Q")

    PAT = 30
    def common_setup_early(vm):
        a("s_waitcnt lgkmcnt(0)")
        srd(a, 16, 4, 1835008)
        srd(a, 20, 6, 1204224)
        srd(a, 24, 8, 25088)
        srd(a, 28, 12, 256)
        srd(a, 32, 14, WS_SIZE)
        pass
    def rot_table(mult):
        a("s_and_b32 s60, s36, 1")
        a("s_mul_i32 s60, s60, 3")
        a("s_add_u32 s60, s60, s37")
        for _ in range(2):
            a("s_cmp_ge_u32 s60, 7")
            a("s_cselect_b32 s61, 7, 0")
            a("s_sub_u32 s60, s60, s61")
        a("s_mov_b32 s67, s60")
        for c in range(7):
            a(f"s_mul_i32 s{60+c}, s67, {mult}")
            a(f"s_add_u32 s{60+c}, s{60+c}, s47")
            if c < 6:
                a("s_add_u32 s67, s67, 1")
                a("s_cmp_ge_u32 s67, 7")
                a("s_cselect_b32 s67, 0, s67")
    def tail_prefetch():
        srd(a, 64, 10, 401408)
        a("s_lshr_b32 s60, s2, 3")
        a("s_lshl_b32 s60, s60, 2")
        a("s_add_u32 s60, s60, s39")
        a(f"v_lshlrev_b32 v226, 7, v{LANE}")
        a(f"v_mov_b32 v227, 0x7fff0000")
        a(f"v_cmp_gt_u32 vcc, 25, v{LANE}")
        a(f"v_cndmask_b32 v228, v227, v226, vcc")
        a("s_mul_i32 s61, s60, 3200")
        a("buffer_load_dword v229, v228, s[64:67], s61 offen")
        a(f"v_cmp_gt_u32 vcc, 32, v{LANE}")
        a(f"v_cndmask_b32 v228, v227, v226, vcc")
        a("s_lshl_b32 s61, s60, 12")
        srd(a, 64, 56, 1605632)
        a("buffer_load_dword v230, v228, s[64:67], s61 offen")
        srd(a, 64, 58, 1605632)
        a("buffer_load_dword v231, v228, s[64:67], s61 offen")
        a(f"v_cmp_gt_u32 vcc, 13, v{LANE}")
        a(f"v_cndmask_b32 v228, v227, v226, vcc")
        a("s_lshl_b32 s61, s2, 2")
        a("s_add_u32 s61, s61, s39")
        a("s_mul_i32 s61, s61, 1664")
        srd(a, 64, 68, 1605632)
        a("buffer_load_dword v225, v228, s[64:67], s61 offen")
        if TLBW:
            a("s_and_b32 s62, s2, 7")
            a("s_mul_i32 s61, s62, 917504")
            a("s_lshl_b32 s63, s60, 13")
            a("s_add_u32 s61, s61, s63")
            a(f"s_add_u32 s61, s61, {WS_HH}")
            a(f"v_lshlrev_b32 v228, 12, v{LANE}")
            a("s_mov_b64 exec, 3")
            a("buffer_load_dword v224, v228, s[32:35], s61 offen")
            a("s_mov_b64 exec, 1")
            a("s_mul_i32 s61, s62, 229376")
            a("s_mul_i32 s63, s60, 1792")
            a("s_add_u32 s61, s61, s63")
            srd(a, 64, 70, 1835008)
            a("buffer_load_dword v227, v228, s[64:67], s61 offen")
            a(f"s_add_u32 s61, s61, {WS_H}")
            a("buffer_load_dword v226, v228, s[32:35], s61 offen")
            a("s_mov_b64 exec, -1")
    XV = 200; TB = 212
    def common_setup_late():
        a(f"v_lshrrev_b32 v7, 2, v{I16}")
        a(f"v_lshl_add_u32 v7, v{HF}, 3, v7")
        a(f"v_mul_u32_u24 v7, 192, v7")
        a(f"v_and_b32 v8, 1, v{G}")
        a(f"v_lshlrev_b32 v8, 2, v8")
        a(f"v_and_b32 v9, 3, v{I16}")
        a(f"v_add_u32 v8, v8, v9")
        a(f"v_lshl_add_u32 v7, v8, 3, v7")
        a("s_and_b32 s50, s37, 1")
        a("s_lshl_b32 s50, s50, 3")
        a(f"s_add_u32 s50, s50, {K1_RING + 16384}")
        a(f"v_add_u32 v{TB}, s50, v7")
        a(f"v_add_u32 v{TB+1}, {2*K1_SLOT}, v{TB}")
        a(f"v_add_u32 v{TB+2}, {4*K1_SLOT}, v{TB}")
        a("s_min_u32 s50, s39, 2")
        a("s_lshl_b32 s50, s50, 6")
        for st in range(3):
            a(f"v_add_u32 v{TB+3+st}, s50, v{TB+st}")
        a("s_lshl_b32 s50, s39, 5")
        a(f"v_add_u32 v7, s50, v{M}")
        a(f"v_lshrrev_b32 v8, 1, v7")
        a(f"v_and_b32 v8, 7, v8")
        a(f"v_xor_b32 v8, v8, v{HF}")
        a(f"v_lshlrev_b32 v8, 4, v8")
        a(f"v_lshl_add_u32 v11, v7, 7, v8")
        for p in range(4):
            a(f"v_xor_b32 v7, {p*32}, v11")
            for st in range(3):
                a(f"v_add_u32 v{XV+4*st+p}, {K1_RING + 2*st*K1_SLOT}, v7")

    LA = 2
    def mainloop(segs, ACC, XFb, WF, SQ, qrole, vm, dma_ops):
        ns = len(segs)
        NB = LA + 1
        a(f"v_mov_b32 v{SQ}, 0"); a(f"v_mov_b32 v{SQ+1}, 0")
        nr = 1 + 2 * ns
        def emit(op):
            for t_ in op[1]: a(t_)
            vm.issue(op[0])
        def reads(kk):
            c = kk // 4; slot = c % 5; p = kk % 4
            st = slot // 2; so = slot % 2
            xb = XFb + (kk % NB) * 4
            a(f"ds_read_b128 v[{xb}:{xb+3}], v{XV+4*st+p} offset:{so*K1_SLOT}")
            b = WF + (kk % NB) * ns * 4
            for i, sg in enumerate(segs):
                off = so * K1_SLOT + p * 3072 + (0 if sg == "cs" else sg * 64)
                tb = TB + st + (3 if sg == "cs" else 0)
                a(f"ds_read_b64_tr_b16 v[{b+4*i}:{b+4*i+1}], v{tb} offset:{off}")
                a(f"ds_read_b64_tr_b16 v[{b+4*i+2}:{b+4*i+3}], v{tb} offset:{off+768}")
        stamp(a, 2)
        vm.wait("c0")
        a("s_barrier")
        for c in range(NPRE, 5):
            for op in dma_ops(c): emit(op)
        stamp(a, 3)
        queue = []
        for kk in range(LA): reads(kk)
        for kk in range(28):
            nk = kk + LA
            if nk < 28:
                if nk % 4 == 0:
                    c = nk // 4
                    while any(op[0] == f"c{c}" for op in queue): emit(queue.pop(0))
                    vm.wait(f"c{c}")
                    a("s_barrier")
                    if c in (2, 4): stamp(a, 3 + c // 2)
                    if c in (2, 3): queue += dma_ops(c + 3)
                reads(nk)
            out = min(28 - 1 - kk, LA) * nr
            a(f"s_waitcnt lgkmcnt({out})")
            b = WF + (kk % NB) * ns * 4
            xb = XFb + (kk % NB) * 4
            c0 = "0" if kk == 0 else None
            if qrole:
                for r in range(4):
                    a(f"v_cndmask_b32 v{qrole+r}, v{b+r}, v{qrole+4}, s[52:53]")
                a(f"v_mfma_f32_32x32x16_bf16 v[{ACC[1]}:{ACC[1]+15}], v[{b+4}:{b+7}], v[{qrole+4}:{qrole+7}], " + (c0 or f"v[{ACC[1]}:{ACC[1]+15}]"))
                a(f"v_lshlrev_b32 v10, 16, v{xb}")
                a(f"v_and_b32 v11, s41, v{xb}")
                a(f"v_fmac_f32 v{SQ}, v10, v10")
                a(f"v_fmac_f32 v{SQ+1}, v11, v11")
                a(f"v_mfma_f32_32x32x16_bf16 v[{ACC[0]}:{ACC[0]+15}], v[{qrole}:{qrole+3}], v[{xb}:{xb+3}], " + (c0 or f"v[{ACC[0]}:{ACC[0]+15}]"))
                a(f"v_lshlrev_b32 v10, 16, v{xb+1}")
                a(f"v_and_b32 v11, s41, v{xb+1}")
                a(f"v_fmac_f32 v{SQ}, v10, v10")
                a(f"v_fmac_f32 v{SQ+1}, v11, v11")
            else:
                for i in range(ns):
                    a(f"v_mfma_f32_32x32x16_bf16 v[{ACC[i]}:{ACC[i]+15}], v[{b+4*i}:{b+4*i+3}], v[{xb}:{xb+3}], " + (c0 or f"v[{ACC[i]}:{ACC[i]+15}]"))
                    a(f"v_lshlrev_b32 v10, 16, v{xb+2+i}")
                    a(f"v_and_b32 v11, s41, v{xb+2+i}")
                    a(f"v_fmac_f32 v{SQ}, v10, v10")
                    a(f"v_fmac_f32 v{SQ+1}, v11, v11")
            if queue: emit(queue.pop(0))
            if queue: emit(queue.pop(0))
        stamp(a, 6)
        a(f"v_add_f32 v{SQ}, v{SQ}, v{SQ+1}")
        a(f"v_lshlrev_b32 v7, 2, v{M}")
        a("s_lshl_b32 s50, s39, 7")
        a(f"v_add_u32 v9, s50, v7")
        xhalf(a, "v_add_f32", SQ, SQ, 10, 11)
        a(f"ds_write_b32 v9, v{SQ} offset:{K1_SQ + (512 if qrole else 0)}")

    def post_reads(segs, dsts, WPF, ST):
        a(f"v_lshlrev_b32 v8, 4, v{HF}")
        a(f"ds_read_b32 v{ST}, v9 offset:{K1_SM}")
        a(f"ds_read_b32 v{ST+1}, v9 offset:{K1_SQ}")
        a(f"ds_read_b32 v{ST+2}, v9 offset:{K1_SQ+512}")
        for sg, dst in zip(segs, dsts):
            for q in range(4):
                a(f"ds_read_b128 v[{dst+4*q}:{dst+4*q+3}], v8 offset:{K1_CS + sg*128 + q*32}")
        for s_ in range(2):
            for e in range(2):
                a(f"ds_read_b64_tr_b16 v[{WPF+4*s_+2*e}:{WPF+4*s_+2*e+1}], v12 offset:{K1_WP + (16*s_+8*e)*56}")

    def wp_addr():
        a(f"v_lshrrev_b32 v7, 2, v{I16}")
        a(f"v_lshl_add_u32 v7, v{HF}, 2, v7")
        a(f"v_mul_u32_u24 v7, 56, v7")
        a(f"v_and_b32 v8, 1, v{G}")
        a(f"v_lshlrev_b32 v8, 2, v8")
        a(f"v_and_b32 v9, 3, v{I16}")
        a(f"v_add_u32 v8, v8, v9")
        a(f"v_lshl_add_u32 v12, v8, 3, v7")

    def center_pack(ACC, CSV, NM, OUT):
        for i in range(8):
            a(f"v_fmac_f32 v{ACC+2*i}, v{CSV+2*i}, v{NM}")
            a(f"v_fmac_f32 v{ACC+2*i+1}, v{CSV+2*i+1}, v{NM}")
            a(f"v_cvt_pk_bf16_f32 v{OUT+i}, v{ACC+2*i}, v{ACC+2*i+1}")

    vmk = VM(a)
    for t in range(3):
        a(f"v_add_u32 v7, {t*64}, v{LANE}")
        a(f"v_mul_u32_u24 v8, 171, v7")
        a(f"v_lshrrev_b32 v8, 11, v8")
        a(f"v_mul_u32_u24 v9, 12, v8")
        a(f"v_sub_u32 v9, v7, v9")
        a(f"v_mul_u32_u24 v8, 2688, v8")
        a(f"v_lshrrev_b32 v7, 2, v9")
        a(f"v_mul_u32_u24 v7, 896, v7")
        a(f"v_and_b32 v9, 3, v9")
        a(f"v_lshlrev_b32 v9, 4, v9")
        a(f"v_add3_u32 v{PAT+t}, v7, v8, v9")
    a("s_mul_i32 s47, s37, 56")
    a("s_and_b32 s47, s47, 0xfffffff0")
    a("s_mul_i32 s48, s39, 43008")
    a("s_add_u32 s47, s47, s48")
    a("s_mul_i32 s49, s39, 3072")
    rot_table(64*2688)
    common_setup_early(vmk)
    def dma_w(c):
        return [(f"c{c}", [f"s_add_u32 m0, s49, {K1_RING + (c%5)*K1_SLOT + 16384 + t*1024}",
                           f"buffer_load_dwordx4 v{PAT+t}, s[20:23], s{60+c} offen lds"]) for t in range(3)]
    for c in range(NPRE):
        for op in dma_w(c):
            for t_ in op[1]: a(t_)
            vmk.issue(op[0])
    a("s_mul_i32 s50, s37, 1568")
    a("s_and_b32 s51, s39, 1")
    a("s_lshl_b32 s51, s51, 10")
    a("s_add_u32 s50, s50, s51")
    a(f"s_add_u32 m0, s51, {K1_WP}")
    a(f"v_lshlrev_b32 v7, 4, v{LANE}")
    a("buffer_load_dwordx4 v7, s[24:27], s50 offen lds")
    vmk.issue("c0")
    common_setup_late()
    wp_addr()
    a("s_lshl_b32 s50, s39, 5")
    a(f"v_add_u32 v7, s50, v{M}")
    a(f"v_lshrrev_b32 v8, 1, v7")
    a(f"v_and_b32 v8, 7, v8")
    a(f"v_xor_b32 v8, v8, v{HF}")
    a(f"v_lshlrev_b32 v8, 3, v8")
    a(f"v_lshl_add_u32 v74, v7, 6, v8")
    a(f"v_lshrrev_b32 v8, 1, v7")
    a(f"v_and_b32 v8, 1, v8")
    a(f"v_lshlrev_b32 v8, 3, v8")
    a(f"v_and_b32 v9, 1, v7")
    a(f"v_or_b32 v8, v8, v9")
    a(f"v_lshrrev_b32 v9, 2, v7")
    a(f"v_and_b32 v9, 3, v9")
    a(f"v_lshl_or_b32 v8, v9, 1, v8")
    a(f"v_xor_b32 v8, v8, v{HF}")
    a(f"v_lshlrev_b32 v8, 3, v8")
    a(f"v_lshl_add_u32 v75, v7, 7, v8")
    a(f"v_lshrrev_b32 v7, 2, v{I16}")
    a(f"v_lshl_add_u32 v7, v{HF}, 3, v7")
    a(f"v_and_b32 v8, 1, v{G}")
    a(f"v_lshlrev_b32 v8, 2, v8")
    a(f"v_and_b32 v9, 3, v{I16}")
    a(f"v_add_u32 v8, v8, v9")
    for e in range(2):
        a(f"v_add_u32 v9, {4*e}, v7")
        a(f"v_lshrrev_b32 v10, 1, v9")
        a(f"v_xor_b32 v10, v10, v8")
        a(f"v_lshlrev_b32 v10, 3, v10")
        a(f"v_lshl_add_u32 v{76+e}, v9, 6, v10")
        a(f"v_lshrrev_b32 v10, 1, v9")
        a(f"v_and_b32 v10, 1, v10")
        a(f"v_lshlrev_b32 v10, 3, v10")
        a(f"v_and_b32 v11, 1, v9")
        a(f"v_or_b32 v10, v10, v11")
        a(f"v_lshrrev_b32 v11, 2, v9")
        a(f"v_lshl_or_b32 v10, v11, 1, v10")
        a(f"v_xor_b32 v10, v10, v8")
        a(f"s_lshl_b32 s50, s39, 3")
        a(f"v_xor_b32 v10, s50, v10")
        a(f"v_lshlrev_b32 v10, 3, v10")
        a(f"v_lshl_add_u32 v{78+e}, v9, 7, v10")
    a("s_lshl_b32 s50, s37, 13")
    a("s_lshl_b32 s51, s39, 7")
    a("s_add_u32 s50, s50, s51")
    a(f"v_lshlrev_b32 v80, 10, v{HF}")
    a(f"v_lshl_add_u32 v80, v{M}, 2, v80")
    a(f"v_add_u32 v80, s50, v80")
    a(f"v_add_u32 v81, 4096, v80")
    for r in range(4): a(f"v_mov_b32 v{82+r}, 0")
    a(f"ds_write_b128 v82, v[82:85] offset:{K1_FL}")
    a("s_lshl_b32 s50, s39, 2")
    a("v_mov_b32 v86, s50")
    a("v_mov_b32 v87, 1")
    a("s_waitcnt lgkmcnt(0)")
    AK, AV = 100, 116
    mainloop([1, 2], [AK, AV], 34, 46, 72, None, vmk, dma_w)
    a("s_waitcnt lgkmcnt(0)")
    a("s_barrier")
    stamp(a, 7)
    a("s_setprio 2")
    CK, CV = 34, 50
    post_reads([1, 2], [CK, CV], 92, 66)
    a("s_lshl_b32 s50, s2, 7")
    a(f"s_add_u32 s50, s50, {768*1024}")
    a("v_mov_b32 v13, 0")
    a(f"v_lshlrev_b32 v14, 2, v{LANE}")
    a("s_mov_b64 exec, 0xff")
    a("buffer_store_dword v13, v14, s[32:35], s50 offen")
    a("s_mov_b64 exec, -1")
    a("s_lshl_b32 s50, s37, 2")
    a("s_add_u32 s50, s50, 64")
    a("v_mov_b32 v13, s50")
    a("buffer_load_dword v14, v13, s[28:31], 0 offen sc1")
    a("s_waitcnt lgkmcnt(12)")
    a("v_add_f32 v67, v67, v68")
    stats_finish(a, 66, 67, 68, 69, 70)
    a("s_waitcnt lgkmcnt(0)")
    KFR, VFR = 132, 140
    center_pack(AK, CK, 68, KFR)
    a(f"v_cndmask_b32 v{KFR+6}, v{KFR+6}, 0, s[42:43]")
    a(f"v_cndmask_b32 v{KFR+7}, v{KFR+7}, 0, s[42:43]")
    PK = 148
    a(f"v_mfma_f32_32x32x16_bf16 v[{PK}:{PK+15}], v[92:95], v[{KFR}:{KFR+3}], 0")
    a(f"v_mfma_f32_32x32x16_bf16 v[{PK}:{PK+15}], v[96:99], v[{KFR+4}:{KFR+7}], v[{PK}:{PK+15}]")
    center_pack(AV, CV, 68, VFR)
    a(f"v_lshrrev_b32 v9, 16, v70")
    a(f"v_mul_f32 v71, s44, v69")
    a(f"v_cndmask_b32 v{VFR+6}, v{VFR+6}, v9, s[42:43]")
    a(f"v_cndmask_b32 v{VFR+7}, v{VFR+7}, 0, s[42:43]")
    for q in range(4):
        a(f"v_xor_b32 v9, {q*16}, v74")
        a(f"ds_write_b64 v9, v[{VFR+2*q}:{VFR+2*q+1}] offset:{K1_V}")
    E, F, OP, ON, T = 164, 180, 34, 42, 50
    softmax_pm(a, PK, E, F, OP, ON, T, 42, 71, 69)
    for t, src in ((0, OP), (1, ON)):
        for q in range(4):
            a(f"v_xor_b32 v9, {(8*t+2*q)*8}, v75")
            a(f"ds_write_b64 v9, v[{src+2*q}:{src+2*q+1}] offset:{K1_PHIK}")
    a("s_waitcnt lgkmcnt(0)")
    a(f"ds_write_b32 v86, v87 offset:{K1_FL}")
    a("s_cmp_ge_u32 s39, 2")
    a("s_cbranch_scc1 K1_FIN")
    a("K1_LPOLL:")
    a(f"ds_read_b128 v[88:91], v82 offset:{K1_FL}")
    a("s_waitcnt lgkmcnt(0)")
    a("v_and_b32 v88, v88, v89")
    a("v_and_b32 v90, v90, v91")
    a("v_and_b32 v88, v88, v90")
    a("v_readfirstlane_b32 s51, v88")
    a("s_cmp_eq_u32 s51, 0")
    a("s_cbranch_scc1 K1_LPOLL")
    stamp(a, 8)
    KV = 16
    for ks in range(8):
        b = 100 + ks * 8
        for e in range(2):
            a(f"ds_read_b64_tr_b16 v[{b+2*e}:{b+2*e+1}], v{76+e} offset:{K1_V + ks*1024}")
        for e in range(2):
            a(f"ds_read_b64_tr_b16 v[{b+4+2*e}:{b+4+2*e+1}], v{78+e} offset:{K1_PHIK + ks*2048}")
    for ks in range(8):
        b = 100 + ks * 8
        a(f"s_waitcnt lgkmcnt({min(15, (7-ks)*4)})")
        c = "0" if ks == 0 else f"v[{KV}:{KV+15}]"
        a(f"v_mfma_f32_32x32x16_bf16 v[{KV}:{KV+15}], v[{b}:{b+3}], v[{b+4}:{b+7}], {c}")
    a("s_waitcnt vmcnt(0)")
    a("v_readfirstlane_b32 s51, v14")
    a("s_cmp_lg_u32 s51, 0")
    a("s_cbranch_scc1 K1_GO")
    a("K1_POLL:")
    a("buffer_load_dword v14, v13, s[28:31], 0 offen sc1")
    a("s_waitcnt vmcnt(0)")
    a("v_readfirstlane_b32 s51, v14")
    a("s_cmp_eq_u32 s51, 0")
    a("s_cbranch_scc1 K1_POLL")
    a("K1_GO:")
    a("s_nop 7")
    for r in range(16):
        d = (r & 3) + 8 * (r >> 2)
        off = d * 256
        base = 80
        if off >= 4096: off -= 4096; base = 81
        a(f"buffer_atomic_add_f32 v{KV+r}, v{base}, s[32:35], 0 offen offset:{WS_KV + off}")
    a("s_branch K1_FIN")

    a("K1_Q:")
    vmq = VM(a)
    a(f"v_lshrrev_b32 v7, 3, v{LANE}")
    a(f"v_and_b32 v8, 7, v{LANE}")
    a(f"v_lshrrev_b32 v9, 1, v7")
    a(f"v_xor_b32 v8, v8, v9")
    a(f"v_mul_u32_u24 v7, 896, v7")
    a(f"v_lshl_add_u32 v30, v8, 4, v7")
    a(f"v_xor_b32 v31, 64, v30")
    a("s_lshl_b32 s46, s36, 7")
    a("s_lshl_b32 s47, s39, 5")
    a("s_add_u32 s46, s46, s47")
    a("s_mul_i32 s47, s46, 896")
    a("s_lshl_b32 s49, s39, 12")
    rot_table(128)
    common_setup_early(vmq)
    def dma_x(c):
        return [(f"c{c}", [f"s_add_u32 m0, s49, {K1_RING + (c%5)*K1_SLOT + i*1024}",
                           f"s_add_u32 s50, s{60+c}, {i*8*896}",
                           f"buffer_load_dwordx4 v{30+(i&1)}, s[16:19], s50 offen lds"]) for i in range(4)]
    for c in range(NPRE):
        for op in dma_x(c):
            for t_ in op[1]: a(t_)
            vmq.issue(op[0])
    common_setup_late()
    wp_addr()
    a(f"v_cmp_eq_u32 s[52:53], 28, v{M}")
    for r in range(4): a(f"v_mov_b32 v{80+r}, s45")
    a("s_or_b32 s51, s36, s39")
    a("s_cmp_lg_u32 s51, 0")
    a("s_cbranch_scc1 K1_Q2")
    a("s_lshl_b32 s50, s37, 13")
    a(f"v_lshl_add_u32 v7, v{LANE}, 4, s50")
    for r in range(4): a(f"v_mov_b32 v{34+r}, 0")
    a("v_add_u32 v8, 4096, v7")
    for i in range(4):
        a(f"buffer_store_dwordx4 v[34:37], v7, s[32:35], 0 offen offset:{WS_KV + i*1024} sc1")
        a(f"buffer_store_dwordx4 v[34:37], v8, s[32:35], 0 offen offset:{WS_KV + i*1024} sc1")
    a("s_waitcnt vmcnt(0)")
    a("s_lshl_b32 s50, s37, 2")
    a("s_add_u32 s50, s50, 64")
    a("v_mov_b32 v7, s50")
    a("v_mov_b32 v8, 1")
    a("s_mov_b64 exec, 1")
    a("buffer_store_dword v8, v7, s[28:31], 0 offen sc1")
    a("s_mov_b64 exec, -1")
    a("s_waitcnt vmcnt(0)")
    a("K1_Q2:")
    AQ = 100
    ACS = 116
    mainloop([0, "cs"], [AQ, ACS], 34, 46, 72, 76, vmq, dma_x)
    a("s_mov_b64 exec, s[42:43]")
    a(f"ds_write_b32 v9, v{AQ+12} offset:{K1_SM}")
    a("s_mov_b32 s54, 1")
    a("s_mov_b32 s55, 1")
    a("s_mov_b64 exec, s[54:55]")
    a("s_min_u32 s50, s39, 2")
    a("s_lshl_b32 s50, s50, 7")
    a(f"v_lshl_add_u32 v8, v{HF}, 4, s50")
    for q in range(4):
        a(f"ds_write_b128 v8, v[{ACS+4*q}:{ACS+4*q+3}] offset:{K1_CS + q*32}")
    a("s_mov_b64 exec, -1")
    a("s_waitcnt lgkmcnt(0)")
    a("s_barrier")
    stamp(a, 7)
    CQ = 34
    post_reads([0], [CQ], 92, 66)
    tail_prefetch()
    a("s_waitcnt lgkmcnt(8)")
    a("v_add_f32 v67, v67, v68")
    stats_finish(a, 66, 67, 68, 69, 70)
    a("s_waitcnt lgkmcnt(0)")
    QFR = 132
    center_pack(AQ, CQ, 68, QFR)
    a(f"v_cndmask_b32 v{QFR+6}, v{QFR+6}, 0, s[42:43]")
    a(f"v_cndmask_b32 v{QFR+7}, v{QFR+7}, 0, s[42:43]")
    PQ = 148
    a(f"v_mfma_f32_32x32x16_bf16 v[{PQ}:{PQ+15}], v[92:95], v[{QFR}:{QFR+3}], 0")
    a(f"v_mfma_f32_32x32x16_bf16 v[{PQ}:{PQ+15}], v[96:99], v[{QFR+4}:{QFR+7}], v[{PQ}:{PQ+15}]")
    a(f"v_mul_f32 v71, s44, v69")
    a("s_lshl_b32 s50, s36, 2")
    a("s_add_u32 s50, s50, s39")
    a("s_lshl_b32 s50, s50, 4")
    a("s_add_u32 s50, s50, s37")
    a("s_lshl_b32 s50, s50, 12")
    a(f"s_add_u32 s50, s50, {WS_PHIQ}")
    a(f"v_lshlrev_b32 v7, 4, v{LANE}")
    softmax_pm(a, PQ, 164, 180, 36, 44, 52, 42, 71)
    for s_ in range(4):
        a(f"buffer_store_dwordx4 v[{36+4*s_}:{36+4*s_+3}], v7, s[32:35], s50 offen offset:{s_*1024}")
    stamp(a, 8)
    a("K1_FIN:")
    if STAMPS: a("s_waitcnt vmcnt(0)")
    stamp(a, 9)
    stamp_flush(a, 38, 32)
    a("K1_END:")
    a("s_endpgm")
    a.fix_hazards()
    return a.text(), kd("k1_kernel", 232)

def main():
    parts = []
    hdr = open("sequential_preLN__linear_kernel_hedgehog__glu_gated_glu__prompt.s.ref").read().split("; Override launch")[0]
    ks = [("k1", gen_k1, 256, 512, K1_LDS)]
    import gen2
    ks += gen2.kernels()
    out = [hdr.rstrip()]
    for nm, fn, g, b, lds in ks:
        out.append(f"; @launch kernel={nm}_kernel grid=({g},1,1) block=({b},1,1) lds={lds}")
    out.append('.amdgcn_target "amdgcn-amd-amdhsa--gfx950"')
    out.append(".text")
    kds = []
    for nm, fn, g, b, lds in ks:
        t, k = fn()
        out.append(t); kds.append(k)
    out.append('.section .rodata,"a"')
    out += kds
    open(sys.argv[1], "w").write("\n".join(out) + "\n")

if __name__ == "__main__":
    main()
```

```python
from asmfw import Asm
import os
import gen
from gen import *
WS_HF = WS_H

K3_SLOT = 16384
K3_NS   = 6
PFI = int(os.environ.get('PFI', '51'))
K3_LDS  = 163840
WS_FLAG = 768 * 1024

def gen_k3():
    a = Asm()
    head(a, "k3_kernel")
    a("s_cmp_ge_u32 s2, 256")
    a("s_cbranch_scc1 K3_END")
    stamp_init(a); stamp(a, 0, real=True); stamp(a, 1)
    a("s_load_dwordx4 s[8:11], s[0:1], 40")
    a("s_load_dwordx4 s[4:7], s[0:1], 56")
    a("s_load_dwordx2 s[14:15], s[0:1], 80")
    a("s_load_dwordx2 s[12:13], s[0:1], 24")
    a("s_load_dwordx2 s[42:43], s[0:1], 0")
    LANE, M, HF, I16, G = 1, 2, 3, 4, 5
    a(f"v_and_b32 v{LANE}, 63, v0")
    a(f"v_lshrrev_b32 v6, 6, v0")
    a(f"v_readfirstlane_b32 s38, v6")
    a(f"v_and_b32 v{M}, 31, v{LANE}")
    a(f"v_lshrrev_b32 v{HF}, 5, v{LANE}")
    a(f"v_and_b32 v{I16}, 15, v{LANE}")
    a(f"v_lshrrev_b32 v{G}, 4, v{LANE}")
    a("s_mov_b32 s41, 0xffff0000")
    a("s_cmp_ge_u32 s2, 224")
    a("s_cbranch_scc1 K3_PF")
    a("s_and_b32 s36, s2, 7")
    a("s_lshl_b32 s36, s36, 1")
    a("s_bfe_u32 s37, s2, 0x10003")
    a("s_add_u32 s36, s36, s37")
    a("s_lshr_b32 s37, s2, 4")
    a("s_and_b32 s39, s38, 1")
    a("s_lshr_b32 s40, s38, 1")
    a(f"v_lshrrev_b32 v7, 3, v{LANE}")
    a(f"v_and_b32 v8, 2, v7")
    a(f"v_add_u32 v8, s39, v8")
    a(f"v_lshlrev_b32 v8, 1, v8")
    a(f"v_and_b32 v9, 7, v{LANE}")
    a(f"v_xor_b32 v8, v8, v9")
    a(f"v_mul_u32_u24 v7, 3584, v7")
    a(f"v_lshl_add_u32 v10, v8, 4, v7")
    a(f"v_lshlrev_b32 v11, 4, v{LANE}")
    a("s_mul_i32 s46, s40, 114688")
    a("s_lshl_b32 s47, s37, 8")
    a("s_add_u32 s46, s46, s47")
    a("s_and_b32 s57, s36, 1")
    a("s_lshl_b32 s58, s57, 7")
    a("s_xor_b32 s59, s58, 128")
    a("s_add_u32 s56, s46, s59")
    a("s_add_u32 s46, s46, s58")
    a("s_lshl_b32 s47, s39, 13")
    a("s_lshl_b32 s48, s40, 12")
    a("s_add_u32 s47, s47, s48")
    a("s_lshl_b32 s48, s36, 2")
    a("s_add_u32 s48, s48, s38")
    a("s_mul_i32 s49, s48, 28672")
    a(f"s_add_u32 s49, s49, {WS_HF}")
    a("s_waitcnt lgkmcnt(0)")
    a("s_cmp_eq_u32 s39, 0")
    a("s_cselect_b32 s20, s8, s10")
    a("s_cselect_b32 s21, s9, s11")
    a("s_mov_b32 s22, 1605632")
    a("s_mov_b32 s23, 0x00020000")
    srd(a, 32, 14, WS_SIZE)
    vm = VM(a)
    def dma_ops(C):
        ph, c = C // 7, C % 7
        return [(f"c{C}", [f"s_add_u32 m0, s47, {(C % K3_NS)*K3_SLOT + i*1024}",
                           f"s_add_u32 s50, s{56 if ph else 46}, {(c*64 + i*8)*3584}",
                           f"buffer_load_dwordx4 v10, s[20:23], s50 offen lds"]) for i in range(4)]
    def h_ops(kk, tag):
        return [(tag, [f"s_add_u32 s50, s49, {kk*1024}",
                       f"buffer_load_dwordx4 a[{4*kk}:{4*kk+3}], v11, s[32:35], s50 offen sc1"])]
    def emit(op):
        for t_ in op[1]: a(t_)
        vm.issue(op[0])
    def chunk_ops(C):
        d = dma_ops(C)
        if C >= 7: return d
        out = []
        for i in range(4): out += ([d[i]] if C >= 2 else []) + h_ops(4*C + i, f"c{C}")
        return out
    a("s_lshr_b32 s60, s2, 3")
    a("s_lshl_b32 s61, s38, 15")
    for i in range(32):
        a(f"s_add_u32 s50, s60, {i}")
        a("s_and_b32 s50, s50, 31")
        a("s_lshl_b32 s50, s50, 10")
        a("s_add_u32 s50, s50, s61")
        a(f"buffer_load_dwordx4 v[{128+4*i}:{128+4*i+3}], v11, s[32:35], s50 offen offset:{WS_KV}")
        vm.issue(f"kv{i}")
    TM = 12
    a(f"v_and_b32 v7, 1, v{G}")
    a(f"v_lshrrev_b32 v8, 2, v{I16}")
    a(f"v_and_b32 v9, 2, v8")
    a(f"v_add_u32 v9, v9, v7")
    a(f"v_lshl_add_u32 v8, v{HF}, 3, v8")
    a(f"v_lshlrev_b32 v8, 7, v8")
    a(f"v_lshl_add_u32 v8, v7, 13, v8")
    a(f"v_and_b32 v7, 3, v{I16}")
    a(f"v_lshl_add_u32 v8, v7, 3, v8")
    a(f"v_lshl_add_u32 v8, v9, 5, v8")
    for t in range(4):
        a(f"v_xor_b32 v{TM+t}, {t*32}, v8")
        a(f"v_add_u32 v{TM+4+t}, 0x10000, v{TM+t}")
        a(f"v_add_u32 v{TM+8+t}, 0x20000, v{TM+t}")
    WF = 36
    def acc(t): return f"v[{128+16*t}:{128+16*t+15}]"
    def rd_ops(ph, kk, t, dst):
        C = ph * 7 + kk // 4; slot = C % K3_NS
        return [f"ds_read_b64_tr_b16 v[{dst+2*e}:{dst+2*e+1}], v{TM + 4*(slot//4) + t} offset:{(slot%4)*K3_SLOT + (kk%4)*2048 + e*512}" for e in range(2)]
    a(f"v_lshlrev_b32 v9, 6, v{M}")
    a(f"v_lshlrev_b32 v118, 3, v{M}")
    a(f"v_lshl_add_u32 v118, v{HF}, 14, v118")
    a(f"v_accvgpr_write_b32 a128, 0")
    a(f"v_accvgpr_write_b32 a129, 0")
    a("s_lshl_b32 s52, s48, 8")
    a(f"s_add_u32 s52, s52, {WS_ST}")
    a("s_lshl_b32 s53, s37, 11")
    a(f"s_add_u32 s53, s53, {WS_CS}")
    a("s_lshl_b32 s58, s57, 5")
    a("s_xor_b32 s59, s58, 32")
    a("s_add_u32 s55, s53, s59")
    a("s_add_u32 s53, s53, s58")
    misc = []
    for j in range(4):
        misc.append(("ms", [f"s_add_u32 s50, s52, {j*32768}", f"buffer_load_dwordx2 v[{100+2*j}:{100+2*j+1}], v118, s[32:35], s50 offen sc1"]))
    for j in range(4):
        misc.append(("ms", [f"buffer_load_dwordx4 a[{112+4*j}:{112+4*j+3}], v9, s[32:35], s{55 if j >= 2 else 53} offen offset:{(j&1)*16} sc1"]))
    a("s_mul_i32 s54, s48, 114688")
    a("s_lshl_b32 s51, s37, 13")
    a("s_add_u32 s54, s54, s51")
    a(f"s_add_u32 s54, s54, {WS_HH}")
    a("s_lshl_b32 s58, s57, 12")
    a("s_xor_b32 s59, s58, 4096")
    a("s_add_u32 s62, s54, s59")
    a("s_add_u32 s54, s54, s58")
    NM, RS, SD, NSC = 114, 115, 116, 117
    fin = Asm()
    fin(f"v_cmp_gt_u32 vcc, 32, v{LANE}")
    fin(f"v_cndmask_b32 v106, 0, v106, vcc")
    fin(f"v_cndmask_b32 v107, 0, v107, vcc")
    for j in range(1, 4):
        fin(f"v_add_f32 v100, v100, v{100+2*j}")
        fin(f"v_add_f32 v101, v101, v{100+2*j+1}")
    xhalf(fin, "v_add_f32", 100, 100, 102, 103)
    xhalf(fin, "v_add_f32", 101, 101, 104, 105)
    stats_finish(fin, 100, 101, NM, RS, SD)
    fin(f"v_mul_f32 v{NSC}, 0xbfb8aa3b, v{RS}")
    fin(f"v_lshrrev_b32 v104, 16, v{NM}")
    fin(f"v_cmp_gt_u32 vcc, 32, v{LANE}")
    fin(f"v_cndmask_b32 v104, 0, v104, vcc")
    fin(f"v_mov_b32 v105, v104")
    fin(f"v_mov_b32 v106, 0")
    fin(f"v_mov_b32 v107, 0")
    fin_ops = [i.text for i in fin.ins]
    deferred = []
    def ep_ops(t):
        A_ = 128 + 16 * t
        OUT = A_
        ep = [f"v_mul_f32 v{A_+r}, v{NSC}, v{A_+r}" for r in range(8)]
        ep += [f"v_exp_f32 v{A_+r}, v{A_+r}" for r in range(8)]
        ep += [f"v_fma_f32 v{A_+r}, v{A_+r}, v{SD}, v{SD}" for r in range(8)]
        ep += [f"v_rcp_f32 v{A_+r}, v{A_+r}" for r in range(8)]
        ep += [f"v_mul_f32 v{A_+8+r}, v{A_+8+r}, v{A_+r}" for r in range(8)]
        ep += [f"v_cvt_pk_bf16_f32 v{OUT+i}, v{A_+8+2*i}, v{A_+8+2*i+1}" for i in range(4)]
        st_ = ("ST", f"s_add_u32 s50, s{62 if t >= 4 else 54}, {(t&3)*1024}", f"buffer_store_dwordx4 v[{OUT}:{OUT+3}], v11, s[32:35], s50 offen sc1")
        ep += [st_]
        return ep
    def emit_valu(vq, n):
        for _ in range(n):
            if not vq: return
            o = vq.pop(0)
            if isinstance(o, tuple):
                a(o[1]); a(o[2]); vm.issue("st")
            else: a(o)
    srd(a, 16, 12, 401408)
    srd(a, 28, 42, 1835008)
    srd(a, 24, 6, 1835008)
    a("s_and_b32 s64, s37, 1")
    a("s_lshl_b32 s65, s36, 1")
    a("s_add_u32 s64, s64, s65")
    a("s_lshr_b32 s65, s37, 1")
    a(f"v_lshrrev_b32 v7, 3, v{LANE}")
    a(f"v_and_b32 v8, 7, v{LANE}")
    a(f"v_lshrrev_b32 v27, 1, v7")
    a(f"v_and_b32 v27, 1, v27")
    a(f"v_lshlrev_b32 v27, 2, v27")
    a(f"v_xor_b32 v27, v8, v27")
    a(f"v_mul_u32_u24 v32, 896, v7")
    a(f"v_lshl_add_u32 v27, v27, 4, v32")
    a(f"v_lshl_add_u32 v32, v8, 4, v32")
    a(f"v_lshrrev_b32 v26, 1, v8")
    a(f"v_lshlrev_b32 v26, 10, v26")
    a(f"v_and_b32 v31, 1, v8")
    a(f"v_lshl_add_u32 v26, v31, 9, v26")
    a(f"v_lshl_add_u32 v26, v7, 4, v26")
    a("s_mul_i32 s63, s64, 57344")
    a("s_lshl_b32 s66, s65, 12")
    a("s_add_u32 s63, s63, s66")
    a("s_lshr_b32 s66, s38, 1")
    a("s_mul_i32 s66, s66, 28672")
    a("s_add_u32 s63, s63, s66")
    a("s_and_b32 s66, s38, 1")
    a("s_lshl_b32 s66, s66, 8")
    a("s_add_u32 s63, s63, s66")
    a(f"s_add_u32 s63, s63, {WS_HF}")
    a("s_lshl_b32 s66, s38, 4")
    a(f"v_add_u32 v31, s66, v7")
    a(f"v_mul_u32_u24 v31, 272, v31")
    a(f"v_lshl_add_u32 v31, v8, 5, v31")
    a(f"v_add_u32 v33, 49152, v31")
    a("s_lshl_b32 s76, s64, 6")
    a("s_add_u32 s76, s76, s66")
    a("s_mul_i32 s76, s76, 896")
    a("s_lshl_b32 s66, s65, 7")
    a("s_add_u32 s76, s76, s66")
    a("s_mul_i32 s66, s38, 401408")
    a("s_lshl_b32 s67, s65, 7")
    a("s_add_u32 s66, s66, s67")
    a("s_mul_i32 s67, s64, 229376")
    a("s_mul_i32 s77, s38, 28672")
    a("s_add_u32 s67, s67, s77")
    a(f"s_add_u32 s67, s67, {WS_HH}")
    for g_ in range(4):
        a(f"s_add_u32 s77, s64, {g_}")
        a("s_add_u32 s77, s77, s65")
        a("s_and_b32 s77, s77, 3")
        a(f"s_mul_i32 s{68+g_}, s77, {7*16*896}")
        a(f"s_add_u32 s{68+g_}, s{68+g_}, s66")
        a(f"s_mul_i32 s{72+g_}, s77, 7168")
        a(f"s_add_u32 s{72+g_}, s{72+g_}, s67")
    a("s_mul_i32 s78, s38, 24576")
    a("s_lshl_b32 s79, s38, 14")
    a("s_add_u32 s79, s79, 98304")
    a(f"v_lshrrev_b32 v7, 2, v{I16}")
    a(f"v_lshl_add_u32 v8, v{HF}, 2, v7")
    a(f"v_lshrrev_b32 v7, 1, v7")
    a(f"v_lshlrev_b32 v7, 3, v7")
    a(f"v_and_b32 v30, 1, v{G}")
    a(f"v_lshl_add_u32 v7, v30, 2, v7")
    a(f"v_and_b32 v30, 3, v{I16}")
    a(f"v_add_u32 v7, v7, v30")
    a(f"v_lshlrev_b32 v7, 3, v7")
    a(f"v_lshl_add_u32 v7, v8, 7, v7")
    a(f"v_add_u32 v28, s78, v7")
    a(f"v_xor_b32 v29, 64, v28")
    a(f"v_add_u32 v24, s79, v7")
    a(f"v_xor_b32 v25, 64, v24")
    a(f"v_mul_u32_u24 v30, 272, v{M}")
    a(f"v_lshl_add_u32 v30, v{HF}, 4, v30")
    a(f"v_add_u32 v30, s78, v30")
    NREG = 8; NRES = 16
    def d_dma(ks):
        sb, lo = (79, (ks % 8) * 2048) if ks < NRES else (78, (ks - NRES) * 2048)
        return [(f"w{ks}", [f"s_add_u32 m0, s{sb}, {lo + i*1024}",
                            f"s_add_u32 s50, s{68+ks//7}, {((ks%7)*16 + i*8)*896}",
                            f"buffer_load_dwordx4 v27, s[16:19], s50 offen lds"]) for i in range(2)]
    def d_stage(ks):
        vm.wait(f"w{ks}")
        for n2 in range(2):
            for e in range(2):
                a(f"ds_read_b64_tr_b16 a[{130+8*ks+4*n2+2*e}:{130+8*ks+4*n2+2*e+1}], v{24+n2} offset:{(ks%8)*2048 + e*1024}")
    dstate = {"next_dma": 0, "next_stage": 0, "dma_at": {}, "stage_at": {}, "ops": []}
    def d_tick(i):
        st = dstate
        ks = st["next_stage"]
        if ks < NREG and 7 in st["dma_at"] and i >= 184:
            d_stage(ks); st["stage_at"][ks] = i; st["next_stage"] += 1
        if not st["ops"]:
            kd_ = st["next_dma"]
            if kd_ < NRES and (kd_ < 8 or (kd_ - 8 in st["stage_at"] and i - st["stage_at"][kd_ - 8] >= 9)):
                st["ops"] = d_dma(kd_); st["cur"] = kd_; st["next_dma"] += 1
        if st["ops"]:
            emit(st["ops"].pop(0))
            if not st["ops"]: st["dma_at"][st["cur"]] = i
    B_KV, B_RED, B_WO = 0, 65536, 102400
    a("s_mov_b32 s44, 0")
    a("s_mov_b32 s45, -1")
    a(f"v_lshrrev_b32 v7, 2, v{I16}")
    a(f"v_mul_u32_u24 v7, 1056, v7")
    a(f"v_and_b32 v8, 1, v{I16}")
    a(f"v_mul_u32_u24 v8, 528, v8")
    a(f"v_add_u32 v7, v7, v8")
    a(f"v_lshrrev_b32 v8, 1, v{I16}")
    a(f"v_and_b32 v8, 1, v8")
    a(f"v_lshl_add_u32 v7, v8, 3, v7")
    a(f"v_lshl_add_u32 v7, v{G}, 4, v7")
    a("s_mul_i32 s50, s38, 16896")
    a(f"v_add_u32 v34, s50, v7")
    a("s_lshl_b32 s66, s64, 1")
    a("s_add_u32 s66, s66, s39")
    a("s_lshl_b32 s66, s66, 4")
    a("s_lshl_b32 s50, s40, 3")
    a("s_add_u32 s66, s66, s50")
    a("s_lshl_b32 s66, s66, 12")
    a(f"s_add_u32 s66, s66, {WS_PHIQ}")
    a("s_mul_i32 s67, s38, 100352")
    a("s_lshl_b32 s50, s65, 7")
    a("s_add_u32 s67, s67, s50")
    a("s_mul_i32 s77, s38, 14336")
    bg = []
    for i in range(32):
        bg.append((f"pq{i>>2}", [f"s_add_u32 s50, s66, {i*1024}", f"buffer_load_dwordx4 a[{4*i}:{4*i+3}], v11, s[32:35], s50 offen"]))
    for i in range(14):
        bg.append(("wo", [f"s_add_u32 m0, s77, {B_WO + i*1024}", f"s_add_u32 s50, s67, {i*8*896}", f"buffer_load_dwordx4 v27, s[16:19], s50 offen lds"]))
    bg.append(("wo", [f"s_mov_b32 m0, {B_WO + 448*128}", f"s_mov_b32 s50, {448*896}", f"buffer_load_dwordx4 v27, s[16:19], s50 offen lds"]))
    bg.append(("x", ["buffer_load_dwordx4 v[120:123], v32, s[28:31], s76 offen"]))
    bg.append(("x", [f"s_add_u32 s50, s76, {8*896}", "buffer_load_dwordx4 v[124:127], v32, s[28:31], s50 offen"]))
    def emit_bg(n=1):
        for _ in range(n):
            if bg: emit(bg.pop(0))
    emit_bg(8)
    for i in range(32):
        if i >= 20 and i % 2 == 0: emit_bg()
        vm.wait(f"kv{i}")
        R = 128 + 4 * i
        a(f"v_cvt_pk_bf16_f32 v{R}, v{R}, v{R+1}")
        a(f"v_cvt_pk_bf16_f32 v{R+1}, v{R+2}, v{R+3}")
        a(f"s_add_u32 s50, s60, {i}")
        a("s_bfe_u32 s51, s50, 0x20003")
        a("s_mul_i32 s51, s51, 4224")
        a("s_and_b32 s50, s50, 7")
        a("s_lshl_b32 s50, s50, 6")
        a("s_add_u32 s50, s50, s51")
        a("v_add_u32 v35, s50, v34")
        a(f"ds_write_b64 v35, v[{R}:{R+1}] offset:{B_KV}")
    a("s_mul_i32 s50, s40, 33792")
    a(f"v_mul_u32_u24 v7, 528, v{HF}")
    a(f"v_lshl_add_u32 v7, v{M}, 4, v7")
    a(f"v_add_u32 v100, s50, v7")
    a("s_mul_i32 s50, s40, 28672")
    a(f"s_add_u32 s50, s50, {B_WO}")
    a("s_sub_u32 s50, s50, s78")
    a(f"v_add_u32 v101, s50, v28")
    a(f"v_xor_b32 v102, 64, v101")
    a("s_lshl_b32 s50, s39, 5")
    a(f"v_add_u32 v7, s50, v{M}")
    a(f"v_mul_u32_u24 v7, 272, v7")
    a(f"v_lshl_add_u32 v7, v{HF}, 4, v7")
    a("s_mul_i32 s50, s40, 17408")
    a(f"s_add_u32 s50, s50, {B_RED}")
    a(f"v_add_u32 v103, s50, v7")
    a(f"v_add_u32 v104, {B_RED}, v31")
    a(f"v_lshrrev_b32 v35, 3, v{LANE}")
    a(f"v_lshlrev_b32 v35, 3, v35")
    a("s_waitcnt lgkmcnt(0)")
    a("s_barrier")
    def kvf_reads(hh):
        for s_ in range(4):
            a(f"ds_read_b128 v[{128+16*hh+4*s_}:{128+16*hh+4*s_+3}], v100 offset:{B_KV + hh*4224 + s_*1056}")
    def num_mfma(hh, outst):
        N = 36 + 16 * (hh & 1)
        vm.wait(f"pq{hh}")
        a(f"s_waitcnt lgkmcnt({outst})")
        for s_ in range(4):
            c = "0" if s_ == 0 else f"v[{N}:{N+15}]"
            a(f"v_mfma_f32_32x32x16_bf16 v[{N}:{N+15}], v[{128+16*hh+4*s_}:{128+16*hh+4*s_+3}], a[{16*hh+4*s_}:{16*hh+4*s_+3}], {c}")
    def o_valu(hh):
        N = 36 + 16 * (hh & 1); O = 128 + 16 * hh
        a(f"v_mov_b32 v105, v{N+12}")
        a(f"v_mov_b32 v106, v{N+12}")
        a(f"v_permlane32_swap_b32 v105, v106")
        bf16r(a, 106, 106)
        a(f"v_add_f32 v106, 0x358637bd, v106")
        bf16r(a, 106, 106)
        a(f"v_rcp_f32 v106, v106")
        for i in range(8):
            a(f"v_mul_f32 v{N+2*i}, v{N+2*i}, v106")
            a(f"v_mul_f32 v{N+2*i+1}, v{N+2*i+1}, v106")
            a(f"v_cvt_pk_bf16_f32 v{O+i}, v{N+2*i}, v{N+2*i+1}")
        a(f"v_cndmask_b32 v{O+6}, v{O+6}, 0, s[44:45]")
        a(f"v_cndmask_b32 v{O+7}, v{O+7}, 0, s[44:45]")
    for hh in range(3): kvf_reads(hh)
    emit_bg(2)
    num_mfma(0, 8)
    for hh in range(8):
        if hh + 3 < 8: kvf_reads(hh + 3)
        emit_bg(3)
        if hh + 1 < 8: num_mfma(hh + 1, 4 * min(2, 8 - (hh + 2)))
        emit_bg(2)
        o_valu(hh)
    emit_bg(100)
    vm.wait("wo")
    a("s_barrier")
    wq = dma_ops(0) + dma_ops(1)
    def wo_reads(hh):
        for s_ in range(2):
            for n2 in range(2):
                b = 68 + 16 * (hh & 1) + 8*s_ + 4*n2
                for e in range(2):
                    a(f"ds_read_b64_tr_b16 v[{b+2*e}:{b+2*e+1}], v{101+n2} offset:{(hh*28 + 16*s_ + 8*e)*128}")
    wo_reads(0)
    for hh in range(8):
        if hh + 1 < 8: wo_reads(hh + 1)
        a(f"s_waitcnt lgkmcnt({8 if hh + 1 < 8 else 0})")
        for s_ in range(2):
            for n2 in range(2):
                b = 68 + 16 * (hh & 1) + 8*s_ + 4*n2
                c = "0" if (hh == 0 and s_ == 0) else f"a[{130+16*n2}:{130+16*n2+15}]"
                a(f"v_mfma_f32_32x32x16_bf16 a[{130+16*n2}:{130+16*n2+15}], v[{b}:{b+3}], v[{128+16*hh+4*s_}:{128+16*hh+4*s_+3}], {c}")
        emit(wq.pop(0))
    for n2 in range(2):
        for q in range(4):
            a(f"ds_write_b128 v103, a[{130+16*n2+4*q}:{130+16*n2+4*q+3}] offset:{n2*128 + q*32}")
    a("s_lshl_b32 s61, s64, 6")
    a("s_lshl_b32 s50, s38, 4")
    a("s_add_u32 s61, s61, s50")
    a("s_lshl_b32 s61, s61, 3")
    a("s_lshl_b32 s50, s65, 14")
    a("s_add_u32 s61, s61, s50")
    a(f"s_add_u32 s61, s61, {WS_ST}")
    a("s_lshl_b32 s60, s2, 7")
    a("s_lshl_b32 s50, s38, 2")
    a("s_add_u32 s60, s60, s50")
    a(f"s_add_u32 s60, s60, {WS_FLAG + 16}")
    a(f"v_lshrrev_b32 v7, 1, v{LANE}")
    a(f"v_lshlrev_b32 v105, 12, v7")
    a("s_lshl_b32 s50, s40, 11")
    a("s_and_b32 s51, s2, 15")
    a("s_lshl_b32 s51, s51, 7")
    a("s_add_u32 s50, s50, s51")
    a("s_lshl_b32 s51, s39, 3")
    a("s_add_u32 s50, s50, s51")
    a("s_add_u32 s50, s50, 16")
    a(f"v_add_u32 v105, s50, v105")
    a(f"v_min_u32 v7, 8, v7")
    a(f"v_subrev_u32 v7, 7, v7")
    a(f"v_mul_u32_u24 v7, 1792, v7")
    a("s_add_u32 s50, s37, 224")
    a("s_lshl_b32 s50, s50, 7")
    a(f"v_add_u32 v7, s50, v7")
    a(f"v_cmp_gt_u32 vcc, 14, v{LANE}")
    a(f"v_cndmask_b32 v105, v7, v105, vcc")
    a(f"v_and_b32 v7, 1, v{LANE}")
    a(f"v_lshl_add_u32 v105, v7, 2, v105")
    a("s_waitcnt lgkmcnt(0)")
    a("s_barrier")
    for g2 in range(2):
        for hp_ in range(2):
            for e in range(2):
                a(f"ds_read_b128 v[{36+16*g2+8*hp_+4*e}:{36+16*g2+8*hp_+4*e+3}], v104 offset:{hp_*17408 + g2*8*272 + e*16}")
    vm.wait("x")
    a("s_mov_b32 s50, 0x01010101")
    a("s_mov_b32 s51, 0x01010101")
    for g2 in range(2):
        B_ = 36 + 16 * g2; T_ = 68 + 16 * g2
        a(f"s_waitcnt lgkmcnt({4 if g2 == 0 else 0})")
        for j in range(8): a(f"v_add_f32 v{B_+j}, v{B_+j}, v{B_+8+j}")
        for i in range(4): a(f"v_cvt_pk_bf16_f32 v{B_+8+i}, v{B_+2*i}, v{B_+2*i+1}")
        for i in range(4):
            a(f"v_lshlrev_b32 v{B_+2*i}, 16, v{B_+8+i}")
            a(f"v_and_b32 v{B_+2*i+1}, s41, v{B_+8+i}")
            a(f"v_lshlrev_b32 v{T_+2*i}, 16, v{120+4*g2+i}")
            a(f"v_and_b32 v{T_+2*i+1}, s41, v{120+4*g2+i}")
        for j in range(8): a(f"v_add_f32 v{B_+j}, v{B_+j}, v{T_+j}")
        for i in range(4): a(f"v_cvt_pk_bf16_f32 v{B_+8+i}, v{B_+2*i}, v{B_+2*i+1}")
        a(f"buffer_store_dwordx4 v[{B_+8}:{B_+11}], v26, s[32:35], s63 offen offset:{g2*128} sc1")
        a(f"v_add_f32 v{T_}, v{B_}, v{B_+1}")
        a(f"v_mul_f32 v{T_+1}, v{B_}, v{B_}")
        a(f"v_add_f32 v{T_+2}, v{B_+2}, v{B_+3}")
        a(f"v_mul_f32 v{T_+3}, v{B_+1}, v{B_+1}")
        for j in range(4, 8, 2):
            a(f"v_add_f32 v{T_}, v{T_}, v{B_+j}")
            a(f"v_add_f32 v{T_+2}, v{T_+2}, v{B_+j+1}")
        for j in range(2, 8, 2):
            a(f"v_fmac_f32 v{T_+1}, v{B_+j}, v{B_+j}")
            a(f"v_fmac_f32 v{T_+3}, v{B_+j+1}, v{B_+j+1}")
        a(f"v_add_f32 v{T_}, v{T_}, v{T_+2}")
        a(f"v_add_f32 v{T_+1}, v{T_+1}, v{T_+3}")
        for dpp in ("quad_perm:[1,0,3,2]", "quad_perm:[2,3,0,1]", "row_half_mirror"):
            a(f"v_add_f32_dpp v{T_}, v{T_}, v{T_} {dpp} row_mask:0xf bank_mask:0xf")
            a(f"v_add_f32_dpp v{T_+1}, v{T_+1}, v{T_+1} {dpp} row_mask:0xf bank_mask:0xf")
        a("s_mov_b64 exec, s[50:51]")
        a(f"buffer_store_dwordx2 v[{T_}:{T_+1}], v35, s[32:35], s61 offen offset:{g2*64} sc1")
        a("s_mov_b64 exec, -1")
    a("v_mov_b32 v106, 1")
    a("v_mov_b32 v107, 0")
    srd(a, 16, 4, 1605632)
    a("s_waitcnt vmcnt(0)")
    a("s_mov_b64 exec, 1")
    a("buffer_store_dword v106, v107, s[32:35], s60 offen sc1")
    a("s_mov_b64 exec, -1")
    a(f"s_mov_b32 s51, {WS_FLAG}")
    a("s_mov_b32 s50, 0")
    a("K3_POLLB:")
    a("buffer_load_dword v107, v105, s[32:35], s51 offen sc1")
    a("s_add_u32 s50, s50, 1")
    a("s_waitcnt vmcnt(0)")
    a("v_cmp_ne_u32 vcc, 1, v107")
    a("s_cmp_gt_u32 s50, 0x400000")
    a("s_cbranch_scc1 K3_POLLBX")
    a("s_cmp_lg_u64 vcc, 0")
    a("s_cbranch_scc1 K3_POLLB")
    a("K3_POLLBX:")
    vm = VM(a)
    for C in range(3):
        for op in chunk_ops(C): emit(op)
    stamp(a, 2)
    vm.wait("c0")
    a("s_barrier")
    stamp(a, 3)
    NK1 = int(os.environ.get('NK1', '20'))
    VP1 = int(os.environ.get('VP1', '3')); VP2 = int(os.environ.get('VP2', '6'))
    seq = [(0, kk, t) for kk in range(28) for t in range(4)] + [(1, kk, t) for kk in range(NK1) for t in range(4)]
    seq += [(1, kk, t) for t in range(4) for kk in range(NK1, 28)]
    LAH = 7
    NBUF = 16
    queue = chunk_ops(3) + chunk_ops(4) + chunk_ops(5)
    late = []
    ready = {0}
    vq = []
    def need_chunk(C):
        nonlocal queue, late
        if C in ready: return
        if any(op[0] == f"c{C}" for op in late):
            queue += late; late = []
        while any(op[0] == f"c{C}" for op in queue): emit(queue.pop(0))
        vm.wait(f"c{C}")
        a("s_barrier")
        ready.add(C)
        if 6 <= C + 4 <= 13: late += chunk_ops(C + 4)
        if C == 2: late += misc
    def issue_reads(i):
        ph, kk, t = seq[i]
        need_chunk(ph * 7 + kk // 4)
        for o in rd_ops(ph, kk, t, WF + 4 * (i % NBUF)): a(o)
    for i in range(LAH): issue_reads(i)
    for i, (ph, kk, t) in enumerate(seq):
        if i + LAH < len(seq):
            issue_reads(i + LAH)
            if i % 2 == 0: a(f"s_waitcnt lgkmcnt({2*LAH-2})")
        elif i % 2 == 0:
            a(f"s_waitcnt lgkmcnt({max(0, 2*(len(seq)-2-i))})")
        T = ph * 4 + t
        b = WF + 4 * (i % NBUF)
        c_ = "0" if kk == 0 else acc(T)
        a(f"v_mfma_f32_32x32x16_bf16 {acc(T)}, v[{b}:{b+3}], a[{4*kk}:{4*kk+3}], {c_}")
        if kk == 27:
            a(f"v_mfma_f32_32x32x16_bf16 {acc(T)}, a[{112+2*T}:{112+2*T+3}], v[104:107], {acc(T)}")
            vq += ep_ops(T)
        if ph == 0 and kk == 22 and t == 0:
            vm.wait("ms")
            vq += fin_ops
        if i == 112: stamp(a, 4)
        if i == 112 + 4 * NK1:
            stamp(a, 5)
        if i % 2 == 0 or i < 12:
            if queue: emit(queue.pop(0))
            elif late: emit(late.pop(0))
            elif 9 in ready: d_tick(i)
        if not (kk == 27): emit_valu(vq, VP1 if i < 112 + 4 * NK1 else VP2)
    emit_valu(vq, 10000)
    while late: emit(late.pop(0))
    print("D staging state at end of C:", dstate["next_dma"], dstate["next_stage"])
    stamp(a, 6)
    a("s_lshl_b32 s50, s2, 7")
    a("s_lshl_b32 s51, s38, 2")
    a("s_add_u32 s50, s50, s51")
    a(f"s_add_u32 s50, s50, {WS_FLAG}")
    a("v_mov_b32 v100, 1")
    a("v_mov_b32 v101, 0")
    a("s_and_b32 s51, s2, 15")
    a("s_lshl_b32 s51, s51, 7")
    a("s_and_b32 s52, s64, 1")
    a("s_lshl_b32 s52, s52, 3")
    a("s_add_u32 s51, s51, s52")
    a(f"s_add_u32 s51, s51, {WS_FLAG}")
    a(f"v_lshrrev_b32 v102, 1, v{LANE}")
    a(f"v_min_u32 v102, 13, v102")
    a(f"v_lshlrev_b32 v102, 11, v102")
    a(f"v_and_b32 v103, 1, v{LANE}")
    a(f"v_lshl_add_u32 v102, v103, 2, v102")
    a("s_waitcnt vmcnt(0)")
    a("s_mov_b64 exec, 1")
    a("buffer_store_dword v100, v101, s[32:35], s50 offen sc1")
    a("s_mov_b64 exec, -1")
    ii = 1000
    while dstate["next_dma"] < NRES or dstate["next_stage"] < NREG or dstate["ops"]:
        a("s_waitcnt lgkmcnt(0)")
        for _ in range(4):
            ii += 20; d_tick(ii)
            if dstate["stage_at"].get(dstate["next_stage"] - 1) == ii: break
    a("s_barrier")
    a("s_mov_b32 s53, 0")
    a("K3_POLL:")
    a("buffer_load_dword v103, v102, s[32:35], s51 offen sc1")
    a("s_add_u32 s53, s53, 1")
    a("s_waitcnt vmcnt(0)")
    a("v_cmp_ne_u32 vcc, 1, v103")
    a("s_cmp_gt_u32 s53, 0x400000")
    a("s_cbranch_scc1 K3_POLLX")
    a("s_cmp_lg_u64 vcc, 0")
    a("s_cbranch_scc1 K3_POLL")
    a("K3_POLLX:")
    stamp(a, 7)
    vm = VM(a)
    NH = 14
    def hh_ops(ks):
        return [(f"k{ks}", [f"s_add_u32 s50, s{72+ks//7}, {m2*114688 + (ks%7)*1024}",
                            f"buffer_load_dwordx4 a[{(ks%NH)*8+4*m2}:{(ks%NH)*8+4*m2+3}], v11, s[32:35], s50 offen sc1"]) for m2 in range(2)]
    for ks in range(NH):
        for op in hh_ops(ks): emit(op)
    def dacc(n2, m2): return f"v[{128+32*n2+16*m2}:{128+32*n2+16*m2+15}]"
    def drd(ks):
        if ks < NREG: return 0
        base, off = (24, (ks % 8) * 2048) if ks < NRES else (28, (ks - NRES) * 2048)
        for n2 in range(2):
            b = 36 + (ks & 1) * 8 + 4 * n2
            for e in range(2):
                a(f"ds_read_b64_tr_b16 v[{b+2*e}:{b+2*e+1}], v{base+n2} offset:{off + e*1024}")
        return 4
    for ks in range(28):
        n_ = 0
        if ks + 1 < 28:
            if ks + 1 >= NRES: vm.wait(f"w{ks+1}")
            n_ = drd(ks + 1)
        vm.wait(f"k{ks}")
        if ks >= NREG - 1: a(f"s_waitcnt lgkmcnt({n_})")
        for n2 in range(2):
            for m2 in range(2):
                wsrc = f"a[{130+8*ks+4*n2}:{130+8*ks+4*n2+3}]" if ks < NREG else f"v[{36+(ks&1)*8+4*n2}:{36+(ks&1)*8+4*n2+3}]"
                c_ = "0" if ks == 0 else dacc(n2, m2)
                a(f"v_mfma_f32_32x32x16_bf16 {dacc(n2,m2)}, {wsrc}, a[{(ks%NH)*8+4*m2}:{(ks%NH)*8+4*m2+3}], {c_}")
        nk = ks + NH
        if nk < 28:
            if nk >= NRES:
                for op in d_dma(nk): emit(op)
            for op in hh_ops(nk): emit(op)
        if nk == 28:
            a(f"buffer_load_dwordx4 v[52:55], v26, s[32:35], s63 offen sc1")
            a(f"buffer_load_dwordx4 v[56:59], v26, s[32:35], s63 offen offset:128 sc1")
            vm.issue("res"); vm.issue("res")
    stamp(a, 8)
    for n2 in range(2):
        for m2 in range(2):
            for q in range(4):
                b = 128 + 32*n2 + 16*m2 + 4*q
                a(f"ds_write_b128 v30, v[{b}:{b+3}] offset:{m2*32*272 + n2*128 + q*32}")
    a("s_waitcnt lgkmcnt(0)")
    a("s_barrier")
    a("s_waitcnt vmcnt(0)")
    for g2 in range(2):
        for w in range(4):
            for e in range(2):
                a(f"ds_read_b128 v[{60+32*g2+8*w+4*e}:{60+32*g2+8*w+4*e+3}], v{31 if w < 2 else 33} offset:{(w&1)*24576 + g2*8*272 + e*16}")
    for g2 in range(2):
        B_ = 60 + 32 * g2
        a(f"s_waitcnt lgkmcnt({8 if g2 == 0 else 0})")
        for j in range(8):
            a(f"v_add_f32 v{B_+j}, v{B_+j}, v{B_+8+j}")
            a(f"v_add_f32 v{B_+16+j}, v{B_+16+j}, v{B_+24+j}")
        for j in range(8): a(f"v_add_f32 v{B_+j}, v{B_+j}, v{B_+16+j}")
        for i in range(4): a(f"v_cvt_pk_bf16_f32 v{B_+8+i}, v{B_+2*i}, v{B_+2*i+1}")
        for i in range(4):
            a(f"v_lshlrev_b32 v{B_+2*i}, 16, v{B_+8+i}")
            a(f"v_and_b32 v{B_+2*i+1}, s41, v{B_+8+i}")
            a(f"v_lshlrev_b32 v{B_+16+2*i}, 16, v{52+4*g2+i}")
            a(f"v_and_b32 v{B_+16+2*i+1}, s41, v{52+4*g2+i}")
        for j in range(8): a(f"v_add_f32 v{B_+j}, v{B_+j}, v{B_+16+j}")
        for i in range(4): a(f"v_cvt_pk_bf16_f32 v{B_+8+i}, v{B_+2*i}, v{B_+2*i+1}")
        a(f"s_add_u32 s50, s76, {g2*8*896}")
        a(f"buffer_store_dwordx4 v[{B_+8}:{B_+11}], v32, s[24:27], s50 offen")
    if STAMPS: a("s_waitcnt vmcnt(0)")
    stamp(a, 9)
    stamp_flush(a, 38, 32, 2)
    a("s_endpgm")
    a("K3_PF:")
    a("s_sub_u32 s36, s2, 224")
    a("s_waitcnt lgkmcnt(0)")
    srd(a, 16, 4, 1605632)
    srd(a, 20, 8, 1605632)
    srd(a, 24, 10, 1605632)
    srd(a, 32, 14, WS_SIZE)
    a("s_cmp_ge_u32 s36, 28")
    a("s_cbranch_scc1 K3_PF2")
    a("s_cmp_ge_u32 s36, 14")
    a("s_cselect_b32 s37, 1, 0")
    a("s_cselect_b32 s28, s10, s8")
    a("s_cselect_b32 s29, s11, s9")
    a("s_mov_b32 s30, 1605632")
    a("s_mov_b32 s31, 0x00020000")
    a("s_mul_i32 s39, s37, 14")
    a("s_sub_u32 s39, s36, s39")
    a("v_lshrrev_b32 v7, 4, v0")
    a("v_and_b32 v8, 15, v0")
    a("v_mul_u32_u24 v9, 3584, v7")
    a("v_lshl_add_u32 v9, v8, 4, v9")
    a("s_lshl_b32 s50, s39, 8")
    for i in range(28):
        a(f"s_add_u32 s51, s50, {i*16*3584}")
        a(f"buffer_load_dwordx4 v[{20+4*i}:{20+4*i+3}], v9, s[28:31], s51 offen")
    for j in range(8): a(f"v_mov_b32 v{140+j}, 0")
    for i in range(28):
        a(f"s_waitcnt vmcnt({27-i})")
        for r in range(4):
            a(f"v_lshlrev_b32 v11, 16, v{20+4*i+r}")
            a(f"v_and_b32 v12, s41, v{20+4*i+r}")
            a(f"v_add_f32 v{140+2*r}, v{140+2*r}, v11")
            a(f"v_add_f32 v{140+2*r+1}, v{140+2*r+1}, v12")
    a("v_lshlrev_b32 v11, 9, v7")
    a("v_lshl_add_u32 v11, v8, 5, v11")
    a("ds_write_b128 v11, v[140:143]")
    a("ds_write_b128 v11, v[144:147] offset:16")
    a("s_waitcnt lgkmcnt(0)")
    a("s_barrier")
    a("s_cmp_ge_u32 s38, 2")
    a("s_cbranch_scc1 K3_PF1")
    a("v_lshlrev_b32 v11, 2, v0")
    for i in range(16):
        a(f"ds_read_b32 v{20+i}, v11 offset:{i*512}")
    a("s_waitcnt lgkmcnt(0)")
    for i in range(1, 16): a(f"v_add_f32 v20, v20, v{20+i}")
    a("v_cvt_pk_bf16_f32 v24, v20, v20")
    a("v_and_b32 v22, s41, v24")
    a("v_sub_f32 v22, v20, v22")
    a("v_cvt_pk_bf16_f32 v25, v22, v22")
    a("v_lshlrev_b32 v11, 6, v8")
    a("v_lshl_add_u32 v11, v7, 3, v11")
    a("s_lshl_b32 s50, s39, 11")
    a("s_lshl_b32 s51, s37, 10")
    a("s_add_u32 s50, s50, s51")
    a(f"s_add_u32 s50, s50, {WS_CS}")
    a("buffer_store_dwordx2 v[24:25], v11, s[32:35], s50 offen sc1")
    a("s_lshl_b32 s50, s2, 7")
    a("s_lshl_b32 s51, s38, 2")
    a("s_add_u32 s50, s50, s51")
    a(f"s_add_u32 s50, s50, {WS_FLAG}")
    a("v_mov_b32 v26, 1")
    a("v_mov_b32 v27, 0")
    a("s_waitcnt vmcnt(0)")
    a("s_mov_b64 exec, 1")
    a("buffer_store_dword v26, v27, s[32:35], s50 offen sc1")
    a("s_mov_b64 exec, -1")
    a("K3_PF1:")
    a("s_barrier")
    a("K3_PF2:")
    a("s_lshr_b32 s60, s36, 3")
    a("s_lshl_b32 s60, s60, 2")
    a("s_add_u32 s60, s60, s38")
    a("s_mul_i32 s61, s60, 7168")
    a(f"v_lshlrev_b32 v10, 7, v{LANE}")
    a(f"v_mov_b32 v11, 0x7fff0000")
    a(f"v_cmp_gt_u32 vcc, 56, v{LANE}")
    a(f"v_cndmask_b32 v10, v11, v10, vcc")
    for i in range(10):
        a(f"s_add_u32 s62, s61, {4096*128 + i*16*7168}")
        a(f"buffer_load_dword v{150+2*i}, v10, s[20:23], s62 offen")
        a(f"buffer_load_dword v{151+2*i}, v10, s[24:27], s62 offen")
    for i in range(14):
        a(f"s_add_u32 s62, s61, {i*16*7168}")
        a(f"buffer_load_dword v{170+i}, v10, s[16:19], s62 offen")
    a("K3_END:")
    a("s_endpgm")
    a.fix_hazards()
    k = kd("k3_kernel", 256).replace("next_free_vgpr 256", "next_free_vgpr 506")
    return a.text(), k

K4_WREG = 40960
K4_LDS = 4 * K4_WREG

def gen_k4():
    a = Asm()
    head(a, "k4_kernel")
    a("s_cmp_ge_u32 s2, 224")
    a("s_cbranch_scc1 K4_END")
    stamp_init(a); stamp(a, 0, real=True); stamp(a, 1)
    a("s_load_dwordx4 s[8:11], s[0:1], 56")
    a("s_load_dwordx2 s[14:15], s[0:1], 80")
    LANE, M, HF, I16, G = 1, 2, 3, 4, 5
    a(f"v_and_b32 v{LANE}, 63, v0")
    a(f"v_lshrrev_b32 v6, 6, v0")
    a(f"v_readfirstlane_b32 s38, v6")
    a(f"v_and_b32 v{M}, 31, v{LANE}")
    a(f"v_lshrrev_b32 v{HF}, 5, v{LANE}")
    a(f"v_and_b32 v{I16}, 15, v{LANE}")
    a(f"v_lshrrev_b32 v{G}, 4, v{LANE}")
    a("s_mov_b32 s41, 0xffff0000")
    a("s_and_b32 s36, s2, 7")
    a("s_lshl_b32 s36, s36, 2")
    a("s_bfe_u32 s37, s2, 0x20003")
    a("s_add_u32 s36, s36, s37")
    a("s_lshr_b32 s37, s2, 5")
    a(f"v_lshrrev_b32 v7, 3, v{LANE}")
    a(f"v_and_b32 v8, 7, v{LANE}")
    a(f"v_lshrrev_b32 v9, 1, v7")
    a(f"v_and_b32 v9, 1, v9")
    a(f"v_lshlrev_b32 v9, 2, v9")
    a(f"v_xor_b32 v8, v8, v9")
    a(f"v_mul_u32_u24 v7, 896, v7")
    a(f"v_lshl_add_u32 v10, v8, 4, v7")
    a(f"v_lshlrev_b32 v11, 4, v{LANE}")
    a("s_waitcnt lgkmcnt(0)")
    srd(a, 20, 8, 1605632)
    srd(a, 24, 10, 1835008)
    srd(a, 32, 14, WS_SIZE)
    a("s_mul_i32 s46, s38, 401408")
    a("s_lshl_b32 s47, s37, 7")
    a("s_add_u32 s46, s46, s47")
    a(f"s_mul_i32 s47, s38, {K4_WREG}")
    a("s_mul_i32 s48, s36, 229376")
    a("s_mul_i32 s49, s38, 28672")
    a("s_add_u32 s48, s48, s49")
    a(f"s_add_u32 s48, s48, {WS_HH}")
    vm = VM(a)
    HH = 28
    a("s_bfe_u32 s52, s2, 0x20003")
    for g_ in range(4):
        a(f"s_add_u32 s53, s52, {g_}")
        a("s_and_b32 s53, s53, 3")
        a(f"s_mul_i32 s{56+g_}, s53, {7*16*896}")
        a(f"s_add_u32 s{56+g_}, s{56+g_}, s46")
        a(f"s_mul_i32 s{60+g_}, s53, 7168")
        a(f"s_add_u32 s{60+g_}, s{60+g_}, s48")
    def dma(ks):
        for i in range(2):
            a(f"s_add_u32 m0, s47, {(ks % 20)*2048 + i*1024}")
            a(f"s_add_u32 s50, s{56+ks//7}, {((ks%7)*16 + i*8)*896}")
            a(f"buffer_load_dwordx4 v10, s[20:23], s50 offen lds")
            vm.issue(f"k{ks}")
    def hload(ks):
        for m2 in range(2):
            a(f"s_add_u32 s50, s{60+ks//7}, {m2*114688 + (ks%7)*1024}")
            a(f"buffer_load_dwordx4 v[{HH+8*ks+4*m2}:{HH+8*ks+4*m2+3}], v11, s[32:35], s50 offen")
            vm.issue(f"k{ks}")
    PRE = 15
    for ks in range(PRE):
        dma(ks); hload(ks)
    a(f"v_lshrrev_b32 v7, 2, v{I16}")
    a(f"v_lshl_add_u32 v8, v{HF}, 2, v7")
    a(f"v_lshrrev_b32 v7, 1, v7")
    a(f"v_lshlrev_b32 v7, 3, v7")
    a(f"v_and_b32 v9, 1, v{G}")
    a(f"v_lshl_add_u32 v7, v9, 2, v7")
    a(f"v_and_b32 v9, 3, v{I16}")
    a(f"v_add_u32 v7, v7, v9")
    a(f"v_lshlrev_b32 v7, 3, v7")
    a(f"v_lshl_add_u32 v7, v8, 7, v7")
    a(f"v_add_u32 v12, s47, v7")
    a(f"v_xor_b32 v13, 64, v12")
    WF = 14
    def acc(n2, m2): return f"a[{32*n2+16*m2}:{32*n2+16*m2+15}]"
    def wf(ks, n2):
        b = 64 + (ks & 1) * 8 + 4 * n2
        return b
    def rd(ks):
        for n2 in range(2):
            b = wf(ks, n2)
            for e in range(2):
                a(f"ds_read_b64_tr_b16 a[{b+2*e}:{b+2*e+1}], v{12+n2} offset:{(ks % 20)*2048 + e*1024}")
    stamp(a, 2)
    vm.wait("k0")
    stamp(a, 3)
    rd(0)
    for ks in range(28):
        if ks + 1 < 28:
            vm.wait(f"k{ks+1}")
            rd(ks + 1)
            a("s_waitcnt lgkmcnt(4)")
        else:
            a("s_waitcnt lgkmcnt(0)")
        for n2 in range(2):
            for m2 in range(2):
                b = wf(ks, n2)
                c_ = "0" if ks == 0 else acc(n2, m2)
                a(f"v_mfma_f32_32x32x16_bf16 {acc(n2,m2)}, a[{b}:{b+3}], v[{HH+8*ks+4*m2}:{HH+8*ks+4*m2+3}], {c_}")
        nk = ks + PRE
        if nk < 28:
            dma(nk); hload(nk)
    stamp(a, 4)
    a("s_lshl_b32 s50, s36, 1")
    a("s_mul_i32 s50, s50, 28")
    a("s_lshl_b32 s51, s37, 2")
    a("s_add_u32 s50, s50, s51")
    a("s_add_u32 s50, s50, s38")
    a("s_lshl_b32 s50, s50, 10")
    a(f"s_add_u32 s50, s50, {WS_HF}")
    a(f"v_mul_u32_u24 v7, 28672, v{HF}")
    a(f"v_lshl_add_u32 v7, v{M}, 4, v7")
    a(f"buffer_load_dwordx4 v[14:17], v7, s[32:35], s50 offen")
    a(f"buffer_load_dwordx4 v[18:21], v7, s[32:35], s50 offen offset:512")
    a(f"v_mul_u32_u24 v7, 272, v{M}")
    a(f"v_lshl_add_u32 v7, v{HF}, 4, v7")
    a(f"v_add_u32 v7, s47, v7")
    for n2 in range(2):
        for m2 in range(2):
            for q in range(4):
                b = 32*n2 + 16*m2 + 4*q
                a(f"ds_write_b128 v7, a[{b}:{b+3}] offset:{m2*32*272 + n2*128 + q*32}")
    a("s_waitcnt lgkmcnt(0)")
    a("s_barrier")
    stamp(a, 5)
    a(f"v_mul_u32_u24 v7, 272, v{LANE}")
    a("s_lshl_b32 s50, s38, 6")
    a(f"v_add_u32 v7, s50, v7")
    a(f"v_add_u32 v8, {2*K4_WREG}, v7")
    for w in range(4):
        for e in range(4):
            base = 7 if w < 2 else 8
            a(f"ds_read_b128 v[{28+16*w+4*e}:{28+16*w+4*e+3}], v{base} offset:{(w&1)*K4_WREG + e*16}")
    a("s_waitcnt lgkmcnt(0)")
    for j in range(16):
        a(f"v_add_f32 v{28+j}, v{28+j}, v{44+j}")
        a(f"v_add_f32 v{60+j}, v{60+j}, v{76+j}")
    for j in range(16):
        a(f"v_add_f32 v{28+j}, v{28+j}, v{60+j}")
    a("s_waitcnt vmcnt(0)")
    for i in range(8):
        a(f"v_cvt_pk_bf16_f32 v44, v{28+2*i}, v{28+2*i+1}")
        a(f"v_lshlrev_b32 v45, 16, v44")
        a(f"v_and_b32 v46, s41, v44")
        a(f"v_lshlrev_b32 v47, 16, v{14+i}")
        a(f"v_and_b32 v48, s41, v{14+i}")
        a(f"v_add_f32 v45, v45, v47")
        a(f"v_add_f32 v46, v46, v48")
        a(f"v_cvt_pk_bf16_f32 v{60+i}, v45, v46")
    a("s_lshl_b32 s50, s36, 6")
    a(f"v_add_u32 v7, s50, v{LANE}")
    a(f"v_mul_u32_u24 v7, 896, v7")
    a("s_lshl_b32 s50, s37, 7")
    a("s_lshl_b32 s51, s38, 5")
    a("s_add_u32 s50, s50, s51")
    a(f"buffer_store_dwordx4 v[60:63], v7, s[24:27], s50 offen")
    a(f"buffer_store_dwordx4 v[64:67], v7, s[24:27], s50 offen offset:16")
    if STAMPS: a("s_waitcnt vmcnt(0)")
    stamp(a, 9)
    stamp_flush(a, 38, 32, 3)
    a("K4_END:")
    a("s_endpgm")
    a.fix_hazards()
    k = kd("k4_kernel", 256).replace("next_free_vgpr 256", "next_free_vgpr 336")
    return a.text(), k

def kernels():
    return [("k3", gen_k3, 256, 256, K3_LDS)]
```

```python
import sys
from asmfw import Asm

WS_KV   = 0
WS_CS   = 512 * 1024
WS_ST   = 640 * 1024
WS_PHIQ = 1 << 20
WS_H    = 8 << 20
WS_HH   = 16 << 20
WS_SIZE = 268435456
LOG2E = 0x3fb8aa3b

class VM:
    def __init__(self, a): self.a = a; self.ops = []
    def issue(self, tag): self.ops.append(tag)
    def wait(self, tag, extra=0):
        idx = max(i for i, t in enumerate(self.ops) if t == tag)
        n = len(self.ops) - 1 - idx + extra
        assert n <= 63
        self.a("s_waitcnt vmcnt(%d)" % n)
    def copy(self):
        v = VM(self.a); v.ops = list(self.ops); return v

def srd(a, d, ptr, size):
    a(f"s_mov_b32 s{d}, s{ptr}")
    a(f"s_mov_b32 s{d+1}, s{ptr+1}")
    a(f"s_mov_b32 s{d+2}, {size}")
    a(f"s_mov_b32 s{d+3}, 0x00020000")

def bf16r(a, dst, src, tmp=None):
    a(f"v_cvt_pk_bf16_f32 v{dst}, v{src}, v{src}")
    a(f"v_and_b32 v{dst}, 0xffff0000, v{dst}")

def xhalf(a, op, dst, src, t1, t2):
    a(f"v_mov_b32 v{t1}, v{src}")
    a(f"v_mov_b32 v{t2}, v{src}")
    a(f"v_permlane32_swap_b32 v{t1}, v{t2}")
    a(f"{op} v{dst}, v{t1}, v{t2}")

def ln_stats_finish(a, vs, vq, v_mr, v_rstd, t1, t2, t3):
    xhalf(a, "v_add_f32", vs, vs, t1, t2)
    xhalf(a, "v_add_f32", vq, vq, t1, t2)
    a(f"v_mul_f32 v{vs}, 0x3b124925, v{vs}")
    a(f"v_mul_f32 v{vq}, 0x3b124925, v{vq}")
    a(f"v_fma_f32 v{vq}, -v{vs}, v{vs}, v{vq}")
    a(f"v_max_f32 v{vq}, 0, v{vq}")
    bf16r(a, vs, vs)
    bf16r(a, vq, vq)
    a(f"v_add_f32 v{vq}, 0x3727c5ac, v{vq}")
    bf16r(a, vq, vq)
    a(f"v_sqrt_f32 v{vq}, v{vq}")
    bf16r(a, vq, vq)
    a(f"v_rcp_f32 v{v_rstd}, v{vq}")
    a(f"v_mul_f32 v{v_mr}, v{vs}, v{v_rstd}")

def softmax_pm(a, P, E, F, OP, ON, T, s_hi, SC, OSC=None):
    for r in range(12, 16):
        a(f"v_cndmask_b32 v{P+r}, v{P+r}, v{P}, s[{s_hi}:{s_hi+1}]")
    mx, mn, t1, t2, se, sf = T, T+1, T+2, T+3, T+4, T+5
    a(f"v_max3_f32 v{mx}, v{P}, v{P+1}, v{P+2}")
    a(f"v_min3_f32 v{mn}, v{P}, v{P+1}, v{P+2}")
    for r in range(3, 15, 2):
        a(f"v_max3_f32 v{mx}, v{mx}, v{P+r}, v{P+r+1}")
        a(f"v_min3_f32 v{mn}, v{mn}, v{P+r}, v{P+r+1}")
    a(f"v_max_f32 v{mx}, v{mx}, v{P+15}")
    a(f"v_min_f32 v{mn}, v{mn}, v{P+15}")
    a(f"v_mov_b32 v{t1}, v{mx}")
    a(f"v_mov_b32 v{se}, v{mn}")
    a(f"v_permlane32_swap_b32 v{t1}, v{mx}")
    a(f"v_permlane32_swap_b32 v{se}, v{mn}")
    a(f"v_max_f32 v{mx}, v{t1}, v{mx}")
    a(f"v_min_f32 v{mn}, v{se}, v{mn}")
    a(f"v_mul_f32 v{mx}, v{SC}, v{mx}")
    a(f"v_mul_f32 v{mn}, v{SC}, v{mn}")
    for r in range(16):
        a(f"v_fma_f32 v{E+r}, v{P+r}, v{SC}, -v{mx}")
        a(f"v_fma_f32 v{F+r}, -v{P+r}, v{SC}, v{mn}")
        if r >= 1:
            a(f"v_exp_f32 v{E+r-1}, v{E+r-1}")
            a(f"v_exp_f32 v{F+r-1}, v{F+r-1}")
    a(f"v_exp_f32 v{E+15}, v{E+15}")
    a(f"v_exp_f32 v{F+15}, v{F+15}")
    a(f"v_add_f32 v{se}, v{E}, v{E+1}")
    a(f"v_add_f32 v{sf}, v{F}, v{F+1}")
    a(f"v_add_f32 v{t1}, v{E+2}, v{E+3}")
    a(f"v_add_f32 v{t2}, v{F+2}, v{F+3}")
    for r in range(4, 12, 2):
        a(f"v_add_f32 v{se}, v{se}, v{E+r}")
        a(f"v_add_f32 v{sf}, v{sf}, v{F+r}")
        a(f"v_add_f32 v{t1}, v{t1}, v{E+r+1}")
        a(f"v_add_f32 v{t2}, v{t2}, v{F+r+1}")
    for r in range(12, 16):
        a(f"v_cndmask_b32 v{E+r}, v{E+r}, 0, s[{s_hi}:{s_hi+1}]")
        a(f"v_cndmask_b32 v{F+r}, v{F+r}, 0, s[{s_hi}:{s_hi+1}]")
    for r in range(12, 16, 2):
        a(f"v_add_f32 v{se}, v{se}, v{E+r}")
        a(f"v_add_f32 v{sf}, v{sf}, v{F+r}")
        a(f"v_add_f32 v{t1}, v{t1}, v{E+r+1}")
        a(f"v_add_f32 v{t2}, v{t2}, v{F+r+1}")
    a(f"v_add_f32 v{se}, v{se}, v{t1}")
    a(f"v_add_f32 v{sf}, v{sf}, v{t2}")
    a(f"v_mov_b32 v{t1}, v{se}")
    a(f"v_mov_b32 v{t2}, v{sf}")
    a(f"v_permlane32_swap_b32 v{t1}, v{se}")
    a(f"v_permlane32_swap_b32 v{t2}, v{sf}")
    a(f"v_add_f32 v{se}, v{t1}, v{se}")
    a(f"v_add_f32 v{sf}, v{t2}, v{sf}")
    a(f"v_rcp_f32 v{se}, v{se}")
    a(f"v_rcp_f32 v{sf}, v{sf}")
    if OSC is not None:
        a(f"v_mul_f32 v{se}, v{se}, v{OSC}")
        a(f"v_mul_f32 v{sf}, v{sf}, v{OSC}")
    for i in range(8):
        a(f"v_mul_f32 v{E+2*i}, v{E+2*i}, v{se}")
        a(f"v_mul_f32 v{E+2*i+1}, v{E+2*i+1}, v{se}")
        a(f"v_cvt_pk_bf16_f32 v{OP+i}, v{E+2*i}, v{E+2*i+1}")
    for i in range(8):
        a(f"v_mul_f32 v{F+2*i}, v{F+2*i}, v{sf}")
        a(f"v_mul_f32 v{F+2*i+1}, v{F+2*i+1}, v{sf}")
        a(f"v_cvt_pk_bf16_f32 v{ON+i}, v{F+2*i}, v{F+2*i+1}")

def stats_finish(a, vs, vq, v_nmean, v_rstd, v_sd):
    a(f"v_mul_f32 v{vs}, 0x3b124925, v{vs}")
    a(f"v_mul_f32 v{vq}, 0x3b124925, v{vq}")
    a(f"v_fma_f32 v{vq}, -v{vs}, v{vs}, v{vq}")
    a(f"v_max_f32 v{vq}, 0, v{vq}")
    a(f"v_cvt_pk_bf16_f32 v{vs}, v{vq}, v{vs}")
    a(f"v_lshlrev_b32 v{vq}, 16, v{vs}")
    a(f"v_and_b32 v{vs}, 0xffff0000, v{vs}")
    a(f"v_add_f32 v{vq}, 0x3727c5ac, v{vq}")
    a(f"v_xor_b32 v{v_nmean}, 0x80000000, v{vs}")
    bf16r(a, vq, vq)
    a(f"v_sqrt_f32 v{vq}, v{vq}")
    bf16r(a, v_sd, vq)
    a(f"v_rcp_f32 v{v_rstd}, v{v_sd}")

def kd(name, vgpr, sgpr=102):
    acc = (vgpr + 3) // 4 * 4
    return f""".p2align 6
.amdhsa_kernel {name}
  .amdhsa_next_free_vgpr {vgpr}
  .amdhsa_next_free_sgpr {sgpr}
  .amdhsa_accum_offset {min(acc,256)}
  .amdhsa_group_segment_fixed_size 0
  .amdhsa_kernarg_size 88
  .amdhsa_user_sgpr_count 2
  .amdhsa_user_sgpr_kernarg_segment_ptr 1
  .amdhsa_system_sgpr_workgroup_id_x 1
.end_amdhsa_kernel"""

WS_STAMP = 64 << 20
import os
STAMPS = bool(int(os.environ.get("STAMPS", "0")))
def stamp(a, idx, real=False):
    if not STAMPS: return
    a(f"s_memrealtime s[{80+2*idx}:{81+2*idx}]" if real else f"s_memtime s[{80+2*idx}:{81+2*idx}]")

def stamp_init(a):
    if not STAMPS: return
    for i in range(80, 100): a(f"s_mov_b32 s{i}, 0")

def stamp_flush(a, s_wave, ws_srd, koff=0):
    if not STAMPS: return
    a("s_waitcnt lgkmcnt(0)")
    a("s_lshl_b32 s3, s2, 3")
    a(f"s_add_u32 s3, s3, s{s_wave}")
    a("s_lshl_b32 s3, s3, 6")
    a(f"s_add_u32 s3, s3, {WS_STAMP + koff*(1<<20)}")
    a("v_mov_b32 v1, s3")
    for i in range(10):
        a(f"v_mov_b32 v0, s{80+2*i}")
        a(f"buffer_store_dword v0, v1, s[{ws_srd}:{ws_srd+3}], 0 offen offset:{i*4}")

def head(a, name):
    a.raw(f".globl {name}\n.p2align 8\n.type {name},@function")
    a(f"{name}:")

K1_CS   = 0
K1_FL   = 448
K1_SQ   = 512
K1_SM   = 1536
K1_WP   = 2048
K1_RING = 4096
K1_SLOT = 28672
K1_LDS  = K1_RING + 5 * K1_SLOT
K1_PHIK = K1_RING
K1_V    = K1_PHIK + 16384

NPRE = int(os.environ.get('NPRE', '2'))
TLBW = int(os.environ.get('TLBW', '0'))
CODEPF = int(os.environ.get('CODEPF', '1'))
def gen_k1():
    a = Asm()
    head(a, "k1_kernel")
    a("s_cmp_ge_u32 s2, 256")
    a("s_cbranch_scc1 K1_END")
    stamp_init(a)
    stamp(a, 0, real=True)
    stamp(a, 1)
    a("s_load_dwordx4 s[4:7], s[0:1], 0")
    a("s_load_dwordx4 s[8:11], s[0:1], 16")
    a("s_load_dwordx4 s[12:15], s[0:1], 72")
    a("s_load_dwordx4 s[56:59], s[0:1], 40")
    a("s_load_dwordx4 s[68:71], s[0:1], 56")
    LANE, M, HF, I16, G = 1, 2, 3, 4, 5
    a(f"v_and_b32 v{LANE}, 63, v0")
    a(f"v_lshrrev_b32 v6, 6, v0")
    a(f"v_readfirstlane_b32 s38, v6")
    a(f"v_and_b32 v{M}, 31, v{LANE}")
    a(f"v_lshrrev_b32 v{HF}, 5, v{LANE}")
    a(f"v_and_b32 v{I16}, 15, v{LANE}")
    a(f"v_lshrrev_b32 v{G}, 4, v{LANE}")
    a("s_and_b32 s36, s2, 7")
    a("s_lshl_b32 s36, s36, 1")
    a("s_bfe_u32 s37, s2, 0x10003")
    a("s_add_u32 s36, s36, s37")
    a("s_lshr_b32 s37, s2, 4")
    a("s_and_b32 s39, s38, 3")
    a("s_lshr_b32 s40, s38, 2")
    a("s_mov_b32 s42, 0")
    a("s_mov_b32 s43, -1")
    a(f"s_mov_b32 s44, {LOG2E}")
    a("s_mov_b32 s45, 0x3f803f80")
    a("s_mov_b32 s41, 0xffff0000")
    a("s_cmp_eq_u32 s40, 1")
    a("s_cbranch_scc1 K1_Q")

    PAT = 30
    def common_setup_early(vm):
        a("s_waitcnt lgkmcnt(0)")
        srd(a, 16, 4, 1835008)
        srd(a, 20, 6, 1204224)
        srd(a, 24, 8, 25088)
        srd(a, 28, 12, 256)
        srd(a, 32, 14, WS_SIZE)
        pass
    def rot_table(mult):
        a("s_and_b32 s60, s36, 1")
        a("s_mul_i32 s60, s60, 3")
        a("s_add_u32 s60, s60, s37")
        for _ in range(2):
            a("s_cmp_ge_u32 s60, 7")
            a("s_cselect_b32 s61, 7, 0")
            a("s_sub_u32 s60, s60, s61")
        a("s_mov_b32 s67, s60")
        for c in range(7):
            a(f"s_mul_i32 s{60+c}, s67, {mult}")
            a(f"s_add_u32 s{60+c}, s{60+c}, s47")
            if c < 6:
                a("s_add_u32 s67, s67, 1")
                a("s_cmp_ge_u32 s67, 7")
                a("s_cselect_b32 s67, 0, s67")
    def tail_prefetch():
        srd(a, 64, 10, 401408)
        a("s_lshr_b32 s60, s2, 3")
        a("s_lshl_b32 s60, s60, 2")
        a("s_add_u32 s60, s60, s39")
        a(f"v_lshlrev_b32 v226, 7, v{LANE}")
        a(f"v_mov_b32 v227, 0x7fff0000")
        a(f"v_cmp_gt_u32 vcc, 25, v{LANE}")
        a(f"v_cndmask_b32 v228, v227, v226, vcc")
        a("s_mul_i32 s61, s60, 3200")
        a("buffer_load_dword v229, v228, s[64:67], s61 offen")
        a(f"v_cmp_gt_u32 vcc, 32, v{LANE}")
        a(f"v_cndmask_b32 v228, v227, v226, vcc")
        a("s_lshl_b32 s61, s60, 12")
        srd(a, 64, 56, 1605632)
        a("buffer_load_dword v230, v228, s[64:67], s61 offen")
        srd(a, 64, 58, 1605632)
        a("buffer_load_dword v231, v228, s[64:67], s61 offen")
        a(f"v_cmp_gt_u32 vcc, 13, v{LANE}")
        a(f"v_cndmask_b32 v228, v227, v226, vcc")
        a("s_lshl_b32 s61, s2, 2")
        a("s_add_u32 s61, s61, s39")
        a("s_mul_i32 s61, s61, 1664")
        srd(a, 64, 68, 1605632)
        a("buffer_load_dword v225, v228, s[64:67], s61 offen")
        if TLBW:
            a("s_and_b32 s62, s2, 7")
            a("s_mul_i32 s61, s62, 917504")
            a("s_lshl_b32 s63, s60, 13")
            a("s_add_u32 s61, s61, s63")
            a(f"s_add_u32 s61, s61, {WS_HH}")
            a(f"v_lshlrev_b32 v228, 12, v{LANE}")
            a("s_mov_b64 exec, 3")
            a("buffer_load_dword v224, v228, s[32:35], s61 offen")
            a("s_mov_b64 exec, 1")
            a("s_mul_i32 s61, s62, 229376")
            a("s_mul_i32 s63, s60, 1792")
            a("s_add_u32 s61, s61, s63")
            srd(a, 64, 70, 1835008)
            a("buffer_load_dword v227, v228, s[64:67], s61 offen")
            a(f"s_add_u32 s61, s61, {WS_H}")
            a("buffer_load_dword v226, v228, s[32:35], s61 offen")
            a("s_mov_b64 exec, -1")
    XV = 200; TB = 212
    def common_setup_late():
        a(f"v_lshrrev_b32 v7, 2, v{I16}")
        a(f"v_lshl_add_u32 v7, v{HF}, 3, v7")
        a(f"v_mul_u32_u24 v7, 192, v7")
        a(f"v_and_b32 v8, 1, v{G}")
        a(f"v_lshlrev_b32 v8, 2, v8")
        a(f"v_and_b32 v9, 3, v{I16}")
        a(f"v_add_u32 v8, v8, v9")
        a(f"v_lshl_add_u32 v7, v8, 3, v7")
        a("s_and_b32 s50, s37, 1")
        a("s_lshl_b32 s50, s50, 3")
        a(f"s_add_u32 s50, s50, {K1_RING + 16384}")
        a(f"v_add_u32 v{TB}, s50, v7")
        a(f"v_add_u32 v{TB+1}, {2*K1_SLOT}, v{TB}")
        a(f"v_add_u32 v{TB+2}, {4*K1_SLOT}, v{TB}")
        a("s_min_u32 s50, s39, 2")
        a("s_lshl_b32 s50, s50, 6")
        for st in range(3):
            a(f"v_add_u32 v{TB+3+st}, s50, v{TB+st}")
        a("s_lshl_b32 s50, s39, 5")
        a(f"v_add_u32 v7, s50, v{M}")
        a(f"v_lshrrev_b32 v8, 1, v7")
        a(f"v_and_b32 v8, 7, v8")
        a(f"v_xor_b32 v8, v8, v{HF}")
        a(f"v_lshlrev_b32 v8, 4, v8")
        a(f"v_lshl_add_u32 v11, v7, 7, v8")
        for p in range(4):
            a(f"v_xor_b32 v7, {p*32}, v11")
            for st in range(3):
                a(f"v_add_u32 v{XV+4*st+p}, {K1_RING + 2*st*K1_SLOT}, v7")

    LA = 2
    def mainloop(segs, ACC, XFb, WF, SQ, qrole, vm, dma_ops):
        ns = len(segs)
        NB = LA + 1
        a(f"v_mov_b32 v{SQ}, 0"); a(f"v_mov_b32 v{SQ+1}, 0")
        nr = 1 + 2 * ns
        def emit(op):
            for t_ in op[1]: a(t_)
            vm.issue(op[0])
        def reads(kk):
            c = kk // 4; slot = c % 5; p = kk % 4
            st = slot // 2; so = slot % 2
            xb = XFb + (kk % NB) * 4
            a(f"ds_read_b128 v[{xb}:{xb+3}], v{XV+4*st+p} offset:{so*K1_SLOT}")
            b = WF + (kk % NB) * ns * 4
            for i, sg in enumerate(segs):
                off = so * K1_SLOT + p * 3072 + (0 if sg == "cs" else sg * 64)
                tb = TB + st + (3 if sg == "cs" else 0)
                a(f"ds_read_b64_tr_b16 v[{b+4*i}:{b+4*i+1}], v{tb} offset:{off}")
                a(f"ds_read_b64_tr_b16 v[{b+4*i+2}:{b+4*i+3}], v{tb} offset:{off+768}")
        stamp(a, 2)
        vm.wait("c0")
        a("s_barrier")
        for c in range(NPRE, 5):
            for op in dma_ops(c): emit(op)
        stamp(a, 3)
        queue = []
        for kk in range(LA): reads(kk)
        for kk in range(28):
            nk = kk + LA
            if nk < 28:
                if nk % 4 == 0:
                    c = nk // 4
                    while any(op[0] == f"c{c}" for op in queue): emit(queue.pop(0))
                    vm.wait(f"c{c}")
                    a("s_barrier")
                    if c in (2, 4): stamp(a, 3 + c // 2)
                    if c in (2, 3): queue += dma_ops(c + 3)
                reads(nk)
            out = min(28 - 1 - kk, LA) * nr
            a(f"s_waitcnt lgkmcnt({out})")
            b = WF + (kk % NB) * ns * 4
            xb = XFb + (kk % NB) * 4
            c0 = "0" if kk == 0 else None
            if qrole:
                for r in range(4):
                    a(f"v_cndmask_b32 v{qrole+r}, v{b+r}, v{qrole+4}, s[52:53]")
                a(f"v_mfma_f32_32x32x16_bf16 v[{ACC[1]}:{ACC[1]+15}], v[{b+4}:{b+7}], v[{qrole+4}:{qrole+7}], " + (c0 or f"v[{ACC[1]}:{ACC[1]+15}]"))
                a(f"v_lshlrev_b32 v10, 16, v{xb}")
                a(f"v_and_b32 v11, s41, v{xb}")
                a(f"v_fmac_f32 v{SQ}, v10, v10")
                a(f"v_fmac_f32 v{SQ+1}, v11, v11")
                a(f"v_mfma_f32_32x32x16_bf16 v[{ACC[0]}:{ACC[0]+15}], v[{qrole}:{qrole+3}], v[{xb}:{xb+3}], " + (c0 or f"v[{ACC[0]}:{ACC[0]+15}]"))
                a(f"v_lshlrev_b32 v10, 16, v{xb+1}")
                a(f"v_and_b32 v11, s41, v{xb+1}")
                a(f"v_fmac_f32 v{SQ}, v10, v10")
                a(f"v_fmac_f32 v{SQ+1}, v11, v11")
            else:
                for i in range(ns):
                    a(f"v_mfma_f32_32x32x16_bf16 v[{ACC[i]}:{ACC[i]+15}], v[{b+4*i}:{b+4*i+3}], v[{xb}:{xb+3}], " + (c0 or f"v[{ACC[i]}:{ACC[i]+15}]"))
                    a(f"v_lshlrev_b32 v10, 16, v{xb+2+i}")
                    a(f"v_and_b32 v11, s41, v{xb+2+i}")
                    a(f"v_fmac_f32 v{SQ}, v10, v10")
                    a(f"v_fmac_f32 v{SQ+1}, v11, v11")
            if queue: emit(queue.pop(0))
            if queue: emit(queue.pop(0))
        stamp(a, 6)
        a(f"v_add_f32 v{SQ}, v{SQ}, v{SQ+1}")
        a(f"v_lshlrev_b32 v7, 2, v{M}")
        a("s_lshl_b32 s50, s39, 7")
        a(f"v_add_u32 v9, s50, v7")
        xhalf(a, "v_add_f32", SQ, SQ, 10, 11)
        a(f"ds_write_b32 v9, v{SQ} offset:{K1_SQ + (512 if qrole else 0)}")

    def post_reads(segs, dsts, WPF, ST):
        a(f"v_lshlrev_b32 v8, 4, v{HF}")
        a(f"ds_read_b32 v{ST}, v9 offset:{K1_SM}")
        a(f"ds_read_b32 v{ST+1}, v9 offset:{K1_SQ}")
        a(f"ds_read_b32 v{ST+2}, v9 offset:{K1_SQ+512}")
        for sg, dst in zip(segs, dsts):
            for q in range(4):
                a(f"ds_read_b128 v[{dst+4*q}:{dst+4*q+3}], v8 offset:{K1_CS + sg*128 + q*32}")
        for s_ in range(2):
            for e in range(2):
                a(f"ds_read_b64_tr_b16 v[{WPF+4*s_+2*e}:{WPF+4*s_+2*e+1}], v12 offset:{K1_WP + (16*s_+8*e)*56}")

    def wp_addr():
        a(f"v_lshrrev_b32 v7, 2, v{I16}")
        a(f"v_lshl_add_u32 v7, v{HF}, 2, v7")
        a(f"v_mul_u32_u24 v7, 56, v7")
        a(f"v_and_b32 v8, 1, v{G}")
        a(f"v_lshlrev_b32 v8, 2, v8")
        a(f"v_and_b32 v9, 3, v{I16}")
        a(f"v_add_u32 v8, v8, v9")
        a(f"v_lshl_add_u32 v12, v8, 3, v7")

    def center_pack(ACC, CSV, NM, OUT):
        for i in range(8):
            a(f"v_fmac_f32 v{ACC+2*i}, v{CSV+2*i}, v{NM}")
            a(f"v_fmac_f32 v{ACC+2*i+1}, v{CSV+2*i+1}, v{NM}")
            a(f"v_cvt_pk_bf16_f32 v{OUT+i}, v{ACC+2*i}, v{ACC+2*i+1}")

    vmk = VM(a)
    for t in range(3):
        a(f"v_add_u32 v7, {t*64}, v{LANE}")
        a(f"v_mul_u32_u24 v8, 171, v7")
        a(f"v_lshrrev_b32 v8, 11, v8")
        a(f"v_mul_u32_u24 v9, 12, v8")
        a(f"v_sub_u32 v9, v7, v9")
        a(f"v_mul_u32_u24 v8, 2688, v8")
        a(f"v_lshrrev_b32 v7, 2, v9")
        a(f"v_mul_u32_u24 v7, 896, v7")
        a(f"v_and_b32 v9, 3, v9")
        a(f"v_lshlrev_b32 v9, 4, v9")
        a(f"v_add3_u32 v{PAT+t}, v7, v8, v9")
    a("s_mul_i32 s47, s37, 56")
    a("s_and_b32 s47, s47, 0xfffffff0")
    a("s_mul_i32 s48, s39, 43008")
    a("s_add_u32 s47, s47, s48")
    a("s_mul_i32 s49, s39, 3072")
    rot_table(64*2688)
    common_setup_early(vmk)
    if CODEPF:
        a("s_getpc_b64 s[72:73]")
        a("K1_PC:")
        a("s_sub_u32 s72, s72, K1_PC-k1_kernel")
        a("s_subb_u32 s73, s73, 0")
        a("s_mov_b32 s74, K3_END-k1_kernel")
        a("s_mov_b32 s75, 0x00020000")
        a("s_lshr_b32 s76, s2, 3")
        a("s_lshl_b32 s76, s76, 2")
        a("s_add_u32 s76, s76, s39")
        a("s_lshl_b32 s76, s76, 9")
        a(f"v_lshlrev_b32 v224, 7, v{LANE}")
        a("s_mov_b64 exec, 15")
        a("buffer_load_dword v225, v224, s[72:75], s76 offen")
        a("s_mov_b64 exec, -1")
        vmk.issue("cpf")
    def dma_w(c):
        return [(f"c{c}", [f"s_add_u32 m0, s49, {K1_RING + (c%5)*K1_SLOT + 16384 + t*1024}",
                           f"buffer_load_dwordx4 v{PAT+t}, s[20:23], s{60+c} offen lds"]) for t in range(3)]
    for c in range(NPRE):
        for op in dma_w(c):
            for t_ in op[1]: a(t_)
            vmk.issue(op[0])
    a("s_mul_i32 s50, s37, 1568")
    a("s_and_b32 s51, s39, 1")
    a("s_lshl_b32 s51, s51, 10")
    a("s_add_u32 s50, s50, s51")
    a(f"s_add_u32 m0, s51, {K1_WP}")
    a(f"v_lshlrev_b32 v7, 4, v{LANE}")
    a("buffer_load_dwordx4 v7, s[24:27], s50 offen lds")
    vmk.issue("c0")
    common_setup_late()
    wp_addr()
    a("s_lshl_b32 s50, s39, 5")
    a(f"v_add_u32 v7, s50, v{M}")
    a(f"v_lshrrev_b32 v8, 1, v7")
    a(f"v_and_b32 v8, 7, v8")
    a(f"v_xor_b32 v8, v8, v{HF}")
    a(f"v_lshlrev_b32 v8, 3, v8")
    a(f"v_lshl_add_u32 v74, v7, 6, v8")
    a(f"v_lshrrev_b32 v8, 1, v7")
    a(f"v_and_b32 v8, 1, v8")
    a(f"v_lshlrev_b32 v8, 3, v8")
    a(f"v_and_b32 v9, 1, v7")
    a(f"v_or_b32 v8, v8, v9")
    a(f"v_lshrrev_b32 v9, 2, v7")
    a(f"v_and_b32 v9, 3, v9")
    a(f"v_lshl_or_b32 v8, v9, 1, v8")
    a(f"v_xor_b32 v8, v8, v{HF}")
    a(f"v_lshlrev_b32 v8, 3, v8")
    a(f"v_lshl_add_u32 v75, v7, 7, v8")
    a(f"v_lshrrev_b32 v7, 2, v{I16}")
    a(f"v_lshl_add_u32 v7, v{HF}, 3, v7")
    a(f"v_and_b32 v8, 1, v{G}")
    a(f"v_lshlrev_b32 v8, 2, v8")
    a(f"v_and_b32 v9, 3, v{I16}")
    a(f"v_add_u32 v8, v8, v9")
    for e in range(2):
        a(f"v_add_u32 v9, {4*e}, v7")
        a(f"v_lshrrev_b32 v10, 1, v9")
        a(f"v_xor_b32 v10, v10, v8")
        a(f"v_lshlrev_b32 v10, 3, v10")
        a(f"v_lshl_add_u32 v{76+e}, v9, 6, v10")
        a(f"v_lshrrev_b32 v10, 1, v9")
        a(f"v_and_b32 v10, 1, v10")
        a(f"v_lshlrev_b32 v10, 3, v10")
        a(f"v_and_b32 v11, 1, v9")
        a(f"v_or_b32 v10, v10, v11")
        a(f"v_lshrrev_b32 v11, 2, v9")
        a(f"v_lshl_or_b32 v10, v11, 1, v10")
        a(f"v_xor_b32 v10, v10, v8")
        a(f"s_lshl_b32 s50, s39, 3")
        a(f"v_xor_b32 v10, s50, v10")
        a(f"v_lshlrev_b32 v10, 3, v10")
        a(f"v_lshl_add_u32 v{78+e}, v9, 7, v10")
    a("s_lshl_b32 s50, s37, 13")
    a("s_lshl_b32 s51, s39, 7")
    a("s_add_u32 s50, s50, s51")
    a(f"v_lshlrev_b32 v80, 10, v{HF}")
    a(f"v_lshl_add_u32 v80, v{M}, 2, v80")
    a(f"v_add_u32 v80, s50, v80")
    a(f"v_add_u32 v81, 4096, v80")
    for r in range(4): a(f"v_mov_b32 v{82+r}, 0")
    a(f"ds_write_b128 v82, v[82:85] offset:{K1_FL}")
    a("s_lshl_b32 s50, s39, 2")
    a("v_mov_b32 v86, s50")
    a("v_mov_b32 v87, 1")
    a("s_waitcnt lgkmcnt(0)")
    AK, AV = 100, 116
    mainloop([1, 2], [AK, AV], 34, 46, 72, None, vmk, dma_w)
    a("s_waitcnt lgkmcnt(0)")
    a("s_barrier")
    stamp(a, 7)
    a("s_setprio 2")
    CK, CV = 34, 50
    post_reads([1, 2], [CK, CV], 92, 66)
    a("s_lshl_b32 s50, s2, 7")
    a(f"s_add_u32 s50, s50, {768*1024}")
    a("v_mov_b32 v13, 0")
    a(f"v_lshlrev_b32 v14, 2, v{LANE}")
    a("s_mov_b64 exec, 0xff")
    a("buffer_store_dword v13, v14, s[32:35], s50 offen")
    a("s_mov_b64 exec, -1")
    a("s_lshl_b32 s50, s37, 2")
    a("s_add_u32 s50, s50, 64")
    a("v_mov_b32 v13, s50")
    a("buffer_load_dword v14, v13, s[28:31], 0 offen sc1")
    a("s_waitcnt lgkmcnt(12)")
    a("v_add_f32 v67, v67, v68")
    stats_finish(a, 66, 67, 68, 69, 70)
    a("s_waitcnt lgkmcnt(0)")
    KFR, VFR = 132, 140
    center_pack(AK, CK, 68, KFR)
    a(f"v_cndmask_b32 v{KFR+6}, v{KFR+6}, 0, s[42:43]")
    a(f"v_cndmask_b32 v{KFR+7}, v{KFR+7}, 0, s[42:43]")
    PK = 148
    a(f"v_mfma_f32_32x32x16_bf16 v[{PK}:{PK+15}], v[92:95], v[{KFR}:{KFR+3}], 0")
    a(f"v_mfma_f32_32x32x16_bf16 v[{PK}:{PK+15}], v[96:99], v[{KFR+4}:{KFR+7}], v[{PK}:{PK+15}]")
    center_pack(AV, CV, 68, VFR)
    a(f"v_lshrrev_b32 v9, 16, v70")
    a(f"v_mul_f32 v71, s44, v69")
    a(f"v_cndmask_b32 v{VFR+6}, v{VFR+6}, v9, s[42:43]")
    a(f"v_cndmask_b32 v{VFR+7}, v{VFR+7}, 0, s[42:43]")
    for q in range(4):
        a(f"v_xor_b32 v9, {q*16}, v74")
        a(f"ds_write_b64 v9, v[{VFR+2*q}:{VFR+2*q+1}] offset:{K1_V}")
    E, F, OP, ON, T = 164, 180, 34, 42, 50
    softmax_pm(a, PK, E, F, OP, ON, T, 42, 71, 69)
    for t, src in ((0, OP), (1, ON)):
        for q in range(4):
            a(f"v_xor_b32 v9, {(8*t+2*q)*8}, v75")
            a(f"ds_write_b64 v9, v[{src+2*q}:{src+2*q+1}] offset:{K1_PHIK}")
    a("s_waitcnt lgkmcnt(0)")
    a(f"ds_write_b32 v86, v87 offset:{K1_FL}")
    a("s_cmp_ge_u32 s39, 2")
    a("s_cbranch_scc1 K1_FIN")
    a("K1_LPOLL:")
    a(f"ds_read_b128 v[88:91], v82 offset:{K1_FL}")
    a("s_waitcnt lgkmcnt(0)")
    a("v_and_b32 v88, v88, v89")
    a("v_and_b32 v90, v90, v91")
    a("v_and_b32 v88, v88, v90")
    a("v_readfirstlane_b32 s51, v88")
    a("s_cmp_eq_u32 s51, 0")
    a("s_cbranch_scc1 K1_LPOLL")
    stamp(a, 8)
    KV = 16
    for ks in range(8):
        b = 100 + ks * 8
        for e in range(2):
            a(f"ds_read_b64_tr_b16 v[{b+2*e}:{b+2*e+1}], v{76+e} offset:{K1_V + ks*1024}")
        for e in range(2):
            a(f"ds_read_b64_tr_b16 v[{b+4+2*e}:{b+4+2*e+1}], v{78+e} offset:{K1_PHIK + ks*2048}")
    for ks in range(8):
        b = 100 + ks * 8
        a(f"s_waitcnt lgkmcnt({min(15, (7-ks)*4)})")
        c = "0" if ks == 0 else f"v[{KV}:{KV+15}]"
        a(f"v_mfma_f32_32x32x16_bf16 v[{KV}:{KV+15}], v[{b}:{b+3}], v[{b+4}:{b+7}], {c}")
    a("s_waitcnt vmcnt(0)")
    a("v_readfirstlane_b32 s51, v14")
    a("s_cmp_lg_u32 s51, 0")
    a("s_cbranch_scc1 K1_GO")
    a("K1_POLL:")
    a("buffer_load_dword v14, v13, s[28:31], 0 offen sc1")
    a("s_waitcnt vmcnt(0)")
    a("v_readfirstlane_b32 s51, v14")
    a("s_cmp_eq_u32 s51, 0")
    a("s_cbranch_scc1 K1_POLL")
    a("K1_GO:")
    a("s_nop 7")
    for r in range(16):
        d = (r & 3) + 8 * (r >> 2)
        off = d * 256
        base = 80
        if off >= 4096: off -= 4096; base = 81
        a(f"buffer_atomic_add_f32 v{KV+r}, v{base}, s[32:35], 0 offen offset:{WS_KV + off}")
    a("s_branch K1_FIN")

    a("K1_Q:")
    vmq = VM(a)
    a(f"v_lshrrev_b32 v7, 3, v{LANE}")
    a(f"v_and_b32 v8, 7, v{LANE}")
    a(f"v_lshrrev_b32 v9, 1, v7")
    a(f"v_xor_b32 v8, v8, v9")
    a(f"v_mul_u32_u24 v7, 896, v7")
    a(f"v_lshl_add_u32 v30, v8, 4, v7")
    a(f"v_xor_b32 v31, 64, v30")
    a("s_lshl_b32 s46, s36, 7")
    a("s_lshl_b32 s47, s39, 5")
    a("s_add_u32 s46, s46, s47")
    a("s_mul_i32 s47, s46, 896")
    a("s_lshl_b32 s49, s39, 12")
    rot_table(128)
    common_setup_early(vmq)
    def dma_x(c):
        return [(f"c{c}", [f"s_add_u32 m0, s49, {K1_RING + (c%5)*K1_SLOT + i*1024}",
                           f"s_add_u32 s50, s{60+c}, {i*8*896}",
                           f"buffer_load_dwordx4 v{30+(i&1)}, s[16:19], s50 offen lds"]) for i in range(4)]
    for c in range(NPRE):
        for op in dma_x(c):
            for t_ in op[1]: a(t_)
            vmq.issue(op[0])
    common_setup_late()
    wp_addr()
    a(f"v_cmp_eq_u32 s[52:53], 28, v{M}")
    for r in range(4): a(f"v_mov_b32 v{80+r}, s45")
    a("s_or_b32 s51, s36, s39")
    a("s_cmp_lg_u32 s51, 0")
    a("s_cbranch_scc1 K1_Q2")
    a("s_lshl_b32 s50, s37, 13")
    a(f"v_lshl_add_u32 v7, v{LANE}, 4, s50")
    for r in range(4): a(f"v_mov_b32 v{34+r}, 0")
    a("v_add_u32 v8, 4096, v7")
    for i in range(4):
        a(f"buffer_store_dwordx4 v[34:37], v7, s[32:35], 0 offen offset:{WS_KV + i*1024} sc1")
        a(f"buffer_store_dwordx4 v[34:37], v8, s[32:35], 0 offen offset:{WS_KV + i*1024} sc1")
    a("s_waitcnt vmcnt(0)")
    a("s_lshl_b32 s50, s37, 2")
    a("s_add_u32 s50, s50, 64")
    a("v_mov_b32 v7, s50")
    a("v_mov_b32 v8, 1")
    a("s_mov_b64 exec, 1")
    a("buffer_store_dword v8, v7, s[28:31], 0 offen sc1")
    a("s_mov_b64 exec, -1")
    a("s_waitcnt vmcnt(0)")
    a("K1_Q2:")
    AQ = 100
    ACS = 116
    mainloop([0, "cs"], [AQ, ACS], 34, 46, 72, 76, vmq, dma_x)
    a("s_mov_b64 exec, s[42:43]")
    a(f"ds_write_b32 v9, v{AQ+12} offset:{K1_SM}")
    a("s_mov_b32 s54, 1")
    a("s_mov_b32 s55, 1")
    a("s_mov_b64 exec, s[54:55]")
    a("s_min_u32 s50, s39, 2")
    a("s_lshl_b32 s50, s50, 7")
    a(f"v_lshl_add_u32 v8, v{HF}, 4, s50")
    for q in range(4):
        a(f"ds_write_b128 v8, v[{ACS+4*q}:{ACS+4*q+3}] offset:{K1_CS + q*32}")
    a("s_mov_b64 exec, -1")
    a("s_waitcnt lgkmcnt(0)")
    a("s_barrier")
    stamp(a, 7)
    CQ = 34
    post_reads([0], [CQ], 92, 66)
    tail_prefetch()
    a("s_waitcnt lgkmcnt(8)")
    a("v_add_f32 v67, v67, v68")
    stats_finish(a, 66, 67, 68, 69, 70)
    a("s_waitcnt lgkmcnt(0)")
    QFR = 132
    center_pack(AQ, CQ, 68, QFR)
    a(f"v_cndmask_b32 v{QFR+6}, v{QFR+6}, 0, s[42:43]")
    a(f"v_cndmask_b32 v{QFR+7}, v{QFR+7}, 0, s[42:43]")
    PQ = 148
    a(f"v_mfma_f32_32x32x16_bf16 v[{PQ}:{PQ+15}], v[92:95], v[{QFR}:{QFR+3}], 0")
    a(f"v_mfma_f32_32x32x16_bf16 v[{PQ}:{PQ+15}], v[96:99], v[{QFR+4}:{QFR+7}], v[{PQ}:{PQ+15}]")
    a(f"v_mul_f32 v71, s44, v69")
    a("s_lshl_b32 s50, s36, 2")
    a("s_add_u32 s50, s50, s39")
    a("s_lshl_b32 s50, s50, 4")
    a("s_add_u32 s50, s50, s37")
    a("s_lshl_b32 s50, s50, 12")
    a(f"s_add_u32 s50, s50, {WS_PHIQ}")
    a(f"v_lshlrev_b32 v7, 4, v{LANE}")
    softmax_pm(a, PQ, 164, 180, 36, 44, 52, 42, 71)
    for s_ in range(4):
        a(f"buffer_store_dwordx4 v[{36+4*s_}:{36+4*s_+3}], v7, s[32:35], s50 offen offset:{s_*1024}")
    stamp(a, 8)
    a("K1_FIN:")
    if STAMPS: a("s_waitcnt vmcnt(0)")
    stamp(a, 9)
    stamp_flush(a, 38, 32)
    a("K1_END:")
    a("s_endpgm")
    a.fix_hazards()
    return a.text(), kd("k1_kernel", 232)

def main():
    parts = []
    hdr = open("sequential_preLN__linear_kernel_hedgehog__glu_gated_glu__prompt.s.ref").read().split("; Override launch")[0]
    ks = [("k1", gen_k1, 256, 512, K1_LDS)]
    import gen2
    ks += gen2.kernels()
    out = [hdr.rstrip()]
    for nm, fn, g, b, lds in ks:
        out.append(f"; @launch kernel={nm}_kernel grid=({g},1,1) block=({b},1,1) lds={lds}")
    out.append('.amdgcn_target "amdgcn-amd-amdhsa--gfx950"')
    out.append(".text")
    kds = []
    for nm, fn, g, b, lds in ks:
        t, k = fn()
        out.append(t); kds.append(k)
    out.append('.section .rodata,"a"')
    out += kds
    open(sys.argv[1], "w").write("\n".join(out) + "\n")

if __name__ == "__main__":
    main()
```

```python
import sys
from asmfw import Asm

WS_KV   = 0
WS_CS   = 512 * 1024
WS_ST   = 640 * 1024
WS_PHIQ = 1 << 20
WS_H    = 8 << 20
WS_HH   = 16 << 20
WS_SIZE = 268435456
LOG2E = 0x3fb8aa3b

class VM:
    def __init__(self, a): self.a = a; self.ops = []
    def issue(self, tag): self.ops.append(tag)
    def wait(self, tag, extra=0):
        idx = max(i for i, t in enumerate(self.ops) if t == tag)
        n = len(self.ops) - 1 - idx + extra
        assert n <= 63
        self.a("s_waitcnt vmcnt(%d)" % n)
    def copy(self):
        v = VM(self.a); v.ops = list(self.ops); return v

def srd(a, d, ptr, size):
    a(f"s_mov_b32 s{d}, s{ptr}")
    a(f"s_mov_b32 s{d+1}, s{ptr+1}")
    a(f"s_mov_b32 s{d+2}, {size}")
    a(f"s_mov_b32 s{d+3}, 0x00020000")

def bf16r(a, dst, src, tmp=None):
    a(f"v_cvt_pk_bf16_f32 v{dst}, v{src}, v{src}")
    a(f"v_and_b32 v{dst}, 0xffff0000, v{dst}")

def xhalf(a, op, dst, src, t1, t2):
    a(f"v_mov_b32 v{t1}, v{src}")
    a(f"v_mov_b32 v{t2}, v{src}")
    a(f"v_permlane32_swap_b32 v{t1}, v{t2}")
    a(f"{op} v{dst}, v{t1}, v{t2}")

def ln_stats_finish(a, vs, vq, v_mr, v_rstd, t1, t2, t3):
    xhalf(a, "v_add_f32", vs, vs, t1, t2)
    xhalf(a, "v_add_f32", vq, vq, t1, t2)
    a(f"v_mul_f32 v{vs}, 0x3b124925, v{vs}")
    a(f"v_mul_f32 v{vq}, 0x3b124925, v{vq}")
    a(f"v_fma_f32 v{vq}, -v{vs}, v{vs}, v{vq}")
    a(f"v_max_f32 v{vq}, 0, v{vq}")
    bf16r(a, vs, vs)
    bf16r(a, vq, vq)
    a(f"v_add_f32 v{vq}, 0x3727c5ac, v{vq}")
    bf16r(a, vq, vq)
    a(f"v_sqrt_f32 v{vq}, v{vq}")
    bf16r(a, vq, vq)
    a(f"v_rcp_f32 v{v_rstd}, v{vq}")
    a(f"v_mul_f32 v{v_mr}, v{vs}, v{v_rstd}")

def softmax_pm(a, P, E, F, OP, ON, T, s_hi, SC, OSC=None):
    for r in range(12, 16):
        a(f"v_cndmask_b32 v{P+r}, v{P+r}, v{P}, s[{s_hi}:{s_hi+1}]")
    mx, mn, t1, t2, se, sf = T, T+1, T+2, T+3, T+4, T+5
    a(f"v_max3_f32 v{mx}, v{P}, v{P+1}, v{P+2}")
    a(f"v_min3_f32 v{mn}, v{P}, v{P+1}, v{P+2}")
    for r in range(3, 15, 2):
        a(f"v_max3_f32 v{mx}, v{mx}, v{P+r}, v{P+r+1}")
        a(f"v_min3_f32 v{mn}, v{mn}, v{P+r}, v{P+r+1}")
    a(f"v_max_f32 v{mx}, v{mx}, v{P+15}")
    a(f"v_min_f32 v{mn}, v{mn}, v{P+15}")
    a(f"v_mov_b32 v{t1}, v{mx}")
    a(f"v_mov_b32 v{se}, v{mn}")
    a(f"v_permlane32_swap_b32 v{t1}, v{mx}")
    a(f"v_permlane32_swap_b32 v{se}, v{mn}")
    a(f"v_max_f32 v{mx}, v{t1}, v{mx}")
    a(f"v_min_f32 v{mn}, v{se}, v{mn}")
    a(f"v_mul_f32 v{mx}, v{SC}, v{mx}")
    a(f"v_mul_f32 v{mn}, v{SC}, v{mn}")
    for r in range(16):
        a(f"v_fma_f32 v{E+r}, v{P+r}, v{SC}, -v{mx}")
        a(f"v_fma_f32 v{F+r}, -v{P+r}, v{SC}, v{mn}")
        if r >= 1:
            a(f"v_exp_f32 v{E+r-1}, v{E+r-1}")
            a(f"v_exp_f32 v{F+r-1}, v{F+r-1}")
    a(f"v_exp_f32 v{E+15}, v{E+15}")
    a(f"v_exp_f32 v{F+15}, v{F+15}")
    a(f"v_add_f32 v{se}, v{E}, v{E+1}")
    a(f"v_add_f32 v{sf}, v{F}, v{F+1}")
    a(f"v_add_f32 v{t1}, v{E+2}, v{E+3}")
    a(f"v_add_f32 v{t2}, v{F+2}, v{F+3}")
    for r in range(4, 12, 2):
        a(f"v_add_f32 v{se}, v{se}, v{E+r}")
        a(f"v_add_f32 v{sf}, v{sf}, v{F+r}")
        a(f"v_add_f32 v{t1}, v{t1}, v{E+r+1}")
        a(f"v_add_f32 v{t2}, v{t2}, v{F+r+1}")
    for r in range(12, 16):
        a(f"v_cndmask_b32 v{E+r}, v{E+r}, 0, s[{s_hi}:{s_hi+1}]")
        a(f"v_cndmask_b32 v{F+r}, v{F+r}, 0, s[{s_hi}:{s_hi+1}]")
    for r in range(12, 16, 2):
        a(f"v_add_f32 v{se}, v{se}, v{E+r}")
        a(f"v_add_f32 v{sf}, v{sf}, v{F+r}")
        a(f"v_add_f32 v{t1}, v{t1}, v{E+r+1}")
        a(f"v_add_f32 v{t2}, v{t2}, v{F+r+1}")
    a(f"v_add_f32 v{se}, v{se}, v{t1}")
    a(f"v_add_f32 v{sf}, v{sf}, v{t2}")
    a(f"v_mov_b32 v{t1}, v{se}")
    a(f"v_mov_b32 v{t2}, v{sf}")
    a(f"v_permlane32_swap_b32 v{t1}, v{se}")
    a(f"v_permlane32_swap_b32 v{t2}, v{sf}")
    a(f"v_add_f32 v{se}, v{t1}, v{se}")
    a(f"v_add_f32 v{sf}, v{t2}, v{sf}")
    a(f"v_rcp_f32 v{se}, v{se}")
    a(f"v_rcp_f32 v{sf}, v{sf}")
    if OSC is not None:
        a(f"v_mul_f32 v{se}, v{se}, v{OSC}")
        a(f"v_mul_f32 v{sf}, v{sf}, v{OSC}")
    for i in range(8):
        a(f"v_mul_f32 v{E+2*i}, v{E+2*i}, v{se}")
        a(f"v_mul_f32 v{E+2*i+1}, v{E+2*i+1}, v{se}")
        a(f"v_cvt_pk_bf16_f32 v{OP+i}, v{E+2*i}, v{E+2*i+1}")
    for i in range(8):
        a(f"v_mul_f32 v{F+2*i}, v{F+2*i}, v{sf}")
        a(f"v_mul_f32 v{F+2*i+1}, v{F+2*i+1}, v{sf}")
        a(f"v_cvt_pk_bf16_f32 v{ON+i}, v{F+2*i}, v{F+2*i+1}")

def stats_finish(a, vs, vq, v_nmean, v_rstd, v_sd):
    a(f"v_mul_f32 v{vs}, 0x3b124925, v{vs}")
    a(f"v_mul_f32 v{vq}, 0x3b124925, v{vq}")
    a(f"v_fma_f32 v{vq}, -v{vs}, v{vs}, v{vq}")
    a(f"v_max_f32 v{vq}, 0, v{vq}")
    a(f"v_cvt_pk_bf16_f32 v{vs}, v{vq}, v{vs}")
    a(f"v_lshlrev_b32 v{vq}, 16, v{vs}")
    a(f"v_and_b32 v{vs}, 0xffff0000, v{vs}")
    a(f"v_add_f32 v{vq}, 0x3727c5ac, v{vq}")
    a(f"v_xor_b32 v{v_nmean}, 0x80000000, v{vs}")
    bf16r(a, vq, vq)
    a(f"v_sqrt_f32 v{vq}, v{vq}")
    bf16r(a, v_sd, vq)
    a(f"v_rcp_f32 v{v_rstd}, v{v_sd}")

def kd(name, vgpr, sgpr=102):
    acc = (vgpr + 3) // 4 * 4
    return f""".p2align 6
.amdhsa_kernel {name}
  .amdhsa_next_free_vgpr {vgpr}
  .amdhsa_next_free_sgpr {sgpr}
  .amdhsa_accum_offset {min(acc,256)}
  .amdhsa_group_segment_fixed_size 0
  .amdhsa_kernarg_size 88
  .amdhsa_user_sgpr_count 2
  .amdhsa_user_sgpr_kernarg_segment_ptr 1
  .amdhsa_system_sgpr_workgroup_id_x 1
.end_amdhsa_kernel"""

WS_STAMP = 64 << 20
import os
STAMPS = bool(int(os.environ.get("STAMPS", "0")))
def stamp(a, idx, real=False):
    if not STAMPS: return
    a(f"s_memrealtime s[{80+2*idx}:{81+2*idx}]" if real else f"s_memtime s[{80+2*idx}:{81+2*idx}]")

def stamp_init(a):
    if not STAMPS: return
    for i in range(80, 100): a(f"s_mov_b32 s{i}, 0")

def stamp_flush(a, s_wave, ws_srd, koff=0):
    if not STAMPS: return
    a("s_waitcnt lgkmcnt(0)")
    a("s_lshl_b32 s3, s2, 3")
    a(f"s_add_u32 s3, s3, s{s_wave}")
    a("s_lshl_b32 s3, s3, 6")
    a(f"s_add_u32 s3, s3, {WS_STAMP + koff*(1<<20)}")
    a("v_mov_b32 v1, s3")
    for i in range(10):
        a(f"v_mov_b32 v0, s{80+2*i}")
        a(f"buffer_store_dword v0, v1, s[{ws_srd}:{ws_srd+3}], 0 offen offset:{i*4}")

def head(a, name):
    a.raw(f".globl {name}\n.p2align 8\n.type {name},@function")
    a(f"{name}:")

K1_CS   = 0
K1_FL   = 448
K1_SQ   = 512
K1_SM   = 1536
K1_WP   = 2048
K1_RING = 4096
K1_SLOT = 28672
K1_LDS  = K1_RING + 5 * K1_SLOT
K1_PHIK = K1_RING
K1_V    = K1_PHIK + 16384

NPRE = int(os.environ.get('NPRE', '2'))
TLBW = int(os.environ.get('TLBW', '0'))
CODEPF = int(os.environ.get('CODEPF', '0'))
def gen_k1():
    a = Asm()
    head(a, "k1_kernel")
    a("s_cmp_ge_u32 s2, 256")
    a("s_cbranch_scc1 K1_END")
    stamp_init(a)
    stamp(a, 0, real=True)
    stamp(a, 1)
    a("s_load_dwordx4 s[4:7], s[0:1], 0")
    a("s_load_dwordx4 s[8:11], s[0:1], 16")
    a("s_load_dwordx4 s[12:15], s[0:1], 72")
    a("s_load_dwordx4 s[56:59], s[0:1], 40")
    a("s_load_dwordx4 s[68:71], s[0:1], 56")
    LANE, M, HF, I16, G = 1, 2, 3, 4, 5
    a(f"v_and_b32 v{LANE}, 63, v0")
    a(f"v_lshrrev_b32 v6, 6, v0")
    a(f"v_readfirstlane_b32 s38, v6")
    a(f"v_and_b32 v{M}, 31, v{LANE}")
    a(f"v_lshrrev_b32 v{HF}, 5, v{LANE}")
    a(f"v_and_b32 v{I16}, 15, v{LANE}")
    a(f"v_lshrrev_b32 v{G}, 4, v{LANE}")
    a("s_and_b32 s36, s2, 7")
    a("s_lshl_b32 s36, s36, 1")
    a("s_bfe_u32 s37, s2, 0x10003")
    a("s_add_u32 s36, s36, s37")
    a("s_lshr_b32 s37, s2, 4")
    a("s_and_b32 s39, s38, 3")
    a("s_lshr_b32 s40, s38, 2")
    a("s_mov_b32 s42, 0")
    a("s_mov_b32 s43, -1")
    a(f"s_mov_b32 s44, {LOG2E}")
    a("s_mov_b32 s45, 0x3f803f80")
    a("s_mov_b32 s41, 0xffff0000")
    a("s_cmp_eq_u32 s40, 1")
    a("s_cbranch_scc1 K1_Q")

    PAT = 30
    def common_setup_early(vm):
        a("s_waitcnt lgkmcnt(0)")
        srd(a, 16, 4, 1835008)
        srd(a, 20, 6, 1204224)
        srd(a, 24, 8, 25088)
        srd(a, 28, 12, 256)
        srd(a, 32, 14, WS_SIZE)
        pass
    def rot_table(mult):
        a("s_and_b32 s60, s36, 1")
        a("s_mul_i32 s60, s60, 3")
        a("s_add_u32 s60, s60, s37")
        for _ in range(2):
            a("s_cmp_ge_u32 s60, 7")
            a("s_cselect_b32 s61, 7, 0")
            a("s_sub_u32 s60, s60, s61")
        a("s_mov_b32 s67, s60")
        for c in range(7):
            a(f"s_mul_i32 s{60+c}, s67, {mult}")
            a(f"s_add_u32 s{60+c}, s{60+c}, s47")
            if c < 6:
                a("s_add_u32 s67, s67, 1")
                a("s_cmp_ge_u32 s67, 7")
                a("s_cselect_b32 s67, 0, s67")
    def tail_prefetch():
        srd(a, 64, 10, 401408)
        a("s_lshr_b32 s60, s2, 3")
        a("s_lshl_b32 s60, s60, 2")
        a("s_add_u32 s60, s60, s39")
        a(f"v_lshlrev_b32 v226, 7, v{LANE}")
        a(f"v_mov_b32 v227, 0x7fff0000")
        a(f"v_cmp_gt_u32 vcc, 25, v{LANE}")
        a(f"v_cndmask_b32 v228, v227, v226, vcc")
        a("s_mul_i32 s61, s60, 3200")
        a("buffer_load_dword v229, v228, s[64:67], s61 offen")
        a(f"v_cmp_gt_u32 vcc, 32, v{LANE}")
        a(f"v_cndmask_b32 v228, v227, v226, vcc")
        a("s_lshl_b32 s61, s60, 12")
        srd(a, 64, 56, 1605632)
        a("buffer_load_dword v230, v228, s[64:67], s61 offen")
        srd(a, 64, 58, 1605632)
        a("buffer_load_dword v231, v228, s[64:67], s61 offen")
        a(f"v_cmp_gt_u32 vcc, 13, v{LANE}")
        a(f"v_cndmask_b32 v228, v227, v226, vcc")
        a("s_lshl_b32 s61, s2, 2")
        a("s_add_u32 s61, s61, s39")
        a("s_mul_i32 s61, s61, 1664")
        srd(a, 64, 68, 1605632)
        a("buffer_load_dword v225, v228, s[64:67], s61 offen")
        if TLBW:
            a("s_and_b32 s62, s2, 7")
            a("s_mul_i32 s61, s62, 917504")
            a("s_lshl_b32 s63, s60, 13")
            a("s_add_u32 s61, s61, s63")
            a(f"s_add_u32 s61, s61, {WS_HH}")
            a(f"v_lshlrev_b32 v228, 12, v{LANE}")
            a("s_mov_b64 exec, 3")
            a("buffer_load_dword v224, v228, s[32:35], s61 offen")
            a("s_mov_b64 exec, 1")
            a("s_mul_i32 s61, s62, 229376")
            a("s_mul_i32 s63, s60, 1792")
            a("s_add_u32 s61, s61, s63")
            srd(a, 64, 70, 1835008)
            a("buffer_load_dword v227, v228, s[64:67], s61 offen")
            a(f"s_add_u32 s61, s61, {WS_H}")
            a("buffer_load_dword v226, v228, s[32:35], s61 offen")
            a("s_mov_b64 exec, -1")
    XV = 200; TB = 212
    def common_setup_late():
        a(f"v_lshrrev_b32 v7, 2, v{I16}")
        a(f"v_lshl_add_u32 v7, v{HF}, 3, v7")
        a(f"v_mul_u32_u24 v7, 192, v7")
        a(f"v_and_b32 v8, 1, v{G}")
        a(f"v_lshlrev_b32 v8, 2, v8")
        a(f"v_and_b32 v9, 3, v{I16}")
        a(f"v_add_u32 v8, v8, v9")
        a(f"v_lshl_add_u32 v7, v8, 3, v7")
        a("s_and_b32 s50, s37, 1")
        a("s_lshl_b32 s50, s50, 3")
        a(f"s_add_u32 s50, s50, {K1_RING + 16384}")
        a(f"v_add_u32 v{TB}, s50, v7")
        a(f"v_add_u32 v{TB+1}, {2*K1_SLOT}, v{TB}")
        a(f"v_add_u32 v{TB+2}, {4*K1_SLOT}, v{TB}")
        a("s_min_u32 s50, s39, 2")
        a("s_lshl_b32 s50, s50, 6")
        for st in range(3):
            a(f"v_add_u32 v{TB+3+st}, s50, v{TB+st}")
        a("s_lshl_b32 s50, s39, 5")
        a(f"v_add_u32 v7, s50, v{M}")
        a(f"v_lshrrev_b32 v8, 1, v7")
        a(f"v_and_b32 v8, 7, v8")
        a(f"v_xor_b32 v8, v8, v{HF}")
        a(f"v_lshlrev_b32 v8, 4, v8")
        a(f"v_lshl_add_u32 v11, v7, 7, v8")
        for p in range(4):
            a(f"v_xor_b32 v7, {p*32}, v11")
            for st in range(3):
                a(f"v_add_u32 v{XV+4*st+p}, {K1_RING + 2*st*K1_SLOT}, v7")

    LA = 2
    def mainloop(segs, ACC, XFb, WF, SQ, qrole, vm, dma_ops):
        ns = len(segs)
        NB = LA + 1
        a(f"v_mov_b32 v{SQ}, 0"); a(f"v_mov_b32 v{SQ+1}, 0")
        nr = 1 + 2 * ns
        def emit(op):
            for t_ in op[1]: a(t_)
            vm.issue(op[0])
        def reads(kk):
            c = kk // 4; slot = c % 5; p = kk % 4
            st = slot // 2; so = slot % 2
            xb = XFb + (kk % NB) * 4
            a(f"ds_read_b128 v[{xb}:{xb+3}], v{XV+4*st+p} offset:{so*K1_SLOT}")
            b = WF + (kk % NB) * ns * 4
            for i, sg in enumerate(segs):
                off = so * K1_SLOT + p * 3072 + (0 if sg == "cs" else sg * 64)
                tb = TB + st + (3 if sg == "cs" else 0)
                a(f"ds_read_b64_tr_b16 v[{b+4*i}:{b+4*i+1}], v{tb} offset:{off}")
                a(f"ds_read_b64_tr_b16 v[{b+4*i+2}:{b+4*i+3}], v{tb} offset:{off+768}")
        stamp(a, 2)
        vm.wait("c0")
        a("s_barrier")
        for c in range(NPRE, 5):
            for op in dma_ops(c): emit(op)
        stamp(a, 3)
        queue = []
        for kk in range(LA): reads(kk)
        for kk in range(28):
            nk = kk + LA
            if nk < 28:
                if nk % 4 == 0:
                    c = nk // 4
                    while any(op[0] == f"c{c}" for op in queue): emit(queue.pop(0))
                    vm.wait(f"c{c}")
                    a("s_barrier")
                    if c in (2, 4): stamp(a, 3 + c // 2)
                    if c in (2, 3): queue += dma_ops(c + 3)
                reads(nk)
            out = min(28 - 1 - kk, LA) * nr
            a(f"s_waitcnt lgkmcnt({out})")
            b = WF + (kk % NB) * ns * 4
            xb = XFb + (kk % NB) * 4
            c0 = "0" if kk == 0 else None
            if qrole:
                for r in range(4):
                    a(f"v_cndmask_b32 v{qrole+r}, v{b+r}, v{qrole+4}, s[52:53]")
                a(f"v_mfma_f32_32x32x16_bf16 v[{ACC[1]}:{ACC[1]+15}], v[{b+4}:{b+7}], v[{qrole+4}:{qrole+7}], " + (c0 or f"v[{ACC[1]}:{ACC[1]+15}]"))
                a(f"v_lshlrev_b32 v10, 16, v{xb}")
                a(f"v_and_b32 v11, s41, v{xb}")
                a(f"v_fmac_f32 v{SQ}, v10, v10")
                a(f"v_fmac_f32 v{SQ+1}, v11, v11")
                a(f"v_mfma_f32_32x32x16_bf16 v[{ACC[0]}:{ACC[0]+15}], v[{qrole}:{qrole+3}], v[{xb}:{xb+3}], " + (c0 or f"v[{ACC[0]}:{ACC[0]+15}]"))
                a(f"v_lshlrev_b32 v10, 16, v{xb+1}")
                a(f"v_and_b32 v11, s41, v{xb+1}")
                a(f"v_fmac_f32 v{SQ}, v10, v10")
                a(f"v_fmac_f32 v{SQ+1}, v11, v11")
            else:
                for i in range(ns):
                    a(f"v_mfma_f32_32x32x16_bf16 v[{ACC[i]}:{ACC[i]+15}], v[{b+4*i}:{b+4*i+3}], v[{xb}:{xb+3}], " + (c0 or f"v[{ACC[i]}:{ACC[i]+15}]"))
                    a(f"v_lshlrev_b32 v10, 16, v{xb+2+i}")
                    a(f"v_and_b32 v11, s41, v{xb+2+i}")
                    a(f"v_fmac_f32 v{SQ}, v10, v10")
                    a(f"v_fmac_f32 v{SQ+1}, v11, v11")
            if queue: emit(queue.pop(0))
            if queue: emit(queue.pop(0))
        stamp(a, 6)
        a(f"v_add_f32 v{SQ}, v{SQ}, v{SQ+1}")
        a(f"v_lshlrev_b32 v7, 2, v{M}")
        a("s_lshl_b32 s50, s39, 7")
        a(f"v_add_u32 v9, s50, v7")
        xhalf(a, "v_add_f32", SQ, SQ, 10, 11)
        a(f"ds_write_b32 v9, v{SQ} offset:{K1_SQ + (512 if qrole else 0)}")

    def post_reads(segs, dsts, WPF, ST):
        a(f"v_lshlrev_b32 v8, 4, v{HF}")
        a(f"ds_read_b32 v{ST}, v9 offset:{K1_SM}")
        a(f"ds_read_b32 v{ST+1}, v9 offset:{K1_SQ}")
        a(f"ds_read_b32 v{ST+2}, v9 offset:{K1_SQ+512}")
        for sg, dst in zip(segs, dsts):
            for q in range(4):
                a(f"ds_read_b128 v[{dst+4*q}:{dst+4*q+3}], v8 offset:{K1_CS + sg*128 + q*32}")
        for s_ in range(2):
            for e in range(2):
                a(f"ds_read_b64_tr_b16 v[{WPF+4*s_+2*e}:{WPF+4*s_+2*e+1}], v12 offset:{K1_WP + (16*s_+8*e)*56}")

    def wp_addr():
        a(f"v_lshrrev_b32 v7, 2, v{I16}")
        a(f"v_lshl_add_u32 v7, v{HF}, 2, v7")
        a(f"v_mul_u32_u24 v7, 56, v7")
        a(f"v_and_b32 v8, 1, v{G}")
        a(f"v_lshlrev_b32 v8, 2, v8")
        a(f"v_and_b32 v9, 3, v{I16}")
        a(f"v_add_u32 v8, v8, v9")
        a(f"v_lshl_add_u32 v12, v8, 3, v7")

    def center_pack(ACC, CSV, NM, OUT):
        for i in range(8):
            a(f"v_fmac_f32 v{ACC+2*i}, v{CSV+2*i}, v{NM}")
            a(f"v_fmac_f32 v{ACC+2*i+1}, v{CSV+2*i+1}, v{NM}")
            a(f"v_cvt_pk_bf16_f32 v{OUT+i}, v{ACC+2*i}, v{ACC+2*i+1}")

    vmk = VM(a)
    for t in range(3):
        a(f"v_add_u32 v7, {t*64}, v{LANE}")
        a(f"v_mul_u32_u24 v8, 171, v7")
        a(f"v_lshrrev_b32 v8, 11, v8")
        a(f"v_mul_u32_u24 v9, 12, v8")
        a(f"v_sub_u32 v9, v7, v9")
        a(f"v_mul_u32_u24 v8, 2688, v8")
        a(f"v_lshrrev_b32 v7, 2, v9")
        a(f"v_mul_u32_u24 v7, 896, v7")
        a(f"v_and_b32 v9, 3, v9")
        a(f"v_lshlrev_b32 v9, 4, v9")
        a(f"v_add3_u32 v{PAT+t}, v7, v8, v9")
    a("s_mul_i32 s47, s37, 56")
    a("s_and_b32 s47, s47, 0xfffffff0")
    a("s_mul_i32 s48, s39, 43008")
    a("s_add_u32 s47, s47, s48")
    a("s_mul_i32 s49, s39, 3072")
    rot_table(64*2688)
    common_setup_early(vmk)
    if CODEPF:
        a("s_getpc_b64 s[72:73]")
        a("K1_PC:")
        a("s_sub_u32 s72, s72, K1_PC-k1_kernel")
        a("s_subb_u32 s73, s73, 0")
        a("s_mov_b32 s74, K3_END-k1_kernel")
        a("s_mov_b32 s75, 0x00020000")
        a("s_lshr_b32 s76, s2, 3")
        a("s_lshl_b32 s76, s76, 2")
        a("s_add_u32 s76, s76, s39")
        a("s_lshl_b32 s76, s76, 9")
        a(f"v_lshlrev_b32 v224, 7, v{LANE}")
        a("s_mov_b64 exec, 15")
        a("buffer_load_dword v225, v224, s[72:75], s76 offen")
        a("s_mov_b64 exec, -1")
        vmk.issue("cpf")
    def dma_w(c):
        return [(f"c{c}", [f"s_add_u32 m0, s49, {K1_RING + (c%5)*K1_SLOT + 16384 + t*1024}",
                           f"buffer_load_dwordx4 v{PAT+t}, s[20:23], s{60+c} offen lds"]) for t in range(3)]
    for c in range(NPRE):
        for op in dma_w(c):
            for t_ in op[1]: a(t_)
            vmk.issue(op[0])
    a("s_mul_i32 s50, s37, 1568")
    a("s_and_b32 s51, s39, 1")
    a("s_lshl_b32 s51, s51, 10")
    a("s_add_u32 s50, s50, s51")
    a(f"s_add_u32 m0, s51, {K1_WP}")
    a(f"v_lshlrev_b32 v7, 4, v{LANE}")
    a("buffer_load_dwordx4 v7, s[24:27], s50 offen lds")
    vmk.issue("c0")
    common_setup_late()
    wp_addr()
    a("s_lshl_b32 s50, s39, 5")
    a(f"v_add_u32 v7, s50, v{M}")
    a(f"v_lshrrev_b32 v8, 1, v7")
    a(f"v_and_b32 v8, 7, v8")
    a(f"v_xor_b32 v8, v8, v{HF}")
    a(f"v_lshlrev_b32 v8, 3, v8")
    a(f"v_lshl_add_u32 v74, v7, 6, v8")
    a(f"v_lshrrev_b32 v8, 1, v7")
    a(f"v_and_b32 v8, 1, v8")
    a(f"v_lshlrev_b32 v8, 3, v8")
    a(f"v_and_b32 v9, 1, v7")
    a(f"v_or_b32 v8, v8, v9")
    a(f"v_lshrrev_b32 v9, 2, v7")
    a(f"v_and_b32 v9, 3, v9")
    a(f"v_lshl_or_b32 v8, v9, 1, v8")
    a(f"v_xor_b32 v8, v8, v{HF}")
    a(f"v_lshlrev_b32 v8, 3, v8")
    a(f"v_lshl_add_u32 v75, v7, 7, v8")
    a(f"v_lshrrev_b32 v7, 2, v{I16}")
    a(f"v_lshl_add_u32 v7, v{HF}, 3, v7")
    a(f"v_and_b32 v8, 1, v{G}")
    a(f"v_lshlrev_b32 v8, 2, v8")
    a(f"v_and_b32 v9, 3, v{I16}")
    a(f"v_add_u32 v8, v8, v9")
    for e in range(2):
        a(f"v_add_u32 v9, {4*e}, v7")
        a(f"v_lshrrev_b32 v10, 1, v9")
        a(f"v_xor_b32 v10, v10, v8")
        a(f"v_lshlrev_b32 v10, 3, v10")
        a(f"v_lshl_add_u32 v{76+e}, v9, 6, v10")
        a(f"v_lshrrev_b32 v10, 1, v9")
        a(f"v_and_b32 v10, 1, v10")
        a(f"v_lshlrev_b32 v10, 3, v10")
        a(f"v_and_b32 v11, 1, v9")
        a(f"v_or_b32 v10, v10, v11")
        a(f"v_lshrrev_b32 v11, 2, v9")
        a(f"v_lshl_or_b32 v10, v11, 1, v10")
        a(f"v_xor_b32 v10, v10, v8")
        a(f"s_lshl_b32 s50, s39, 3")
        a(f"v_xor_b32 v10, s50, v10")
        a(f"v_lshlrev_b32 v10, 3, v10")
        a(f"v_lshl_add_u32 v{78+e}, v9, 7, v10")
    a("s_lshl_b32 s50, s37, 13")
    a("s_lshl_b32 s51, s39, 7")
    a("s_add_u32 s50, s50, s51")
    a(f"v_lshlrev_b32 v80, 10, v{HF}")
    a(f"v_lshl_add_u32 v80, v{M}, 2, v80")
    a(f"v_add_u32 v80, s50, v80")
    a(f"v_add_u32 v81, 4096, v80")
    for r in range(4): a(f"v_mov_b32 v{82+r}, 0")
    a(f"ds_write_b128 v82, v[82:85] offset:{K1_FL}")
    a("s_lshl_b32 s50, s39, 2")
    a("v_mov_b32 v86, s50")
    a("v_mov_b32 v87, 1")
    a("s_waitcnt lgkmcnt(0)")
    AK, AV = 100, 116
    mainloop([1, 2], [AK, AV], 34, 46, 72, None, vmk, dma_w)
    a("s_waitcnt lgkmcnt(0)")
    a("s_barrier")
    stamp(a, 7)
    a("s_setprio 2")
    CK, CV = 34, 50
    post_reads([1, 2], [CK, CV], 92, 66)
    a("s_lshl_b32 s50, s2, 7")
    a(f"s_add_u32 s50, s50, {768*1024}")
    a("v_mov_b32 v13, 0")
    a(f"v_lshlrev_b32 v14, 2, v{LANE}")
    a("s_mov_b64 exec, 0xff")
    a("buffer_store_dword v13, v14, s[32:35], s50 offen")
    a("s_mov_b64 exec, -1")
    a("s_lshl_b32 s50, s37, 2")
    a("s_add_u32 s50, s50, 64")
    a("v_mov_b32 v13, s50")
    a("buffer_load_dword v14, v13, s[28:31], 0 offen sc1")
    a("s_waitcnt lgkmcnt(12)")
    a("v_add_f32 v67, v67, v68")
    stats_finish(a, 66, 67, 68, 69, 70)
    a("s_waitcnt lgkmcnt(0)")
    KFR, VFR = 132, 140
    center_pack(AK, CK, 68, KFR)
    a(f"v_cndmask_b32 v{KFR+6}, v{KFR+6}, 0, s[42:43]")
    a(f"v_cndmask_b32 v{KFR+7}, v{KFR+7}, 0, s[42:43]")
    PK = 148
    a(f"v_mfma_f32_32x32x16_bf16 v[{PK}:{PK+15}], v[92:95], v[{KFR}:{KFR+3}], 0")
    a(f"v_mfma_f32_32x32x16_bf16 v[{PK}:{PK+15}], v[96:99], v[{KFR+4}:{KFR+7}], v[{PK}:{PK+15}]")
    center_pack(AV, CV, 68, VFR)
    a(f"v_lshrrev_b32 v9, 16, v70")
    a(f"v_mul_f32 v71, s44, v69")
    a(f"v_cndmask_b32 v{VFR+6}, v{VFR+6}, v9, s[42:43]")
    a(f"v_cndmask_b32 v{VFR+7}, v{VFR+7}, 0, s[42:43]")
    for q in range(4):
        a(f"v_xor_b32 v9, {q*16}, v74")
        a(f"ds_write_b64 v9, v[{VFR+2*q}:{VFR+2*q+1}] offset:{K1_V}")
    E, F, OP, ON, T = 164, 180, 34, 42, 50
    softmax_pm(a, PK, E, F, OP, ON, T, 42, 71, 69)
    for t, src in ((0, OP), (1, ON)):
        for q in range(4):
            a(f"v_xor_b32 v9, {(8*t+2*q)*8}, v75")
            a(f"ds_write_b64 v9, v[{src+2*q}:{src+2*q+1}] offset:{K1_PHIK}")
    a("s_waitcnt lgkmcnt(0)")
    a(f"ds_write_b32 v86, v87 offset:{K1_FL}")
    a("s_cmp_ge_u32 s39, 2")
    a("s_cbranch_scc1 K1_FIN")
    a("K1_LPOLL:")
    a(f"ds_read_b128 v[88:91], v82 offset:{K1_FL}")
    a("s_waitcnt lgkmcnt(0)")
    a("v_and_b32 v88, v88, v89")
    a("v_and_b32 v90, v90, v91")
    a("v_and_b32 v88, v88, v90")
    a("v_readfirstlane_b32 s51, v88")
    a("s_cmp_eq_u32 s51, 0")
    a("s_cbranch_scc1 K1_LPOLL")
    stamp(a, 8)
    KV = 16
    for ks in range(8):
        b = 100 + ks * 8
        for e in range(2):
            a(f"ds_read_b64_tr_b16 v[{b+2*e}:{b+2*e+1}], v{76+e} offset:{K1_V + ks*1024}")
        for e in range(2):
            a(f"ds_read_b64_tr_b16 v[{b+4+2*e}:{b+4+2*e+1}], v{78+e} offset:{K1_PHIK + ks*2048}")
    for ks in range(8):
        b = 100 + ks * 8
        a(f"s_waitcnt lgkmcnt({min(15, (7-ks)*4)})")
        c = "0" if ks == 0 else f"v[{KV}:{KV+15}]"
        a(f"v_mfma_f32_32x32x16_bf16 v[{KV}:{KV+15}], v[{b}:{b+3}], v[{b+4}:{b+7}], {c}")
    a("s_waitcnt vmcnt(0)")
    a("v_readfirstlane_b32 s51, v14")
    a("s_cmp_lg_u32 s51, 0")
    a("s_cbranch_scc1 K1_GO")
    a("s_mov_b32 s50, 0")
    a("K1_POLL:")
    a("buffer_load_dword v14, v13, s[28:31], 0 offen sc1")
    a("s_add_u32 s50, s50, 1")
    a("s_waitcnt vmcnt(0)")
    a("v_readfirstlane_b32 s51, v14")
    a("s_cmp_gt_u32 s50, 0x400000")
    a("s_cbranch_scc1 K1_GO")
    a("s_cmp_eq_u32 s51, 0")
    a("s_cbranch_scc1 K1_POLL")
    a("K1_GO:")
    a("s_nop 7")
    for r in range(16):
        d = (r & 3) + 8 * (r >> 2)
        off = d * 256
        base = 80
        if off >= 4096: off -= 4096; base = 81
        a(f"buffer_atomic_add_f32 v{KV+r}, v{base}, s[32:35], 0 offen offset:{WS_KV + off}")
    a("s_branch K1_FIN")

    a("K1_Q:")
    vmq = VM(a)
    a(f"v_lshrrev_b32 v7, 3, v{LANE}")
    a(f"v_and_b32 v8, 7, v{LANE}")
    a(f"v_lshrrev_b32 v9, 1, v7")
    a(f"v_xor_b32 v8, v8, v9")
    a(f"v_mul_u32_u24 v7, 896, v7")
    a(f"v_lshl_add_u32 v30, v8, 4, v7")
    a(f"v_xor_b32 v31, 64, v30")
    a("s_lshl_b32 s46, s36, 7")
    a("s_lshl_b32 s47, s39, 5")
    a("s_add_u32 s46, s46, s47")
    a("s_mul_i32 s47, s46, 896")
    a("s_lshl_b32 s49, s39, 12")
    rot_table(128)
    common_setup_early(vmq)
    def dma_x(c):
        return [(f"c{c}", [f"s_add_u32 m0, s49, {K1_RING + (c%5)*K1_SLOT + i*1024}",
                           f"s_add_u32 s50, s{60+c}, {i*8*896}",
                           f"buffer_load_dwordx4 v{30+(i&1)}, s[16:19], s50 offen lds"]) for i in range(4)]
    for c in range(NPRE):
        for op in dma_x(c):
            for t_ in op[1]: a(t_)
            vmq.issue(op[0])
    common_setup_late()
    wp_addr()
    a(f"v_cmp_eq_u32 s[52:53], 28, v{M}")
    for r in range(4): a(f"v_mov_b32 v{80+r}, s45")
    a("s_or_b32 s51, s36, s39")
    a("s_cmp_lg_u32 s51, 0")
    a("s_cbranch_scc1 K1_Q2")
    a("s_lshl_b32 s50, s37, 13")
    a(f"v_lshl_add_u32 v7, v{LANE}, 4, s50")
    for r in range(4): a(f"v_mov_b32 v{34+r}, 0")
    a("v_add_u32 v8, 4096, v7")
    for i in range(4):
        a(f"buffer_store_dwordx4 v[34:37], v7, s[32:35], 0 offen offset:{WS_KV + i*1024} sc1")
        a(f"buffer_store_dwordx4 v[34:37], v8, s[32:35], 0 offen offset:{WS_KV + i*1024} sc1")
    a("s_waitcnt vmcnt(0)")
    a("s_lshl_b32 s50, s37, 2")
    a("s_add_u32 s50, s50, 64")
    a("v_mov_b32 v7, s50")
    a("v_mov_b32 v8, 1")
    a("s_mov_b64 exec, 1")
    a("buffer_store_dword v8, v7, s[28:31], 0 offen sc1")
    a("s_mov_b64 exec, -1")
    a("s_waitcnt vmcnt(0)")
    a("K1_Q2:")
    AQ = 100
    ACS = 116
    mainloop([0, "cs"], [AQ, ACS], 34, 46, 72, 76, vmq, dma_x)
    a("s_mov_b64 exec, s[42:43]")
    a(f"ds_write_b32 v9, v{AQ+12} offset:{K1_SM}")
    a("s_mov_b32 s54, 1")
    a("s_mov_b32 s55, 1")
    a("s_mov_b64 exec, s[54:55]")
    a("s_min_u32 s50, s39, 2")
    a("s_lshl_b32 s50, s50, 7")
    a(f"v_lshl_add_u32 v8, v{HF}, 4, s50")
    for q in range(4):
        a(f"ds_write_b128 v8, v[{ACS+4*q}:{ACS+4*q+3}] offset:{K1_CS + q*32}")
    a("s_mov_b64 exec, -1")
    a("s_waitcnt lgkmcnt(0)")
    a("s_barrier")
    stamp(a, 7)
    CQ = 34
    post_reads([0], [CQ], 92, 66)
    tail_prefetch()
    a("s_waitcnt lgkmcnt(8)")
    a("v_add_f32 v67, v67, v68")
    stats_finish(a, 66, 67, 68, 69, 70)
    a("s_waitcnt lgkmcnt(0)")
    QFR = 132
    center_pack(AQ, CQ, 68, QFR)
    a(f"v_cndmask_b32 v{QFR+6}, v{QFR+6}, 0, s[42:43]")
    a(f"v_cndmask_b32 v{QFR+7}, v{QFR+7}, 0, s[42:43]")
    PQ = 148
    a(f"v_mfma_f32_32x32x16_bf16 v[{PQ}:{PQ+15}], v[92:95], v[{QFR}:{QFR+3}], 0")
    a(f"v_mfma_f32_32x32x16_bf16 v[{PQ}:{PQ+15}], v[96:99], v[{QFR+4}:{QFR+7}], v[{PQ}:{PQ+15}]")
    a(f"v_mul_f32 v71, s44, v69")
    a("s_lshl_b32 s50, s36, 2")
    a("s_add_u32 s50, s50, s39")
    a("s_lshl_b32 s50, s50, 4")
    a("s_add_u32 s50, s50, s37")
    a("s_lshl_b32 s50, s50, 12")
    a(f"s_add_u32 s50, s50, {WS_PHIQ}")
    a(f"v_lshlrev_b32 v7, 4, v{LANE}")
    softmax_pm(a, PQ, 164, 180, 36, 44, 52, 42, 71)
    for s_ in range(4):
        a(f"buffer_store_dwordx4 v[{36+4*s_}:{36+4*s_+3}], v7, s[32:35], s50 offen offset:{s_*1024}")
    stamp(a, 8)
    a("K1_FIN:")
    if STAMPS: a("s_waitcnt vmcnt(0)")
    stamp(a, 9)
    stamp_flush(a, 38, 32)
    a("K1_END:")
    a("s_endpgm")
    a.fix_hazards()
    return a.text(), kd("k1_kernel", 232)

def main():
    parts = []
    hdr = open("sequential_preLN__linear_kernel_hedgehog__glu_gated_glu__prompt.s.ref").read().split("; Override launch")[0]
    ks = [("k1", gen_k1, 256, 512, K1_LDS)]
    import gen2
    ks += gen2.kernels()
    out = [hdr.rstrip()]
    for nm, fn, g, b, lds in ks:
        out.append(f"; @launch kernel={nm}_kernel grid=({g},1,1) block=({b},1,1) lds={lds}")
    out.append('.amdgcn_target "amdgcn-amd-amdhsa--gfx950"')
    out.append(".text")
    kds = []
    for nm, fn, g, b, lds in ks:
        t, k = fn()
        out.append(t); kds.append(k)
    out.append('.section .rodata,"a"')
    out += kds
    open(sys.argv[1], "w").write("\n".join(out) + "\n")

if __name__ == "__main__":
    main()
```

```python
from asmfw import Asm
import os
import gen
from gen import *

L_CS = 0; L_FL = 448; L_SQ = 512; L_SM = 1536; L_WP = 2048
L_WQ = 4096
L_RING = 32768; L_SLOT = 24576
K1B_LDS = L_RING + 5 * L_SLOT
L_PHIK = L_RING; L_V = L_PHIK + 16384

def gen_k1b():
    a = Asm()
    head(a, "k1_kernel")
    a("s_cmp_ge_u32 s2, 256")
    a("s_cbranch_scc1 K1_END")
    stamp_init(a); stamp(a, 0, real=True); stamp(a, 1)
    a("s_load_dwordx4 s[4:7], s[0:1], 0")
    a("s_load_dwordx4 s[8:11], s[0:1], 16")
    a("s_load_dwordx4 s[12:15], s[0:1], 72")
    a("s_load_dwordx4 s[56:59], s[0:1], 40")
    a("s_load_dwordx2 s[68:69], s[0:1], 56")
    LANE, M, HF, I16, G = 1, 2, 3, 4, 5
    a(f"v_and_b32 v{LANE}, 63, v0")
    a(f"v_lshrrev_b32 v6, 6, v0")
    a(f"v_readfirstlane_b32 s38, v6")
    a(f"v_and_b32 v{M}, 31, v{LANE}")
    a(f"v_lshrrev_b32 v{HF}, 5, v{LANE}")
    a(f"v_and_b32 v{I16}, 15, v{LANE}")
    a(f"v_lshrrev_b32 v{G}, 4, v{LANE}")
    a("s_and_b32 s36, s2, 7")
    a("s_lshl_b32 s36, s36, 1")
    a("s_bfe_u32 s37, s2, 0x10003")
    a("s_add_u32 s36, s36, s37")
    a("s_lshr_b32 s37, s2, 4")
    a("s_and_b32 s39, s38, 3")
    a("s_lshr_b32 s40, s38, 2")
    a("s_mov_b32 s42, 0")
    a("s_mov_b32 s43, -1")
    a(f"s_mov_b32 s44, {LOG2E}")
    a("s_mov_b32 s45, 0x3f803f80")
    a("s_mov_b32 s41, 0xffff0000")
    a("s_and_b32 s67, s36, 1")
    a("s_mul_i32 s67, s67, 3")
    a("s_add_u32 s67, s67, s37")
    for _ in range(2):
        a("s_cmp_ge_u32 s67, 7")
        a("s_cselect_b32 s61, 7, 0")
        a("s_sub_u32 s67, s67, s61")
    a("s_lshl_b32 s46, s36, 7")
    a("s_lshl_b32 s47, s39, 5")
    a("s_add_u32 s46, s46, s47")
    a("s_mul_i32 s47, s46, 896")
    a("s_mul_i32 s48, s37, 56")
    a("s_and_b32 s48, s48, 0xfffffff0")
    a("s_mul_i32 s49, s39, 43008")
    a("s_add_u32 s48, s48, s49")
    for c in range(7):
        a(f"s_lshl_b32 s{60+c}, s67, 7")
        a(f"s_add_u32 s{60+c}, s{60+c}, s47")
        a(f"s_mul_i32 s{72+c}, s67, {64*2688}")
        a(f"s_add_u32 s{72+c}, s{72+c}, s48")
        if c < 6:
            a("s_add_u32 s67, s67, 1")
            a("s_cmp_ge_u32 s67, 7")
            a("s_cselect_b32 s67, 0, s67")
    a("s_cmp_eq_u32 s40, 1")
    a("s_cbranch_scc1 K1_Q")
    def srds():
        a("s_waitcnt lgkmcnt(0)")
        srd(a, 16, 4, 1835008); srd(a, 20, 6, 1204224); srd(a, 24, 8, 25088); srd(a, 28, 12, 256); srd(a, 32, 14, WS_SIZE)
    XV = 228; TB = 240
    def setup_late(q):
        a(f"v_lshrrev_b32 v7, 2, v{I16}")
        a(f"v_lshl_add_u32 v8, v{HF}, 3, v7")
        a(f"v_lshlrev_b32 v8, 7, v8")
        a(f"v_and_b32 v9, 1, v{G}")
        a(f"v_lshlrev_b32 v9, 2, v9")
        a(f"v_and_b32 v10, 3, v{I16}")
        a(f"v_add_u32 v9, v9, v10")
        a(f"v_lshl_add_u32 v8, v9, 3, v8")
        a("s_and_b32 s50, s37, 1")
        a("s_lshl_b32 s50, s50, 3")
        a(f"s_add_u32 s51, s50, {L_RING + 16384}")
        a(f"v_add_u32 v8, s51, v8")
        a(f"v_lshrrev_b32 v7, 1, v7")
        if q:
            a("s_and_b32 s51, s39, 1")
            a(f"v_xor_b32 v7, s51, v7")
            a(f"v_lshl_add_u32 v{TB}, v7, 6, v8")
            for st in range(1, 3): a(f"v_add_u32 v{TB+2*st}, {2*st*L_SLOT}, v{TB}")
            a(f"v_lshrrev_b32 v7, 2, v{I16}")
            a(f"v_lshl_add_u32 v7, v{HF}, 3, v7")
            a(f"v_lshlrev_b32 v7, 6, v7")
            a(f"v_lshl_add_u32 v7, v9, 3, v7")
            a(f"s_add_u32 s51, s50, {L_WQ}")
            a(f"v_add_u32 v246, s51, v7")
        else:
            a(f"v_lshl_add_u32 v{TB}, v7, 6, v8")
            a(f"v_xor_b32 v7, 1, v7")
            a(f"v_lshl_add_u32 v{TB+1}, v7, 6, v8")
            for st in range(1, 3):
                a(f"v_add_u32 v{TB+2*st}, {2*st*L_SLOT}, v{TB}")
                a(f"v_add_u32 v{TB+2*st+1}, {2*st*L_SLOT}, v{TB+1}")
        a("s_lshl_b32 s50, s39, 5")
        a(f"v_add_u32 v7, s50, v{M}")
        a(f"v_lshrrev_b32 v8, 1, v7")
        a(f"v_and_b32 v8, 7, v8")
        a(f"v_xor_b32 v8, v8, v{HF}")
        a(f"v_lshlrev_b32 v8, 4, v8")
        a(f"v_lshl_add_u32 v11, v7, 7, v8")
        for p in range(4):
            a(f"v_xor_b32 v7, {p*32}, v11")
            for st in range(3):
                a(f"v_add_u32 v{XV+4*st+p}, {L_RING + 2*st*L_SLOT}, v7")
        a(f"v_lshrrev_b32 v7, 2, v{I16}")
        a(f"v_lshl_add_u32 v7, v{HF}, 2, v7")
        a(f"v_mul_u32_u24 v7, 56, v7")
        a(f"v_lshl_add_u32 v12, v9, 3, v7")
        a("s_lshl_b32 s50, s39, 7")
        a(f"v_lshl_add_u32 v9, v{M}, 2, s50")
    LA = 2; NB = 3
    def pass1(q, vm, dma_ops, extra_ops):
        ns = 1 if q else 2
        WF = 46; SQ = 72
        a(f"v_mov_b32 v{SQ}, 0"); a(f"v_mov_b32 v{SQ+1}, 0")
        nr = 1 + 2 * ns
        def emit(op):
            for t_ in op[1]: a(t_)
            vm.issue(op[0])
        def xreg(kk): return 100 + 4 * kk if q else 34 + (kk % NB) * 4
        def reads(kk):
            c = kk // 4; slot = c % 5; p = kk % 4
            st = slot // 2; so = slot % 2
            xb = xreg(kk)
            a(f"ds_read_b128 v[{xb}:{xb+3}], v{XV+4*st+p} offset:{so*L_SLOT}")
            b = WF + (kk % NB) * ns * 4
            for i in range(ns):
                off = so * L_SLOT + p * 2048
                a(f"ds_read_b64_tr_b16 v[{b+4*i}:{b+4*i+1}], v{TB+2*st+i} offset:{off}")
                a(f"ds_read_b64_tr_b16 v[{b+4*i+2}:{b+4*i+3}], v{TB+2*st+i} offset:{off+512}")
        stamp(a, 2)
        vm.wait("c0")
        a("s_barrier")
        for c in range(2, 5):
            for op in dma_ops(c): emit(op)
        stamp(a, 3)
        queue = []
        for kk in range(LA): reads(kk)
        for kk in range(28):
            nk = kk + LA
            if nk < 28:
                if nk % 4 == 0:
                    c = nk // 4
                    while any(op[0] == f"c{c}" for op in queue): emit(queue.pop(0))
                    vm.wait(f"c{c}")
                    a("s_barrier")
                    if c in (2, 4): stamp(a, 3 + c // 2)
                    if c in (2, 3): queue += dma_ops(c + 3)
                    if c == 3: queue += extra_ops
                reads(nk)
            a(f"s_waitcnt lgkmcnt({min(28 - 1 - kk, LA) * nr})")
            b = WF + (kk % NB) * ns * 4
            xb = xreg(kk)
            c0 = "0" if kk == 0 else None
            if q:
                a(f"v_mfma_f32_32x32x16_bf16 v[212:227], v[{b}:{b+3}], v[80:83], " + (c0 or "v[212:227]"))
                for r in range(2):
                    a(f"v_lshlrev_b32 v10, 16, v{xb+r}")
                    a(f"v_and_b32 v11, s41, v{xb+r}")
                    a(f"v_fmac_f32 v{SQ}, v10, v10")
                    a(f"v_fmac_f32 v{SQ+1}, v11, v11")
            else:
                for r in range(4):
                    a(f"v_cndmask_b32 v{b+4+r}, v{b+4+r}, v92, s[52:53]")
                for i, AC in enumerate((100, 116)):
                    a(f"v_mfma_f32_32x32x16_bf16 v[{AC}:{AC+15}], v[{b+4*i}:{b+4*i+3}], v[{xb}:{xb+3}], " + (c0 or f"v[{AC}:{AC+15}]"))
                    a(f"v_lshlrev_b32 v10, 16, v{xb+2+i}")
                    a(f"v_and_b32 v11, s41, v{xb+2+i}")
                    a(f"v_fmac_f32 v{SQ}, v10, v10")
                    a(f"v_fmac_f32 v{SQ+1}, v11, v11")
            if queue: emit(queue.pop(0))
            if queue: emit(queue.pop(0))
        while queue: emit(queue.pop(0))
        stamp(a, 6)
        a(f"v_add_f32 v{SQ}, v{SQ}, v{SQ+1}")
        xhalf(a, "v_add_f32", SQ, SQ, 10, 11)
        a(f"ds_write_b32 v9, v{SQ} offset:{L_SQ + (512 if q else 0)}")
    def stats_reads(ST):
        a(f"ds_read_b32 v{ST}, v9 offset:{L_SM}")
        a(f"ds_read_b32 v{ST+1}, v9 offset:{L_SQ}")
        a(f"ds_read_b32 v{ST+2}, v9 offset:{L_SQ+512}")
    def wp_reads(WPF):
        for s_ in range(2):
            for e in range(2):
                a(f"ds_read_b64_tr_b16 v[{WPF+4*s_+2*e}:{WPF+4*s_+2*e+1}], v12 offset:{L_WP + (16*s_+8*e)*56}")
    def center_pack(ACC, CSV, NM, OUT):
        for i in range(8):
            a(f"v_fmac_f32 v{ACC+2*i}, v{CSV+2*i}, v{NM}")
            a(f"v_fmac_f32 v{ACC+2*i+1}, v{CSV+2*i+1}, v{NM}")
            a(f"v_cvt_pk_bf16_f32 v{OUT+i}, v{ACC+2*i}, v{ACC+2*i+1}")

    vmk = VM(a)
    a(f"v_lshrrev_b32 v7, 3, v{LANE}")
    a(f"v_and_b32 v8, 7, v{LANE}")
    a(f"v_lshrrev_b32 v9, 1, v7")
    a(f"v_and_b32 v9, 1, v9")
    a(f"v_lshlrev_b32 v9, 2, v9")
    a(f"v_xor_b32 v8, v8, v9")
    a(f"v_mul_u32_u24 v7, 2688, v7")
    a(f"v_lshrrev_b32 v9, 2, v8")
    a(f"v_mul_u32_u24 v9, 896, v9")
    a(f"v_and_b32 v8, 3, v8")
    a(f"v_lshlrev_b32 v8, 4, v8")
    a(f"v_add3_u32 v30, v7, v8, v9")
    a(f"v_add_u32 v30, 896, v30")
    a("s_lshl_b32 s49, s39, 11")
    srds()
    def dma_w(c):
        return [(f"c{c}", [f"s_add_u32 m0, s49, {L_RING + (c%5)*L_SLOT + 16384 + i*1024}",
                           f"s_add_u32 s50, s{72+c}, {i*8*2688}",
                           f"buffer_load_dwordx4 v30, s[20:23], s50 offen lds"]) for i in range(2)]
    for c in range(2):
        for op in dma_w(c):
            for t_ in op[1]: a(t_)
            vmk.issue(op[0])
    a("s_mul_i32 s50, s37, 1568")
    a("s_and_b32 s51, s39, 1")
    a("s_lshl_b32 s51, s51, 10")
    a("s_add_u32 s50, s50, s51")
    a(f"s_add_u32 m0, s51, {L_WP}")
    a(f"v_lshlrev_b32 v7, 4, v{LANE}")
    a("buffer_load_dwordx4 v7, s[24:27], s50 offen lds")
    vmk.issue("c1")
    setup_late(False)
    a(f"v_cmp_eq_u32 s[52:53], 28, v{M}")
    a("v_mov_b32 v92, s45")
    a("s_lshl_b32 s50, s39, 5")
    a(f"v_add_u32 v7, s50, v{M}")
    a(f"v_lshrrev_b32 v8, 1, v7")
    a(f"v_and_b32 v8, 7, v8")
    a(f"v_xor_b32 v8, v8, v{HF}")
    a(f"v_lshlrev_b32 v8, 3, v8")
    a(f"v_lshl_add_u32 v74, v7, 6, v8")
    a(f"v_lshrrev_b32 v8, 1, v7")
    a(f"v_and_b32 v8, 1, v8")
    a(f"v_lshlrev_b32 v8, 3, v8")
    a(f"v_and_b32 v10, 1, v7")
    a(f"v_or_b32 v8, v8, v10")
    a(f"v_lshrrev_b32 v10, 2, v7")
    a(f"v_and_b32 v10, 3, v10")
    a(f"v_lshl_or_b32 v8, v10, 1, v8")
    a(f"v_xor_b32 v8, v8, v{HF}")
    a(f"v_lshlrev_b32 v8, 3, v8")
    a(f"v_lshl_add_u32 v75, v7, 7, v8")
    a(f"v_lshrrev_b32 v7, 2, v{I16}")
    a(f"v_lshl_add_u32 v7, v{HF}, 3, v7")
    a(f"v_and_b32 v8, 1, v{G}")
    a(f"v_lshlrev_b32 v8, 2, v8")
    a(f"v_and_b32 v13, 3, v{I16}")
    a(f"v_add_u32 v8, v8, v13")
    for e in range(2):
        a(f"v_add_u32 v13, {4*e}, v7")
        a(f"v_lshrrev_b32 v10, 1, v13")
        a(f"v_xor_b32 v10, v10, v8")
        a(f"v_lshlrev_b32 v10, 3, v10")
        a(f"v_lshl_add_u32 v{76+e}, v13, 6, v10")
        a(f"v_lshrrev_b32 v10, 1, v13")
        a(f"v_and_b32 v10, 1, v10")
        a(f"v_lshlrev_b32 v10, 3, v10")
        a(f"v_and_b32 v11, 1, v13")
        a(f"v_or_b32 v10, v10, v11")
        a(f"v_lshrrev_b32 v11, 2, v13")
        a(f"v_lshl_or_b32 v10, v11, 1, v10")
        a(f"v_xor_b32 v10, v10, v8")
        a(f"s_lshl_b32 s50, s39, 3")
        a(f"v_xor_b32 v10, s50, v10")
        a(f"v_lshlrev_b32 v10, 3, v10")
        a(f"v_lshl_add_u32 v{78+e}, v13, 7, v10")
    a("s_lshl_b32 s50, s37, 13")
    a("s_lshl_b32 s51, s39, 7")
    a("s_add_u32 s50, s50, s51")
    a(f"v_lshlrev_b32 v80, 10, v{HF}")
    a(f"v_lshl_add_u32 v80, v{M}, 2, v80")
    a(f"v_add_u32 v80, s50, v80")
    a(f"v_add_u32 v81, 4096, v80")
    for r in range(4): a(f"v_mov_b32 v{82+r}, 0")
    a(f"ds_write_b128 v82, v[82:85] offset:{L_FL}")
    a(f"ds_write_b128 v82, v[82:85] offset:{L_FL+16}")
    a("s_lshl_b32 s50, s39, 2")
    a("v_mov_b32 v86, s50")
    a("v_mov_b32 v87, 1")
    a("s_waitcnt lgkmcnt(0)")
    AK, AV = 100, 116
    pass1(False, vmk, dma_w, [])
    a("s_mov_b64 exec, s[42:43]")
    a(f"ds_write_b32 v9, v{AV+12} offset:{L_SM}")
    a("s_mov_b64 exec, -1")
    a("s_waitcnt lgkmcnt(0)")
    a("s_barrier")
    stamp(a, 7)
    a("s_setprio 2")
    CK, CV = 34, 50
    a(f"v_lshlrev_b32 v8, 4, v{HF}")
    stats_reads(66)
    for sg, dst in ((1, CK), (2, CV)):
        for q_ in range(4):
            a(f"ds_read_b128 v[{dst+4*q_}:{dst+4*q_+3}], v8 offset:{L_CS + sg*128 + q_*32}")
    wp_reads(92)
    a("s_lshl_b32 s50, s2, 7")
    a(f"s_add_u32 s50, s50, {768*1024}")
    a("v_mov_b32 v13, 0")
    a(f"v_lshlrev_b32 v14, 2, v{LANE}")
    a("s_mov_b64 exec, 0xff")
    a("buffer_store_dword v13, v14, s[32:35], s50 offen")
    a("s_mov_b64 exec, -1")
    a("s_lshl_b32 s50, s37, 2")
    a("s_add_u32 s50, s50, 64")
    a("v_mov_b32 v13, s50")
    a("buffer_load_dword v14, v13, s[28:31], 0 offen sc1")
    a("s_waitcnt lgkmcnt(12)")
    a("v_add_f32 v67, v67, v68")
    stats_finish(a, 66, 67, 68, 69, 70)
    a("s_waitcnt lgkmcnt(0)")
    KFR, VFR = 132, 140
    center_pack(AK, CK, 68, KFR)
    a(f"v_cndmask_b32 v{KFR+6}, v{KFR+6}, 0, s[42:43]")
    a(f"v_cndmask_b32 v{KFR+7}, v{KFR+7}, 0, s[42:43]")
    PK = 148
    a(f"v_mfma_f32_32x32x16_bf16 v[{PK}:{PK+15}], v[92:95], v[{KFR}:{KFR+3}], 0")
    a(f"v_mfma_f32_32x32x16_bf16 v[{PK}:{PK+15}], v[96:99], v[{KFR+4}:{KFR+7}], v[{PK}:{PK+15}]")
    center_pack(AV, CV, 68, VFR)
    a(f"v_lshrrev_b32 v9, 16, v70")
    a(f"v_mul_f32 v71, s44, v69")
    a(f"v_cndmask_b32 v{VFR+6}, v{VFR+6}, v9, s[42:43]")
    a(f"v_cndmask_b32 v{VFR+7}, v{VFR+7}, 0, s[42:43]")
    for q_ in range(4):
        a(f"v_xor_b32 v9, {q_*16}, v74")
        a(f"ds_write_b64 v9, v[{VFR+2*q_}:{VFR+2*q_+1}] offset:{L_V}")
    softmax_pm(a, PK, 164, 180, 34, 42, 50, 42, 71, 69)
    for t, src in ((0, 34), (1, 42)):
        for q_ in range(4):
            a(f"v_xor_b32 v9, {(8*t+2*q_)*8}, v75")
            a(f"ds_write_b64 v9, v[{src+2*q_}:{src+2*q_+1}] offset:{L_PHIK}")
    a("s_waitcnt lgkmcnt(0)")
    a(f"ds_write_b32 v86, v87 offset:{L_FL}")
    a("s_cmp_ge_u32 s39, 2")
    a("s_cbranch_scc1 K1_FIN")
    a("K1_LPOLL:")
    a(f"ds_read_b128 v[88:91], v82 offset:{L_FL}")
    a("s_waitcnt lgkmcnt(0)")
    a("v_and_b32 v88, v88, v89")
    a("v_and_b32 v90, v90, v91")
    a("v_and_b32 v88, v88, v90")
    a("v_readfirstlane_b32 s51, v88")
    a("s_cmp_eq_u32 s51, 0")
    a("s_cbranch_scc1 K1_LPOLL")
    stamp(a, 8)
    KV = 16
    for ks in range(8):
        b = 100 + ks * 8
        for e in range(2):
            a(f"ds_read_b64_tr_b16 v[{b+2*e}:{b+2*e+1}], v{76+e} offset:{L_V + ks*1024}")
        for e in range(2):
            a(f"ds_read_b64_tr_b16 v[{b+4+2*e}:{b+4+2*e+1}], v{78+e} offset:{L_PHIK + ks*2048}")
    for ks in range(8):
        b = 100 + ks * 8
        a(f"s_waitcnt lgkmcnt({min(15, (7-ks)*4)})")
        c = "0" if ks == 0 else f"v[{KV}:{KV+15}]"
        a(f"v_mfma_f32_32x32x16_bf16 v[{KV}:{KV+15}], v[{b}:{b+3}], v[{b+4}:{b+7}], {c}")
    a("s_waitcnt vmcnt(0)")
    a("v_readfirstlane_b32 s51, v14")
    a("s_cmp_lg_u32 s51, 0")
    a("s_cbranch_scc1 K1_GO")
    a("s_mov_b32 s50, 0")
    a("K1_POLL:")
    a("buffer_load_dword v14, v13, s[28:31], 0 offen sc1")
    a("s_add_u32 s50, s50, 1")
    a("s_waitcnt vmcnt(0)")
    a("v_readfirstlane_b32 s51, v14")
    a("s_cmp_gt_u32 s50, 0x400000")
    a("s_cbranch_scc1 K1_GO")
    a("s_cmp_eq_u32 s51, 0")
    a("s_cbranch_scc1 K1_POLL")
    a("K1_GO:")
    a("s_nop 7")
    for r in range(16):
        d = (r & 3) + 8 * (r >> 2); off = d * 256; base = 80
        if off >= 4096: off -= 4096; base = 81
        a(f"buffer_atomic_add_f32 v{KV+r}, v{base}, s[32:35], 0 offen offset:{WS_KV + off}")
    a("s_branch K1_FIN")

    a("K1_Q:")
    vmq = VM(a)
    a(f"v_lshrrev_b32 v7, 3, v{LANE}")
    a(f"v_and_b32 v8, 7, v{LANE}")
    a(f"v_lshrrev_b32 v9, 1, v7")
    a(f"v_xor_b32 v8, v8, v9")
    a(f"v_mul_u32_u24 v7, 896, v7")
    a(f"v_lshl_add_u32 v30, v8, 4, v7")
    a(f"v_xor_b32 v31, 64, v30")
    a(f"v_lshrrev_b32 v7, 2, v{LANE}")
    a(f"v_mul_u32_u24 v7, 2688, v7")
    a(f"v_and_b32 v8, 3, v{LANE}")
    a(f"v_lshl_add_u32 v32, v8, 4, v7")
    a("s_lshl_b32 s49, s39, 12")
    a("s_lshl_b32 s54, s39, 10")
    srds()
    def dma_x(c):
        return [(f"c{c}", [f"s_add_u32 m0, s49, {L_RING + (c%5)*L_SLOT + i*1024}",
                           f"s_add_u32 s50, s{60+c}, {i*8*896}",
                           f"buffer_load_dwordx4 v{30+(i&1)}, s[16:19], s50 offen lds"]) for i in range(4)]
    wq_ops = [("wq", [f"s_add_u32 m0, s54, {L_WQ + c*4096}", f"buffer_load_dwordx4 v32, s[20:23], s{72+c} offen lds"]) for c in range(7)]
    for c in range(2):
        for op in dma_x(c):
            for t_ in op[1]: a(t_)
            vmq.issue(op[0])
    setup_late(True)
    for r in range(4): a(f"v_mov_b32 v{80+r}, s45")
    a("s_lshl_b32 s50, s39, 2")
    a("v_mov_b32 v86, s50")
    a("v_mov_b32 v87, 1")
    a("v_mov_b32 v85, 0")
    a("s_or_b32 s51, s36, s39")
    a("s_cmp_lg_u32 s51, 0")
    a("s_cbranch_scc1 K1_Q2")
    a("s_lshl_b32 s50, s37, 13")
    a(f"v_lshl_add_u32 v7, v{LANE}, 4, s50")
    for r in range(4): a(f"v_mov_b32 v{34+r}, 0")
    a("v_add_u32 v8, 4096, v7")
    for i in range(4):
        a(f"buffer_store_dwordx4 v[34:37], v7, s[32:35], 0 offen offset:{WS_KV + i*1024} sc1")
        a(f"buffer_store_dwordx4 v[34:37], v8, s[32:35], 0 offen offset:{WS_KV + i*1024} sc1")
    a("s_waitcnt vmcnt(0)")
    a("s_lshl_b32 s50, s37, 2")
    a("s_add_u32 s50, s50, 64")
    a("v_mov_b32 v7, s50")
    a("v_mov_b32 v8, 1")
    a("s_mov_b64 exec, 1")
    a("buffer_store_dword v8, v7, s[28:31], 0 offen sc1")
    a("s_mov_b64 exec, -1")
    a("s_waitcnt vmcnt(0)")
    a("K1_Q2:")
    pass1(True, vmq, dma_x, wq_ops)
    a("s_mov_b32 s54, 1")
    a("s_mov_b32 s55, 1")
    a("s_mov_b64 exec, s[54:55]")
    a("s_and_b32 s50, s39, 1")
    a("s_lshl_b32 s50, s50, 7")
    a(f"v_lshl_add_u32 v8, v{HF}, 4, s50")
    for q_ in range(4):
        a(f"ds_write_b128 v8, v[{212+4*q_}:{212+4*q_+3}] offset:{L_CS + 128 + q_*32}")
    a("s_mov_b64 exec, -1")
    a("s_waitcnt lgkmcnt(0)")
    a("s_barrier")
    stamp(a, 7)
    a("s_waitcnt vmcnt(0)")
    a(f"ds_write_b32 v86, v87 offset:{L_FL+16}")
    srd(a, 64, 10, 401408)
    a("s_lshr_b32 s60, s2, 3")
    a("s_lshl_b32 s60, s60, 2")
    a("s_add_u32 s60, s60, s39")
    a(f"v_lshlrev_b32 v247, 7, v{LANE}")
    a(f"v_mov_b32 v248, 0x7fff0000")
    a(f"v_cmp_gt_u32 vcc, 25, v{LANE}")
    a(f"v_cndmask_b32 v249, v248, v247, vcc")
    a("s_mul_i32 s61, s60, 3200")
    a("buffer_load_dword v250, v249, s[64:67], s61 offen")
    a(f"v_cmp_gt_u32 vcc, 32, v{LANE}")
    a(f"v_cndmask_b32 v249, v248, v247, vcc")
    a("s_lshl_b32 s61, s60, 12")
    srd(a, 64, 56, 1605632)
    a("buffer_load_dword v251, v249, s[64:67], s61 offen")
    srd(a, 64, 58, 1605632)
    a("buffer_load_dword v252, v249, s[64:67], s61 offen")
    a(f"v_cmp_gt_u32 vcc, 13, v{LANE}")
    a(f"v_cndmask_b32 v249, v248, v247, vcc")
    a("s_lshl_b32 s61, s2, 2")
    a("s_add_u32 s61, s61, s39")
    a("s_mul_i32 s61, s61, 1664")
    srd(a, 64, 68, 1605632)
    a("buffer_load_dword v253, v249, s[64:67], s61 offen")
    a("K1_QPOLL:")
    a(f"ds_read_b128 v[88:91], v85 offset:{L_FL+16}")
    a("s_waitcnt lgkmcnt(0)")
    a("v_and_b32 v88, v88, v89")
    a("v_and_b32 v90, v90, v91")
    a("v_and_b32 v88, v88, v90")
    a("v_readfirstlane_b32 s51, v88")
    a("s_cmp_eq_u32 s51, 0")
    a("s_cbranch_scc1 K1_QPOLL")
    AQ, ACS = 14, 212
    stats_reads(66)
    wp_reads(92)
    LQ = 4
    def qrd(kk):
        b = 34 + (kk % 6) * 4
        for e in range(2):
            a(f"ds_read_b64_tr_b16 v[{b+2*e}:{b+2*e+1}], v246 offset:{kk*1024 + e*256}")
    for kk in range(LQ): qrd(kk)
    fin = Asm()
    fin("v_add_f32 v67, v67, v68")
    stats_finish(fin, 66, 67, 68, 69, 70)
    fin(f"v_mul_f32 v71, s44, v69")
    fo = [i.text for i in fin.ins]
    for kk in range(28):
        if kk + LQ < 28: qrd(kk + LQ)
        a(f"s_waitcnt lgkmcnt({2*min(LQ, 27-kk)})")
        b = 34 + (kk % 6) * 4
        c0 = "0" if kk == 0 else None
        a(f"v_mfma_f32_32x32x16_bf16 v[{AQ}:{AQ+15}], v[{b}:{b+3}], v[{100+4*kk}:{100+4*kk+3}], " + (c0 or f"v[{AQ}:{AQ+15}]"))
        a(f"v_mfma_f32_32x32x16_bf16 v[{ACS}:{ACS+15}], v[{b}:{b+3}], v[80:83], " + (c0 or f"v[{ACS}:{ACS+15}]"))
        if fo: a(fo.pop(0))
    QFR = 132
    a("s_lshl_b32 s50, s36, 2")
    a("s_add_u32 s50, s50, s39")
    a("s_lshl_b32 s50, s50, 4")
    a("s_add_u32 s50, s50, s37")
    a("s_lshl_b32 s50, s50, 12")
    a(f"s_add_u32 s50, s50, {WS_PHIQ}")
    a(f"v_lshlrev_b32 v7, 4, v{LANE}")
    center_pack(AQ, ACS, 68, QFR)
    a(f"v_cndmask_b32 v{QFR+6}, v{QFR+6}, 0, s[42:43]")
    a(f"v_cndmask_b32 v{QFR+7}, v{QFR+7}, 0, s[42:43]")
    PQ = 148
    a(f"v_mfma_f32_32x32x16_bf16 v[{PQ}:{PQ+15}], v[92:95], v[{QFR}:{QFR+3}], 0")
    a(f"v_mfma_f32_32x32x16_bf16 v[{PQ}:{PQ+15}], v[96:99], v[{QFR+4}:{QFR+7}], v[{PQ}:{PQ+15}]")
    softmax_pm(a, PQ, 164, 180, 36, 44, 52, 42, 71)
    for s_ in range(4):
        a(f"buffer_store_dwordx4 v[{36+4*s_}:{36+4*s_+3}], v7, s[32:35], s50 offen offset:{s_*1024}")
    stamp(a, 8)
    a("K1_FIN:")
    if STAMPS: a("s_waitcnt vmcnt(0)")
    stamp(a, 9)
    stamp_flush(a, 38, 32)
    a("K1_END:")
    a("s_endpgm")
    a.fix_hazards()
    return a.text(), kd("k1_kernel", 256)
```

```python
import sys
from asmfw import Asm

WS_KV   = 0
WS_CS   = 512 * 1024
WS_ST   = 640 * 1024
WS_PHIQ = 1 << 20
WS_H    = 8 << 20
WS_HH   = 16 << 20
WS_SIZE = 268435456
LOG2E = 0x3fb8aa3b

class VM:
    def __init__(self, a): self.a = a; self.ops = []
    def issue(self, tag): self.ops.append(tag)
    def wait(self, tag, extra=0):
        idx = max(i for i, t in enumerate(self.ops) if t == tag)
        n = len(self.ops) - 1 - idx + extra
        assert n <= 63
        self.a("s_waitcnt vmcnt(%d)" % n)
    def copy(self):
        v = VM(self.a); v.ops = list(self.ops); return v

def srd(a, d, ptr, size):
    a(f"s_mov_b32 s{d}, s{ptr}")
    a(f"s_mov_b32 s{d+1}, s{ptr+1}")
    a(f"s_mov_b32 s{d+2}, {size}")
    a(f"s_mov_b32 s{d+3}, 0x00020000")

def bf16r(a, dst, src, tmp=None):
    a(f"v_cvt_pk_bf16_f32 v{dst}, v{src}, v{src}")
    a(f"v_and_b32 v{dst}, 0xffff0000, v{dst}")

def xhalf(a, op, dst, src, t1, t2):
    a(f"v_mov_b32 v{t1}, v{src}")
    a(f"v_mov_b32 v{t2}, v{src}")
    a(f"v_permlane32_swap_b32 v{t1}, v{t2}")
    a(f"{op} v{dst}, v{t1}, v{t2}")

def ln_stats_finish(a, vs, vq, v_mr, v_rstd, t1, t2, t3):
    xhalf(a, "v_add_f32", vs, vs, t1, t2)
    xhalf(a, "v_add_f32", vq, vq, t1, t2)
    a(f"v_mul_f32 v{vs}, 0x3b124925, v{vs}")
    a(f"v_mul_f32 v{vq}, 0x3b124925, v{vq}")
    a(f"v_fma_f32 v{vq}, -v{vs}, v{vs}, v{vq}")
    a(f"v_max_f32 v{vq}, 0, v{vq}")
    bf16r(a, vs, vs)
    bf16r(a, vq, vq)
    a(f"v_add_f32 v{vq}, 0x3727c5ac, v{vq}")
    bf16r(a, vq, vq)
    a(f"v_sqrt_f32 v{vq}, v{vq}")
    bf16r(a, vq, vq)
    a(f"v_rcp_f32 v{v_rstd}, v{vq}")
    a(f"v_mul_f32 v{v_mr}, v{vs}, v{v_rstd}")

def softmax_pm(a, P, E, F, OP, ON, T, s_hi, SC, OSC=None):
    for r in range(12, 16):
        a(f"v_cndmask_b32 v{P+r}, v{P+r}, v{P}, s[{s_hi}:{s_hi+1}]")
    mx, mn, t1, t2, se, sf = T, T+1, T+2, T+3, T+4, T+5
    a(f"v_max3_f32 v{mx}, v{P}, v{P+1}, v{P+2}")
    a(f"v_min3_f32 v{mn}, v{P}, v{P+1}, v{P+2}")
    for r in range(3, 15, 2):
        a(f"v_max3_f32 v{mx}, v{mx}, v{P+r}, v{P+r+1}")
        a(f"v_min3_f32 v{mn}, v{mn}, v{P+r}, v{P+r+1}")
    a(f"v_max_f32 v{mx}, v{mx}, v{P+15}")
    a(f"v_min_f32 v{mn}, v{mn}, v{P+15}")
    a(f"v_mov_b32 v{t1}, v{mx}")
    a(f"v_mov_b32 v{se}, v{mn}")
    a(f"v_permlane32_swap_b32 v{t1}, v{mx}")
    a(f"v_permlane32_swap_b32 v{se}, v{mn}")
    a(f"v_max_f32 v{mx}, v{t1}, v{mx}")
    a(f"v_min_f32 v{mn}, v{se}, v{mn}")
    a(f"v_mul_f32 v{mx}, v{SC}, v{mx}")
    a(f"v_mul_f32 v{mn}, v{SC}, v{mn}")
    for r in range(16):
        a(f"v_fma_f32 v{E+r}, v{P+r}, v{SC}, -v{mx}")
        a(f"v_fma_f32 v{F+r}, -v{P+r}, v{SC}, v{mn}")
        if r >= 1:
            a(f"v_exp_f32 v{E+r-1}, v{E+r-1}")
            a(f"v_exp_f32 v{F+r-1}, v{F+r-1}")
    a(f"v_exp_f32 v{E+15}, v{E+15}")
    a(f"v_exp_f32 v{F+15}, v{F+15}")
    a(f"v_add_f32 v{se}, v{E}, v{E+1}")
    a(f"v_add_f32 v{sf}, v{F}, v{F+1}")
    a(f"v_add_f32 v{t1}, v{E+2}, v{E+3}")
    a(f"v_add_f32 v{t2}, v{F+2}, v{F+3}")
    for r in range(4, 12, 2):
        a(f"v_add_f32 v{se}, v{se}, v{E+r}")
        a(f"v_add_f32 v{sf}, v{sf}, v{F+r}")
        a(f"v_add_f32 v{t1}, v{t1}, v{E+r+1}")
        a(f"v_add_f32 v{t2}, v{t2}, v{F+r+1}")
    for r in range(12, 16):
        a(f"v_cndmask_b32 v{E+r}, v{E+r}, 0, s[{s_hi}:{s_hi+1}]")
        a(f"v_cndmask_b32 v{F+r}, v{F+r}, 0, s[{s_hi}:{s_hi+1}]")
    for r in range(12, 16, 2):
        a(f"v_add_f32 v{se}, v{se}, v{E+r}")
        a(f"v_add_f32 v{sf}, v{sf}, v{F+r}")
        a(f"v_add_f32 v{t1}, v{t1}, v{E+r+1}")
        a(f"v_add_f32 v{t2}, v{t2}, v{F+r+1}")
    a(f"v_add_f32 v{se}, v{se}, v{t1}")
    a(f"v_add_f32 v{sf}, v{sf}, v{t2}")
    a(f"v_mov_b32 v{t1}, v{se}")
    a(f"v_mov_b32 v{t2}, v{sf}")
    a(f"v_permlane32_swap_b32 v{t1}, v{se}")
    a(f"v_permlane32_swap_b32 v{t2}, v{sf}")
    a(f"v_add_f32 v{se}, v{t1}, v{se}")
    a(f"v_add_f32 v{sf}, v{t2}, v{sf}")
    a(f"v_rcp_f32 v{se}, v{se}")
    a(f"v_rcp_f32 v{sf}, v{sf}")
    if OSC is not None:
        a(f"v_mul_f32 v{se}, v{se}, v{OSC}")
        a(f"v_mul_f32 v{sf}, v{sf}, v{OSC}")
    for i in range(8):
        a(f"v_mul_f32 v{E+2*i}, v{E+2*i}, v{se}")
        a(f"v_mul_f32 v{E+2*i+1}, v{E+2*i+1}, v{se}")
        a(f"v_cvt_pk_bf16_f32 v{OP+i}, v{E+2*i}, v{E+2*i+1}")
    for i in range(8):
        a(f"v_mul_f32 v{F+2*i}, v{F+2*i}, v{sf}")
        a(f"v_mul_f32 v{F+2*i+1}, v{F+2*i+1}, v{sf}")
        a(f"v_cvt_pk_bf16_f32 v{ON+i}, v{F+2*i}, v{F+2*i+1}")

def stats_finish(a, vs, vq, v_nmean, v_rstd, v_sd):
    a(f"v_mul_f32 v{vs}, 0x3b124925, v{vs}")
    a(f"v_mul_f32 v{vq}, 0x3b124925, v{vq}")
    a(f"v_fma_f32 v{vq}, -v{vs}, v{vs}, v{vq}")
    a(f"v_max_f32 v{vq}, 0, v{vq}")
    a(f"v_cvt_pk_bf16_f32 v{vs}, v{vq}, v{vs}")
    a(f"v_lshlrev_b32 v{vq}, 16, v{vs}")
    a(f"v_and_b32 v{vs}, 0xffff0000, v{vs}")
    a(f"v_add_f32 v{vq}, 0x3727c5ac, v{vq}")
    a(f"v_xor_b32 v{v_nmean}, 0x80000000, v{vs}")
    bf16r(a, vq, vq)
    a(f"v_sqrt_f32 v{vq}, v{vq}")
    bf16r(a, v_sd, vq)
    a(f"v_rcp_f32 v{v_rstd}, v{v_sd}")

def kd(name, vgpr, sgpr=102):
    acc = (vgpr + 3) // 4 * 4
    return f""".p2align 6
.amdhsa_kernel {name}
  .amdhsa_next_free_vgpr {vgpr}
  .amdhsa_next_free_sgpr {sgpr}
  .amdhsa_accum_offset {min(acc,256)}
  .amdhsa_group_segment_fixed_size 0
  .amdhsa_kernarg_size 88
  .amdhsa_user_sgpr_count 2
  .amdhsa_user_sgpr_kernarg_segment_ptr 1
  .amdhsa_system_sgpr_workgroup_id_x 1
.end_amdhsa_kernel"""

WS_STAMP = 64 << 20
import os
STAMPS = bool(int(os.environ.get("STAMPS", "0")))
def stamp(a, idx, real=False):
    if not STAMPS: return
    a(f"s_memrealtime s[{80+2*idx}:{81+2*idx}]" if real else f"s_memtime s[{80+2*idx}:{81+2*idx}]")

def stamp_init(a):
    if not STAMPS: return
    for i in range(80, 100): a(f"s_mov_b32 s{i}, 0")

def stamp_flush(a, s_wave, ws_srd, koff=0):
    if not STAMPS: return
    a("s_waitcnt lgkmcnt(0)")
    a("s_lshl_b32 s3, s2, 3")
    a(f"s_add_u32 s3, s3, s{s_wave}")
    a("s_lshl_b32 s3, s3, 6")
    a(f"s_add_u32 s3, s3, {WS_STAMP + koff*(1<<20)}")
    a("v_mov_b32 v1, s3")
    for i in range(10):
        a(f"v_mov_b32 v0, s{80+2*i}")
        a(f"buffer_store_dword v0, v1, s[{ws_srd}:{ws_srd+3}], 0 offen offset:{i*4}")

def head(a, name):
    a.raw(f".globl {name}\n.p2align 8\n.type {name},@function")
    a(f"{name}:")

K1_CS   = 0
K1_FL   = 448
K1_SQ   = 512
K1_SM   = 1536
K1_WP   = 2048
K1_RING = 4096
K1_SLOT = 28672
K1_LDS  = K1_RING + 5 * K1_SLOT
K1_PHIK = K1_RING
K1_V    = K1_PHIK + 16384

NPRE = int(os.environ.get('NPRE', '2'))
TLBW = int(os.environ.get('TLBW', '0'))
CODEPF = int(os.environ.get('CODEPF', '0'))
def gen_k1():
    a = Asm()
    head(a, "k1_kernel")
    a("s_cmp_ge_u32 s2, 256")
    a("s_cbranch_scc1 K1_END")
    stamp_init(a)
    stamp(a, 0, real=True)
    stamp(a, 1)
    a("s_load_dwordx4 s[4:7], s[0:1], 0")
    a("s_load_dwordx4 s[8:11], s[0:1], 16")
    a("s_load_dwordx4 s[12:15], s[0:1], 72")
    a("s_load_dwordx4 s[56:59], s[0:1], 40")
    a("s_load_dwordx4 s[68:71], s[0:1], 56")
    LANE, M, HF, I16, G = 1, 2, 3, 4, 5
    a(f"v_and_b32 v{LANE}, 63, v0")
    a(f"v_lshrrev_b32 v6, 6, v0")
    a(f"v_readfirstlane_b32 s38, v6")
    a(f"v_and_b32 v{M}, 31, v{LANE}")
    a(f"v_lshrrev_b32 v{HF}, 5, v{LANE}")
    a(f"v_and_b32 v{I16}, 15, v{LANE}")
    a(f"v_lshrrev_b32 v{G}, 4, v{LANE}")
    a("s_and_b32 s36, s2, 7")
    a("s_lshl_b32 s36, s36, 1")
    a("s_bfe_u32 s37, s2, 0x10003")
    a("s_add_u32 s36, s36, s37")
    a("s_lshr_b32 s37, s2, 4")
    a("s_and_b32 s39, s38, 3")
    a("s_lshr_b32 s40, s38, 2")
    a("s_mov_b32 s42, 0")
    a("s_mov_b32 s43, -1")
    a(f"s_mov_b32 s44, {LOG2E}")
    a("s_mov_b32 s45, 0x3f803f80")
    a("s_mov_b32 s41, 0xffff0000")
    a("s_cmp_eq_u32 s40, 1")
    a("s_cbranch_scc1 K1_Q")

    PAT = 30
    def common_setup_early(vm):
        a("s_waitcnt lgkmcnt(0)")
        srd(a, 16, 4, 1835008)
        srd(a, 20, 6, 1204224)
        srd(a, 24, 8, 25088)
        srd(a, 28, 12, 256)
        srd(a, 32, 14, WS_SIZE)
        pass
    def rot_table(mult):
        a("s_and_b32 s60, s36, 1")
        a("s_mul_i32 s60, s60, 3")
        a("s_add_u32 s60, s60, s37")
        for _ in range(2):
            a("s_cmp_ge_u32 s60, 7")
            a("s_cselect_b32 s61, 7, 0")
            a("s_sub_u32 s60, s60, s61")
        a("s_mov_b32 s67, s60")
        for c in range(7):
            a(f"s_mul_i32 s{60+c}, s67, {mult}")
            a(f"s_add_u32 s{60+c}, s{60+c}, s47")
            if c < 6:
                a("s_add_u32 s67, s67, 1")
                a("s_cmp_ge_u32 s67, 7")
                a("s_cselect_b32 s67, 0, s67")
    def tail_prefetch():
        srd(a, 64, 10, 401408)
        a("s_lshr_b32 s60, s2, 3")
        a("s_lshl_b32 s60, s60, 2")
        a("s_add_u32 s60, s60, s39")
        a(f"v_lshlrev_b32 v226, 7, v{LANE}")
        a(f"v_mov_b32 v227, 0x7fff0000")
        a(f"v_cmp_gt_u32 vcc, 25, v{LANE}")
        a(f"v_cndmask_b32 v228, v227, v226, vcc")
        a("s_mul_i32 s61, s60, 3200")
        a("buffer_load_dword v229, v228, s[64:67], s61 offen")
        a(f"v_cmp_gt_u32 vcc, 32, v{LANE}")
        a(f"v_cndmask_b32 v228, v227, v226, vcc")
        a("s_lshl_b32 s61, s60, 12")
        srd(a, 64, 56, 1605632)
        a("buffer_load_dword v230, v228, s[64:67], s61 offen")
        srd(a, 64, 58, 1605632)
        a("buffer_load_dword v231, v228, s[64:67], s61 offen")
        a(f"v_cmp_gt_u32 vcc, 13, v{LANE}")
        a(f"v_cndmask_b32 v228, v227, v226, vcc")
        a("s_lshl_b32 s61, s2, 2")
        a("s_add_u32 s61, s61, s39")
        a("s_mul_i32 s61, s61, 1664")
        srd(a, 64, 68, 1605632)
        a("buffer_load_dword v225, v228, s[64:67], s61 offen")
        if TLBW:
            a("s_and_b32 s62, s2, 7")
            a("s_mul_i32 s61, s62, 917504")
            a("s_lshl_b32 s63, s60, 13")
            a("s_add_u32 s61, s61, s63")
            a(f"s_add_u32 s61, s61, {WS_HH}")
            a(f"v_lshlrev_b32 v228, 12, v{LANE}")
            a("s_mov_b64 exec, 3")
            a("buffer_load_dword v224, v228, s[32:35], s61 offen")
            a("s_mov_b64 exec, 1")
            a("s_mul_i32 s61, s62, 229376")
            a("s_mul_i32 s63, s60, 1792")
            a("s_add_u32 s61, s61, s63")
            srd(a, 64, 70, 1835008)
            a("buffer_load_dword v227, v228, s[64:67], s61 offen")
            a(f"s_add_u32 s61, s61, {WS_H}")
            a("buffer_load_dword v226, v228, s[32:35], s61 offen")
            a("s_mov_b64 exec, -1")
    XV = 200; TB = 212
    def common_setup_late():
        a(f"v_lshrrev_b32 v7, 2, v{I16}")
        a(f"v_lshl_add_u32 v7, v{HF}, 3, v7")
        a(f"v_mul_u32_u24 v7, 192, v7")
        a(f"v_and_b32 v8, 1, v{G}")
        a(f"v_lshlrev_b32 v8, 2, v8")
        a(f"v_and_b32 v9, 3, v{I16}")
        a(f"v_add_u32 v8, v8, v9")
        a(f"v_lshl_add_u32 v7, v8, 3, v7")
        a("s_and_b32 s50, s37, 1")
        a("s_lshl_b32 s50, s50, 3")
        a(f"s_add_u32 s50, s50, {K1_RING + 16384}")
        a(f"v_add_u32 v{TB}, s50, v7")
        a(f"v_add_u32 v{TB+1}, {2*K1_SLOT}, v{TB}")
        a(f"v_add_u32 v{TB+2}, {4*K1_SLOT}, v{TB}")
        a("s_min_u32 s50, s39, 2")
        a("s_lshl_b32 s50, s50, 6")
        for st in range(3):
            a(f"v_add_u32 v{TB+3+st}, s50, v{TB+st}")
        a("s_lshl_b32 s50, s39, 5")
        a(f"v_add_u32 v7, s50, v{M}")
        a(f"v_lshrrev_b32 v8, 1, v7")
        a(f"v_and_b32 v8, 7, v8")
        a(f"v_xor_b32 v8, v8, v{HF}")
        a(f"v_lshlrev_b32 v8, 4, v8")
        a(f"v_lshl_add_u32 v11, v7, 7, v8")
        for p in range(4):
            a(f"v_xor_b32 v7, {p*32}, v11")
            for st in range(3):
                a(f"v_add_u32 v{XV+4*st+p}, {K1_RING + 2*st*K1_SLOT}, v7")

    LA = 2
    def mainloop(segs, ACC, XFb, WF, SQ, qrole, vm, dma_ops):
        ns = len(segs)
        NB = LA + 1
        a(f"v_mov_b32 v{SQ}, 0"); a(f"v_mov_b32 v{SQ+1}, 0")
        nr = 1 + 2 * ns
        def emit(op):
            for t_ in op[1]: a(t_)
            vm.issue(op[0])
        def reads(kk):
            c = kk // 4; slot = c % 5; p = kk % 4
            st = slot // 2; so = slot % 2
            xb = XFb + (kk % NB) * 4
            a(f"ds_read_b128 v[{xb}:{xb+3}], v{XV+4*st+p} offset:{so*K1_SLOT}")
            b = WF + (kk % NB) * ns * 4
            for i, sg in enumerate(segs):
                off = so * K1_SLOT + p * 3072 + (0 if sg == "cs" else sg * 64)
                tb = TB + st + (3 if sg == "cs" else 0)
                a(f"ds_read_b64_tr_b16 v[{b+4*i}:{b+4*i+1}], v{tb} offset:{off}")
                a(f"ds_read_b64_tr_b16 v[{b+4*i+2}:{b+4*i+3}], v{tb} offset:{off+768}")
        stamp(a, 2)
        vm.wait("c0")
        a("s_barrier")
        for c in range(NPRE, 5):
            for op in dma_ops(c): emit(op)
        stamp(a, 3)
        queue = []
        for kk in range(LA): reads(kk)
        for kk in range(28):
            nk = kk + LA
            if nk < 28:
                if nk % 4 == 0:
                    c = nk // 4
                    while any(op[0] == f"c{c}" for op in queue): emit(queue.pop(0))
                    vm.wait(f"c{c}")
                    a("s_barrier")
                    if c in (2, 4): stamp(a, 3 + c // 2)
                    if c in (2, 3): queue += dma_ops(c + 3)
                reads(nk)
            out = min(28 - 1 - kk, LA) * nr
            a(f"s_waitcnt lgkmcnt({out})")
            b = WF + (kk % NB) * ns * 4
            xb = XFb + (kk % NB) * 4
            c0 = "0" if kk == 0 else None
            if qrole:
                for r in range(4):
                    a(f"v_cndmask_b32 v{qrole+r}, v{b+r}, v{qrole+4}, s[52:53]")
                a(f"v_mfma_f32_32x32x16_bf16 v[{ACC[1]}:{ACC[1]+15}], v[{b+4}:{b+7}], v[{qrole+4}:{qrole+7}], " + (c0 or f"v[{ACC[1]}:{ACC[1]+15}]"))
                a(f"v_lshlrev_b32 v10, 16, v{xb}")
                a(f"v_and_b32 v11, s41, v{xb}")
                a(f"v_fmac_f32 v{SQ}, v10, v10")
                a(f"v_fmac_f32 v{SQ+1}, v11, v11")
                a(f"v_mfma_f32_32x32x16_bf16 v[{ACC[0]}:{ACC[0]+15}], v[{qrole}:{qrole+3}], v[{xb}:{xb+3}], " + (c0 or f"v[{ACC[0]}:{ACC[0]+15}]"))
                a(f"v_lshlrev_b32 v10, 16, v{xb+1}")
                a(f"v_and_b32 v11, s41, v{xb+1}")
                a(f"v_fmac_f32 v{SQ}, v10, v10")
                a(f"v_fmac_f32 v{SQ+1}, v11, v11")
            else:
                for i in range(ns):
                    a(f"v_mfma_f32_32x32x16_bf16 v[{ACC[i]}:{ACC[i]+15}], v[{b+4*i}:{b+4*i+3}], v[{xb}:{xb+3}], " + (c0 or f"v[{ACC[i]}:{ACC[i]+15}]"))
                    a(f"v_lshlrev_b32 v10, 16, v{xb+2+i}")
                    a(f"v_and_b32 v11, s41, v{xb+2+i}")
                    a(f"v_fmac_f32 v{SQ}, v10, v10")
                    a(f"v_fmac_f32 v{SQ+1}, v11, v11")
            if queue: emit(queue.pop(0))
            if queue: emit(queue.pop(0))
        stamp(a, 6)
        a(f"v_add_f32 v{SQ}, v{SQ}, v{SQ+1}")
        a(f"v_lshlrev_b32 v7, 2, v{M}")
        a("s_lshl_b32 s50, s39, 7")
        a(f"v_add_u32 v9, s50, v7")
        xhalf(a, "v_add_f32", SQ, SQ, 10, 11)
        a(f"ds_write_b32 v9, v{SQ} offset:{K1_SQ + (512 if qrole else 0)}")

    def post_reads(segs, dsts, WPF, ST):
        a(f"v_lshlrev_b32 v8, 4, v{HF}")
        a(f"ds_read_b32 v{ST}, v9 offset:{K1_SM}")
        a(f"ds_read_b32 v{ST+1}, v9 offset:{K1_SQ}")
        a(f"ds_read_b32 v{ST+2}, v9 offset:{K1_SQ+512}")
        for sg, dst in zip(segs, dsts):
            for q in range(4):
                a(f"ds_read_b128 v[{dst+4*q}:{dst+4*q+3}], v8 offset:{K1_CS + sg*128 + q*32}")
        for s_ in range(2):
            for e in range(2):
                a(f"ds_read_b64_tr_b16 v[{WPF+4*s_+2*e}:{WPF+4*s_+2*e+1}], v12 offset:{K1_WP + (16*s_+8*e)*56}")

    def wp_addr():
        a(f"v_lshrrev_b32 v7, 2, v{I16}")
        a(f"v_lshl_add_u32 v7, v{HF}, 2, v7")
        a(f"v_mul_u32_u24 v7, 56, v7")
        a(f"v_and_b32 v8, 1, v{G}")
        a(f"v_lshlrev_b32 v8, 2, v8")
        a(f"v_and_b32 v9, 3, v{I16}")
        a(f"v_add_u32 v8, v8, v9")
        a(f"v_lshl_add_u32 v12, v8, 3, v7")

    def center_pack(ACC, CSV, NM, OUT):
        for i in range(8):
            a(f"v_fmac_f32 v{ACC+2*i}, v{CSV+2*i}, v{NM}")
            a(f"v_fmac_f32 v{ACC+2*i+1}, v{CSV+2*i+1}, v{NM}")
            a(f"v_cvt_pk_bf16_f32 v{OUT+i}, v{ACC+2*i}, v{ACC+2*i+1}")

    vmk = VM(a)
    for t in range(3):
        a(f"v_add_u32 v7, {t*64}, v{LANE}")
        a(f"v_mul_u32_u24 v8, 171, v7")
        a(f"v_lshrrev_b32 v8, 11, v8")
        a(f"v_mul_u32_u24 v9, 12, v8")
        a(f"v_sub_u32 v9, v7, v9")
        a(f"v_mul_u32_u24 v8, 2688, v8")
        a(f"v_lshrrev_b32 v7, 2, v9")
        a(f"v_mul_u32_u24 v7, 896, v7")
        a(f"v_and_b32 v9, 3, v9")
        a(f"v_lshlrev_b32 v9, 4, v9")
        a(f"v_add3_u32 v{PAT+t}, v7, v8, v9")
    a("s_mul_i32 s47, s37, 56")
    a("s_and_b32 s47, s47, 0xfffffff0")
    a("s_mul_i32 s48, s39, 43008")
    a("s_add_u32 s47, s47, s48")
    a("s_mul_i32 s49, s39, 3072")
    rot_table(64*2688)
    common_setup_early(vmk)
    if CODEPF:
        a("s_getpc_b64 s[72:73]")
        a("K1_PC:")
        a("s_sub_u32 s72, s72, K1_PC-k1_kernel")
        a("s_subb_u32 s73, s73, 0")
        a("s_mov_b32 s74, K3_END-k1_kernel")
        a("s_mov_b32 s75, 0x00020000")
        a("s_lshr_b32 s76, s2, 3")
        a("s_lshl_b32 s76, s76, 2")
        a("s_add_u32 s76, s76, s39")
        a("s_lshl_b32 s76, s76, 9")
        a(f"v_lshlrev_b32 v224, 7, v{LANE}")
        a("s_mov_b64 exec, 15")
        a("buffer_load_dword v225, v224, s[72:75], s76 offen")
        a("s_mov_b64 exec, -1")
        vmk.issue("cpf")
    def dma_w(c):
        return [(f"c{c}", [f"s_add_u32 m0, s49, {K1_RING + (c%5)*K1_SLOT + 16384 + t*1024}",
                           f"buffer_load_dwordx4 v{PAT+t}, s[20:23], s{60+c} offen lds"]) for t in range(3)]
    for c in range(NPRE):
        for op in dma_w(c):
            for t_ in op[1]: a(t_)
            vmk.issue(op[0])
    a("s_mul_i32 s50, s37, 1568")
    a("s_and_b32 s51, s39, 1")
    a("s_lshl_b32 s51, s51, 10")
    a("s_add_u32 s50, s50, s51")
    a(f"s_add_u32 m0, s51, {K1_WP}")
    a(f"v_lshlrev_b32 v7, 4, v{LANE}")
    a("buffer_load_dwordx4 v7, s[24:27], s50 offen lds")
    vmk.issue("c0")
    common_setup_late()
    wp_addr()
    a("s_lshl_b32 s50, s39, 5")
    a(f"v_add_u32 v7, s50, v{M}")
    a(f"v_lshrrev_b32 v8, 1, v7")
    a(f"v_and_b32 v8, 7, v8")
    a(f"v_xor_b32 v8, v8, v{HF}")
    a(f"v_lshlrev_b32 v8, 3, v8")
    a(f"v_lshl_add_u32 v74, v7, 6, v8")
    a(f"v_lshrrev_b32 v8, 1, v7")
    a(f"v_and_b32 v8, 1, v8")
    a(f"v_lshlrev_b32 v8, 3, v8")
    a(f"v_and_b32 v9, 1, v7")
    a(f"v_or_b32 v8, v8, v9")
    a(f"v_lshrrev_b32 v9, 2, v7")
    a(f"v_and_b32 v9, 3, v9")
    a(f"v_lshl_or_b32 v8, v9, 1, v8")
    a(f"v_xor_b32 v8, v8, v{HF}")
    a(f"v_lshlrev_b32 v8, 3, v8")
    a(f"v_lshl_add_u32 v75, v7, 7, v8")
    a(f"v_lshrrev_b32 v7, 2, v{I16}")
    a(f"v_lshl_add_u32 v7, v{HF}, 3, v7")
    a(f"v_and_b32 v8, 1, v{G}")
    a(f"v_lshlrev_b32 v8, 2, v8")
    a(f"v_and_b32 v9, 3, v{I16}")
    a(f"v_add_u32 v8, v8, v9")
    for e in range(2):
        a(f"v_add_u32 v9, {4*e}, v7")
        a(f"v_lshrrev_b32 v10, 1, v9")
        a(f"v_xor_b32 v10, v10, v8")
        a(f"v_lshlrev_b32 v10, 3, v10")
        a(f"v_lshl_add_u32 v{76+e}, v9, 6, v10")
        a(f"v_lshrrev_b32 v10, 1, v9")
        a(f"v_and_b32 v10, 1, v10")
        a(f"v_lshlrev_b32 v10, 3, v10")
        a(f"v_and_b32 v11, 1, v9")
        a(f"v_or_b32 v10, v10, v11")
        a(f"v_lshrrev_b32 v11, 2, v9")
        a(f"v_lshl_or_b32 v10, v11, 1, v10")
        a(f"v_xor_b32 v10, v10, v8")
        a(f"s_lshl_b32 s50, s39, 3")
        a(f"v_xor_b32 v10, s50, v10")
        a(f"v_lshlrev_b32 v10, 3, v10")
        a(f"v_lshl_add_u32 v{78+e}, v9, 7, v10")
    a("s_lshl_b32 s50, s37, 13")
    a("s_lshl_b32 s51, s39, 7")
    a("s_add_u32 s50, s50, s51")
    a(f"v_lshlrev_b32 v80, 10, v{HF}")
    a(f"v_lshl_add_u32 v80, v{M}, 2, v80")
    a(f"v_add_u32 v80, s50, v80")
    a(f"v_add_u32 v81, 4096, v80")
    for r in range(4): a(f"v_mov_b32 v{82+r}, 0")
    a(f"ds_write_b128 v82, v[82:85] offset:{K1_FL}")
    a("s_lshl_b32 s50, s39, 2")
    a("v_mov_b32 v86, s50")
    a("v_mov_b32 v87, 1")
    a("s_waitcnt lgkmcnt(0)")
    AK, AV = 100, 116
    mainloop([1, 2], [AK, AV], 34, 46, 72, None, vmk, dma_w)
    a("s_waitcnt lgkmcnt(0)")
    a("s_barrier")
    stamp(a, 7)
    a("s_setprio 2")
    CK, CV = 34, 50
    post_reads([1, 2], [CK, CV], 92, 66)
    a("s_lshl_b32 s50, s2, 7")
    a(f"s_add_u32 s50, s50, {768*1024}")
    a("v_mov_b32 v13, 0")
    a(f"v_lshlrev_b32 v14, 2, v{LANE}")
    a("s_mov_b64 exec, 0xff")
    a("buffer_store_dword v13, v14, s[32:35], s50 offen")
    a("s_mov_b64 exec, -1")
    a("s_lshl_b32 s50, s37, 2")
    a("s_add_u32 s50, s50, 64")
    a("v_mov_b32 v13, s50")
    a("buffer_load_dword v14, v13, s[28:31], 0 offen sc1")
    a("s_waitcnt lgkmcnt(12)")
    a("v_add_f32 v67, v67, v68")
    stats_finish(a, 66, 67, 68, 69, 70)
    a("s_waitcnt lgkmcnt(0)")
    KFR, VFR = 132, 140
    center_pack(AK, CK, 68, KFR)
    a(f"v_cndmask_b32 v{KFR+6}, v{KFR+6}, 0, s[42:43]")
    a(f"v_cndmask_b32 v{KFR+7}, v{KFR+7}, 0, s[42:43]")
    PK = 148
    a(f"v_mfma_f32_32x32x16_bf16 v[{PK}:{PK+15}], v[92:95], v[{KFR}:{KFR+3}], 0")
    a(f"v_mfma_f32_32x32x16_bf16 v[{PK}:{PK+15}], v[96:99], v[{KFR+4}:{KFR+7}], v[{PK}:{PK+15}]")
    center_pack(AV, CV, 68, VFR)
    a(f"v_lshrrev_b32 v9, 16, v70")
    a(f"v_mul_f32 v71, s44, v69")
    a(f"v_cndmask_b32 v{VFR+6}, v{VFR+6}, v9, s[42:43]")
    a(f"v_cndmask_b32 v{VFR+7}, v{VFR+7}, 0, s[42:43]")
    for q in range(4):
        a(f"v_xor_b32 v9, {q*16}, v74")
        a(f"ds_write_b64 v9, v[{VFR+2*q}:{VFR+2*q+1}] offset:{K1_V}")
    E, F, OP, ON, T = 164, 180, 34, 42, 50
    softmax_pm(a, PK, E, F, OP, ON, T, 42, 71, 69)
    for t, src in ((0, OP), (1, ON)):
        for q in range(4):
            a(f"v_xor_b32 v9, {(8*t+2*q)*8}, v75")
            a(f"ds_write_b64 v9, v[{src+2*q}:{src+2*q+1}] offset:{K1_PHIK}")
    a("s_waitcnt lgkmcnt(0)")
    a(f"ds_write_b32 v86, v87 offset:{K1_FL}")
    a("s_cmp_ge_u32 s39, 2")
    a("s_cbranch_scc1 K1_FIN")
    a("K1_LPOLL:")
    a(f"ds_read_b128 v[88:91], v82 offset:{K1_FL}")
    a("s_waitcnt lgkmcnt(0)")
    a("v_and_b32 v88, v88, v89")
    a("v_and_b32 v90, v90, v91")
    a("v_and_b32 v88, v88, v90")
    a("v_readfirstlane_b32 s51, v88")
    a("s_cmp_eq_u32 s51, 0")
    a("s_cbranch_scc1 K1_LPOLL")
    stamp(a, 8)
    KV = 16
    for ks in range(8):
        b = 100 + ks * 8
        for e in range(2):
            a(f"ds_read_b64_tr_b16 v[{b+2*e}:{b+2*e+1}], v{76+e} offset:{K1_V + ks*1024}")
        for e in range(2):
            a(f"ds_read_b64_tr_b16 v[{b+4+2*e}:{b+4+2*e+1}], v{78+e} offset:{K1_PHIK + ks*2048}")
    for ks in range(8):
        b = 100 + ks * 8
        a(f"s_waitcnt lgkmcnt({min(15, (7-ks)*4)})")
        c = "0" if ks == 0 else f"v[{KV}:{KV+15}]"
        a(f"v_mfma_f32_32x32x16_bf16 v[{KV}:{KV+15}], v[{b}:{b+3}], v[{b+4}:{b+7}], {c}")
    a("s_waitcnt vmcnt(0)")
    a("v_readfirstlane_b32 s51, v14")
    a("s_cmp_lg_u32 s51, 0")
    a("s_cbranch_scc1 K1_GO")
    a("s_mov_b32 s50, 0")
    a("K1_POLL:")
    a("buffer_load_dword v14, v13, s[28:31], 0 offen sc1")
    a("s_add_u32 s50, s50, 1")
    a("s_waitcnt vmcnt(0)")
    a("v_readfirstlane_b32 s51, v14")
    a("s_cmp_gt_u32 s50, 0x400000")
    a("s_cbranch_scc1 K1_GO")
    a("s_cmp_eq_u32 s51, 0")
    a("s_cbranch_scc1 K1_POLL")
    a("K1_GO:")
    a("s_nop 7")
    for r in range(16):
        d = (r & 3) + 8 * (r >> 2)
        off = d * 256
        base = 80
        if off >= 4096: off -= 4096; base = 81
        a(f"buffer_atomic_add_f32 v{KV+r}, v{base}, s[32:35], 0 offen offset:{WS_KV + off}")
    a("s_branch K1_FIN")

    a("K1_Q:")
    vmq = VM(a)
    a(f"v_lshrrev_b32 v7, 3, v{LANE}")
    a(f"v_and_b32 v8, 7, v{LANE}")
    a(f"v_lshrrev_b32 v9, 1, v7")
    a(f"v_xor_b32 v8, v8, v9")
    a(f"v_mul_u32_u24 v7, 896, v7")
    a(f"v_lshl_add_u32 v30, v8, 4, v7")
    a(f"v_xor_b32 v31, 64, v30")
    a("s_lshl_b32 s46, s36, 7")
    a("s_lshl_b32 s47, s39, 5")
    a("s_add_u32 s46, s46, s47")
    a("s_mul_i32 s47, s46, 896")
    a("s_lshl_b32 s49, s39, 12")
    rot_table(128)
    common_setup_early(vmq)
    def dma_x(c):
        return [(f"c{c}", [f"s_add_u32 m0, s49, {K1_RING + (c%5)*K1_SLOT + i*1024}",
                           f"s_add_u32 s50, s{60+c}, {i*8*896}",
                           f"buffer_load_dwordx4 v{30+(i&1)}, s[16:19], s50 offen lds"]) for i in range(4)]
    for c in range(NPRE):
        for op in dma_x(c):
            for t_ in op[1]: a(t_)
            vmq.issue(op[0])
    common_setup_late()
    wp_addr()
    a(f"v_cmp_eq_u32 s[52:53], 28, v{M}")
    for r in range(4): a(f"v_mov_b32 v{80+r}, s45")
    a("s_or_b32 s51, s36, s39")
    a("s_cmp_lg_u32 s51, 0")
    a("s_cbranch_scc1 K1_Q2")
    a("s_lshl_b32 s50, s37, 13")
    a(f"v_lshl_add_u32 v7, v{LANE}, 4, s50")
    for r in range(4): a(f"v_mov_b32 v{34+r}, 0")
    a("v_add_u32 v8, 4096, v7")
    for i in range(4):
        a(f"buffer_store_dwordx4 v[34:37], v7, s[32:35], 0 offen offset:{WS_KV + i*1024} sc1")
        a(f"buffer_store_dwordx4 v[34:37], v8, s[32:35], 0 offen offset:{WS_KV + i*1024} sc1")
    a("s_waitcnt vmcnt(0)")
    a("s_lshl_b32 s50, s37, 2")
    a("s_add_u32 s50, s50, 64")
    a("v_mov_b32 v7, s50")
    a("v_mov_b32 v8, 1")
    a("s_mov_b64 exec, 1")
    a("buffer_store_dword v8, v7, s[28:31], 0 offen sc1")
    a("s_mov_b64 exec, -1")
    a("s_waitcnt vmcnt(0)")
    a("K1_Q2:")
    AQ = 100
    ACS = 116
    mainloop([0, "cs"], [AQ, ACS], 34, 46, 72, 76, vmq, dma_x)
    a("s_mov_b64 exec, s[42:43]")
    a(f"ds_write_b32 v9, v{AQ+12} offset:{K1_SM}")
    a("s_mov_b32 s54, 1")
    a("s_mov_b32 s55, 1")
    a("s_mov_b64 exec, s[54:55]")
    a("s_min_u32 s50, s39, 2")
    a("s_lshl_b32 s50, s50, 7")
    a(f"v_lshl_add_u32 v8, v{HF}, 4, s50")
    for q in range(4):
        a(f"ds_write_b128 v8, v[{ACS+4*q}:{ACS+4*q+3}] offset:{K1_CS + q*32}")
    a("s_mov_b64 exec, -1")
    a("s_waitcnt lgkmcnt(0)")
    a("s_barrier")
    stamp(a, 7)
    CQ = 34
    post_reads([0], [CQ], 92, 66)
    tail_prefetch()
    a("s_waitcnt lgkmcnt(8)")
    a("v_add_f32 v67, v67, v68")
    stats_finish(a, 66, 67, 68, 69, 70)
    a("s_waitcnt lgkmcnt(0)")
    QFR = 132
    center_pack(AQ, CQ, 68, QFR)
    a(f"v_cndmask_b32 v{QFR+6}, v{QFR+6}, 0, s[42:43]")
    a(f"v_cndmask_b32 v{QFR+7}, v{QFR+7}, 0, s[42:43]")
    PQ = 148
    a(f"v_mfma_f32_32x32x16_bf16 v[{PQ}:{PQ+15}], v[92:95], v[{QFR}:{QFR+3}], 0")
    a(f"v_mfma_f32_32x32x16_bf16 v[{PQ}:{PQ+15}], v[96:99], v[{QFR+4}:{QFR+7}], v[{PQ}:{PQ+15}]")
    a(f"v_mul_f32 v71, s44, v69")
    a("s_lshl_b32 s50, s36, 2")
    a("s_add_u32 s50, s50, s39")
    a("s_lshl_b32 s50, s50, 4")
    a("s_add_u32 s50, s50, s37")
    a("s_lshl_b32 s50, s50, 12")
    a(f"s_add_u32 s50, s50, {WS_PHIQ}")
    a(f"v_lshlrev_b32 v7, 4, v{LANE}")
    softmax_pm(a, PQ, 164, 180, 36, 44, 52, 42, 71)
    for s_ in range(4):
        a(f"buffer_store_dwordx4 v[{36+4*s_}:{36+4*s_+3}], v7, s[32:35], s50 offen offset:{s_*1024}")
    stamp(a, 8)
    a("K1_FIN:")
    if STAMPS: a("s_waitcnt vmcnt(0)")
    stamp(a, 9)
    stamp_flush(a, 38, 32)
    a("K1_END:")
    a("s_endpgm")
    a.fix_hazards()
    return a.text(), kd("k1_kernel", 232)

def main():
    parts = []
    hdr = open("sequential_preLN__linear_kernel_hedgehog__glu_gated_glu__prompt.s.ref").read().split("; Override launch")[0]
    ks = [("k1", gen_k1, 256, 512, K1_LDS)]
    if int(os.environ.get("K1B", "1")):
        import gen1b
        ks = [("k1", gen1b.gen_k1b, 256, 512, gen1b.K1B_LDS)]
    import gen2
    ks += gen2.kernels()
    out = [hdr.rstrip()]
    for nm, fn, g, b, lds in ks:
        out.append(f"; @launch kernel={nm}_kernel grid=({g},1,1) block=({b},1,1) lds={lds}")
    out.append('.amdgcn_target "amdgcn-amd-amdhsa--gfx950"')
    out.append(".text")
    kds = []
    for nm, fn, g, b, lds in ks:
        t, k = fn()
        out.append(t); kds.append(k)
    out.append('.section .rodata,"a"')
    out += kds
    open(sys.argv[1], "w").write("\n".join(out) + "\n")

if __name__ == "__main__":
    main()
```

```python
from asmfw import Asm
import os
import gen
from gen import *
WS_HF = WS_H

K3_SLOT = 16384
K3_NS   = 6
PFI = int(os.environ.get('PFI', '51'))
K3_LDS  = 163840
WS_FLAG = 768 * 1024

def gen_k3():
    a = Asm()
    head(a, "k3_kernel")
    a("s_cmp_ge_u32 s2, 256")
    a("s_cbranch_scc1 K3_END")
    stamp_init(a); stamp(a, 0, real=True); stamp(a, 1)
    a("s_load_dwordx4 s[8:11], s[0:1], 40")
    a("s_load_dwordx4 s[4:7], s[0:1], 56")
    a("s_load_dwordx2 s[14:15], s[0:1], 80")
    a("s_load_dwordx2 s[12:13], s[0:1], 24")
    a("s_load_dwordx2 s[42:43], s[0:1], 0")
    LANE, M, HF, I16, G = 1, 2, 3, 4, 5
    a(f"v_and_b32 v{LANE}, 63, v0")
    a(f"v_lshrrev_b32 v6, 6, v0")
    a(f"v_readfirstlane_b32 s38, v6")
    a(f"v_and_b32 v{M}, 31, v{LANE}")
    a(f"v_lshrrev_b32 v{HF}, 5, v{LANE}")
    a(f"v_and_b32 v{I16}, 15, v{LANE}")
    a(f"v_lshrrev_b32 v{G}, 4, v{LANE}")
    a("s_mov_b32 s41, 0xffff0000")
    a("s_cmp_ge_u32 s2, 224")
    a("s_cbranch_scc1 K3_PF")
    a("s_and_b32 s36, s2, 7")
    a("s_lshl_b32 s36, s36, 1")
    a("s_bfe_u32 s37, s2, 0x10003")
    a("s_add_u32 s36, s36, s37")
    a("s_lshr_b32 s37, s2, 4")
    a("s_and_b32 s39, s38, 1")
    a("s_lshr_b32 s40, s38, 1")
    a(f"v_lshrrev_b32 v7, 3, v{LANE}")
    a(f"v_and_b32 v8, 2, v7")
    a(f"v_add_u32 v8, s39, v8")
    a(f"v_lshlrev_b32 v8, 1, v8")
    a(f"v_and_b32 v9, 7, v{LANE}")
    a(f"v_xor_b32 v8, v8, v9")
    a(f"v_mul_u32_u24 v7, 3584, v7")
    a(f"v_lshl_add_u32 v10, v8, 4, v7")
    a(f"v_lshlrev_b32 v11, 4, v{LANE}")
    a("s_mul_i32 s46, s40, 114688")
    a("s_lshl_b32 s47, s37, 8")
    a("s_add_u32 s46, s46, s47")
    a("s_and_b32 s57, s36, 1")
    a("s_lshl_b32 s58, s57, 7")
    a("s_xor_b32 s59, s58, 128")
    a("s_add_u32 s56, s46, s59")
    a("s_add_u32 s46, s46, s58")
    a("s_lshl_b32 s47, s39, 13")
    a("s_lshl_b32 s48, s40, 12")
    a("s_add_u32 s47, s47, s48")
    a("s_lshl_b32 s48, s36, 2")
    a("s_add_u32 s48, s48, s38")
    a("s_mul_i32 s49, s48, 28672")
    a(f"s_add_u32 s49, s49, {WS_HF}")
    a("s_waitcnt lgkmcnt(0)")
    a("s_cmp_eq_u32 s39, 0")
    a("s_cselect_b32 s20, s8, s10")
    a("s_cselect_b32 s21, s9, s11")
    a("s_mov_b32 s22, 1605632")
    a("s_mov_b32 s23, 0x00020000")
    srd(a, 32, 14, WS_SIZE)
    vm = VM(a)
    def dma_ops(C):
        ph, c = C // 7, C % 7
        return [(f"c{C}", [f"s_add_u32 m0, s47, {(C % K3_NS)*K3_SLOT + i*1024}",
                           f"s_add_u32 s50, s{56 if ph else 46}, {(c*64 + i*8)*3584}",
                           f"buffer_load_dwordx4 v10, s[20:23], s50 offen lds"]) for i in range(4)]
    def h_ops(kk, tag):
        return [(tag, [f"s_add_u32 s50, s49, {kk*1024}",
                       f"buffer_load_dwordx4 a[{4*kk}:{4*kk+3}], v11, s[32:35], s50 offen sc1"])]
    def emit(op):
        for t_ in op[1]: a(t_)
        vm.issue(op[0])
    def chunk_ops(C):
        d = dma_ops(C)
        if C >= 7: return d
        out = []
        for i in range(4): out += ([d[i]] if C >= 2 else []) + h_ops(4*C + i, f"c{C}")
        return out
    a("s_lshr_b32 s60, s2, 3")
    a("s_lshl_b32 s61, s38, 15")
    for i in range(32):
        a(f"s_add_u32 s50, s60, {i}")
        a("s_and_b32 s50, s50, 31")
        a("s_lshl_b32 s50, s50, 10")
        a("s_add_u32 s50, s50, s61")
        a(f"buffer_load_dwordx4 v[{128+4*i}:{128+4*i+3}], v11, s[32:35], s50 offen offset:{WS_KV}")
        vm.issue(f"kv{i}")
    TM = 12
    a(f"v_and_b32 v7, 1, v{G}")
    a(f"v_lshrrev_b32 v8, 2, v{I16}")
    a(f"v_and_b32 v9, 2, v8")
    a(f"v_add_u32 v9, v9, v7")
    a(f"v_lshl_add_u32 v8, v{HF}, 3, v8")
    a(f"v_lshlrev_b32 v8, 7, v8")
    a(f"v_lshl_add_u32 v8, v7, 13, v8")
    a(f"v_and_b32 v7, 3, v{I16}")
    a(f"v_lshl_add_u32 v8, v7, 3, v8")
    a(f"v_lshl_add_u32 v8, v9, 5, v8")
    for t in range(4):
        a(f"v_xor_b32 v{TM+t}, {t*32}, v8")
        a(f"v_add_u32 v{TM+4+t}, 0x10000, v{TM+t}")
        a(f"v_add_u32 v{TM+8+t}, 0x20000, v{TM+t}")
    WF = 36
    def acc(t): return f"v[{128+16*t}:{128+16*t+15}]"
    def rd_ops(ph, kk, t, dst):
        C = ph * 7 + kk // 4; slot = C % K3_NS
        return [f"ds_read_b64_tr_b16 v[{dst+2*e}:{dst+2*e+1}], v{TM + 4*(slot//4) + t} offset:{(slot%4)*K3_SLOT + (kk%4)*2048 + e*512}" for e in range(2)]
    a(f"v_lshlrev_b32 v9, 6, v{M}")
    a(f"v_lshlrev_b32 v118, 3, v{M}")
    a(f"v_lshl_add_u32 v118, v{HF}, 14, v118")
    a(f"v_accvgpr_write_b32 a128, 0")
    a(f"v_accvgpr_write_b32 a129, 0")
    a("s_lshl_b32 s52, s48, 8")
    a(f"s_add_u32 s52, s52, {WS_ST}")
    a("s_lshl_b32 s53, s37, 11")
    a(f"s_add_u32 s53, s53, {WS_CS}")
    a("s_lshl_b32 s58, s57, 5")
    a("s_xor_b32 s59, s58, 32")
    a("s_add_u32 s55, s53, s59")
    a("s_add_u32 s53, s53, s58")
    misc = []
    for j in range(4):
        misc.append(("ms", [f"s_add_u32 s50, s52, {j*32768}", f"buffer_load_dwordx2 v[{100+2*j}:{100+2*j+1}], v118, s[32:35], s50 offen sc1"]))
    for j in range(4):
        misc.append(("ms", [f"buffer_load_dwordx4 a[{112+4*j}:{112+4*j+3}], v9, s[32:35], s{55 if j >= 2 else 53} offen offset:{(j&1)*16} sc1"]))
    a("s_mul_i32 s54, s48, 114688")
    a("s_lshl_b32 s51, s37, 13")
    a("s_add_u32 s54, s54, s51")
    a(f"s_add_u32 s54, s54, {WS_HH}")
    a("s_lshl_b32 s58, s57, 12")
    a("s_xor_b32 s59, s58, 4096")
    a("s_add_u32 s62, s54, s59")
    a("s_add_u32 s54, s54, s58")
    NM, RS, SD, NSC = 114, 115, 116, 117
    fin = Asm()
    fin(f"v_cmp_gt_u32 vcc, 32, v{LANE}")
    fin(f"v_cndmask_b32 v106, 0, v106, vcc")
    fin(f"v_cndmask_b32 v107, 0, v107, vcc")
    for j in range(1, 4):
        fin(f"v_add_f32 v100, v100, v{100+2*j}")
        fin(f"v_add_f32 v101, v101, v{100+2*j+1}")
    xhalf(fin, "v_add_f32", 100, 100, 102, 103)
    xhalf(fin, "v_add_f32", 101, 101, 104, 105)
    stats_finish(fin, 100, 101, NM, RS, SD)
    fin(f"v_mul_f32 v{NSC}, 0xbfb8aa3b, v{RS}")
    fin(f"v_lshrrev_b32 v104, 16, v{NM}")
    fin(f"v_cmp_gt_u32 vcc, 32, v{LANE}")
    fin(f"v_cndmask_b32 v104, 0, v104, vcc")
    fin(f"v_mov_b32 v105, v104")
    fin(f"v_mov_b32 v106, 0")
    fin(f"v_mov_b32 v107, 0")
    fin_ops = [i.text for i in fin.ins]
    deferred = []
    def ep_ops(t):
        A_ = 128 + 16 * t
        OUT = A_
        ep = [f"v_mul_f32 v{A_+r}, v{NSC}, v{A_+r}" for r in range(8)]
        ep += [f"v_exp_f32 v{A_+r}, v{A_+r}" for r in range(8)]
        ep += [f"v_fma_f32 v{A_+r}, v{A_+r}, v{SD}, v{SD}" for r in range(8)]
        ep += [f"v_rcp_f32 v{A_+r}, v{A_+r}" for r in range(8)]
        ep += [f"v_mul_f32 v{A_+8+r}, v{A_+8+r}, v{A_+r}" for r in range(8)]
        ep += [f"v_cvt_pk_bf16_f32 v{OUT+i}, v{A_+8+2*i}, v{A_+8+2*i+1}" for i in range(4)]
        st_ = ("ST", f"s_add_u32 s50, s{62 if t >= 4 else 54}, {(t&3)*1024}", f"buffer_store_dwordx4 v[{OUT}:{OUT+3}], v11, s[32:35], s50 offen sc1")
        ep += [st_]
        return ep
    def emit_valu(vq, n):
        for _ in range(n):
            if not vq: return
            o = vq.pop(0)
            if isinstance(o, tuple):
                a(o[1]); a(o[2]); vm.issue("st")
            else: a(o)
    srd(a, 16, 12, 401408)
    srd(a, 28, 42, 1835008)
    srd(a, 24, 6, 1835008)
    a("s_and_b32 s64, s37, 1")
    a("s_lshl_b32 s65, s36, 1")
    a("s_add_u32 s64, s64, s65")
    a("s_lshr_b32 s65, s37, 1")
    a(f"v_lshrrev_b32 v7, 3, v{LANE}")
    a(f"v_and_b32 v8, 7, v{LANE}")
    a(f"v_lshrrev_b32 v27, 1, v7")
    a(f"v_and_b32 v27, 1, v27")
    a(f"v_lshlrev_b32 v27, 2, v27")
    a(f"v_xor_b32 v27, v8, v27")
    a(f"v_mul_u32_u24 v32, 896, v7")
    a(f"v_lshl_add_u32 v27, v27, 4, v32")
    a(f"v_lshl_add_u32 v32, v8, 4, v32")
    a(f"v_lshrrev_b32 v26, 1, v8")
    a(f"v_lshlrev_b32 v26, 10, v26")
    a(f"v_and_b32 v31, 1, v8")
    a(f"v_lshl_add_u32 v26, v31, 9, v26")
    a(f"v_lshl_add_u32 v26, v7, 4, v26")
    a("s_mul_i32 s63, s64, 57344")
    a("s_lshl_b32 s66, s65, 12")
    a("s_add_u32 s63, s63, s66")
    a("s_lshr_b32 s66, s38, 1")
    a("s_mul_i32 s66, s66, 28672")
    a("s_add_u32 s63, s63, s66")
    a("s_and_b32 s66, s38, 1")
    a("s_lshl_b32 s66, s66, 8")
    a("s_add_u32 s63, s63, s66")
    a(f"s_add_u32 s63, s63, {WS_HF}")
    a("s_lshl_b32 s66, s38, 4")
    a(f"v_add_u32 v31, s66, v7")
    a(f"v_mul_u32_u24 v31, 272, v31")
    a(f"v_lshl_add_u32 v31, v8, 5, v31")
    a(f"v_add_u32 v33, 49152, v31")
    a("s_lshl_b32 s76, s64, 6")
    a("s_add_u32 s76, s76, s66")
    a("s_mul_i32 s76, s76, 896")
    a("s_lshl_b32 s66, s65, 7")
    a("s_add_u32 s76, s76, s66")
    a("s_mul_i32 s66, s38, 401408")
    a("s_lshl_b32 s67, s65, 7")
    a("s_add_u32 s66, s66, s67")
    a("s_mul_i32 s67, s64, 229376")
    a("s_mul_i32 s77, s38, 28672")
    a("s_add_u32 s67, s67, s77")
    a(f"s_add_u32 s67, s67, {WS_HH}")
    for g_ in range(4):
        a(f"s_add_u32 s77, s64, {g_}")
        a("s_add_u32 s77, s77, s65")
        a("s_and_b32 s77, s77, 3")
        a(f"s_mul_i32 s{68+g_}, s77, {7*16*896}")
        a(f"s_add_u32 s{68+g_}, s{68+g_}, s66")
        a(f"s_mul_i32 s{72+g_}, s77, 7168")
        a(f"s_add_u32 s{72+g_}, s{72+g_}, s67")
    a("s_mul_i32 s78, s38, 24576")
    a("s_lshl_b32 s79, s38, 14")
    a("s_add_u32 s79, s79, 98304")
    a(f"v_lshrrev_b32 v7, 2, v{I16}")
    a(f"v_lshl_add_u32 v8, v{HF}, 2, v7")
    a(f"v_lshrrev_b32 v7, 1, v7")
    a(f"v_lshlrev_b32 v7, 3, v7")
    a(f"v_and_b32 v30, 1, v{G}")
    a(f"v_lshl_add_u32 v7, v30, 2, v7")
    a(f"v_and_b32 v30, 3, v{I16}")
    a(f"v_add_u32 v7, v7, v30")
    a(f"v_lshlrev_b32 v7, 3, v7")
    a(f"v_lshl_add_u32 v7, v8, 7, v7")
    a(f"v_add_u32 v28, s78, v7")
    a(f"v_xor_b32 v29, 64, v28")
    a(f"v_add_u32 v24, s79, v7")
    a(f"v_xor_b32 v25, 64, v24")
    a(f"v_mul_u32_u24 v30, 272, v{M}")
    a(f"v_lshl_add_u32 v30, v{HF}, 4, v30")
    a(f"v_add_u32 v30, s78, v30")
    NREG = 8; NRES = 16
    def d_dma(ks):
        sb, lo = (79, (ks % 8) * 2048) if ks < NRES else (78, (ks - NRES) * 2048)
        return [(f"w{ks}", [f"s_add_u32 m0, s{sb}, {lo + i*1024}",
                            f"s_add_u32 s50, s{68+ks//7}, {((ks%7)*16 + i*8)*896}",
                            f"buffer_load_dwordx4 v27, s[16:19], s50 offen lds"]) for i in range(2)]
    def d_stage(ks):
        vm.wait(f"w{ks}")
        for n2 in range(2):
            for e in range(2):
                a(f"ds_read_b64_tr_b16 a[{130+8*ks+4*n2+2*e}:{130+8*ks+4*n2+2*e+1}], v{24+n2} offset:{(ks%8)*2048 + e*1024}")
    dstate = {"next_dma": 0, "next_stage": 0, "dma_at": {}, "stage_at": {}, "ops": []}
    def d_tick(i):
        st = dstate
        ks = st["next_stage"]
        if ks < NREG and 7 in st["dma_at"] and i >= 184:
            d_stage(ks); st["stage_at"][ks] = i; st["next_stage"] += 1
        if not st["ops"]:
            kd_ = st["next_dma"]
            if kd_ < NRES and (kd_ < 8 or (kd_ - 8 in st["stage_at"] and i - st["stage_at"][kd_ - 8] >= 9)):
                st["ops"] = d_dma(kd_); st["cur"] = kd_; st["next_dma"] += 1
        if st["ops"]:
            emit(st["ops"].pop(0))
            if not st["ops"]: st["dma_at"][st["cur"]] = i
    B_KV, B_RED, B_WO = 0, 65536, 102400
    a("s_mov_b32 s44, 0")
    a("s_mov_b32 s45, -1")
    a(f"v_lshrrev_b32 v7, 2, v{I16}")
    a(f"v_mul_u32_u24 v7, 1056, v7")
    a(f"v_and_b32 v8, 1, v{I16}")
    a(f"v_mul_u32_u24 v8, 528, v8")
    a(f"v_add_u32 v7, v7, v8")
    a(f"v_lshrrev_b32 v8, 1, v{I16}")
    a(f"v_and_b32 v8, 1, v8")
    a(f"v_lshl_add_u32 v7, v8, 3, v7")
    a(f"v_lshl_add_u32 v7, v{G}, 4, v7")
    a("s_mul_i32 s50, s38, 16896")
    a(f"v_add_u32 v34, s50, v7")
    a("s_lshl_b32 s66, s64, 1")
    a("s_add_u32 s66, s66, s39")
    a("s_lshl_b32 s66, s66, 4")
    a("s_lshl_b32 s50, s40, 3")
    a("s_add_u32 s66, s66, s50")
    a("s_lshl_b32 s66, s66, 12")
    a(f"s_add_u32 s66, s66, {WS_PHIQ}")
    a("s_mul_i32 s67, s38, 100352")
    a("s_lshl_b32 s50, s65, 7")
    a("s_add_u32 s67, s67, s50")
    a("s_mul_i32 s77, s38, 14336")
    bg = []
    for i in range(14):
        bg.append(("wo", [f"s_add_u32 m0, s77, {B_WO + i*1024}", f"s_add_u32 s50, s67, {i*8*896}", f"buffer_load_dwordx4 v27, s[16:19], s50 offen lds"]))
    bg.append(("wo", [f"s_mov_b32 m0, {B_WO + 448*128}", f"s_mov_b32 s50, {448*896}", f"buffer_load_dwordx4 v27, s[16:19], s50 offen lds"]))
    for i in range(32):
        bg.append((f"pq{i>>2}", [f"s_add_u32 s50, s66, {i*1024}", f"buffer_load_dwordx4 a[{4*i}:{4*i+3}], v11, s[32:35], s50 offen"]))
    bg.append(("x", ["buffer_load_dwordx4 v[120:123], v32, s[28:31], s76 offen"]))
    bg.append(("x", [f"s_add_u32 s50, s76, {8*896}", "buffer_load_dwordx4 v[124:127], v32, s[28:31], s50 offen"]))
    def emit_bg(n=1):
        for _ in range(n):
            if bg: emit(bg.pop(0))
    emit_bg(8)
    for i in range(32):
        if i >= 8: emit_bg()
        vm.wait(f"kv{i}")
        R = 128 + 4 * i
        a(f"v_cvt_pk_bf16_f32 v{R}, v{R}, v{R+1}")
        a(f"v_cvt_pk_bf16_f32 v{R+1}, v{R+2}, v{R+3}")
        a(f"s_add_u32 s50, s60, {i}")
        a("s_bfe_u32 s51, s50, 0x20003")
        a("s_mul_i32 s51, s51, 4224")
        a("s_and_b32 s50, s50, 7")
        a("s_lshl_b32 s50, s50, 6")
        a("s_add_u32 s50, s50, s51")
        a("v_add_u32 v35, s50, v34")
        a(f"ds_write_b64 v35, v[{R}:{R+1}] offset:{B_KV}")
    a("s_mul_i32 s50, s40, 33792")
    a(f"v_mul_u32_u24 v7, 528, v{HF}")
    a(f"v_lshl_add_u32 v7, v{M}, 4, v7")
    a(f"v_add_u32 v100, s50, v7")
    a("s_mul_i32 s50, s40, 28672")
    a(f"s_add_u32 s50, s50, {B_WO}")
    a("s_sub_u32 s50, s50, s78")
    a(f"v_add_u32 v101, s50, v28")
    a(f"v_xor_b32 v102, 64, v101")
    a("s_lshl_b32 s50, s39, 5")
    a(f"v_add_u32 v7, s50, v{M}")
    a(f"v_mul_u32_u24 v7, 272, v7")
    a(f"v_lshl_add_u32 v7, v{HF}, 4, v7")
    a("s_mul_i32 s50, s40, 17408")
    a(f"s_add_u32 s50, s50, {B_RED}")
    a(f"v_add_u32 v103, s50, v7")
    a(f"v_add_u32 v104, {B_RED}, v31")
    a(f"v_lshrrev_b32 v35, 3, v{LANE}")
    a(f"v_lshlrev_b32 v35, 3, v35")
    vm.wait("wo")
    a("s_waitcnt lgkmcnt(0)")
    a("s_barrier")
    def kvf_reads(hh):
        for s_ in range(4):
            a(f"ds_read_b128 v[{128+16*hh+4*s_}:{128+16*hh+4*s_+3}], v100 offset:{B_KV + hh*4224 + s_*1056}")
    def num_ops(hh):
        N = 36 + 16 * (hh & 1)
        return [f"v_mfma_f32_32x32x16_bf16 v[{N}:{N+15}], v[{128+16*hh+4*s_}:{128+16*hh+4*s_+3}], a[{16*hh+4*s_}:{16*hh+4*s_+3}], " + ("0" if s_ == 0 else f"v[{N}:{N+15}]") for s_ in range(4)]
    def o_ops(hh):
        N = 36 + 16 * (hh & 1); O = 128 + 16 * hh
        t = Asm()
        t(f"v_mov_b32 v105, v{N+12}")
        t(f"v_mov_b32 v106, v{N+12}")
        t(f"v_permlane32_swap_b32 v105, v106")
        bf16r(t, 106, 106)
        t(f"v_add_f32 v106, 0x358637bd, v106")
        bf16r(t, 106, 106)
        t(f"v_rcp_f32 v106, v106")
        for i in range(8):
            t(f"v_mul_f32 v{N+2*i}, v{N+2*i}, v106")
            t(f"v_mul_f32 v{N+2*i+1}, v{N+2*i+1}, v106")
            t(f"v_cvt_pk_bf16_f32 v{O+i}, v{N+2*i}, v{N+2*i+1}")
        t(f"v_cndmask_b32 v{O+6}, v{O+6}, 0, s[44:45]")
        t(f"v_cndmask_b32 v{O+7}, v{O+7}, 0, s[44:45]")
        return [i.text for i in t.ins]
    def wo_reads(hh):
        for s_ in range(2):
            for n2 in range(2):
                b = 68 + 16 * (hh & 1) + 8*s_ + 4*n2
                for e in range(2):
                    a(f"ds_read_b64_tr_b16 v[{b+2*e}:{b+2*e+1}], v{101+n2} offset:{(hh*28 + 16*s_ + 8*e)*128}")
    def wo_ops(hh):
        out = []
        for s_ in range(2):
            for n2 in range(2):
                b = 68 + 16 * (hh & 1) + 8*s_ + 4*n2
                c = "0" if (hh == 0 and s_ == 0) else f"a[{130+16*n2}:{130+16*n2+15}]"
                out.append(f"v_mfma_f32_32x32x16_bf16 a[{130+16*n2}:{130+16*n2+15}], v[{b}:{b+3}], v[{128+16*hh+4*s_}:{128+16*hh+4*s_+3}], {c}")
        return out
    for hh in range(8): kvf_reads(hh)
    emit_bg(4)
    a("s_waitcnt lgkmcnt(0)")
    a("s_barrier")
    wq = dma_ops(0) + dma_ops(1)
    vm.wait("pq0")
    for o in num_ops(0): a(o)
    for hh in range(9):
        if hh < 8: wo_reads(hh)
        emit_bg(3)
        if not bg and wq: emit(wq.pop(0)); emit(wq.pop(0))
        mf = []
        if hh >= 1:
            a(f"s_waitcnt lgkmcnt({8 if hh < 8 else 0})")
            mf += wo_ops(hh - 1)
        if hh + 1 < 8:
            vm.wait(f"pq{hh+1}")
            mf = num_ops(hh + 1)[:2] + mf[:2] + num_ops(hh + 1)[2:] + mf[2:]
        va = o_ops(hh) if hh < 8 else []
        per = (len(va) + max(1, len(mf)) - 1) // max(1, len(mf))
        for k_, m_ in enumerate(mf):
            a(m_)
            for o in va[k_*per:(k_+1)*per]: a(o)
        if not mf:
            for o in va: a(o)
    emit_bg(100)
    while wq: emit(wq.pop(0))
    for n2 in range(2):
        for q in range(4):
            a(f"ds_write_b128 v103, a[{130+16*n2+4*q}:{130+16*n2+4*q+3}] offset:{n2*128 + q*32}")
    a("s_lshl_b32 s61, s64, 6")
    a("s_lshl_b32 s50, s38, 4")
    a("s_add_u32 s61, s61, s50")
    a("s_lshl_b32 s61, s61, 3")
    a("s_lshl_b32 s50, s65, 14")
    a("s_add_u32 s61, s61, s50")
    a(f"s_add_u32 s61, s61, {WS_ST}")
    a("s_lshl_b32 s60, s2, 7")
    a("s_lshl_b32 s50, s38, 2")
    a("s_add_u32 s60, s60, s50")
    a(f"s_add_u32 s60, s60, {WS_FLAG + 16}")
    a(f"v_lshrrev_b32 v7, 1, v{LANE}")
    a(f"v_lshlrev_b32 v105, 12, v7")
    a("s_lshl_b32 s50, s40, 11")
    a("s_and_b32 s51, s2, 15")
    a("s_lshl_b32 s51, s51, 7")
    a("s_add_u32 s50, s50, s51")
    a("s_lshl_b32 s51, s39, 3")
    a("s_add_u32 s50, s50, s51")
    a("s_add_u32 s50, s50, 16")
    a(f"v_add_u32 v105, s50, v105")
    a(f"v_min_u32 v7, 8, v7")
    a(f"v_subrev_u32 v7, 7, v7")
    a(f"v_mul_u32_u24 v7, 1792, v7")
    a("s_add_u32 s50, s37, 224")
    a("s_lshl_b32 s50, s50, 7")
    a(f"v_add_u32 v7, s50, v7")
    a(f"v_cmp_gt_u32 vcc, 14, v{LANE}")
    a(f"v_cndmask_b32 v105, v7, v105, vcc")
    a(f"v_and_b32 v7, 1, v{LANE}")
    a(f"v_lshl_add_u32 v105, v7, 2, v105")
    a("s_waitcnt lgkmcnt(0)")
    a("s_barrier")
    for g2 in range(2):
        for hp_ in range(2):
            for e in range(2):
                a(f"ds_read_b128 v[{36+16*g2+8*hp_+4*e}:{36+16*g2+8*hp_+4*e+3}], v104 offset:{hp_*17408 + g2*8*272 + e*16}")
    vm.wait("x")
    a("s_mov_b32 s50, 0x01010101")
    a("s_mov_b32 s51, 0x01010101")
    for g2 in range(2):
        B_ = 36 + 16 * g2; T_ = 68 + 16 * g2
        a(f"s_waitcnt lgkmcnt({4 if g2 == 0 else 0})")
        for j in range(8): a(f"v_add_f32 v{B_+j}, v{B_+j}, v{B_+8+j}")
        for i in range(4): a(f"v_cvt_pk_bf16_f32 v{B_+8+i}, v{B_+2*i}, v{B_+2*i+1}")
        for i in range(4):
            a(f"v_lshlrev_b32 v{B_+2*i}, 16, v{B_+8+i}")
            a(f"v_and_b32 v{B_+2*i+1}, s41, v{B_+8+i}")
            a(f"v_lshlrev_b32 v{T_+2*i}, 16, v{120+4*g2+i}")
            a(f"v_and_b32 v{T_+2*i+1}, s41, v{120+4*g2+i}")
        for j in range(8): a(f"v_add_f32 v{B_+j}, v{B_+j}, v{T_+j}")
        for i in range(4): a(f"v_cvt_pk_bf16_f32 v{B_+8+i}, v{B_+2*i}, v{B_+2*i+1}")
        a(f"buffer_store_dwordx4 v[{B_+8}:{B_+11}], v26, s[32:35], s63 offen offset:{g2*128} sc1")
        a(f"v_add_f32 v{T_}, v{B_}, v{B_+1}")
        a(f"v_mul_f32 v{T_+1}, v{B_}, v{B_}")
        a(f"v_add_f32 v{T_+2}, v{B_+2}, v{B_+3}")
        a(f"v_mul_f32 v{T_+3}, v{B_+1}, v{B_+1}")
        for j in range(4, 8, 2):
            a(f"v_add_f32 v{T_}, v{T_}, v{B_+j}")
            a(f"v_add_f32 v{T_+2}, v{T_+2}, v{B_+j+1}")
        for j in range(2, 8, 2):
            a(f"v_fmac_f32 v{T_+1}, v{B_+j}, v{B_+j}")
            a(f"v_fmac_f32 v{T_+3}, v{B_+j+1}, v{B_+j+1}")
        a(f"v_add_f32 v{T_}, v{T_}, v{T_+2}")
        a(f"v_add_f32 v{T_+1}, v{T_+1}, v{T_+3}")
        for dpp in ("quad_perm:[1,0,3,2]", "quad_perm:[2,3,0,1]", "row_half_mirror"):
            a(f"v_add_f32_dpp v{T_}, v{T_}, v{T_} {dpp} row_mask:0xf bank_mask:0xf")
            a(f"v_add_f32_dpp v{T_+1}, v{T_+1}, v{T_+1} {dpp} row_mask:0xf bank_mask:0xf")
        a("s_mov_b64 exec, s[50:51]")
        a(f"buffer_store_dwordx2 v[{T_}:{T_+1}], v35, s[32:35], s61 offen offset:{g2*64} sc1")
        a("s_mov_b64 exec, -1")
    a("v_mov_b32 v106, 1")
    a("v_mov_b32 v107, 0")
    srd(a, 16, 4, 1605632)
    a("s_waitcnt vmcnt(0)")
    a("s_mov_b64 exec, 1")
    a("buffer_store_dword v106, v107, s[32:35], s60 offen sc1")
    a("s_mov_b64 exec, -1")
    a(f"s_mov_b32 s51, {WS_FLAG}")
    a("s_mov_b32 s50, 0")
    a("buffer_load_dword v107, v105, s[32:35], s51 offen sc1")
    a("s_sleep 4")
    a("buffer_load_dword v108, v105, s[32:35], s51 offen sc1")
    a("s_sleep 4")
    a("K3_POLLB:")
    a("buffer_load_dword v109, v105, s[32:35], s51 offen sc1")
    a("s_waitcnt vmcnt(2)")
    a("v_cmp_ne_u32 vcc, 1, v107")
    a("s_cmp_eq_u64 vcc, 0")
    a("s_cbranch_scc1 K3_POLLBX")
    a("buffer_load_dword v107, v105, s[32:35], s51 offen sc1")
    a("s_waitcnt vmcnt(2)")
    a("v_cmp_ne_u32 vcc, 1, v108")
    a("s_cmp_eq_u64 vcc, 0")
    a("s_cbranch_scc1 K3_POLLBX")
    a("buffer_load_dword v108, v105, s[32:35], s51 offen sc1")
    a("s_waitcnt vmcnt(2)")
    a("v_cmp_ne_u32 vcc, 1, v109")
    a("s_cmp_eq_u64 vcc, 0")
    a("s_cbranch_scc1 K3_POLLBX")
    a("s_add_u32 s50, s50, 1")
    a("s_cmp_lt_u32 s50, 0x200000")
    a("s_cbranch_scc1 K3_POLLB")
    a("K3_POLLBX:")
    vm = VM(a)
    for C in range(3):
        for op in chunk_ops(C): emit(op)
    stamp(a, 2)
    vm.wait("c0")
    a("s_barrier")
    stamp(a, 3)
    NK1 = int(os.environ.get('NK1', '20'))
    VP1 = int(os.environ.get('VP1', '3')); VP2 = int(os.environ.get('VP2', '6'))
    seq = [(0, kk, t) for kk in range(28) for t in range(4)] + [(1, kk, t) for kk in range(NK1) for t in range(4)]
    seq += [(1, kk, t) for t in range(4) for kk in range(NK1, 28)]
    LAH = 7
    NBUF = 16
    queue = chunk_ops(3) + chunk_ops(4) + chunk_ops(5)
    late = []
    ready = {0}
    vq = []
    def need_chunk(C):
        nonlocal queue, late
        if C in ready: return
        if any(op[0] == f"c{C}" for op in late):
            queue += late; late = []
        while any(op[0] == f"c{C}" for op in queue): emit(queue.pop(0))
        vm.wait(f"c{C}")
        a("s_barrier")
        ready.add(C)
        if 6 <= C + 4 <= 13: late += chunk_ops(C + 4)
        if C == 2: late += misc
    def issue_reads(i):
        ph, kk, t = seq[i]
        need_chunk(ph * 7 + kk // 4)
        for o in rd_ops(ph, kk, t, WF + 4 * (i % NBUF)): a(o)
    for i in range(LAH): issue_reads(i)
    for i, (ph, kk, t) in enumerate(seq):
        if i + LAH < len(seq):
            issue_reads(i + LAH)
            if i % 2 == 0: a(f"s_waitcnt lgkmcnt({2*LAH-2})")
        elif i % 2 == 0:
            a(f"s_waitcnt lgkmcnt({max(0, 2*(len(seq)-2-i))})")
        T = ph * 4 + t
        b = WF + 4 * (i % NBUF)
        c_ = "0" if kk == 0 else acc(T)
        a(f"v_mfma_f32_32x32x16_bf16 {acc(T)}, v[{b}:{b+3}], a[{4*kk}:{4*kk+3}], {c_}")
        if kk == 27:
            a(f"v_mfma_f32_32x32x16_bf16 {acc(T)}, a[{112+2*T}:{112+2*T+3}], v[104:107], {acc(T)}")
            vq += ep_ops(T)
        if ph == 0 and kk == 22 and t == 0:
            vm.wait("ms")
            vq += fin_ops
        if i == 112: stamp(a, 4)
        if i == 112 + 4 * NK1:
            stamp(a, 5)
        if i % 2 == 0 or i < 12:
            if queue: emit(queue.pop(0))
            elif late: emit(late.pop(0))
            elif 9 in ready: d_tick(i)
        if not (kk == 27): emit_valu(vq, VP1 if i < 112 + 4 * NK1 else VP2)
    emit_valu(vq, 10000)
    while late: emit(late.pop(0))
    print("D staging state at end of C:", dstate["next_dma"], dstate["next_stage"])
    stamp(a, 6)
    a("s_lshl_b32 s50, s2, 7")
    a("s_lshl_b32 s51, s38, 2")
    a("s_add_u32 s50, s50, s51")
    a(f"s_add_u32 s50, s50, {WS_FLAG}")
    a("v_mov_b32 v100, 1")
    a("v_mov_b32 v101, 0")
    a("s_and_b32 s51, s2, 15")
    a("s_lshl_b32 s51, s51, 7")
    a("s_and_b32 s52, s64, 1")
    a("s_lshl_b32 s52, s52, 3")
    a("s_add_u32 s51, s51, s52")
    a(f"s_add_u32 s51, s51, {WS_FLAG}")
    a(f"v_lshrrev_b32 v102, 1, v{LANE}")
    a(f"v_min_u32 v102, 13, v102")
    a(f"v_lshlrev_b32 v102, 11, v102")
    a(f"v_and_b32 v103, 1, v{LANE}")
    a(f"v_lshl_add_u32 v102, v103, 2, v102")
    a("s_waitcnt vmcnt(0)")
    a("s_mov_b64 exec, 1")
    a("buffer_store_dword v100, v101, s[32:35], s50 offen sc1")
    a("s_mov_b64 exec, -1")
    ii = 1000
    while dstate["next_dma"] < NRES or dstate["next_stage"] < NREG or dstate["ops"]:
        a("s_waitcnt lgkmcnt(0)")
        for _ in range(4):
            ii += 20; d_tick(ii)
            if dstate["stage_at"].get(dstate["next_stage"] - 1) == ii: break
    a("s_barrier")
    a("s_mov_b32 s53, 0")
    a("buffer_load_dword v103, v102, s[32:35], s51 offen sc1")
    a("s_sleep 4")
    a("buffer_load_dword v108, v102, s[32:35], s51 offen sc1")
    a("s_sleep 4")
    a("K3_POLL:")
    a("buffer_load_dword v109, v102, s[32:35], s51 offen sc1")
    a("s_waitcnt vmcnt(2)")
    a("v_cmp_ne_u32 vcc, 1, v103")
    a("s_cmp_eq_u64 vcc, 0")
    a("s_cbranch_scc1 K3_POLLX")
    a("buffer_load_dword v103, v102, s[32:35], s51 offen sc1")
    a("s_waitcnt vmcnt(2)")
    a("v_cmp_ne_u32 vcc, 1, v108")
    a("s_cmp_eq_u64 vcc, 0")
    a("s_cbranch_scc1 K3_POLLX")
    a("buffer_load_dword v108, v102, s[32:35], s51 offen sc1")
    a("s_waitcnt vmcnt(2)")
    a("v_cmp_ne_u32 vcc, 1, v109")
    a("s_cmp_eq_u64 vcc, 0")
    a("s_cbranch_scc1 K3_POLLX")
    a("s_add_u32 s53, s53, 1")
    a("s_cmp_lt_u32 s53, 0x200000")
    a("s_cbranch_scc1 K3_POLL")
    a("K3_POLLX:")
    stamp(a, 7)
    vm = VM(a)
    NH = 14
    def hh_ops(ks):
        return [(f"k{ks}", [f"s_add_u32 s50, s{72+ks//7}, {m2*114688 + (ks%7)*1024}",
                            f"buffer_load_dwordx4 a[{(ks%NH)*8+4*m2}:{(ks%NH)*8+4*m2+3}], v11, s[32:35], s50 offen sc1"]) for m2 in range(2)]
    for ks in range(NH):
        for op in hh_ops(ks): emit(op)
    def dacc(n2, m2): return f"v[{128+32*n2+16*m2}:{128+32*n2+16*m2+15}]"
    def drd(ks):
        if ks < NREG: return 0
        base, off = (24, (ks % 8) * 2048) if ks < NRES else (28, (ks - NRES) * 2048)
        for n2 in range(2):
            b = 36 + (ks & 1) * 8 + 4 * n2
            for e in range(2):
                a(f"ds_read_b64_tr_b16 v[{b+2*e}:{b+2*e+1}], v{base+n2} offset:{off + e*1024}")
        return 4
    for ks in range(28):
        n_ = 0
        if ks + 1 < 28:
            if ks + 1 >= NRES: vm.wait(f"w{ks+1}")
            n_ = drd(ks + 1)
        vm.wait(f"k{ks}")
        if ks >= NREG - 1: a(f"s_waitcnt lgkmcnt({n_})")
        for n2 in range(2):
            for m2 in range(2):
                wsrc = f"a[{130+8*ks+4*n2}:{130+8*ks+4*n2+3}]" if ks < NREG else f"v[{36+(ks&1)*8+4*n2}:{36+(ks&1)*8+4*n2+3}]"
                c_ = "0" if ks == 0 else dacc(n2, m2)
                a(f"v_mfma_f32_32x32x16_bf16 {dacc(n2,m2)}, {wsrc}, a[{(ks%NH)*8+4*m2}:{(ks%NH)*8+4*m2+3}], {c_}")
        nk = ks + NH
        if nk < 28:
            if nk >= NRES:
                for op in d_dma(nk): emit(op)
            for op in hh_ops(nk): emit(op)
        if nk == 28:
            a(f"buffer_load_dwordx4 v[52:55], v26, s[32:35], s63 offen sc1")
            a(f"buffer_load_dwordx4 v[56:59], v26, s[32:35], s63 offen offset:128 sc1")
            vm.issue("res"); vm.issue("res")
    stamp(a, 8)
    for n2 in range(2):
        for m2 in range(2):
            for q in range(4):
                b = 128 + 32*n2 + 16*m2 + 4*q
                a(f"ds_write_b128 v30, v[{b}:{b+3}] offset:{m2*32*272 + n2*128 + q*32}")
    a("s_waitcnt lgkmcnt(0)")
    a("s_barrier")
    a("s_waitcnt vmcnt(0)")
    for g2 in range(2):
        for w in range(4):
            for e in range(2):
                a(f"ds_read_b128 v[{60+32*g2+8*w+4*e}:{60+32*g2+8*w+4*e+3}], v{31 if w < 2 else 33} offset:{(w&1)*24576 + g2*8*272 + e*16}")
    for g2 in range(2):
        B_ = 60 + 32 * g2
        a(f"s_waitcnt lgkmcnt({8 if g2 == 0 else 0})")
        for j in range(8):
            a(f"v_add_f32 v{B_+j}, v{B_+j}, v{B_+8+j}")
            a(f"v_add_f32 v{B_+16+j}, v{B_+16+j}, v{B_+24+j}")
        for j in range(8): a(f"v_add_f32 v{B_+j}, v{B_+j}, v{B_+16+j}")
        for i in range(4): a(f"v_cvt_pk_bf16_f32 v{B_+8+i}, v{B_+2*i}, v{B_+2*i+1}")
        for i in range(4):
            a(f"v_lshlrev_b32 v{B_+2*i}, 16, v{B_+8+i}")
            a(f"v_and_b32 v{B_+2*i+1}, s41, v{B_+8+i}")
            a(f"v_lshlrev_b32 v{B_+16+2*i}, 16, v{52+4*g2+i}")
            a(f"v_and_b32 v{B_+16+2*i+1}, s41, v{52+4*g2+i}")
        for j in range(8): a(f"v_add_f32 v{B_+j}, v{B_+j}, v{B_+16+j}")
        for i in range(4): a(f"v_cvt_pk_bf16_f32 v{B_+8+i}, v{B_+2*i}, v{B_+2*i+1}")
        a(f"s_add_u32 s50, s76, {g2*8*896}")
        a(f"buffer_store_dwordx4 v[{B_+8}:{B_+11}], v32, s[24:27], s50 offen")
    if STAMPS: a("s_waitcnt vmcnt(0)")
    stamp(a, 9)
    stamp_flush(a, 38, 32, 2)
    a("s_endpgm")
    a("K3_PF:")
    a("s_sub_u32 s36, s2, 224")
    a("s_waitcnt lgkmcnt(0)")
    srd(a, 16, 4, 1605632)
    srd(a, 20, 8, 1605632)
    srd(a, 24, 10, 1605632)
    srd(a, 32, 14, WS_SIZE)
    a("s_cmp_ge_u32 s36, 28")
    a("s_cbranch_scc1 K3_PF2")
    a("s_cmp_ge_u32 s36, 14")
    a("s_cselect_b32 s37, 1, 0")
    a("s_cselect_b32 s28, s10, s8")
    a("s_cselect_b32 s29, s11, s9")
    a("s_mov_b32 s30, 1605632")
    a("s_mov_b32 s31, 0x00020000")
    a("s_mul_i32 s39, s37, 14")
    a("s_sub_u32 s39, s36, s39")
    a("v_lshrrev_b32 v7, 4, v0")
    a("v_and_b32 v8, 15, v0")
    a("v_mul_u32_u24 v9, 3584, v7")
    a("v_lshl_add_u32 v9, v8, 4, v9")
    a("s_lshl_b32 s50, s39, 8")
    for i in range(28):
        a(f"s_add_u32 s51, s50, {i*16*3584}")
        a(f"buffer_load_dwordx4 v[{20+4*i}:{20+4*i+3}], v9, s[28:31], s51 offen")
    for j in range(8): a(f"v_mov_b32 v{140+j}, 0")
    for i in range(28):
        a(f"s_waitcnt vmcnt({27-i})")
        for r in range(4):
            a(f"v_lshlrev_b32 v11, 16, v{20+4*i+r}")
            a(f"v_and_b32 v12, s41, v{20+4*i+r}")
            a(f"v_add_f32 v{140+2*r}, v{140+2*r}, v11")
            a(f"v_add_f32 v{140+2*r+1}, v{140+2*r+1}, v12")
    a("v_lshlrev_b32 v11, 9, v7")
    a("v_lshl_add_u32 v11, v8, 5, v11")
    a("ds_write_b128 v11, v[140:143]")
    a("ds_write_b128 v11, v[144:147] offset:16")
    a("s_waitcnt lgkmcnt(0)")
    a("s_barrier")
    a("s_cmp_ge_u32 s38, 2")
    a("s_cbranch_scc1 K3_PF1")
    a("v_lshlrev_b32 v11, 2, v0")
    for i in range(16):
        a(f"ds_read_b32 v{20+i}, v11 offset:{i*512}")
    a("s_waitcnt lgkmcnt(0)")
    for i in range(1, 16): a(f"v_add_f32 v20, v20, v{20+i}")
    a("v_cvt_pk_bf16_f32 v24, v20, v20")
    a("v_and_b32 v22, s41, v24")
    a("v_sub_f32 v22, v20, v22")
    a("v_cvt_pk_bf16_f32 v25, v22, v22")
    a("v_lshlrev_b32 v11, 6, v8")
    a("v_lshl_add_u32 v11, v7, 3, v11")
    a("s_lshl_b32 s50, s39, 11")
    a("s_lshl_b32 s51, s37, 10")
    a("s_add_u32 s50, s50, s51")
    a(f"s_add_u32 s50, s50, {WS_CS}")
    a("buffer_store_dwordx2 v[24:25], v11, s[32:35], s50 offen sc1")
    a("s_lshl_b32 s50, s2, 7")
    a("s_lshl_b32 s51, s38, 2")
    a("s_add_u32 s50, s50, s51")
    a(f"s_add_u32 s50, s50, {WS_FLAG}")
    a("v_mov_b32 v26, 1")
    a("v_mov_b32 v27, 0")
    a("s_waitcnt vmcnt(0)")
    a("s_mov_b64 exec, 1")
    a("buffer_store_dword v26, v27, s[32:35], s50 offen sc1")
    a("s_mov_b64 exec, -1")
    a("K3_PF1:")
    a("s_barrier")
    a("K3_PF2:")
    a("s_lshr_b32 s60, s36, 3")
    a("s_lshl_b32 s60, s60, 2")
    a("s_add_u32 s60, s60, s38")
    a("s_mul_i32 s61, s60, 7168")
    a(f"v_lshlrev_b32 v10, 7, v{LANE}")
    a(f"v_mov_b32 v11, 0x7fff0000")
    a(f"v_cmp_gt_u32 vcc, 56, v{LANE}")
    a(f"v_cndmask_b32 v10, v11, v10, vcc")
    for i in range(10):
        a(f"s_add_u32 s62, s61, {4096*128 + i*16*7168}")
        a(f"buffer_load_dword v{150+2*i}, v10, s[20:23], s62 offen")
        a(f"buffer_load_dword v{151+2*i}, v10, s[24:27], s62 offen")
    for i in range(14):
        a(f"s_add_u32 s62, s61, {i*16*7168}")
        a(f"buffer_load_dword v{170+i}, v10, s[16:19], s62 offen")
    a("K3_END:")
    a("s_endpgm")
    a.fix_hazards()
    k = kd("k3_kernel", 256).replace("next_free_vgpr 256", "next_free_vgpr 506")
    return a.text(), k

K4_WREG = 40960
K4_LDS = 4 * K4_WREG

def gen_k4():
    a = Asm()
    head(a, "k4_kernel")
    a("s_cmp_ge_u32 s2, 224")
    a("s_cbranch_scc1 K4_END")
    stamp_init(a); stamp(a, 0, real=True); stamp(a, 1)
    a("s_load_dwordx4 s[8:11], s[0:1], 56")
    a("s_load_dwordx2 s[14:15], s[0:1], 80")
    LANE, M, HF, I16, G = 1, 2, 3, 4, 5
    a(f"v_and_b32 v{LANE}, 63, v0")
    a(f"v_lshrrev_b32 v6, 6, v0")
    a(f"v_readfirstlane_b32 s38, v6")
    a(f"v_and_b32 v{M}, 31, v{LANE}")
    a(f"v_lshrrev_b32 v{HF}, 5, v{LANE}")
    a(f"v_and_b32 v{I16}, 15, v{LANE}")
    a(f"v_lshrrev_b32 v{G}, 4, v{LANE}")
    a("s_mov_b32 s41, 0xffff0000")
    a("s_and_b32 s36, s2, 7")
    a("s_lshl_b32 s36, s36, 2")
    a("s_bfe_u32 s37, s2, 0x20003")
    a("s_add_u32 s36, s36, s37")
    a("s_lshr_b32 s37, s2, 5")
    a(f"v_lshrrev_b32 v7, 3, v{LANE}")
    a(f"v_and_b32 v8, 7, v{LANE}")
    a(f"v_lshrrev_b32 v9, 1, v7")
    a(f"v_and_b32 v9, 1, v9")
    a(f"v_lshlrev_b32 v9, 2, v9")
    a(f"v_xor_b32 v8, v8, v9")
    a(f"v_mul_u32_u24 v7, 896, v7")
    a(f"v_lshl_add_u32 v10, v8, 4, v7")
    a(f"v_lshlrev_b32 v11, 4, v{LANE}")
    a("s_waitcnt lgkmcnt(0)")
    srd(a, 20, 8, 1605632)
    srd(a, 24, 10, 1835008)
    srd(a, 32, 14, WS_SIZE)
    a("s_mul_i32 s46, s38, 401408")
    a("s_lshl_b32 s47, s37, 7")
    a("s_add_u32 s46, s46, s47")
    a(f"s_mul_i32 s47, s38, {K4_WREG}")
    a("s_mul_i32 s48, s36, 229376")
    a("s_mul_i32 s49, s38, 28672")
    a("s_add_u32 s48, s48, s49")
    a(f"s_add_u32 s48, s48, {WS_HH}")
    vm = VM(a)
    HH = 28
    a("s_bfe_u32 s52, s2, 0x20003")
    for g_ in range(4):
        a(f"s_add_u32 s53, s52, {g_}")
        a("s_and_b32 s53, s53, 3")
        a(f"s_mul_i32 s{56+g_}, s53, {7*16*896}")
        a(f"s_add_u32 s{56+g_}, s{56+g_}, s46")
        a(f"s_mul_i32 s{60+g_}, s53, 7168")
        a(f"s_add_u32 s{60+g_}, s{60+g_}, s48")
    def dma(ks):
        for i in range(2):
            a(f"s_add_u32 m0, s47, {(ks % 20)*2048 + i*1024}")
            a(f"s_add_u32 s50, s{56+ks//7}, {((ks%7)*16 + i*8)*896}")
            a(f"buffer_load_dwordx4 v10, s[20:23], s50 offen lds")
            vm.issue(f"k{ks}")
    def hload(ks):
        for m2 in range(2):
            a(f"s_add_u32 s50, s{60+ks//7}, {m2*114688 + (ks%7)*1024}")
            a(f"buffer_load_dwordx4 v[{HH+8*ks+4*m2}:{HH+8*ks+4*m2+3}], v11, s[32:35], s50 offen")
            vm.issue(f"k{ks}")
    PRE = 15
    for ks in range(PRE):
        dma(ks); hload(ks)
    a(f"v_lshrrev_b32 v7, 2, v{I16}")
    a(f"v_lshl_add_u32 v8, v{HF}, 2, v7")
    a(f"v_lshrrev_b32 v7, 1, v7")
    a(f"v_lshlrev_b32 v7, 3, v7")
    a(f"v_and_b32 v9, 1, v{G}")
    a(f"v_lshl_add_u32 v7, v9, 2, v7")
    a(f"v_and_b32 v9, 3, v{I16}")
    a(f"v_add_u32 v7, v7, v9")
    a(f"v_lshlrev_b32 v7, 3, v7")
    a(f"v_lshl_add_u32 v7, v8, 7, v7")
    a(f"v_add_u32 v12, s47, v7")
    a(f"v_xor_b32 v13, 64, v12")
    WF = 14
    def acc(n2, m2): return f"a[{32*n2+16*m2}:{32*n2+16*m2+15}]"
    def wf(ks, n2):
        b = 64 + (ks & 1) * 8 + 4 * n2
        return b
    def rd(ks):
        for n2 in range(2):
            b = wf(ks, n2)
            for e in range(2):
                a(f"ds_read_b64_tr_b16 a[{b+2*e}:{b+2*e+1}], v{12+n2} offset:{(ks % 20)*2048 + e*1024}")
    stamp(a, 2)
    vm.wait("k0")
    stamp(a, 3)
    rd(0)
    for ks in range(28):
        if ks + 1 < 28:
            vm.wait(f"k{ks+1}")
            rd(ks + 1)
            a("s_waitcnt lgkmcnt(4)")
        else:
            a("s_waitcnt lgkmcnt(0)")
        for n2 in range(2):
            for m2 in range(2):
                b = wf(ks, n2)
                c_ = "0" if ks == 0 else acc(n2, m2)
                a(f"v_mfma_f32_32x32x16_bf16 {acc(n2,m2)}, a[{b}:{b+3}], v[{HH+8*ks+4*m2}:{HH+8*ks+4*m2+3}], {c_}")
        nk = ks + PRE
        if nk < 28:
            dma(nk); hload(nk)
    stamp(a, 4)
    a("s_lshl_b32 s50, s36, 1")
    a("s_mul_i32 s50, s50, 28")
    a("s_lshl_b32 s51, s37, 2")
    a("s_add_u32 s50, s50, s51")
    a("s_add_u32 s50, s50, s38")
    a("s_lshl_b32 s50, s50, 10")
    a(f"s_add_u32 s50, s50, {WS_HF}")
    a(f"v_mul_u32_u24 v7, 28672, v{HF}")
    a(f"v_lshl_add_u32 v7, v{M}, 4, v7")
    a(f"buffer_load_dwordx4 v[14:17], v7, s[32:35], s50 offen")
    a(f"buffer_load_dwordx4 v[18:21], v7, s[32:35], s50 offen offset:512")
    a(f"v_mul_u32_u24 v7, 272, v{M}")
    a(f"v_lshl_add_u32 v7, v{HF}, 4, v7")
    a(f"v_add_u32 v7, s47, v7")
    for n2 in range(2):
        for m2 in range(2):
            for q in range(4):
                b = 32*n2 + 16*m2 + 4*q
                a(f"ds_write_b128 v7, a[{b}:{b+3}] offset:{m2*32*272 + n2*128 + q*32}")
    a("s_waitcnt lgkmcnt(0)")
    a("s_barrier")
    stamp(a, 5)
    a(f"v_mul_u32_u24 v7, 272, v{LANE}")
    a("s_lshl_b32 s50, s38, 6")
    a(f"v_add_u32 v7, s50, v7")
    a(f"v_add_u32 v8, {2*K4_WREG}, v7")
    for w in range(4):
        for e in range(4):
            base = 7 if w < 2 else 8
            a(f"ds_read_b128 v[{28+16*w+4*e}:{28+16*w+4*e+3}], v{base} offset:{(w&1)*K4_WREG + e*16}")
    a("s_waitcnt lgkmcnt(0)")
    for j in range(16):
        a(f"v_add_f32 v{28+j}, v{28+j}, v{44+j}")
        a(f"v_add_f32 v{60+j}, v{60+j}, v{76+j}")
    for j in range(16):
        a(f"v_add_f32 v{28+j}, v{28+j}, v{60+j}")
    a("s_waitcnt vmcnt(0)")
    for i in range(8):
        a(f"v_cvt_pk_bf16_f32 v44, v{28+2*i}, v{28+2*i+1}")
        a(f"v_lshlrev_b32 v45, 16, v44")
        a(f"v_and_b32 v46, s41, v44")
        a(f"v_lshlrev_b32 v47, 16, v{14+i}")
        a(f"v_and_b32 v48, s41, v{14+i}")
        a(f"v_add_f32 v45, v45, v47")
        a(f"v_add_f32 v46, v46, v48")
        a(f"v_cvt_pk_bf16_f32 v{60+i}, v45, v46")
    a("s_lshl_b32 s50, s36, 6")
    a(f"v_add_u32 v7, s50, v{LANE}")
    a(f"v_mul_u32_u24 v7, 896, v7")
    a("s_lshl_b32 s50, s37, 7")
    a("s_lshl_b32 s51, s38, 5")
    a("s_add_u32 s50, s50, s51")
    a(f"buffer_store_dwordx4 v[60:63], v7, s[24:27], s50 offen")
    a(f"buffer_store_dwordx4 v[64:67], v7, s[24:27], s50 offen offset:16")
    if STAMPS: a("s_waitcnt vmcnt(0)")
    stamp(a, 9)
    stamp_flush(a, 38, 32, 3)
    a("K4_END:")
    a("s_endpgm")
    a.fix_hazards()
    k = kd("k4_kernel", 256).replace("next_free_vgpr 256", "next_free_vgpr 336")
    return a.text(), k

def kernels():
    return [("k3", gen_k3, 256, 256, K3_LDS)]
```

```python
import sys
from asmfw import Asm

WS_KV   = 0
WS_CS   = 512 * 1024
WS_ST   = 640 * 1024
WS_PHIQ = 1 << 20
WS_H    = 8 << 20
WS_HH   = 16 << 20
WS_SIZE = 268435456
LOG2E = 0x3fb8aa3b

class VM:
    def __init__(self, a): self.a = a; self.ops = []
    def issue(self, tag): self.ops.append(tag)
    def wait(self, tag, extra=0):
        idx = max(i for i, t in enumerate(self.ops) if t == tag)
        n = len(self.ops) - 1 - idx + extra
        assert n <= 63
        self.a("s_waitcnt vmcnt(%d)" % n)
    def copy(self):
        v = VM(self.a); v.ops = list(self.ops); return v

def srd(a, d, ptr, size):
    a(f"s_mov_b32 s{d}, s{ptr}")
    a(f"s_mov_b32 s{d+1}, s{ptr+1}")
    a(f"s_mov_b32 s{d+2}, {size}")
    a(f"s_mov_b32 s{d+3}, 0x00020000")

def bf16r(a, dst, src, tmp=None):
    a(f"v_cvt_pk_bf16_f32 v{dst}, v{src}, v{src}")
    a(f"v_and_b32 v{dst}, 0xffff0000, v{dst}")

def xhalf(a, op, dst, src, t1, t2):
    a(f"v_mov_b32 v{t1}, v{src}")
    a(f"v_mov_b32 v{t2}, v{src}")
    a(f"v_permlane32_swap_b32 v{t1}, v{t2}")
    a(f"{op} v{dst}, v{t1}, v{t2}")

def ln_stats_finish(a, vs, vq, v_mr, v_rstd, t1, t2, t3):
    xhalf(a, "v_add_f32", vs, vs, t1, t2)
    xhalf(a, "v_add_f32", vq, vq, t1, t2)
    a(f"v_mul_f32 v{vs}, 0x3b124925, v{vs}")
    a(f"v_mul_f32 v{vq}, 0x3b124925, v{vq}")
    a(f"v_fma_f32 v{vq}, -v{vs}, v{vs}, v{vq}")
    a(f"v_max_f32 v{vq}, 0, v{vq}")
    bf16r(a, vs, vs)
    bf16r(a, vq, vq)
    a(f"v_add_f32 v{vq}, 0x3727c5ac, v{vq}")
    bf16r(a, vq, vq)
    a(f"v_sqrt_f32 v{vq}, v{vq}")
    bf16r(a, vq, vq)
    a(f"v_rcp_f32 v{v_rstd}, v{vq}")
    a(f"v_mul_f32 v{v_mr}, v{vs}, v{v_rstd}")

def softmax_pm(a, P, E, F, OP, ON, T, s_hi, SC, OSC=None):
    for r in range(12, 16):
        a(f"v_cndmask_b32 v{P+r}, v{P+r}, v{P}, s[{s_hi}:{s_hi+1}]")
    mx, mn, t1, t2, se, sf = T, T+1, T+2, T+3, T+4, T+5
    a(f"v_max3_f32 v{mx}, v{P}, v{P+1}, v{P+2}")
    a(f"v_min3_f32 v{mn}, v{P}, v{P+1}, v{P+2}")
    for r in range(3, 15, 2):
        a(f"v_max3_f32 v{mx}, v{mx}, v{P+r}, v{P+r+1}")
        a(f"v_min3_f32 v{mn}, v{mn}, v{P+r}, v{P+r+1}")
    a(f"v_max_f32 v{mx}, v{mx}, v{P+15}")
    a(f"v_min_f32 v{mn}, v{mn}, v{P+15}")
    a(f"v_mov_b32 v{t1}, v{mx}")
    a(f"v_mov_b32 v{se}, v{mn}")
    a(f"v_permlane32_swap_b32 v{t1}, v{mx}")
    a(f"v_permlane32_swap_b32 v{se}, v{mn}")
    a(f"v_max_f32 v{mx}, v{t1}, v{mx}")
    a(f"v_min_f32 v{mn}, v{se}, v{mn}")
    a(f"v_mul_f32 v{mx}, v{SC}, v{mx}")
    a(f"v_mul_f32 v{mn}, v{SC}, v{mn}")
    for r in range(16):
        a(f"v_fma_f32 v{E+r}, v{P+r}, v{SC}, -v{mx}")
        a(f"v_fma_f32 v{F+r}, -v{P+r}, v{SC}, v{mn}")
        if r >= 1:
            a(f"v_exp_f32 v{E+r-1}, v{E+r-1}")
            a(f"v_exp_f32 v{F+r-1}, v{F+r-1}")
    a(f"v_exp_f32 v{E+15}, v{E+15}")
    a(f"v_exp_f32 v{F+15}, v{F+15}")
    a(f"v_add_f32 v{se}, v{E}, v{E+1}")
    a(f"v_add_f32 v{sf}, v{F}, v{F+1}")
    a(f"v_add_f32 v{t1}, v{E+2}, v{E+3}")
    a(f"v_add_f32 v{t2}, v{F+2}, v{F+3}")
    for r in range(4, 12, 2):
        a(f"v_add_f32 v{se}, v{se}, v{E+r}")
        a(f"v_add_f32 v{sf}, v{sf}, v{F+r}")
        a(f"v_add_f32 v{t1}, v{t1}, v{E+r+1}")
        a(f"v_add_f32 v{t2}, v{t2}, v{F+r+1}")
    for r in range(12, 16):
        a(f"v_cndmask_b32 v{E+r}, v{E+r}, 0, s[{s_hi}:{s_hi+1}]")
        a(f"v_cndmask_b32 v{F+r}, v{F+r}, 0, s[{s_hi}:{s_hi+1}]")
    for r in range(12, 16, 2):
        a(f"v_add_f32 v{se}, v{se}, v{E+r}")
        a(f"v_add_f32 v{sf}, v{sf}, v{F+r}")
        a(f"v_add_f32 v{t1}, v{t1}, v{E+r+1}")
        a(f"v_add_f32 v{t2}, v{t2}, v{F+r+1}")
    a(f"v_add_f32 v{se}, v{se}, v{t1}")
    a(f"v_add_f32 v{sf}, v{sf}, v{t2}")
    a(f"v_mov_b32 v{t1}, v{se}")
    a(f"v_mov_b32 v{t2}, v{sf}")
    a(f"v_permlane32_swap_b32 v{t1}, v{se}")
    a(f"v_permlane32_swap_b32 v{t2}, v{sf}")
    a(f"v_add_f32 v{se}, v{t1}, v{se}")
    a(f"v_add_f32 v{sf}, v{t2}, v{sf}")
    a(f"v_rcp_f32 v{se}, v{se}")
    a(f"v_rcp_f32 v{sf}, v{sf}")
    if OSC is not None:
        a(f"v_mul_f32 v{se}, v{se}, v{OSC}")
        a(f"v_mul_f32 v{sf}, v{sf}, v{OSC}")
    for i in range(8):
        a(f"v_mul_f32 v{E+2*i}, v{E+2*i}, v{se}")
        a(f"v_mul_f32 v{E+2*i+1}, v{E+2*i+1}, v{se}")
        a(f"v_cvt_pk_bf16_f32 v{OP+i}, v{E+2*i}, v{E+2*i+1}")
    for i in range(8):
        a(f"v_mul_f32 v{F+2*i}, v{F+2*i}, v{sf}")
        a(f"v_mul_f32 v{F+2*i+1}, v{F+2*i+1}, v{sf}")
        a(f"v_cvt_pk_bf16_f32 v{ON+i}, v{F+2*i}, v{F+2*i+1}")

def stats_finish(a, vs, vq, v_nmean, v_rstd, v_sd):
    a(f"v_mul_f32 v{vs}, 0x3b124925, v{vs}")
    a(f"v_mul_f32 v{vq}, 0x3b124925, v{vq}")
    a(f"v_fma_f32 v{vq}, -v{vs}, v{vs}, v{vq}")
    a(f"v_max_f32 v{vq}, 0, v{vq}")
    a(f"v_cvt_pk_bf16_f32 v{vs}, v{vq}, v{vs}")
    a(f"v_lshlrev_b32 v{vq}, 16, v{vs}")
    a(f"v_and_b32 v{vs}, 0xffff0000, v{vs}")
    a(f"v_add_f32 v{vq}, 0x3727c5ac, v{vq}")
    a(f"v_xor_b32 v{v_nmean}, 0x80000000, v{vs}")
    bf16r(a, vq, vq)
    a(f"v_sqrt_f32 v{vq}, v{vq}")
    bf16r(a, v_sd, vq)
    a(f"v_rcp_f32 v{v_rstd}, v{v_sd}")

def kd(name, vgpr, sgpr=102):
    acc = (vgpr + 3) // 4 * 4
    return f""".p2align 6
.amdhsa_kernel {name}
  .amdhsa_next_free_vgpr {vgpr}
  .amdhsa_next_free_sgpr {sgpr}
  .amdhsa_accum_offset {min(acc,256)}
  .amdhsa_group_segment_fixed_size 0
  .amdhsa_kernarg_size 88
  .amdhsa_user_sgpr_count 2
  .amdhsa_user_sgpr_kernarg_segment_ptr 1
  .amdhsa_system_sgpr_workgroup_id_x 1
.end_amdhsa_kernel"""

WS_STAMP = 64 << 20
import os
STAMPS = bool(int(os.environ.get("STAMPS", "0")))
def stamp(a, idx, real=False):
    if not STAMPS: return
    a(f"s_memrealtime s[{80+2*idx}:{81+2*idx}]" if real else f"s_memtime s[{80+2*idx}:{81+2*idx}]")

def stamp_init(a):
    if not STAMPS: return
    for i in range(80, 100): a(f"s_mov_b32 s{i}, 0")

def stamp_flush(a, s_wave, ws_srd, koff=0):
    if not STAMPS: return
    a("s_waitcnt lgkmcnt(0)")
    a("s_lshl_b32 s3, s2, 3")
    a(f"s_add_u32 s3, s3, s{s_wave}")
    a("s_lshl_b32 s3, s3, 6")
    a(f"s_add_u32 s3, s3, {WS_STAMP + koff*(1<<20)}")
    a("v_mov_b32 v1, s3")
    for i in range(10):
        a(f"v_mov_b32 v0, s{80+2*i}")
        a(f"buffer_store_dword v0, v1, s[{ws_srd}:{ws_srd+3}], 0 offen offset:{i*4}")

def head(a, name):
    a.raw(f".globl {name}\n.p2align 8\n.type {name},@function")
    a(f"{name}:")

K1_CS   = 0
K1_FL   = 448
K1_SQ   = 512
K1_SM   = 1536
K1_WP   = 2048
K1_RING = 4096
K1_SLOT = 28672
K1_LDS  = K1_RING + 5 * K1_SLOT
K1_PHIK = K1_RING
K1_V    = K1_PHIK + 16384

NPRE = int(os.environ.get('NPRE', '2'))
TLBW = int(os.environ.get('TLBW', '0'))
CODEPF = int(os.environ.get('CODEPF', '0'))
def gen_k1():
    a = Asm()
    head(a, "k1_kernel")
    a("s_cmp_ge_u32 s2, 256")
    a("s_cbranch_scc1 K1_END")
    stamp_init(a)
    stamp(a, 0, real=True)
    stamp(a, 1)
    a("s_load_dwordx4 s[4:7], s[0:1], 0")
    a("s_load_dwordx4 s[8:11], s[0:1], 16")
    a("s_load_dwordx4 s[12:15], s[0:1], 72")
    a("s_load_dwordx4 s[56:59], s[0:1], 40")
    a("s_load_dwordx4 s[68:71], s[0:1], 56")
    LANE, M, HF, I16, G = 1, 2, 3, 4, 5
    a(f"v_and_b32 v{LANE}, 63, v0")
    a(f"v_lshrrev_b32 v6, 6, v0")
    a(f"v_readfirstlane_b32 s38, v6")
    a(f"v_and_b32 v{M}, 31, v{LANE}")
    a(f"v_lshrrev_b32 v{HF}, 5, v{LANE}")
    a(f"v_and_b32 v{I16}, 15, v{LANE}")
    a(f"v_lshrrev_b32 v{G}, 4, v{LANE}")
    a("s_and_b32 s36, s2, 7")
    a("s_lshl_b32 s36, s36, 1")
    a("s_bfe_u32 s37, s2, 0x10003")
    a("s_add_u32 s36, s36, s37")
    a("s_lshr_b32 s37, s2, 4")
    a("s_and_b32 s39, s38, 3")
    a("s_lshr_b32 s40, s38, 2")
    a("s_mov_b32 s42, 0")
    a("s_mov_b32 s43, -1")
    a(f"s_mov_b32 s44, {LOG2E}")
    a("s_mov_b32 s45, 0x3f803f80")
    a("s_mov_b32 s41, 0xffff0000")
    a("s_cmp_eq_u32 s40, 1")
    a("s_cbranch_scc1 K1_Q")

    PAT = 30
    def common_setup_early(vm):
        a("s_waitcnt lgkmcnt(0)")
        srd(a, 16, 4, 1835008)
        srd(a, 20, 6, 1204224)
        srd(a, 24, 8, 25088)
        srd(a, 28, 12, 256)
        srd(a, 32, 14, WS_SIZE)
        pass
    def rot_table(mult):
        a("s_and_b32 s60, s36, 1")
        a("s_mul_i32 s60, s60, 3")
        a("s_add_u32 s60, s60, s37")
        for _ in range(2):
            a("s_cmp_ge_u32 s60, 7")
            a("s_cselect_b32 s61, 7, 0")
            a("s_sub_u32 s60, s60, s61")
        a("s_mov_b32 s67, s60")
        for c in range(7):
            a(f"s_mul_i32 s{60+c}, s67, {mult}")
            a(f"s_add_u32 s{60+c}, s{60+c}, s47")
            if c < 6:
                a("s_add_u32 s67, s67, 1")
                a("s_cmp_ge_u32 s67, 7")
                a("s_cselect_b32 s67, 0, s67")
    def tail_prefetch():
        srd(a, 64, 10, 401408)
        a("s_lshr_b32 s60, s2, 3")
        a("s_lshl_b32 s60, s60, 2")
        a("s_add_u32 s60, s60, s39")
        a(f"v_lshlrev_b32 v226, 7, v{LANE}")
        a(f"v_mov_b32 v227, 0x7fff0000")
        a(f"v_cmp_gt_u32 vcc, 25, v{LANE}")
        a(f"v_cndmask_b32 v228, v227, v226, vcc")
        a("s_mul_i32 s61, s60, 3200")
        a("buffer_load_dword v229, v228, s[64:67], s61 offen")
        a(f"v_cmp_gt_u32 vcc, 32, v{LANE}")
        a(f"v_cndmask_b32 v228, v227, v226, vcc")
        a("s_lshl_b32 s61, s60, 12")
        srd(a, 64, 56, 1605632)
        a("buffer_load_dword v230, v228, s[64:67], s61 offen")
        srd(a, 64, 58, 1605632)
        a("buffer_load_dword v231, v228, s[64:67], s61 offen")
        a(f"v_cmp_gt_u32 vcc, 13, v{LANE}")
        a(f"v_cndmask_b32 v228, v227, v226, vcc")
        a("s_lshl_b32 s61, s2, 2")
        a("s_add_u32 s61, s61, s39")
        a("s_mul_i32 s61, s61, 1664")
        srd(a, 64, 68, 1605632)
        a("buffer_load_dword v225, v228, s[64:67], s61 offen")
        if TLBW:
            a("s_and_b32 s62, s2, 7")
            a("s_mul_i32 s61, s62, 917504")
            a("s_lshl_b32 s63, s60, 13")
            a("s_add_u32 s61, s61, s63")
            a(f"s_add_u32 s61, s61, {WS_HH}")
            a(f"v_lshlrev_b32 v228, 12, v{LANE}")
            a("s_mov_b64 exec, 3")
            a("buffer_load_dword v224, v228, s[32:35], s61 offen")
            a("s_mov_b64 exec, 1")
            a("s_mul_i32 s61, s62, 229376")
            a("s_mul_i32 s63, s60, 1792")
            a("s_add_u32 s61, s61, s63")
            srd(a, 64, 70, 1835008)
            a("buffer_load_dword v227, v228, s[64:67], s61 offen")
            a(f"s_add_u32 s61, s61, {WS_H}")
            a("buffer_load_dword v226, v228, s[32:35], s61 offen")
            a("s_mov_b64 exec, -1")
    XV = 200; TB = 212
    def common_setup_late():
        a(f"v_lshrrev_b32 v7, 2, v{I16}")
        a(f"v_lshl_add_u32 v7, v{HF}, 3, v7")
        a(f"v_mul_u32_u24 v7, 192, v7")
        a(f"v_and_b32 v8, 1, v{G}")
        a(f"v_lshlrev_b32 v8, 2, v8")
        a(f"v_and_b32 v9, 3, v{I16}")
        a(f"v_add_u32 v8, v8, v9")
        a(f"v_lshl_add_u32 v7, v8, 3, v7")
        a("s_and_b32 s50, s37, 1")
        a("s_lshl_b32 s50, s50, 3")
        a(f"s_add_u32 s50, s50, {K1_RING + 16384}")
        a(f"v_add_u32 v{TB}, s50, v7")
        a(f"v_add_u32 v{TB+1}, {2*K1_SLOT}, v{TB}")
        a(f"v_add_u32 v{TB+2}, {4*K1_SLOT}, v{TB}")
        a("s_min_u32 s50, s39, 2")
        a("s_lshl_b32 s50, s50, 6")
        for st in range(3):
            a(f"v_add_u32 v{TB+3+st}, s50, v{TB+st}")
        a("s_lshl_b32 s50, s39, 5")
        a(f"v_add_u32 v7, s50, v{M}")
        a(f"v_lshrrev_b32 v8, 1, v7")
        a(f"v_and_b32 v8, 7, v8")
        a(f"v_xor_b32 v8, v8, v{HF}")
        a(f"v_lshlrev_b32 v8, 4, v8")
        a(f"v_lshl_add_u32 v11, v7, 7, v8")
        for p in range(4):
            a(f"v_xor_b32 v7, {p*32}, v11")
            for st in range(3):
                a(f"v_add_u32 v{XV+4*st+p}, {K1_RING + 2*st*K1_SLOT}, v7")

    LA = 2
    def mainloop(segs, ACC, XFb, WF, SQ, qrole, vm, dma_ops):
        ns = len(segs)
        NB = LA + 1
        a(f"v_mov_b32 v{SQ}, 0"); a(f"v_mov_b32 v{SQ+1}, 0")
        nr = 1 + 2 * ns
        def emit(op):
            for t_ in op[1]: a(t_)
            vm.issue(op[0])
        def reads(kk):
            c = kk // 4; slot = c % 5; p = kk % 4
            st = slot // 2; so = slot % 2
            xb = XFb + (kk % NB) * 4
            a(f"ds_read_b128 v[{xb}:{xb+3}], v{XV+4*st+p} offset:{so*K1_SLOT}")
            b = WF + (kk % NB) * ns * 4
            for i, sg in enumerate(segs):
                off = so * K1_SLOT + p * 3072 + (0 if sg == "cs" else sg * 64)
                tb = TB + st + (3 if sg == "cs" else 0)
                a(f"ds_read_b64_tr_b16 v[{b+4*i}:{b+4*i+1}], v{tb} offset:{off}")
                a(f"ds_read_b64_tr_b16 v[{b+4*i+2}:{b+4*i+3}], v{tb} offset:{off+768}")
        stamp(a, 2)
        vm.wait("c0")
        a("s_barrier")
        for c in range(NPRE, 5):
            for op in dma_ops(c): emit(op)
        stamp(a, 3)
        queue = []
        for kk in range(LA): reads(kk)
        for kk in range(28):
            nk = kk + LA
            if nk < 28:
                if nk % 4 == 0:
                    c = nk // 4
                    while any(op[0] == f"c{c}" for op in queue): emit(queue.pop(0))
                    vm.wait(f"c{c}")
                    a("s_barrier")
                    if c in (2, 4): stamp(a, 3 + c // 2)
                    if c in (2, 3): queue += dma_ops(c + 3)
                reads(nk)
            out = min(28 - 1 - kk, LA) * nr
            a(f"s_waitcnt lgkmcnt({out})")
            b = WF + (kk % NB) * ns * 4
            xb = XFb + (kk % NB) * 4
            c0 = "0" if kk == 0 else None
            if qrole:
                for r in range(4):
                    a(f"v_cndmask_b32 v{qrole+r}, v{b+r}, v{qrole+4}, s[52:53]")
                a(f"v_mfma_f32_32x32x16_bf16 v[{ACC[1]}:{ACC[1]+15}], v[{b+4}:{b+7}], v[{qrole+4}:{qrole+7}], " + (c0 or f"v[{ACC[1]}:{ACC[1]+15}]"))
                a(f"v_lshlrev_b32 v10, 16, v{xb}")
                a(f"v_and_b32 v11, s41, v{xb}")
                a(f"v_fmac_f32 v{SQ}, v10, v10")
                a(f"v_fmac_f32 v{SQ+1}, v11, v11")
                a(f"v_mfma_f32_32x32x16_bf16 v[{ACC[0]}:{ACC[0]+15}], v[{qrole}:{qrole+3}], v[{xb}:{xb+3}], " + (c0 or f"v[{ACC[0]}:{ACC[0]+15}]"))
                a(f"v_lshlrev_b32 v10, 16, v{xb+1}")
                a(f"v_and_b32 v11, s41, v{xb+1}")
                a(f"v_fmac_f32 v{SQ}, v10, v10")
                a(f"v_fmac_f32 v{SQ+1}, v11, v11")
            else:
                for i in range(ns):
                    a(f"v_mfma_f32_32x32x16_bf16 v[{ACC[i]}:{ACC[i]+15}], v[{b+4*i}:{b+4*i+3}], v[{xb}:{xb+3}], " + (c0 or f"v[{ACC[i]}:{ACC[i]+15}]"))
                    a(f"v_lshlrev_b32 v10, 16, v{xb+2+i}")
                    a(f"v_and_b32 v11, s41, v{xb+2+i}")
                    a(f"v_fmac_f32 v{SQ}, v10, v10")
                    a(f"v_fmac_f32 v{SQ+1}, v11, v11")
            if queue: emit(queue.pop(0))
            if queue: emit(queue.pop(0))
        stamp(a, 6)
        a(f"v_add_f32 v{SQ}, v{SQ}, v{SQ+1}")
        a(f"v_lshlrev_b32 v7, 2, v{M}")
        a("s_lshl_b32 s50, s39, 7")
        a(f"v_add_u32 v9, s50, v7")
        xhalf(a, "v_add_f32", SQ, SQ, 10, 11)
        a(f"ds_write_b32 v9, v{SQ} offset:{K1_SQ + (512 if qrole else 0)}")

    def post_reads(segs, dsts, WPF, ST):
        a(f"v_lshlrev_b32 v8, 4, v{HF}")
        a(f"ds_read_b32 v{ST}, v9 offset:{K1_SM}")
        a(f"ds_read_b32 v{ST+1}, v9 offset:{K1_SQ}")
        a(f"ds_read_b32 v{ST+2}, v9 offset:{K1_SQ+512}")
        for sg, dst in zip(segs, dsts):
            for q in range(4):
                a(f"ds_read_b128 v[{dst+4*q}:{dst+4*q+3}], v8 offset:{K1_CS + sg*128 + q*32}")
        for s_ in range(2):
            for e in range(2):
                a(f"ds_read_b64_tr_b16 v[{WPF+4*s_+2*e}:{WPF+4*s_+2*e+1}], v12 offset:{K1_WP + (16*s_+8*e)*56}")

    def wp_addr():
        a(f"v_lshrrev_b32 v7, 2, v{I16}")
        a(f"v_lshl_add_u32 v7, v{HF}, 2, v7")
        a(f"v_mul_u32_u24 v7, 56, v7")
        a(f"v_and_b32 v8, 1, v{G}")
        a(f"v_lshlrev_b32 v8, 2, v8")
        a(f"v_and_b32 v9, 3, v{I16}")
        a(f"v_add_u32 v8, v8, v9")
        a(f"v_lshl_add_u32 v12, v8, 3, v7")

    def center_pack(ACC, CSV, NM, OUT):
        for i in range(8):
            a(f"v_fmac_f32 v{ACC+2*i}, v{CSV+2*i}, v{NM}")
            a(f"v_fmac_f32 v{ACC+2*i+1}, v{CSV+2*i+1}, v{NM}")
            a(f"v_cvt_pk_bf16_f32 v{OUT+i}, v{ACC+2*i}, v{ACC+2*i+1}")

    vmk = VM(a)
    for t in range(3):
        a(f"v_add_u32 v7, {t*64}, v{LANE}")
        a(f"v_mul_u32_u24 v8, 171, v7")
        a(f"v_lshrrev_b32 v8, 11, v8")
        a(f"v_mul_u32_u24 v9, 12, v8")
        a(f"v_sub_u32 v9, v7, v9")
        a(f"v_mul_u32_u24 v8, 2688, v8")
        a(f"v_lshrrev_b32 v7, 2, v9")
        a(f"v_mul_u32_u24 v7, 896, v7")
        a(f"v_and_b32 v9, 3, v9")
        a(f"v_lshlrev_b32 v9, 4, v9")
        a(f"v_add3_u32 v{PAT+t}, v7, v8, v9")
    a("s_mul_i32 s47, s37, 56")
    a("s_and_b32 s47, s47, 0xfffffff0")
    a("s_mul_i32 s48, s39, 43008")
    a("s_add_u32 s47, s47, s48")
    a("s_mul_i32 s49, s39, 3072")
    rot_table(64*2688)
    common_setup_early(vmk)
    if CODEPF:
        a("s_getpc_b64 s[72:73]")
        a("K1_PC:")
        a("s_sub_u32 s72, s72, K1_PC-k1_kernel")
        a("s_subb_u32 s73, s73, 0")
        a("s_mov_b32 s74, K3_END-k1_kernel")
        a("s_mov_b32 s75, 0x00020000")
        a("s_lshr_b32 s76, s2, 3")
        a("s_lshl_b32 s76, s76, 2")
        a("s_add_u32 s76, s76, s39")
        a("s_lshl_b32 s76, s76, 9")
        a(f"v_lshlrev_b32 v224, 7, v{LANE}")
        a("s_mov_b64 exec, 15")
        a("buffer_load_dword v225, v224, s[72:75], s76 offen")
        a("s_mov_b64 exec, -1")
        vmk.issue("cpf")
    def dma_w(c):
        return [(f"c{c}", [f"s_add_u32 m0, s49, {K1_RING + (c%5)*K1_SLOT + 16384 + t*1024}",
                           f"buffer_load_dwordx4 v{PAT+t}, s[20:23], s{60+c} offen lds"]) for t in range(3)]
    for c in range(NPRE):
        for op in dma_w(c):
            for t_ in op[1]: a(t_)
            vmk.issue(op[0])
    a("s_mul_i32 s50, s37, 1568")
    a("s_and_b32 s51, s39, 1")
    a("s_lshl_b32 s51, s51, 10")
    a("s_add_u32 s50, s50, s51")
    a(f"s_add_u32 m0, s51, {K1_WP}")
    a(f"v_lshlrev_b32 v7, 4, v{LANE}")
    a("buffer_load_dwordx4 v7, s[24:27], s50 offen lds")
    vmk.issue("c0")
    common_setup_late()
    wp_addr()
    a("s_lshl_b32 s50, s39, 5")
    a(f"v_add_u32 v7, s50, v{M}")
    a(f"v_lshrrev_b32 v8, 1, v7")
    a(f"v_and_b32 v8, 7, v8")
    a(f"v_xor_b32 v8, v8, v{HF}")
    a(f"v_lshlrev_b32 v8, 3, v8")
    a(f"v_lshl_add_u32 v74, v7, 6, v8")
    a(f"v_lshrrev_b32 v8, 1, v7")
    a(f"v_and_b32 v8, 1, v8")
    a(f"v_lshlrev_b32 v8, 3, v8")
    a(f"v_and_b32 v9, 1, v7")
    a(f"v_or_b32 v8, v8, v9")
    a(f"v_lshrrev_b32 v9, 2, v7")
    a(f"v_and_b32 v9, 3, v9")
    a(f"v_lshl_or_b32 v8, v9, 1, v8")
    a(f"v_xor_b32 v8, v8, v{HF}")
    a(f"v_lshlrev_b32 v8, 3, v8")
    a(f"v_lshl_add_u32 v75, v7, 7, v8")
    a(f"v_lshrrev_b32 v7, 2, v{I16}")
    a(f"v_lshl_add_u32 v7, v{HF}, 3, v7")
    a(f"v_and_b32 v8, 1, v{G}")
    a(f"v_lshlrev_b32 v8, 2, v8")
    a(f"v_and_b32 v9, 3, v{I16}")
    a(f"v_add_u32 v8, v8, v9")
    for e in range(2):
        a(f"v_add_u32 v9, {4*e}, v7")
        a(f"v_lshrrev_b32 v10, 1, v9")
        a(f"v_xor_b32 v10, v10, v8")
        a(f"v_lshlrev_b32 v10, 3, v10")
        a(f"v_lshl_add_u32 v{76+e}, v9, 6, v10")
        a(f"v_lshrrev_b32 v10, 1, v9")
        a(f"v_and_b32 v10, 1, v10")
        a(f"v_lshlrev_b32 v10, 3, v10")
        a(f"v_and_b32 v11, 1, v9")
        a(f"v_or_b32 v10, v10, v11")
        a(f"v_lshrrev_b32 v11, 2, v9")
        a(f"v_lshl_or_b32 v10, v11, 1, v10")
        a(f"v_xor_b32 v10, v10, v8")
        a(f"s_lshl_b32 s50, s39, 3")
        a(f"v_xor_b32 v10, s50, v10")
        a(f"v_lshlrev_b32 v10, 3, v10")
        a(f"v_lshl_add_u32 v{78+e}, v9, 7, v10")
    a("s_lshl_b32 s50, s37, 13")
    a("s_lshl_b32 s51, s39, 7")
    a("s_add_u32 s50, s50, s51")
    a(f"v_lshlrev_b32 v80, 10, v{HF}")
    a(f"v_lshl_add_u32 v80, v{M}, 2, v80")
    a(f"v_add_u32 v80, s50, v80")
    a(f"v_add_u32 v81, 4096, v80")
    for r in range(4): a(f"v_mov_b32 v{82+r}, 0")
    a(f"ds_write_b128 v82, v[82:85] offset:{K1_FL}")
    a("s_lshl_b32 s50, s39, 2")
    a("v_mov_b32 v86, s50")
    a("v_mov_b32 v87, 1")
    a("s_waitcnt lgkmcnt(0)")
    AK, AV = 100, 116
    mainloop([1, 2], [AK, AV], 34, 46, 72, None, vmk, dma_w)
    a("s_waitcnt lgkmcnt(0)")
    a("s_barrier")
    stamp(a, 7)
    a("s_setprio 2")
    CK, CV = 34, 50
    post_reads([1, 2], [CK, CV], 92, 66)
    a("s_lshl_b32 s50, s2, 7")
    a(f"s_add_u32 s50, s50, {768*1024}")
    a("v_mov_b32 v13, 0")
    a(f"v_lshlrev_b32 v14, 2, v{LANE}")
    a("s_mov_b64 exec, 0xfff")
    a("buffer_store_dword v13, v14, s[32:35], s50 offen")
    a("s_mov_b64 exec, -1")
    a("s_lshl_b32 s50, s37, 2")
    a("s_add_u32 s50, s50, 64")
    a("v_mov_b32 v13, s50")
    a("buffer_load_dword v14, v13, s[28:31], 0 offen sc1")
    a("s_waitcnt lgkmcnt(12)")
    a("v_add_f32 v67, v67, v68")
    stats_finish(a, 66, 67, 68, 69, 70)
    a("s_waitcnt lgkmcnt(0)")
    KFR, VFR = 132, 140
    center_pack(AK, CK, 68, KFR)
    a(f"v_cndmask_b32 v{KFR+6}, v{KFR+6}, 0, s[42:43]")
    a(f"v_cndmask_b32 v{KFR+7}, v{KFR+7}, 0, s[42:43]")
    PK = 148
    a(f"v_mfma_f32_32x32x16_bf16 v[{PK}:{PK+15}], v[92:95], v[{KFR}:{KFR+3}], 0")
    a(f"v_mfma_f32_32x32x16_bf16 v[{PK}:{PK+15}], v[96:99], v[{KFR+4}:{KFR+7}], v[{PK}:{PK+15}]")
    center_pack(AV, CV, 68, VFR)
    a(f"v_lshrrev_b32 v9, 16, v70")
    a(f"v_mul_f32 v71, s44, v69")
    a(f"v_cndmask_b32 v{VFR+6}, v{VFR+6}, v9, s[42:43]")
    a(f"v_cndmask_b32 v{VFR+7}, v{VFR+7}, 0, s[42:43]")
    for q in range(4):
        a(f"v_xor_b32 v9, {q*16}, v74")
        a(f"ds_write_b64 v9, v[{VFR+2*q}:{VFR+2*q+1}] offset:{K1_V}")
    E, F, OP, ON, T = 164, 180, 34, 42, 50
    softmax_pm(a, PK, E, F, OP, ON, T, 42, 71, 69)
    for t, src in ((0, OP), (1, ON)):
        for q in range(4):
            a(f"v_xor_b32 v9, {(8*t+2*q)*8}, v75")
            a(f"ds_write_b64 v9, v[{src+2*q}:{src+2*q+1}] offset:{K1_PHIK}")
    a("s_waitcnt lgkmcnt(0)")
    a(f"ds_write_b32 v86, v87 offset:{K1_FL}")
    a("s_cmp_ge_u32 s39, 2")
    a("s_cbranch_scc1 K1_FIN")
    a("K1_LPOLL:")
    a(f"ds_read_b128 v[88:91], v82 offset:{K1_FL}")
    a("s_waitcnt lgkmcnt(0)")
    a("v_and_b32 v88, v88, v89")
    a("v_and_b32 v90, v90, v91")
    a("v_and_b32 v88, v88, v90")
    a("v_readfirstlane_b32 s51, v88")
    a("s_cmp_eq_u32 s51, 0")
    a("s_cbranch_scc1 K1_LPOLL")
    stamp(a, 8)
    KV = 16
    for ks in range(8):
        b = 100 + ks * 8
        for e in range(2):
            a(f"ds_read_b64_tr_b16 v[{b+2*e}:{b+2*e+1}], v{76+e} offset:{K1_V + ks*1024}")
        for e in range(2):
            a(f"ds_read_b64_tr_b16 v[{b+4+2*e}:{b+4+2*e+1}], v{78+e} offset:{K1_PHIK + ks*2048}")
    for ks in range(8):
        b = 100 + ks * 8
        a(f"s_waitcnt lgkmcnt({min(15, (7-ks)*4)})")
        c = "0" if ks == 0 else f"v[{KV}:{KV+15}]"
        a(f"v_mfma_f32_32x32x16_bf16 v[{KV}:{KV+15}], v[{b}:{b+3}], v[{b+4}:{b+7}], {c}")
    a("s_waitcnt vmcnt(0)")
    a("v_readfirstlane_b32 s51, v14")
    a("s_cmp_lg_u32 s51, 0")
    a("s_cbranch_scc1 K1_GO")
    a("s_mov_b32 s50, 0")
    a("K1_POLL:")
    a("buffer_load_dword v14, v13, s[28:31], 0 offen sc1")
    a("s_add_u32 s50, s50, 1")
    a("s_waitcnt vmcnt(0)")
    a("v_readfirstlane_b32 s51, v14")
    a("s_cmp_gt_u32 s50, 0x400000")
    a("s_cbranch_scc1 K1_GO")
    a("s_cmp_eq_u32 s51, 0")
    a("s_cbranch_scc1 K1_POLL")
    a("K1_GO:")
    a("s_nop 7")
    for r in range(16):
        d = (r & 3) + 8 * (r >> 2)
        off = d * 256
        base = 80
        if off >= 4096: off -= 4096; base = 81
        a(f"buffer_atomic_add_f32 v{KV+r}, v{base}, s[32:35], 0 offen offset:{WS_KV + off}")
    a("s_branch K1_FIN")

    a("K1_Q:")
    vmq = VM(a)
    a(f"v_lshrrev_b32 v7, 3, v{LANE}")
    a(f"v_and_b32 v8, 7, v{LANE}")
    a(f"v_lshrrev_b32 v9, 1, v7")
    a(f"v_xor_b32 v8, v8, v9")
    a(f"v_mul_u32_u24 v7, 896, v7")
    a(f"v_lshl_add_u32 v30, v8, 4, v7")
    a(f"v_xor_b32 v31, 64, v30")
    a("s_lshl_b32 s46, s36, 7")
    a("s_lshl_b32 s47, s39, 5")
    a("s_add_u32 s46, s46, s47")
    a("s_mul_i32 s47, s46, 896")
    a("s_lshl_b32 s49, s39, 12")
    rot_table(128)
    common_setup_early(vmq)
    def dma_x(c):
        return [(f"c{c}", [f"s_add_u32 m0, s49, {K1_RING + (c%5)*K1_SLOT + i*1024}",
                           f"s_add_u32 s50, s{60+c}, {i*8*896}",
                           f"buffer_load_dwordx4 v{30+(i&1)}, s[16:19], s50 offen lds"]) for i in range(4)]
    for c in range(NPRE):
        for op in dma_x(c):
            for t_ in op[1]: a(t_)
            vmq.issue(op[0])
    common_setup_late()
    wp_addr()
    a(f"v_cmp_eq_u32 s[52:53], 28, v{M}")
    for r in range(4): a(f"v_mov_b32 v{80+r}, s45")
    a("s_or_b32 s51, s36, s39")
    a("s_cmp_lg_u32 s51, 0")
    a("s_cbranch_scc1 K1_Q2")
    a("s_lshl_b32 s50, s37, 13")
    a(f"v_lshl_add_u32 v7, v{LANE}, 4, s50")
    for r in range(4): a(f"v_mov_b32 v{34+r}, 0")
    a("v_add_u32 v8, 4096, v7")
    for i in range(4):
        a(f"buffer_store_dwordx4 v[34:37], v7, s[32:35], 0 offen offset:{WS_KV + i*1024} sc1")
        a(f"buffer_store_dwordx4 v[34:37], v8, s[32:35], 0 offen offset:{WS_KV + i*1024} sc1")
    a("s_waitcnt vmcnt(0)")
    a("s_lshl_b32 s50, s37, 2")
    a("s_add_u32 s50, s50, 64")
    a("v_mov_b32 v7, s50")
    a("v_mov_b32 v8, 1")
    a("s_mov_b64 exec, 1")
    a("buffer_store_dword v8, v7, s[28:31], 0 offen sc1")
    a("s_mov_b64 exec, -1")
    a("s_waitcnt vmcnt(0)")
    a("K1_Q2:")
    AQ = 100
    ACS = 116
    mainloop([0, "cs"], [AQ, ACS], 34, 46, 72, 76, vmq, dma_x)
    a("s_mov_b64 exec, s[42:43]")
    a(f"ds_write_b32 v9, v{AQ+12} offset:{K1_SM}")
    a("s_mov_b32 s54, 1")
    a("s_mov_b32 s55, 1")
    a("s_mov_b64 exec, s[54:55]")
    a("s_min_u32 s50, s39, 2")
    a("s_lshl_b32 s50, s50, 7")
    a(f"v_lshl_add_u32 v8, v{HF}, 4, s50")
    for q in range(4):
        a(f"ds_write_b128 v8, v[{ACS+4*q}:{ACS+4*q+3}] offset:{K1_CS + q*32}")
    a("s_mov_b64 exec, -1")
    a("s_waitcnt lgkmcnt(0)")
    a("s_barrier")
    stamp(a, 7)
    CQ = 34
    post_reads([0], [CQ], 92, 66)
    tail_prefetch()
    a("s_waitcnt lgkmcnt(8)")
    a("v_add_f32 v67, v67, v68")
    stats_finish(a, 66, 67, 68, 69, 70)
    a("s_waitcnt lgkmcnt(0)")
    QFR = 132
    center_pack(AQ, CQ, 68, QFR)
    a(f"v_cndmask_b32 v{QFR+6}, v{QFR+6}, 0, s[42:43]")
    a(f"v_cndmask_b32 v{QFR+7}, v{QFR+7}, 0, s[42:43]")
    PQ = 148
    a(f"v_mfma_f32_32x32x16_bf16 v[{PQ}:{PQ+15}], v[92:95], v[{QFR}:{QFR+3}], 0")
    a(f"v_mfma_f32_32x32x16_bf16 v[{PQ}:{PQ+15}], v[96:99], v[{QFR+4}:{QFR+7}], v[{PQ}:{PQ+15}]")
    a(f"v_mul_f32 v71, s44, v69")
    a("s_lshl_b32 s50, s36, 2")
    a("s_add_u32 s50, s50, s39")
    a("s_lshl_b32 s50, s50, 4")
    a("s_add_u32 s50, s50, s37")
    a("s_lshl_b32 s50, s50, 12")
    a(f"s_add_u32 s50, s50, {WS_PHIQ}")
    a(f"v_lshlrev_b32 v7, 4, v{LANE}")
    softmax_pm(a, PQ, 164, 180, 36, 44, 52, 42, 71)
    for s_ in range(4):
        a(f"buffer_store_dwordx4 v[{36+4*s_}:{36+4*s_+3}], v7, s[32:35], s50 offen offset:{s_*1024}")
    stamp(a, 8)
    a("K1_FIN:")
    if STAMPS: a("s_waitcnt vmcnt(0)")
    stamp(a, 9)
    stamp_flush(a, 38, 32)
    a("K1_END:")
    a("s_endpgm")
    a.fix_hazards()
    return a.text(), kd("k1_kernel", 232)

def main():
    parts = []
    hdr = open("sequential_preLN__linear_kernel_hedgehog__glu_gated_glu__prompt.s.ref").read().split("; Override launch")[0]
    ks = [("k1", gen_k1, 256, 512, K1_LDS)]
    if int(os.environ.get("K1B", "1")):
        import gen1b
        ks = [("k1", gen1b.gen_k1b, 256, 512, gen1b.K1B_LDS)]
    import gen2
    ks += gen2.kernels()
    out = [hdr.rstrip()]
    for nm, fn, g, b, lds in ks:
        out.append(f"; @launch kernel={nm}_kernel grid=({g},1,1) block=({b},1,1) lds={lds}")
    out.append('.amdgcn_target "amdgcn-amd-amdhsa--gfx950"')
    out.append(".text")
    kds = []
    for nm, fn, g, b, lds in ks:
        t, k = fn()
        out.append(t); kds.append(k)
    out.append('.section .rodata,"a"')
    out += kds
    open(sys.argv[1], "w").write("\n".join(out) + "\n")

if __name__ == "__main__":
    main()
```

```python
from asmfw import Asm
import os
import gen
from gen import *

L_CS = 0; L_FL = 448; L_SQ = 512; L_SM = 1536; L_WP = 2048
L_WQ = 4096
L_RING = 32768; L_SLOT = 24576
K1B_LDS = L_RING + 5 * L_SLOT
L_PHIK = L_RING; L_V = L_PHIK + 16384

def gen_k1b():
    a = Asm()
    head(a, "k1_kernel")
    a("s_cmp_ge_u32 s2, 256")
    a("s_cbranch_scc1 K1_END")
    stamp_init(a); stamp(a, 0, real=True); stamp(a, 1)
    a("s_load_dwordx4 s[4:7], s[0:1], 0")
    a("s_load_dwordx4 s[8:11], s[0:1], 16")
    a("s_load_dwordx4 s[12:15], s[0:1], 72")
    a("s_load_dwordx4 s[56:59], s[0:1], 40")
    a("s_load_dwordx2 s[68:69], s[0:1], 56")
    LANE, M, HF, I16, G = 1, 2, 3, 4, 5
    a(f"v_and_b32 v{LANE}, 63, v0")
    a(f"v_lshrrev_b32 v6, 6, v0")
    a(f"v_readfirstlane_b32 s38, v6")
    a(f"v_and_b32 v{M}, 31, v{LANE}")
    a(f"v_lshrrev_b32 v{HF}, 5, v{LANE}")
    a(f"v_and_b32 v{I16}, 15, v{LANE}")
    a(f"v_lshrrev_b32 v{G}, 4, v{LANE}")
    a("s_and_b32 s36, s2, 7")
    a("s_lshl_b32 s36, s36, 1")
    a("s_bfe_u32 s37, s2, 0x10003")
    a("s_add_u32 s36, s36, s37")
    a("s_lshr_b32 s37, s2, 4")
    a("s_and_b32 s39, s38, 3")
    a("s_lshr_b32 s40, s38, 2")
    a("s_mov_b32 s42, 0")
    a("s_mov_b32 s43, -1")
    a(f"s_mov_b32 s44, {LOG2E}")
    a("s_mov_b32 s45, 0x3f803f80")
    a("s_mov_b32 s41, 0xffff0000")
    a("s_and_b32 s67, s36, 1")
    a("s_mul_i32 s67, s67, 3")
    a("s_add_u32 s67, s67, s37")
    for _ in range(2):
        a("s_cmp_ge_u32 s67, 7")
        a("s_cselect_b32 s61, 7, 0")
        a("s_sub_u32 s67, s67, s61")
    a("s_lshl_b32 s46, s36, 7")
    a("s_lshl_b32 s47, s39, 5")
    a("s_add_u32 s46, s46, s47")
    a("s_mul_i32 s47, s46, 896")
    a("s_mul_i32 s48, s37, 56")
    a("s_and_b32 s48, s48, 0xfffffff0")
    a("s_mul_i32 s49, s39, 43008")
    a("s_add_u32 s48, s48, s49")
    for c in range(7):
        a(f"s_lshl_b32 s{60+c}, s67, 7")
        a(f"s_add_u32 s{60+c}, s{60+c}, s47")
        a(f"s_mul_i32 s{72+c}, s67, {64*2688}")
        a(f"s_add_u32 s{72+c}, s{72+c}, s48")
        if c < 6:
            a("s_add_u32 s67, s67, 1")
            a("s_cmp_ge_u32 s67, 7")
            a("s_cselect_b32 s67, 0, s67")
    a("s_cmp_eq_u32 s40, 1")
    a("s_cbranch_scc1 K1_Q")
    def srds():
        a("s_waitcnt lgkmcnt(0)")
        srd(a, 16, 4, 1835008); srd(a, 20, 6, 1204224); srd(a, 24, 8, 25088); srd(a, 28, 12, 256); srd(a, 32, 14, WS_SIZE)
    XV = 228; TB = 240
    def setup_late(q):
        a(f"v_lshrrev_b32 v7, 2, v{I16}")
        a(f"v_lshl_add_u32 v8, v{HF}, 3, v7")
        a(f"v_lshlrev_b32 v8, 7, v8")
        a(f"v_and_b32 v9, 1, v{G}")
        a(f"v_lshlrev_b32 v9, 2, v9")
        a(f"v_and_b32 v10, 3, v{I16}")
        a(f"v_add_u32 v9, v9, v10")
        a(f"v_lshl_add_u32 v8, v9, 3, v8")
        a("s_and_b32 s50, s37, 1")
        a("s_lshl_b32 s50, s50, 3")
        a(f"s_add_u32 s51, s50, {L_RING + 16384}")
        a(f"v_add_u32 v8, s51, v8")
        a(f"v_lshrrev_b32 v7, 1, v7")
        if q:
            a("s_and_b32 s51, s39, 1")
            a(f"v_xor_b32 v7, s51, v7")
            a(f"v_lshl_add_u32 v{TB}, v7, 6, v8")
            for st in range(1, 3): a(f"v_add_u32 v{TB+2*st}, {2*st*L_SLOT}, v{TB}")
            a(f"v_lshrrev_b32 v7, 2, v{I16}")
            a(f"v_lshl_add_u32 v7, v{HF}, 3, v7")
            a(f"v_lshlrev_b32 v7, 6, v7")
            a(f"v_lshl_add_u32 v7, v9, 3, v7")
            a(f"s_add_u32 s51, s50, {L_WQ}")
            a(f"v_add_u32 v246, s51, v7")
        else:
            a(f"v_lshl_add_u32 v{TB}, v7, 6, v8")
            a(f"v_xor_b32 v7, 1, v7")
            a(f"v_lshl_add_u32 v{TB+1}, v7, 6, v8")
            for st in range(1, 3):
                a(f"v_add_u32 v{TB+2*st}, {2*st*L_SLOT}, v{TB}")
                a(f"v_add_u32 v{TB+2*st+1}, {2*st*L_SLOT}, v{TB+1}")
        a("s_lshl_b32 s50, s39, 5")
        a(f"v_add_u32 v7, s50, v{M}")
        a(f"v_lshrrev_b32 v8, 1, v7")
        a(f"v_and_b32 v8, 7, v8")
        a(f"v_xor_b32 v8, v8, v{HF}")
        a(f"v_lshlrev_b32 v8, 4, v8")
        a(f"v_lshl_add_u32 v11, v7, 7, v8")
        for p in range(4):
            a(f"v_xor_b32 v7, {p*32}, v11")
            for st in range(3):
                a(f"v_add_u32 v{XV+4*st+p}, {L_RING + 2*st*L_SLOT}, v7")
        a(f"v_lshrrev_b32 v7, 2, v{I16}")
        a(f"v_lshl_add_u32 v7, v{HF}, 2, v7")
        a(f"v_mul_u32_u24 v7, 56, v7")
        a(f"v_lshl_add_u32 v12, v9, 3, v7")
        a("s_lshl_b32 s50, s39, 7")
        a(f"v_lshl_add_u32 v9, v{M}, 2, s50")
    LA = 2; NB = 3
    def pass1(q, vm, dma_ops, extra_ops):
        ns = 1 if q else 2
        WF = 46; SQ = 72
        a(f"v_mov_b32 v{SQ}, 0"); a(f"v_mov_b32 v{SQ+1}, 0")
        nr = 1 + 2 * ns
        def emit(op):
            for t_ in op[1]: a(t_)
            vm.issue(op[0])
        def xreg(kk): return 100 + 4 * kk if q else 34 + (kk % NB) * 4
        def reads(kk):
            c = kk // 4; slot = c % 5; p = kk % 4
            st = slot // 2; so = slot % 2
            xb = xreg(kk)
            a(f"ds_read_b128 v[{xb}:{xb+3}], v{XV+4*st+p} offset:{so*L_SLOT}")
            b = WF + (kk % NB) * ns * 4
            for i in range(ns):
                off = so * L_SLOT + p * 2048
                a(f"ds_read_b64_tr_b16 v[{b+4*i}:{b+4*i+1}], v{TB+2*st+i} offset:{off}")
                a(f"ds_read_b64_tr_b16 v[{b+4*i+2}:{b+4*i+3}], v{TB+2*st+i} offset:{off+512}")
        stamp(a, 2)
        vm.wait("c0")
        a("s_barrier")
        for c in range(2, 5):
            for op in dma_ops(c): emit(op)
        stamp(a, 3)
        queue = []
        for kk in range(LA): reads(kk)
        for kk in range(28):
            nk = kk + LA
            if nk < 28:
                if nk % 4 == 0:
                    c = nk // 4
                    while any(op[0] == f"c{c}" for op in queue): emit(queue.pop(0))
                    vm.wait(f"c{c}")
                    a("s_barrier")
                    if c in (2, 4): stamp(a, 3 + c // 2)
                    if c in (2, 3): queue += dma_ops(c + 3)
                    if c == 3: queue += extra_ops
                reads(nk)
            a(f"s_waitcnt lgkmcnt({min(28 - 1 - kk, LA) * nr})")
            b = WF + (kk % NB) * ns * 4
            xb = xreg(kk)
            c0 = "0" if kk == 0 else None
            if q:
                a(f"v_mfma_f32_32x32x16_bf16 v[212:227], v[{b}:{b+3}], v[80:83], " + (c0 or "v[212:227]"))
                for r in range(2):
                    a(f"v_lshlrev_b32 v10, 16, v{xb+r}")
                    a(f"v_and_b32 v11, s41, v{xb+r}")
                    a(f"v_fmac_f32 v{SQ}, v10, v10")
                    a(f"v_fmac_f32 v{SQ+1}, v11, v11")
            else:
                for r in range(4):
                    a(f"v_cndmask_b32 v{b+4+r}, v{b+4+r}, v92, s[52:53]")
                for i, AC in enumerate((100, 116)):
                    a(f"v_mfma_f32_32x32x16_bf16 v[{AC}:{AC+15}], v[{b+4*i}:{b+4*i+3}], v[{xb}:{xb+3}], " + (c0 or f"v[{AC}:{AC+15}]"))
                    a(f"v_lshlrev_b32 v10, 16, v{xb+2+i}")
                    a(f"v_and_b32 v11, s41, v{xb+2+i}")
                    a(f"v_fmac_f32 v{SQ}, v10, v10")
                    a(f"v_fmac_f32 v{SQ+1}, v11, v11")
            if queue: emit(queue.pop(0))
            if queue: emit(queue.pop(0))
        while queue: emit(queue.pop(0))
        stamp(a, 6)
        a(f"v_add_f32 v{SQ}, v{SQ}, v{SQ+1}")
        xhalf(a, "v_add_f32", SQ, SQ, 10, 11)
        a(f"ds_write_b32 v9, v{SQ} offset:{L_SQ + (512 if q else 0)}")
    def stats_reads(ST):
        a(f"ds_read_b32 v{ST}, v9 offset:{L_SM}")
        a(f"ds_read_b32 v{ST+1}, v9 offset:{L_SQ}")
        a(f"ds_read_b32 v{ST+2}, v9 offset:{L_SQ+512}")
    def wp_reads(WPF):
        for s_ in range(2):
            for e in range(2):
                a(f"ds_read_b64_tr_b16 v[{WPF+4*s_+2*e}:{WPF+4*s_+2*e+1}], v12 offset:{L_WP + (16*s_+8*e)*56}")
    def center_pack(ACC, CSV, NM, OUT):
        for i in range(8):
            a(f"v_fmac_f32 v{ACC+2*i}, v{CSV+2*i}, v{NM}")
            a(f"v_fmac_f32 v{ACC+2*i+1}, v{CSV+2*i+1}, v{NM}")
            a(f"v_cvt_pk_bf16_f32 v{OUT+i}, v{ACC+2*i}, v{ACC+2*i+1}")

    vmk = VM(a)
    a(f"v_lshrrev_b32 v7, 3, v{LANE}")
    a(f"v_and_b32 v8, 7, v{LANE}")
    a(f"v_lshrrev_b32 v9, 1, v7")
    a(f"v_and_b32 v9, 1, v9")
    a(f"v_lshlrev_b32 v9, 2, v9")
    a(f"v_xor_b32 v8, v8, v9")
    a(f"v_mul_u32_u24 v7, 2688, v7")
    a(f"v_lshrrev_b32 v9, 2, v8")
    a(f"v_mul_u32_u24 v9, 896, v9")
    a(f"v_and_b32 v8, 3, v8")
    a(f"v_lshlrev_b32 v8, 4, v8")
    a(f"v_add3_u32 v30, v7, v8, v9")
    a(f"v_add_u32 v30, 896, v30")
    a("s_lshl_b32 s49, s39, 11")
    srds()
    def dma_w(c):
        return [(f"c{c}", [f"s_add_u32 m0, s49, {L_RING + (c%5)*L_SLOT + 16384 + i*1024}",
                           f"s_add_u32 s50, s{72+c}, {i*8*2688}",
                           f"buffer_load_dwordx4 v30, s[20:23], s50 offen lds"]) for i in range(2)]
    for c in range(2):
        for op in dma_w(c):
            for t_ in op[1]: a(t_)
            vmk.issue(op[0])
    a("s_mul_i32 s50, s37, 1568")
    a("s_and_b32 s51, s39, 1")
    a("s_lshl_b32 s51, s51, 10")
    a("s_add_u32 s50, s50, s51")
    a(f"s_add_u32 m0, s51, {L_WP}")
    a(f"v_lshlrev_b32 v7, 4, v{LANE}")
    a("buffer_load_dwordx4 v7, s[24:27], s50 offen lds")
    vmk.issue("c1")
    setup_late(False)
    a(f"v_cmp_eq_u32 s[52:53], 28, v{M}")
    a("v_mov_b32 v92, s45")
    a("s_lshl_b32 s50, s39, 5")
    a(f"v_add_u32 v7, s50, v{M}")
    a(f"v_lshrrev_b32 v8, 1, v7")
    a(f"v_and_b32 v8, 7, v8")
    a(f"v_xor_b32 v8, v8, v{HF}")
    a(f"v_lshlrev_b32 v8, 3, v8")
    a(f"v_lshl_add_u32 v74, v7, 6, v8")
    a(f"v_lshrrev_b32 v8, 1, v7")
    a(f"v_and_b32 v8, 1, v8")
    a(f"v_lshlrev_b32 v8, 3, v8")
    a(f"v_and_b32 v10, 1, v7")
    a(f"v_or_b32 v8, v8, v10")
    a(f"v_lshrrev_b32 v10, 2, v7")
    a(f"v_and_b32 v10, 3, v10")
    a(f"v_lshl_or_b32 v8, v10, 1, v8")
    a(f"v_xor_b32 v8, v8, v{HF}")
    a(f"v_lshlrev_b32 v8, 3, v8")
    a(f"v_lshl_add_u32 v75, v7, 7, v8")
    a(f"v_lshrrev_b32 v7, 2, v{I16}")
    a(f"v_lshl_add_u32 v7, v{HF}, 3, v7")
    a(f"v_and_b32 v8, 1, v{G}")
    a(f"v_lshlrev_b32 v8, 2, v8")
    a(f"v_and_b32 v13, 3, v{I16}")
    a(f"v_add_u32 v8, v8, v13")
    for e in range(2):
        a(f"v_add_u32 v13, {4*e}, v7")
        a(f"v_lshrrev_b32 v10, 1, v13")
        a(f"v_xor_b32 v10, v10, v8")
        a(f"v_lshlrev_b32 v10, 3, v10")
        a(f"v_lshl_add_u32 v{76+e}, v13, 6, v10")
        a(f"v_lshrrev_b32 v10, 1, v13")
        a(f"v_and_b32 v10, 1, v10")
        a(f"v_lshlrev_b32 v10, 3, v10")
        a(f"v_and_b32 v11, 1, v13")
        a(f"v_or_b32 v10, v10, v11")
        a(f"v_lshrrev_b32 v11, 2, v13")
        a(f"v_lshl_or_b32 v10, v11, 1, v10")
        a(f"v_xor_b32 v10, v10, v8")
        a(f"s_lshl_b32 s50, s39, 3")
        a(f"v_xor_b32 v10, s50, v10")
        a(f"v_lshlrev_b32 v10, 3, v10")
        a(f"v_lshl_add_u32 v{78+e}, v13, 7, v10")
    a("s_lshl_b32 s50, s37, 13")
    a("s_lshl_b32 s51, s39, 7")
    a("s_add_u32 s50, s50, s51")
    a(f"v_lshlrev_b32 v80, 10, v{HF}")
    a(f"v_lshl_add_u32 v80, v{M}, 2, v80")
    a(f"v_add_u32 v80, s50, v80")
    a(f"v_add_u32 v81, 4096, v80")
    for r in range(4): a(f"v_mov_b32 v{82+r}, 0")
    a(f"ds_write_b128 v82, v[82:85] offset:{L_FL}")
    a(f"ds_write_b128 v82, v[82:85] offset:{L_FL+16}")
    a("s_lshl_b32 s50, s39, 2")
    a("v_mov_b32 v86, s50")
    a("v_mov_b32 v87, 1")
    a("s_waitcnt lgkmcnt(0)")
    AK, AV = 100, 116
    pass1(False, vmk, dma_w, [])
    a("s_mov_b64 exec, s[42:43]")
    a(f"ds_write_b32 v9, v{AV+12} offset:{L_SM}")
    a("s_mov_b64 exec, -1")
    a("s_waitcnt lgkmcnt(0)")
    a("s_barrier")
    stamp(a, 7)
    a("s_setprio 2")
    CK, CV = 34, 50
    a(f"v_lshlrev_b32 v8, 4, v{HF}")
    stats_reads(66)
    for sg, dst in ((1, CK), (2, CV)):
        for q_ in range(4):
            a(f"ds_read_b128 v[{dst+4*q_}:{dst+4*q_+3}], v8 offset:{L_CS + sg*128 + q_*32}")
    wp_reads(92)
    a("s_lshl_b32 s50, s2, 7")
    a(f"s_add_u32 s50, s50, {768*1024}")
    a("v_mov_b32 v13, 0")
    a(f"v_lshlrev_b32 v14, 2, v{LANE}")
    a("s_mov_b64 exec, 0xfff")
    a("buffer_store_dword v13, v14, s[32:35], s50 offen")
    a("s_mov_b64 exec, -1")
    a("s_lshl_b32 s50, s37, 2")
    a("s_add_u32 s50, s50, 64")
    a("v_mov_b32 v13, s50")
    a("buffer_load_dword v14, v13, s[28:31], 0 offen sc1")
    a("s_waitcnt lgkmcnt(12)")
    a("v_add_f32 v67, v67, v68")
    stats_finish(a, 66, 67, 68, 69, 70)
    a("s_waitcnt lgkmcnt(0)")
    KFR, VFR = 132, 140
    center_pack(AK, CK, 68, KFR)
    a(f"v_cndmask_b32 v{KFR+6}, v{KFR+6}, 0, s[42:43]")
    a(f"v_cndmask_b32 v{KFR+7}, v{KFR+7}, 0, s[42:43]")
    PK = 148
    a(f"v_mfma_f32_32x32x16_bf16 v[{PK}:{PK+15}], v[92:95], v[{KFR}:{KFR+3}], 0")
    a(f"v_mfma_f32_32x32x16_bf16 v[{PK}:{PK+15}], v[96:99], v[{KFR+4}:{KFR+7}], v[{PK}:{PK+15}]")
    center_pack(AV, CV, 68, VFR)
    a(f"v_lshrrev_b32 v9, 16, v70")
    a(f"v_mul_f32 v71, s44, v69")
    a(f"v_cndmask_b32 v{VFR+6}, v{VFR+6}, v9, s[42:43]")
    a(f"v_cndmask_b32 v{VFR+7}, v{VFR+7}, 0, s[42:43]")
    for q_ in range(4):
        a(f"v_xor_b32 v9, {q_*16}, v74")
        a(f"ds_write_b64 v9, v[{VFR+2*q_}:{VFR+2*q_+1}] offset:{L_V}")
    softmax_pm(a, PK, 164, 180, 34, 42, 50, 42, 71, 69)
    for t, src in ((0, 34), (1, 42)):
        for q_ in range(4):
            a(f"v_xor_b32 v9, {(8*t+2*q_)*8}, v75")
            a(f"ds_write_b64 v9, v[{src+2*q_}:{src+2*q_+1}] offset:{L_PHIK}")
    a("s_waitcnt lgkmcnt(0)")
    a(f"ds_write_b32 v86, v87 offset:{L_FL}")
    a("s_cmp_ge_u32 s39, 2")
    a("s_cbranch_scc1 K1_FIN")
    a("K1_LPOLL:")
    a(f"ds_read_b128 v[88:91], v82 offset:{L_FL}")
    a("s_waitcnt lgkmcnt(0)")
    a("v_and_b32 v88, v88, v89")
    a("v_and_b32 v90, v90, v91")
    a("v_and_b32 v88, v88, v90")
    a("v_readfirstlane_b32 s51, v88")
    a("s_cmp_eq_u32 s51, 0")
    a("s_cbranch_scc1 K1_LPOLL")
    stamp(a, 8)
    KV = 16
    for ks in range(8):
        b = 100 + ks * 8
        for e in range(2):
            a(f"ds_read_b64_tr_b16 v[{b+2*e}:{b+2*e+1}], v{76+e} offset:{L_V + ks*1024}")
        for e in range(2):
            a(f"ds_read_b64_tr_b16 v[{b+4+2*e}:{b+4+2*e+1}], v{78+e} offset:{L_PHIK + ks*2048}")
    for ks in range(8):
        b = 100 + ks * 8
        a(f"s_waitcnt lgkmcnt({min(15, (7-ks)*4)})")
        c = "0" if ks == 0 else f"v[{KV}:{KV+15}]"
        a(f"v_mfma_f32_32x32x16_bf16 v[{KV}:{KV+15}], v[{b}:{b+3}], v[{b+4}:{b+7}], {c}")
    a("s_waitcnt vmcnt(0)")
    a("v_readfirstlane_b32 s51, v14")
    a("s_cmp_lg_u32 s51, 0")
    a("s_cbranch_scc1 K1_GO")
    a("s_mov_b32 s50, 0")
    a("K1_POLL:")
    a("buffer_load_dword v14, v13, s[28:31], 0 offen sc1")
    a("s_add_u32 s50, s50, 1")
    a("s_waitcnt vmcnt(0)")
    a("v_readfirstlane_b32 s51, v14")
    a("s_cmp_gt_u32 s50, 0x400000")
    a("s_cbranch_scc1 K1_GO")
    a("s_cmp_eq_u32 s51, 0")
    a("s_cbranch_scc1 K1_POLL")
    a("K1_GO:")
    a("s_nop 7")
    for r in range(16):
        d = (r & 3) + 8 * (r >> 2); off = d * 256; base = 80
        if off >= 4096: off -= 4096; base = 81
        a(f"buffer_atomic_add_f32 v{KV+r}, v{base}, s[32:35], 0 offen offset:{WS_KV + off}")
    a("s_branch K1_FIN")

    a("K1_Q:")
    vmq = VM(a)
    a(f"v_lshrrev_b32 v7, 3, v{LANE}")
    a(f"v_and_b32 v8, 7, v{LANE}")
    a(f"v_lshrrev_b32 v9, 1, v7")
    a(f"v_xor_b32 v8, v8, v9")
    a(f"v_mul_u32_u24 v7, 896, v7")
    a(f"v_lshl_add_u32 v30, v8, 4, v7")
    a(f"v_xor_b32 v31, 64, v30")
    a(f"v_lshrrev_b32 v7, 2, v{LANE}")
    a(f"v_mul_u32_u24 v7, 2688, v7")
    a(f"v_and_b32 v8, 3, v{LANE}")
    a(f"v_lshl_add_u32 v32, v8, 4, v7")
    a("s_lshl_b32 s49, s39, 12")
    a("s_lshl_b32 s54, s39, 10")
    srds()
    def dma_x(c):
        return [(f"c{c}", [f"s_add_u32 m0, s49, {L_RING + (c%5)*L_SLOT + i*1024}",
                           f"s_add_u32 s50, s{60+c}, {i*8*896}",
                           f"buffer_load_dwordx4 v{30+(i&1)}, s[16:19], s50 offen lds"]) for i in range(4)]
    wq_ops = [("wq", [f"s_add_u32 m0, s54, {L_WQ + c*4096}", f"buffer_load_dwordx4 v32, s[20:23], s{72+c} offen lds"]) for c in range(7)]
    for c in range(2):
        for op in dma_x(c):
            for t_ in op[1]: a(t_)
            vmq.issue(op[0])
    setup_late(True)
    for r in range(4): a(f"v_mov_b32 v{80+r}, s45")
    a("s_lshl_b32 s50, s39, 2")
    a("v_mov_b32 v86, s50")
    a("v_mov_b32 v87, 1")
    a("v_mov_b32 v85, 0")
    a("s_or_b32 s51, s36, s39")
    a("s_cmp_lg_u32 s51, 0")
    a("s_cbranch_scc1 K1_Q2")
    a("s_lshl_b32 s50, s37, 13")
    a(f"v_lshl_add_u32 v7, v{LANE}, 4, s50")
    for r in range(4): a(f"v_mov_b32 v{34+r}, 0")
    a("v_add_u32 v8, 4096, v7")
    for i in range(4):
        a(f"buffer_store_dwordx4 v[34:37], v7, s[32:35], 0 offen offset:{WS_KV + i*1024} sc1")
        a(f"buffer_store_dwordx4 v[34:37], v8, s[32:35], 0 offen offset:{WS_KV + i*1024} sc1")
    a("s_waitcnt vmcnt(0)")
    a("s_lshl_b32 s50, s37, 2")
    a("s_add_u32 s50, s50, 64")
    a("v_mov_b32 v7, s50")
    a("v_mov_b32 v8, 1")
    a("s_mov_b64 exec, 1")
    a("buffer_store_dword v8, v7, s[28:31], 0 offen sc1")
    a("s_mov_b64 exec, -1")
    a("s_waitcnt vmcnt(0)")
    a("K1_Q2:")
    pass1(True, vmq, dma_x, wq_ops)
    a("s_mov_b32 s54, 1")
    a("s_mov_b32 s55, 1")
    a("s_mov_b64 exec, s[54:55]")
    a("s_and_b32 s50, s39, 1")
    a("s_lshl_b32 s50, s50, 7")
    a(f"v_lshl_add_u32 v8, v{HF}, 4, s50")
    for q_ in range(4):
        a(f"ds_write_b128 v8, v[{212+4*q_}:{212+4*q_+3}] offset:{L_CS + 128 + q_*32}")
    a("s_mov_b64 exec, -1")
    a("s_waitcnt lgkmcnt(0)")
    a("s_barrier")
    stamp(a, 7)
    a("s_waitcnt vmcnt(0)")
    a(f"ds_write_b32 v86, v87 offset:{L_FL+16}")
    srd(a, 64, 10, 401408)
    a("s_lshr_b32 s60, s2, 3")
    a("s_lshl_b32 s60, s60, 2")
    a("s_add_u32 s60, s60, s39")
    a(f"v_lshlrev_b32 v247, 7, v{LANE}")
    a(f"v_mov_b32 v248, 0x7fff0000")
    a(f"v_cmp_gt_u32 vcc, 25, v{LANE}")
    a(f"v_cndmask_b32 v249, v248, v247, vcc")
    a("s_mul_i32 s61, s60, 3200")
    a("buffer_load_dword v250, v249, s[64:67], s61 offen")
    a(f"v_cmp_gt_u32 vcc, 32, v{LANE}")
    a(f"v_cndmask_b32 v249, v248, v247, vcc")
    a("s_lshl_b32 s61, s60, 12")
    srd(a, 64, 56, 1605632)
    a("buffer_load_dword v251, v249, s[64:67], s61 offen")
    srd(a, 64, 58, 1605632)
    a("buffer_load_dword v252, v249, s[64:67], s61 offen")
    a(f"v_cmp_gt_u32 vcc, 13, v{LANE}")
    a(f"v_cndmask_b32 v249, v248, v247, vcc")
    a("s_lshl_b32 s61, s2, 2")
    a("s_add_u32 s61, s61, s39")
    a("s_mul_i32 s61, s61, 1664")
    srd(a, 64, 68, 1605632)
    a("buffer_load_dword v253, v249, s[64:67], s61 offen")
    a("K1_QPOLL:")
    a(f"ds_read_b128 v[88:91], v85 offset:{L_FL+16}")
    a("s_waitcnt lgkmcnt(0)")
    a("v_and_b32 v88, v88, v89")
    a("v_and_b32 v90, v90, v91")
    a("v_and_b32 v88, v88, v90")
    a("v_readfirstlane_b32 s51, v88")
    a("s_cmp_eq_u32 s51, 0")
    a("s_cbranch_scc1 K1_QPOLL")
    AQ, ACS = 14, 212
    stats_reads(66)
    wp_reads(92)
    LQ = 4
    def qrd(kk):
        b = 34 + (kk % 6) * 4
        for e in range(2):
            a(f"ds_read_b64_tr_b16 v[{b+2*e}:{b+2*e+1}], v246 offset:{kk*1024 + e*256}")
    for kk in range(LQ): qrd(kk)
    fin = Asm()
    fin("v_add_f32 v67, v67, v68")
    stats_finish(fin, 66, 67, 68, 69, 70)
    fin(f"v_mul_f32 v71, s44, v69")
    fo = [i.text for i in fin.ins]
    for kk in range(28):
        if kk + LQ < 28: qrd(kk + LQ)
        a(f"s_waitcnt lgkmcnt({2*min(LQ, 27-kk)})")
        b = 34 + (kk % 6) * 4
        c0 = "0" if kk == 0 else None
        a(f"v_mfma_f32_32x32x16_bf16 v[{AQ}:{AQ+15}], v[{b}:{b+3}], v[{100+4*kk}:{100+4*kk+3}], " + (c0 or f"v[{AQ}:{AQ+15}]"))
        a(f"v_mfma_f32_32x32x16_bf16 v[{ACS}:{ACS+15}], v[{b}:{b+3}], v[80:83], " + (c0 or f"v[{ACS}:{ACS+15}]"))
        if fo: a(fo.pop(0))
    QFR = 132
    a("s_lshl_b32 s50, s36, 2")
    a("s_add_u32 s50, s50, s39")
    a("s_lshl_b32 s50, s50, 4")
    a("s_add_u32 s50, s50, s37")
    a("s_lshl_b32 s50, s50, 12")
    a(f"s_add_u32 s50, s50, {WS_PHIQ}")
    a(f"v_lshlrev_b32 v7, 4, v{LANE}")
    center_pack(AQ, ACS, 68, QFR)
    a(f"v_cndmask_b32 v{QFR+6}, v{QFR+6}, 0, s[42:43]")
    a(f"v_cndmask_b32 v{QFR+7}, v{QFR+7}, 0, s[42:43]")
    PQ = 148
    a(f"v_mfma_f32_32x32x16_bf16 v[{PQ}:{PQ+15}], v[92:95], v[{QFR}:{QFR+3}], 0")
    a(f"v_mfma_f32_32x32x16_bf16 v[{PQ}:{PQ+15}], v[96:99], v[{QFR+4}:{QFR+7}], v[{PQ}:{PQ+15}]")
    softmax_pm(a, PQ, 164, 180, 36, 44, 52, 42, 71)
    for s_ in range(4):
        a(f"buffer_store_dwordx4 v[{36+4*s_}:{36+4*s_+3}], v7, s[32:35], s50 offen offset:{s_*1024}")
    stamp(a, 8)
    a("K1_FIN:")
    if STAMPS: a("s_waitcnt vmcnt(0)")
    stamp(a, 9)
    stamp_flush(a, 38, 32)
    a("K1_END:")
    a("s_endpgm")
    a.fix_hazards()
    return a.text(), kd("k1_kernel", 256)
```

```python
from asmfw import Asm
import os
import gen
from gen import *
WS_HF = WS_H

K3_SLOT = 16384
K3_NS   = 6
PFI = int(os.environ.get('PFI', '51'))
K3_LDS  = 163840
WS_FLAG = 768 * 1024

def gen_k3():
    a = Asm()
    head(a, "k3_kernel")
    a("s_cmp_ge_u32 s2, 256")
    a("s_cbranch_scc1 K3_END")
    stamp_init(a); stamp(a, 0, real=True); stamp(a, 1)
    a("s_load_dwordx4 s[8:11], s[0:1], 40")
    a("s_load_dwordx4 s[4:7], s[0:1], 56")
    a("s_load_dwordx2 s[14:15], s[0:1], 80")
    a("s_load_dwordx2 s[12:13], s[0:1], 24")
    a("s_load_dwordx2 s[42:43], s[0:1], 0")
    LANE, M, HF, I16, G = 1, 2, 3, 4, 5
    a(f"v_and_b32 v{LANE}, 63, v0")
    a(f"v_lshrrev_b32 v6, 6, v0")
    a(f"v_readfirstlane_b32 s38, v6")
    a(f"v_and_b32 v{M}, 31, v{LANE}")
    a(f"v_lshrrev_b32 v{HF}, 5, v{LANE}")
    a(f"v_and_b32 v{I16}, 15, v{LANE}")
    a(f"v_lshrrev_b32 v{G}, 4, v{LANE}")
    a("s_mov_b32 s41, 0xffff0000")
    a("s_cmp_ge_u32 s2, 224")
    a("s_cbranch_scc1 K3_PF")
    a("s_and_b32 s36, s2, 7")
    a("s_lshl_b32 s36, s36, 1")
    a("s_bfe_u32 s37, s2, 0x10003")
    a("s_add_u32 s36, s36, s37")
    a("s_lshr_b32 s37, s2, 4")
    a("s_and_b32 s39, s38, 1")
    a("s_lshr_b32 s40, s38, 1")
    a(f"v_lshrrev_b32 v7, 3, v{LANE}")
    a(f"v_and_b32 v8, 2, v7")
    a(f"v_add_u32 v8, s39, v8")
    a(f"v_lshlrev_b32 v8, 1, v8")
    a(f"v_and_b32 v9, 7, v{LANE}")
    a(f"v_xor_b32 v8, v8, v9")
    a(f"v_mul_u32_u24 v7, 3584, v7")
    a(f"v_lshl_add_u32 v10, v8, 4, v7")
    a(f"v_lshlrev_b32 v11, 4, v{LANE}")
    a("s_mul_i32 s46, s40, 114688")
    a("s_lshl_b32 s47, s37, 8")
    a("s_add_u32 s46, s46, s47")
    a("s_and_b32 s57, s36, 1")
    a("s_lshl_b32 s58, s57, 7")
    a("s_xor_b32 s59, s58, 128")
    a("s_add_u32 s56, s46, s59")
    a("s_add_u32 s46, s46, s58")
    a("s_lshl_b32 s47, s39, 13")
    a("s_lshl_b32 s48, s40, 12")
    a("s_add_u32 s47, s47, s48")
    a("s_lshl_b32 s48, s36, 2")
    a("s_add_u32 s48, s48, s38")
    a("s_mul_i32 s49, s48, 28672")
    a(f"s_add_u32 s49, s49, {WS_HF}")
    a("s_waitcnt lgkmcnt(0)")
    a("s_cmp_eq_u32 s39, 0")
    a("s_cselect_b32 s20, s8, s10")
    a("s_cselect_b32 s21, s9, s11")
    a("s_mov_b32 s22, 1605632")
    a("s_mov_b32 s23, 0x00020000")
    srd(a, 32, 14, WS_SIZE)
    vm = VM(a)
    def dma_ops(C):
        ph, c = C // 7, C % 7
        return [(f"c{C}", [f"s_add_u32 m0, s47, {(C % K3_NS)*K3_SLOT + i*1024}",
                           f"s_add_u32 s50, s{56 if ph else 46}, {(c*64 + i*8)*3584}",
                           f"buffer_load_dwordx4 v10, s[20:23], s50 offen lds"]) for i in range(4)]
    def h_ops(kk, tag):
        return [(tag, [f"s_add_u32 s50, s49, {kk*1024}",
                       f"buffer_load_dwordx4 a[{4*kk}:{4*kk+3}], v11, s[32:35], s50 offen sc1"])]
    def emit(op):
        for t_ in op[1]: a(t_)
        vm.issue(op[0])
    def chunk_ops(C):
        d = dma_ops(C)
        if C >= 7: return d
        out = []
        for i in range(4): out += ([d[i]] if C >= 2 else []) + h_ops(4*C + i, f"c{C}")
        return out
    a("s_lshr_b32 s60, s2, 3")
    a("s_lshl_b32 s61, s38, 15")
    for i in range(32):
        a(f"s_add_u32 s50, s60, {i}")
        a("s_and_b32 s50, s50, 31")
        a("s_lshl_b32 s50, s50, 10")
        a("s_add_u32 s50, s50, s61")
        a(f"buffer_load_dwordx4 v[{128+4*i}:{128+4*i+3}], v11, s[32:35], s50 offen offset:{WS_KV}")
        vm.issue(f"kv{i}")
    TM = 12
    a(f"v_and_b32 v7, 1, v{G}")
    a(f"v_lshrrev_b32 v8, 2, v{I16}")
    a(f"v_and_b32 v9, 2, v8")
    a(f"v_add_u32 v9, v9, v7")
    a(f"v_lshl_add_u32 v8, v{HF}, 3, v8")
    a(f"v_lshlrev_b32 v8, 7, v8")
    a(f"v_lshl_add_u32 v8, v7, 13, v8")
    a(f"v_and_b32 v7, 3, v{I16}")
    a(f"v_lshl_add_u32 v8, v7, 3, v8")
    a(f"v_lshl_add_u32 v8, v9, 5, v8")
    for t in range(4):
        a(f"v_xor_b32 v{TM+t}, {t*32}, v8")
        a(f"v_add_u32 v{TM+4+t}, 0x10000, v{TM+t}")
        a(f"v_add_u32 v{TM+8+t}, 0x20000, v{TM+t}")
    WF = 36
    def acc(t): return f"v[{128+16*t}:{128+16*t+15}]"
    def rd_ops(ph, kk, t, dst):
        C = ph * 7 + kk // 4; slot = C % K3_NS
        return [f"ds_read_b64_tr_b16 v[{dst+2*e}:{dst+2*e+1}], v{TM + 4*(slot//4) + t} offset:{(slot%4)*K3_SLOT + (kk%4)*2048 + e*512}" for e in range(2)]
    a(f"v_lshlrev_b32 v9, 6, v{M}")
    a(f"v_lshlrev_b32 v118, 3, v{M}")
    a(f"v_lshl_add_u32 v118, v{HF}, 14, v118")
    a(f"v_accvgpr_write_b32 a128, 0")
    a(f"v_accvgpr_write_b32 a129, 0")
    a("s_lshl_b32 s52, s48, 8")
    a(f"s_add_u32 s52, s52, {WS_ST}")
    a("s_lshl_b32 s53, s37, 11")
    a(f"s_add_u32 s53, s53, {WS_CS}")
    a("s_lshl_b32 s58, s57, 5")
    a("s_xor_b32 s59, s58, 32")
    a("s_add_u32 s55, s53, s59")
    a("s_add_u32 s53, s53, s58")
    misc = []
    for j in range(4):
        misc.append(("ms", [f"s_add_u32 s50, s52, {j*32768}", f"buffer_load_dwordx2 v[{100+2*j}:{100+2*j+1}], v118, s[32:35], s50 offen sc1"]))
    for j in range(4):
        misc.append(("ms", [f"buffer_load_dwordx4 a[{112+4*j}:{112+4*j+3}], v9, s[32:35], s{55 if j >= 2 else 53} offen offset:{(j&1)*16} sc1"]))
    a("s_mul_i32 s54, s48, 114688")
    a("s_lshl_b32 s51, s37, 13")
    a("s_add_u32 s54, s54, s51")
    a(f"s_add_u32 s54, s54, {WS_HH}")
    a("s_lshl_b32 s58, s57, 12")
    a("s_xor_b32 s59, s58, 4096")
    a("s_add_u32 s62, s54, s59")
    a("s_add_u32 s54, s54, s58")
    NM, RS, SD, NSC = 114, 115, 116, 117
    fin = Asm()
    fin(f"v_cmp_gt_u32 vcc, 32, v{LANE}")
    fin(f"v_cndmask_b32 v106, 0, v106, vcc")
    fin(f"v_cndmask_b32 v107, 0, v107, vcc")
    for j in range(1, 4):
        fin(f"v_add_f32 v100, v100, v{100+2*j}")
        fin(f"v_add_f32 v101, v101, v{100+2*j+1}")
    xhalf(fin, "v_add_f32", 100, 100, 102, 103)
    xhalf(fin, "v_add_f32", 101, 101, 104, 105)
    stats_finish(fin, 100, 101, NM, RS, SD)
    fin(f"v_mul_f32 v{NSC}, 0xbfb8aa3b, v{RS}")
    fin(f"v_lshrrev_b32 v104, 16, v{NM}")
    fin(f"v_cmp_gt_u32 vcc, 32, v{LANE}")
    fin(f"v_cndmask_b32 v104, 0, v104, vcc")
    fin(f"v_mov_b32 v105, v104")
    fin(f"v_mov_b32 v106, 0")
    fin(f"v_mov_b32 v107, 0")
    fin_ops = [i.text for i in fin.ins]
    deferred = []
    def ep_ops(t):
        A_ = 128 + 16 * t
        OUT = A_
        ep = [f"v_mul_f32 v{A_+r}, v{NSC}, v{A_+r}" for r in range(8)]
        ep += [f"v_exp_f32 v{A_+r}, v{A_+r}" for r in range(8)]
        ep += [f"v_fma_f32 v{A_+r}, v{A_+r}, v{SD}, v{SD}" for r in range(8)]
        ep += [f"v_rcp_f32 v{A_+r}, v{A_+r}" for r in range(8)]
        ep += [f"v_mul_f32 v{A_+8+r}, v{A_+8+r}, v{A_+r}" for r in range(8)]
        ep += [f"v_cvt_pk_bf16_f32 v{OUT+i}, v{A_+8+2*i}, v{A_+8+2*i+1}" for i in range(4)]
        st_ = (f"st{t}", f"s_add_u32 s50, s{62 if t >= 4 else 54}, {(t&3)*1024}", f"buffer_store_dwordx4 v[{OUT}:{OUT+3}], v11, s[32:35], s50 offen sc1")
        ep += [st_]
        return ep
    def emit_valu(vq, n):
        for _ in range(n):
            if not vq: return
            o = vq.pop(0)
            if isinstance(o, tuple):
                a(o[1]); a(o[2]); vm.issue(o[0])
            else: a(o)
    srd(a, 16, 12, 401408)
    srd(a, 28, 42, 1835008)
    srd(a, 24, 6, 1835008)
    a("s_and_b32 s64, s37, 1")
    a("s_lshl_b32 s65, s36, 1")
    a("s_add_u32 s64, s64, s65")
    a("s_lshr_b32 s65, s37, 1")
    a(f"v_lshrrev_b32 v7, 3, v{LANE}")
    a(f"v_and_b32 v8, 7, v{LANE}")
    a(f"v_lshrrev_b32 v27, 1, v7")
    a(f"v_and_b32 v27, 1, v27")
    a(f"v_lshlrev_b32 v27, 2, v27")
    a(f"v_xor_b32 v27, v8, v27")
    a(f"v_mul_u32_u24 v32, 896, v7")
    a(f"v_lshl_add_u32 v27, v27, 4, v32")
    a(f"v_lshl_add_u32 v32, v8, 4, v32")
    a(f"v_lshrrev_b32 v26, 1, v8")
    a(f"v_lshlrev_b32 v26, 10, v26")
    a(f"v_and_b32 v31, 1, v8")
    a(f"v_lshl_add_u32 v26, v31, 9, v26")
    a(f"v_lshl_add_u32 v26, v7, 4, v26")
    a("s_mul_i32 s63, s64, 57344")
    a("s_lshl_b32 s66, s65, 12")
    a("s_add_u32 s63, s63, s66")
    a("s_lshr_b32 s66, s38, 1")
    a("s_mul_i32 s66, s66, 28672")
    a("s_add_u32 s63, s63, s66")
    a("s_and_b32 s66, s38, 1")
    a("s_lshl_b32 s66, s66, 8")
    a("s_add_u32 s63, s63, s66")
    a(f"s_add_u32 s63, s63, {WS_HF}")
    a("s_lshl_b32 s66, s38, 4")
    a(f"v_add_u32 v31, s66, v7")
    a(f"v_mul_u32_u24 v31, 272, v31")
    a(f"v_lshl_add_u32 v31, v8, 5, v31")
    a(f"v_add_u32 v33, 49152, v31")
    a("s_lshl_b32 s76, s64, 6")
    a("s_add_u32 s76, s76, s66")
    a("s_mul_i32 s76, s76, 896")
    a("s_lshl_b32 s66, s65, 7")
    a("s_add_u32 s76, s76, s66")
    TR = [68, 69, 70, 71, 72, 73, 74, 75, 8, 9, 10, 11, 12, 13]
    a("s_mul_i32 s78, s38, 24576")
    a("s_lshl_b32 s79, s38, 14")
    a("s_add_u32 s79, s79, 98304")
    a(f"v_lshrrev_b32 v7, 2, v{I16}")
    a(f"v_lshl_add_u32 v8, v{HF}, 2, v7")
    a(f"v_lshrrev_b32 v7, 1, v7")
    a(f"v_lshlrev_b32 v7, 3, v7")
    a(f"v_and_b32 v30, 1, v{G}")
    a(f"v_lshl_add_u32 v7, v30, 2, v7")
    a(f"v_and_b32 v30, 3, v{I16}")
    a(f"v_add_u32 v7, v7, v30")
    a(f"v_lshlrev_b32 v7, 3, v7")
    a(f"v_lshl_add_u32 v7, v8, 7, v7")
    a(f"v_add_u32 v28, s78, v7")
    a(f"v_xor_b32 v29, 64, v28")
    a(f"v_add_u32 v24, s79, v7")
    a(f"v_xor_b32 v25, 64, v24")
    a(f"v_mul_u32_u24 v30, 272, v{M}")
    a(f"v_lshl_add_u32 v30, v{HF}, 4, v30")
    a(f"v_add_u32 v30, s78, v30")
    NREG = 8; NRES = 16
    def d_dma(ks):
        sb, lo = (79, (ks % 8) * 2048) if ks < NRES else (78, (ks - NRES) * 2048)
        return [(f"w{ks}", [f"s_add_u32 m0, s{sb}, {lo + i*1024}",
                            f"s_mul_i32 s50, s{TR[ks%14]}, 14",
                            f"s_add_u32 s50, s50, s{42 + ks//14}",
                            f"buffer_load_dwordx4 v{27 if i == 0 else 34}, s[16:19], s50 offen lds"]) for i in range(2)]
    def d_stage(ks):
        vm.wait(f"w{ks}")
        for n2 in range(2):
            for e in range(2):
                a(f"ds_read_b64_tr_b16 a[{130+8*ks+4*n2+2*e}:{130+8*ks+4*n2+2*e+1}], v{24+n2} offset:{(ks%8)*2048 + e*1024}")
    dstate = {"next_dma": 0, "next_stage": 0, "dma_at": {}, "stage_at": {}, "ops": []}
    def d_tick(i):
        st = dstate
        ks = st["next_stage"]
        if ks < NREG and 7 in st["dma_at"] and i >= 184:
            d_stage(ks); st["stage_at"][ks] = i; st["next_stage"] += 1
        if not st["ops"]:
            kd_ = st["next_dma"]
            if kd_ < NRES and (kd_ < 8 or (kd_ - 8 in st["stage_at"] and i - st["stage_at"][kd_ - 8] >= 9)):
                st["ops"] = d_dma(kd_); st["cur"] = kd_; st["next_dma"] += 1
        if st["ops"]:
            emit(st["ops"].pop(0))
            if not st["ops"]: st["dma_at"][st["cur"]] = i
    B_KV, B_RED, B_WO = 0, 65536, 102400
    a("s_mov_b32 s44, 0")
    a("s_mov_b32 s45, -1")
    a(f"v_lshrrev_b32 v7, 2, v{I16}")
    a(f"v_mul_u32_u24 v7, 1056, v7")
    a(f"v_and_b32 v8, 1, v{I16}")
    a(f"v_mul_u32_u24 v8, 528, v8")
    a(f"v_add_u32 v7, v7, v8")
    a(f"v_lshrrev_b32 v8, 1, v{I16}")
    a(f"v_and_b32 v8, 1, v8")
    a(f"v_lshl_add_u32 v7, v8, 3, v7")
    a(f"v_lshl_add_u32 v7, v{G}, 4, v7")
    a("s_mul_i32 s50, s38, 16896")
    a(f"v_add_u32 v34, s50, v7")
    a("s_lshl_b32 s66, s64, 1")
    a("s_add_u32 s66, s66, s39")
    a("s_lshl_b32 s66, s66, 4")
    a("s_lshl_b32 s50, s40, 3")
    a("s_add_u32 s66, s66, s50")
    a("s_lshl_b32 s66, s66, 12")
    a(f"s_add_u32 s66, s66, {WS_PHIQ}")
    a("s_mul_i32 s67, s38, 100352")
    a("s_lshl_b32 s50, s65, 7")
    a("s_add_u32 s67, s67, s50")
    a("s_mul_i32 s77, s38, 14336")
    bg = []
    for i in range(14):
        bg.append(("wo", [f"s_add_u32 m0, s77, {B_WO + i*1024}", f"s_add_u32 s50, s67, {i*8*896}", f"buffer_load_dwordx4 v27, s[16:19], s50 offen lds"]))
    bg.append(("wo", [f"s_mov_b32 m0, {B_WO + 448*128}", f"s_mov_b32 s50, {448*896}", f"buffer_load_dwordx4 v27, s[16:19], s50 offen lds"]))
    for i in range(32):
        bg.append((f"pq{i>>2}", [f"s_add_u32 s50, s66, {i*1024}", f"buffer_load_dwordx4 a[{4*i}:{4*i+3}], v11, s[32:35], s50 offen"]))
    bg.append(("x", ["buffer_load_dwordx4 v[120:123], v32, s[28:31], s76 offen"]))
    bg.append(("x", [f"s_add_u32 s50, s76, {8*896}", "buffer_load_dwordx4 v[124:127], v32, s[28:31], s50 offen"]))
    def emit_bg(n=1):
        for _ in range(n):
            if bg: emit(bg.pop(0))
    emit_bg(8)
    for i in range(32):
        if i >= 8: emit_bg()
        vm.wait(f"kv{i}")
        R = 128 + 4 * i
        a(f"v_cvt_pk_bf16_f32 v{R}, v{R}, v{R+1}")
        a(f"v_cvt_pk_bf16_f32 v{R+1}, v{R+2}, v{R+3}")
        a(f"s_add_u32 s50, s60, {i}")
        a("s_bfe_u32 s51, s50, 0x20003")
        a("s_mul_i32 s51, s51, 4224")
        a("s_and_b32 s50, s50, 7")
        a("s_lshl_b32 s50, s50, 6")
        a("s_add_u32 s50, s50, s51")
        a("v_add_u32 v35, s50, v34")
        a(f"ds_write_b64 v35, v[{R}:{R+1}] offset:{B_KV}")
    a("s_mul_i32 s50, s40, 33792")
    a(f"v_mul_u32_u24 v7, 528, v{HF}")
    a(f"v_lshl_add_u32 v7, v{M}, 4, v7")
    a(f"v_add_u32 v100, s50, v7")
    a("s_mul_i32 s50, s40, 28672")
    a(f"s_add_u32 s50, s50, {B_WO}")
    a("s_sub_u32 s50, s50, s78")
    a(f"v_add_u32 v101, s50, v28")
    a(f"v_xor_b32 v102, 64, v101")
    a("s_lshl_b32 s50, s39, 5")
    a(f"v_add_u32 v7, s50, v{M}")
    a(f"v_mul_u32_u24 v7, 272, v7")
    a(f"v_lshl_add_u32 v7, v{HF}, 4, v7")
    a("s_mul_i32 s50, s40, 17408")
    a(f"s_add_u32 s50, s50, {B_RED}")
    a(f"v_add_u32 v103, s50, v7")
    a(f"v_add_u32 v104, {B_RED}, v31")
    a(f"v_lshrrev_b32 v35, 3, v{LANE}")
    a(f"v_lshlrev_b32 v35, 3, v35")
    vm.wait("wo")
    a("s_waitcnt lgkmcnt(0)")
    a("s_barrier")
    def kvf_reads(hh):
        for s_ in range(4):
            a(f"ds_read_b128 v[{128+16*hh+4*s_}:{128+16*hh+4*s_+3}], v100 offset:{B_KV + hh*4224 + s_*1056}")
    def num_ops(hh):
        N = 36 + 16 * (hh & 1)
        return [f"v_mfma_f32_32x32x16_bf16 v[{N}:{N+15}], v[{128+16*hh+4*s_}:{128+16*hh+4*s_+3}], a[{16*hh+4*s_}:{16*hh+4*s_+3}], " + ("0" if s_ == 0 else f"v[{N}:{N+15}]") for s_ in range(4)]
    def o_ops(hh):
        N = 36 + 16 * (hh & 1); O = 128 + 16 * hh
        t = Asm()
        t(f"v_mov_b32 v105, v{N+12}")
        t(f"v_mov_b32 v106, v{N+12}")
        t(f"v_permlane32_swap_b32 v105, v106")
        bf16r(t, 106, 106)
        t(f"v_add_f32 v106, 0x358637bd, v106")
        bf16r(t, 106, 106)
        t(f"v_rcp_f32 v106, v106")
        for i in range(8):
            t(f"v_mul_f32 v{N+2*i}, v{N+2*i}, v106")
            t(f"v_mul_f32 v{N+2*i+1}, v{N+2*i+1}, v106")
            t(f"v_cvt_pk_bf16_f32 v{O+i}, v{N+2*i}, v{N+2*i+1}")
        t(f"v_cndmask_b32 v{O+6}, v{O+6}, 0, s[44:45]")
        t(f"v_cndmask_b32 v{O+7}, v{O+7}, 0, s[44:45]")
        return [i.text for i in t.ins]
    def wo_reads(hh):
        for s_ in range(2):
            for n2 in range(2):
                b = 68 + 16 * (hh & 1) + 8*s_ + 4*n2
                for e in range(2):
                    a(f"ds_read_b64_tr_b16 v[{b+2*e}:{b+2*e+1}], v{101+n2} offset:{(hh*28 + 16*s_ + 8*e)*128}")
    def wo_ops(hh):
        out = []
        for s_ in range(2):
            for n2 in range(2):
                b = 68 + 16 * (hh & 1) + 8*s_ + 4*n2
                c = "0" if (hh == 0 and s_ == 0) else f"a[{130+16*n2}:{130+16*n2+15}]"
                out.append(f"v_mfma_f32_32x32x16_bf16 a[{130+16*n2}:{130+16*n2+15}], v[{b}:{b+3}], v[{128+16*hh+4*s_}:{128+16*hh+4*s_+3}], {c}")
        return out
    for hh in range(8): kvf_reads(hh)
    emit_bg(4)
    a("s_waitcnt lgkmcnt(0)")
    a("s_barrier")
    wq = dma_ops(0) + dma_ops(1)
    vm.wait("pq0")
    for o in num_ops(0): a(o)
    for hh in range(9):
        if hh < 8: wo_reads(hh)
        emit_bg(3)
        if not bg and wq: emit(wq.pop(0)); emit(wq.pop(0))
        mf = []
        if hh >= 1:
            a(f"s_waitcnt lgkmcnt({8 if hh < 8 else 0})")
            mf += wo_ops(hh - 1)
        if hh + 1 < 8:
            vm.wait(f"pq{hh+1}")
            mf = num_ops(hh + 1)[:2] + mf[:2] + num_ops(hh + 1)[2:] + mf[2:]
        va = o_ops(hh) if hh < 8 else []
        per = (len(va) + max(1, len(mf)) - 1) // max(1, len(mf))
        for k_, m_ in enumerate(mf):
            a(m_)
            for o in va[k_*per:(k_+1)*per]: a(o)
        if not mf:
            for o in va: a(o)
    emit_bg(100)
    while wq: emit(wq.pop(0))
    for n2 in range(2):
        for q in range(4):
            a(f"ds_write_b128 v103, a[{130+16*n2+4*q}:{130+16*n2+4*q+3}] offset:{n2*128 + q*32}")
    a("s_lshl_b32 s61, s64, 6")
    a("s_lshl_b32 s50, s38, 4")
    a("s_add_u32 s61, s61, s50")
    a("s_lshl_b32 s61, s61, 3")
    a("s_lshl_b32 s50, s65, 14")
    a("s_add_u32 s61, s61, s50")
    a(f"s_add_u32 s61, s61, {WS_ST}")
    a("s_lshl_b32 s60, s2, 7")
    a("s_lshl_b32 s50, s38, 2")
    a("s_add_u32 s60, s60, s50")
    a(f"s_add_u32 s60, s60, {WS_FLAG + 16}")
    a(f"v_lshrrev_b32 v7, 1, v{LANE}")
    a(f"v_lshlrev_b32 v105, 12, v7")
    a("s_lshl_b32 s50, s40, 11")
    a("s_and_b32 s51, s2, 15")
    a("s_lshl_b32 s51, s51, 7")
    a("s_add_u32 s50, s50, s51")
    a("s_lshl_b32 s51, s39, 3")
    a("s_add_u32 s50, s50, s51")
    a("s_add_u32 s50, s50, 16")
    a(f"v_add_u32 v105, s50, v105")
    a(f"v_min_u32 v7, 8, v7")
    a(f"v_subrev_u32 v7, 7, v7")
    a(f"v_mul_u32_u24 v7, 1792, v7")
    a("s_add_u32 s50, s37, 224")
    a("s_lshl_b32 s50, s50, 7")
    a(f"v_add_u32 v7, s50, v7")
    a(f"v_cmp_gt_u32 vcc, 14, v{LANE}")
    a(f"v_cndmask_b32 v105, v7, v105, vcc")
    a(f"v_and_b32 v7, 1, v{LANE}")
    a(f"v_lshl_add_u32 v105, v7, 2, v105")
    a("s_waitcnt lgkmcnt(0)")
    a("s_barrier")
    for g2 in range(2):
        for hp_ in range(2):
            for e in range(2):
                a(f"ds_read_b128 v[{36+16*g2+8*hp_+4*e}:{36+16*g2+8*hp_+4*e+3}], v104 offset:{hp_*17408 + g2*8*272 + e*16}")
    vm.wait("x")
    a("s_mov_b32 s50, 0x01010101")
    a("s_mov_b32 s51, 0x01010101")
    for g2 in range(2):
        B_ = 36 + 16 * g2; T_ = 68 + 16 * g2
        a(f"s_waitcnt lgkmcnt({4 if g2 == 0 else 0})")
        for j in range(8): a(f"v_add_f32 v{B_+j}, v{B_+j}, v{B_+8+j}")
        for i in range(4): a(f"v_cvt_pk_bf16_f32 v{B_+8+i}, v{B_+2*i}, v{B_+2*i+1}")
        for i in range(4):
            a(f"v_lshlrev_b32 v{B_+2*i}, 16, v{B_+8+i}")
            a(f"v_and_b32 v{B_+2*i+1}, s41, v{B_+8+i}")
            a(f"v_lshlrev_b32 v{T_+2*i}, 16, v{120+4*g2+i}")
            a(f"v_and_b32 v{T_+2*i+1}, s41, v{120+4*g2+i}")
        for j in range(8): a(f"v_add_f32 v{B_+j}, v{B_+j}, v{T_+j}")
        for i in range(4): a(f"v_cvt_pk_bf16_f32 v{B_+8+i}, v{B_+2*i}, v{B_+2*i+1}")
        a(f"buffer_store_dwordx4 v[{B_+8}:{B_+11}], v26, s[32:35], s63 offen offset:{g2*128} sc1")
        a(f"v_add_f32 v{T_}, v{B_}, v{B_+1}")
        a(f"v_mul_f32 v{T_+1}, v{B_}, v{B_}")
        a(f"v_add_f32 v{T_+2}, v{B_+2}, v{B_+3}")
        a(f"v_mul_f32 v{T_+3}, v{B_+1}, v{B_+1}")
        for j in range(4, 8, 2):
            a(f"v_add_f32 v{T_}, v{T_}, v{B_+j}")
            a(f"v_add_f32 v{T_+2}, v{T_+2}, v{B_+j+1}")
        for j in range(2, 8, 2):
            a(f"v_fmac_f32 v{T_+1}, v{B_+j}, v{B_+j}")
            a(f"v_fmac_f32 v{T_+3}, v{B_+j+1}, v{B_+j+1}")
        a(f"v_add_f32 v{T_}, v{T_}, v{T_+2}")
        a(f"v_add_f32 v{T_+1}, v{T_+1}, v{T_+3}")
        for dpp in ("quad_perm:[1,0,3,2]", "quad_perm:[2,3,0,1]", "row_half_mirror"):
            a(f"v_add_f32_dpp v{T_}, v{T_}, v{T_} {dpp} row_mask:0xf bank_mask:0xf")
            a(f"v_add_f32_dpp v{T_+1}, v{T_+1}, v{T_+1} {dpp} row_mask:0xf bank_mask:0xf")
        a("s_mov_b64 exec, s[50:51]")
        a(f"buffer_store_dwordx2 v[{T_}:{T_+1}], v35, s[32:35], s61 offen offset:{g2*64} sc1")
        a("s_mov_b64 exec, -1")
    a("v_mov_b32 v106, 1")
    a("v_mov_b32 v107, 0")
    srd(a, 16, 4, 1605632)
    a("s_waitcnt vmcnt(0)")
    a("s_mov_b64 exec, 1")
    a("buffer_store_dword v106, v107, s[32:35], s60 offen sc1")
    a("s_mov_b64 exec, -1")
    a("s_lshl_b32 s66, s65, 1")
    a("s_and_b32 s67, s64, 3")
    a("s_mul_i32 s67, s67, 3")
    a("s_add_u32 s66, s66, s67")
    a("s_cmp_ge_u32 s66, 14")
    a("s_cselect_b32 s67, 14, 0")
    a("s_sub_u32 s66, s66, s67")
    a("s_mul_i32 s77, s38, 14")
    for i in range(14):
        a("s_add_u32 s67, s66, s77")
        a("s_lshr_b32 s50, s67, 2")
        a("s_lshl_b32 s50, s50, 3")
        a("s_and_b32 s67, s67, 3")
        a("s_add_u32 s50, s50, s67")
        a(f"s_lshl_b32 s{TR[i]}, s50, 10")
        a("s_add_u32 s66, s66, 1")
        a("s_cmp_ge_u32 s66, 14")
        a("s_cselect_b32 s66, 0, s66")
    a("s_lshl_b32 s50, s65, 7")
    a("s_mul_i32 s42, s57, 57344")
    a("s_sub_u32 s43, 57344, s42")
    a("s_add_u32 s42, s42, s50")
    a("s_add_u32 s43, s43, s50")
    a("s_mul_i32 s50, s64, 229376")
    a(f"s_add_u32 s50, s50, {WS_HH}")
    a("s_lshl_b32 s66, s57, 12")
    a("s_sub_u32 s67, 4096, s66")
    a("s_add_u32 s66, s66, s50")
    a("s_add_u32 s67, s67, s50")
    a("v_add_u32 v34, 7168, v27")
    a("s_sub_u32 s60, s60, 16")
    a("s_and_b32 s61, s2, 15")
    a("s_lshl_b32 s61, s61, 7")
    a("s_and_b32 s50, s64, 1")
    a("s_lshl_b32 s50, s50, 3")
    a("s_add_u32 s61, s61, s50")
    a(f"s_add_u32 s61, s61, {WS_FLAG}")
    a(f"v_lshrrev_b32 v110, 1, v{LANE}")
    a(f"v_min_u32 v110, 13, v110")
    a(f"v_lshlrev_b32 v110, 11, v110")
    a(f"v_and_b32 v111, 1, v{LANE}")
    a(f"v_lshl_add_u32 v110, v111, 2, v110")
    a("v_mov_b32 v111, 1")
    a("v_mov_b32 v112, 0")
    a(f"s_mov_b32 s51, {WS_FLAG}")
    a("s_mov_b32 s50, 0")
    a("buffer_load_dword v107, v105, s[32:35], s51 offen sc1")
    a("s_sleep 4")
    a("buffer_load_dword v108, v105, s[32:35], s51 offen sc1")
    a("s_sleep 4")
    a("K3_POLLB:")
    a("buffer_load_dword v109, v105, s[32:35], s51 offen sc1")
    a("s_waitcnt vmcnt(2)")
    a("v_cmp_ne_u32 vcc, 1, v107")
    a("s_cmp_eq_u64 vcc, 0")
    a("s_cbranch_scc1 K3_POLLBX")
    a("buffer_load_dword v107, v105, s[32:35], s51 offen sc1")
    a("s_waitcnt vmcnt(2)")
    a("v_cmp_ne_u32 vcc, 1, v108")
    a("s_cmp_eq_u64 vcc, 0")
    a("s_cbranch_scc1 K3_POLLBX")
    a("buffer_load_dword v108, v105, s[32:35], s51 offen sc1")
    a("s_waitcnt vmcnt(2)")
    a("v_cmp_ne_u32 vcc, 1, v109")
    a("s_cmp_eq_u64 vcc, 0")
    a("s_cbranch_scc1 K3_POLLBX")
    a("s_add_u32 s50, s50, 1")
    a("s_cmp_lt_u32 s50, 0x200000")
    a("s_cbranch_scc1 K3_POLLB")
    a("K3_POLLBX:")
    vm = VM(a)
    for C in range(3):
        for op in chunk_ops(C): emit(op)
    stamp(a, 2)
    vm.wait("c0")
    a("s_barrier")
    stamp(a, 3)
    NK1 = int(os.environ.get('NK1', '20'))
    VP1 = int(os.environ.get('VP1', '3')); VP2 = int(os.environ.get('VP2', '6'))
    seq = [(0, kk, t) for kk in range(28) for t in range(4)] + [(1, kk, t) for kk in range(NK1) for t in range(4)]
    seq += [(1, kk, t) for t in range(4) for kk in range(NK1, 28)]
    LAH = 7
    NBUF = 16
    queue = chunk_ops(3) + chunk_ops(4) + chunk_ops(5)
    late = []
    ready = {0}
    vq = []
    def need_chunk(C):
        nonlocal queue, late
        if C in ready: return
        if any(op[0] == f"c{C}" for op in late):
            queue += late; late = []
        while any(op[0] == f"c{C}" for op in queue): emit(queue.pop(0))
        vm.wait(f"c{C}")
        a("s_barrier")
        ready.add(C)
        if 6 <= C + 4 <= 13: late += chunk_ops(C + 4)
        if C == 2: late += misc
    def issue_reads(i):
        ph, kk, t = seq[i]
        need_chunk(ph * 7 + kk // 4)
        for o in rd_ops(ph, kk, t, WF + 4 * (i % NBUF)): a(o)
    for i in range(LAH): issue_reads(i)
    for i, (ph, kk, t) in enumerate(seq):
        if i + LAH < len(seq):
            issue_reads(i + LAH)
            if i % 2 == 0: a(f"s_waitcnt lgkmcnt({2*LAH-2})")
        elif i % 2 == 0:
            a(f"s_waitcnt lgkmcnt({max(0, 2*(len(seq)-2-i))})")
        T = ph * 4 + t
        b = WF + 4 * (i % NBUF)
        c_ = "0" if kk == 0 else acc(T)
        a(f"v_mfma_f32_32x32x16_bf16 {acc(T)}, v[{b}:{b+3}], a[{4*kk}:{4*kk+3}], {c_}")
        if kk == 27:
            a(f"v_mfma_f32_32x32x16_bf16 {acc(T)}, a[{112+2*T}:{112+2*T+3}], v[104:107], {acc(T)}")
            vq += ep_ops(T)
        if ph == 0 and kk == 22 and t == 0:
            vm.wait("ms")
            vq += fin_ops
        if i == 182:
            vm.wait("st3")
            a("s_mov_b64 exec, 1")
            a("buffer_store_dword v111, v112, s[32:35], s60 offen offset:32 sc1")
            a("s_mov_b64 exec, -1")
            vm.issue("fa")
        if i == 216:
            a("buffer_load_dword v113, v110, s[32:35], s61 offen offset:32 sc1")
            vm.issue("pa")
        if i == 112: stamp(a, 4)
        if i == 112 + 4 * NK1:
            stamp(a, 5)
        if i % 2 == 0 or i < 12:
            if queue: emit(queue.pop(0))
            elif late: emit(late.pop(0))
            elif 9 in ready: d_tick(i)
        if not (kk == 27): emit_valu(vq, VP1 if i < 112 + 4 * NK1 else VP2)
    emit_valu(vq, 10000)
    while late: emit(late.pop(0))
    print("D staging state at end of C:", dstate["next_dma"], dstate["next_stage"])
    stamp(a, 6)
    assert dstate["next_dma"] == NRES and dstate["next_stage"] == NREG
    while dstate["ops"]: emit(dstate["ops"].pop(0))
    vm.wait("pa")
    a("v_cmp_ne_u32 vcc, 1, v113")
    a("s_cmp_eq_u64 vcc, 0")
    a("s_cbranch_scc1 K3_PAX")
    a("s_mov_b32 s53, 0")
    a("K3_PA:")
    a("buffer_load_dword v113, v110, s[32:35], s61 offen offset:32 sc1")
    a("s_add_u32 s53, s53, 1")
    a("s_waitcnt vmcnt(0)")
    a("v_cmp_ne_u32 vcc, 1, v113")
    a("s_cmp_gt_u32 s53, 0x400000")
    a("s_cbranch_scc1 K3_PAX")
    a("s_cmp_lg_u64 vcc, 0")
    a("s_cbranch_scc1 K3_PA")
    a("K3_PAX:")
    NH = 14
    def hh_ops(ks):
        return [(f"k{ks}", [f"s_add_u32 s50, s{TR[ks%14]}, s{66 + ks//14}"] + ([f"s_add_u32 s50, s50, 114688"] if m2 else []) +
                           [f"buffer_load_dwordx4 a[{(ks%NH)*8+4*m2}:{(ks%NH)*8+4*m2+3}], v11, s[32:35], s50 offen sc1"]) for m2 in range(2)]
    for ks in range(6):
        for op in hh_ops(ks): emit(op)
    vm.wait("st7")
    a("s_mov_b64 exec, 1")
    a("buffer_store_dword v111, v112, s[32:35], s60 offen sc1")
    a("s_mov_b64 exec, -1")
    vm.issue("fb")
    for ks in range(6, NH):
        for op in hh_ops(ks): emit(op)
    a("s_barrier")
    stamp(a, 7)
    def dacc(n2, m2): return f"v[{128+32*n2+16*m2}:{128+32*n2+16*m2+15}]"
    def drd(ks):
        if ks < NREG: return 0
        base, off = (24, (ks % 8) * 2048) if ks < NRES else (28, (ks - NRES) * 2048)
        for n2 in range(2):
            b = 36 + (ks & 1) * 8 + 4 * n2
            for e in range(2):
                a(f"ds_read_b64_tr_b16 v[{b+2*e}:{b+2*e+1}], v{base+n2} offset:{off + e*1024}")
        return 4
    wlate = []
    for ks in range(NRES, 28): wlate += d_dma(ks)
    PB = 8
    done_upto = -1
    for ks in range(28):
        n_ = 0
        if ks + 1 < 28: n_ = drd(ks + 1)
        if ks > done_upto: vm.wait(f"k{ks}")
        if ks >= NREG - 1: a(f"s_waitcnt lgkmcnt({n_})")
        for n2 in range(2):
            for m2 in range(2):
                wsrc = f"a[{130+8*ks+4*n2}:{130+8*ks+4*n2+3}]" if ks < NREG else f"v[{36+(ks&1)*8+4*n2}:{36+(ks&1)*8+4*n2+3}]"
                c_ = "0" if ks == 0 else dacc(n2, m2)
                a(f"v_mfma_f32_32x32x16_bf16 {dacc(n2,m2)}, {wsrc}, a[{(ks%NH)*8+4*m2}:{(ks%NH)*8+4*m2+3}], {c_}")
        if ks < PB:
            for _ in range(3): emit(wlate.pop(0))
        if ks == PB - 1:
            assert not wlate
            a("s_mov_b32 s53, 0")
            a("buffer_load_dword v113, v110, s[32:35], s61 offen sc1")
            a("buffer_load_dword v108, v110, s[32:35], s61 offen sc1")
            a("K3_POLL:")
            for ra, rb_ in ((109, 113), (113, 108), (108, 109)):
                a(f"buffer_load_dword v{ra}, v110, s[32:35], s61 offen sc1")
                a("s_waitcnt vmcnt(2)")
                a(f"v_cmp_ne_u32 vcc, 1, v{rb_}")
                a("s_cmp_eq_u64 vcc, 0")
                a("s_cbranch_scc1 K3_POLLX")
            a("s_add_u32 s53, s53, 1")
            a("s_cmp_lt_u32 s53, 0x200000")
            a("s_cbranch_scc1 K3_POLL")
            a("K3_POLLX:")
            vm = VM(a)
            done_upto = NH - 1
            for k2 in range(NH, NH + PB):
                for op in hh_ops(k2): emit(op)
        elif ks >= PB and ks + NH < 28:
            for op in hh_ops(ks + NH): emit(op)
        if ks + NH == 28:
            a(f"buffer_load_dwordx4 v[52:55], v26, s[32:35], s63 offen sc1")
            a(f"buffer_load_dwordx4 v[56:59], v26, s[32:35], s63 offen offset:128 sc1")
            vm.issue("res"); vm.issue("res")
    stamp(a, 8)
    for n2 in range(2):
        for m2 in range(2):
            for q in range(4):
                b = 128 + 32*n2 + 16*m2 + 4*q
                a(f"ds_write_b128 v30, v[{b}:{b+3}] offset:{m2*32*272 + n2*128 + q*32}")
    a("s_waitcnt lgkmcnt(0)")
    a("s_barrier")
    a("s_waitcnt vmcnt(0)")
    for g2 in range(2):
        for w in range(4):
            for e in range(2):
                a(f"ds_read_b128 v[{60+32*g2+8*w+4*e}:{60+32*g2+8*w+4*e+3}], v{31 if w < 2 else 33} offset:{(w&1)*24576 + g2*8*272 + e*16}")
    for g2 in range(2):
        B_ = 60 + 32 * g2
        a(f"s_waitcnt lgkmcnt({8 if g2 == 0 else 0})")
        for j in range(8):
            a(f"v_add_f32 v{B_+j}, v{B_+j}, v{B_+8+j}")
            a(f"v_add_f32 v{B_+16+j}, v{B_+16+j}, v{B_+24+j}")
        for j in range(8): a(f"v_add_f32 v{B_+j}, v{B_+j}, v{B_+16+j}")
        for i in range(4): a(f"v_cvt_pk_bf16_f32 v{B_+8+i}, v{B_+2*i}, v{B_+2*i+1}")
        for i in range(4):
            a(f"v_lshlrev_b32 v{B_+2*i}, 16, v{B_+8+i}")
            a(f"v_and_b32 v{B_+2*i+1}, s41, v{B_+8+i}")
            a(f"v_lshlrev_b32 v{B_+16+2*i}, 16, v{52+4*g2+i}")
            a(f"v_and_b32 v{B_+16+2*i+1}, s41, v{52+4*g2+i}")
        for j in range(8): a(f"v_add_f32 v{B_+j}, v{B_+j}, v{B_+16+j}")
        for i in range(4): a(f"v_cvt_pk_bf16_f32 v{B_+8+i}, v{B_+2*i}, v{B_+2*i+1}")
        a(f"s_add_u32 s50, s76, {g2*8*896}")
        a(f"buffer_store_dwordx4 v[{B_+8}:{B_+11}], v32, s[24:27], s50 offen")
    if STAMPS: a("s_waitcnt vmcnt(0)")
    stamp(a, 9)
    stamp_flush(a, 38, 32, 2)
    a("s_endpgm")
    a("K3_PF:")
    a("s_sub_u32 s36, s2, 224")
    a("s_waitcnt lgkmcnt(0)")
    srd(a, 16, 4, 1605632)
    srd(a, 20, 8, 1605632)
    srd(a, 24, 10, 1605632)
    srd(a, 32, 14, WS_SIZE)
    a("s_cmp_ge_u32 s36, 28")
    a("s_cbranch_scc1 K3_PF2")
    a("s_cmp_ge_u32 s36, 14")
    a("s_cselect_b32 s37, 1, 0")
    a("s_cselect_b32 s28, s10, s8")
    a("s_cselect_b32 s29, s11, s9")
    a("s_mov_b32 s30, 1605632")
    a("s_mov_b32 s31, 0x00020000")
    a("s_mul_i32 s39, s37, 14")
    a("s_sub_u32 s39, s36, s39")
    a("v_lshrrev_b32 v7, 4, v0")
    a("v_and_b32 v8, 15, v0")
    a("v_mul_u32_u24 v9, 3584, v7")
    a("v_lshl_add_u32 v9, v8, 4, v9")
    a("s_lshl_b32 s50, s39, 8")
    for i in range(28):
        a(f"s_add_u32 s51, s50, {i*16*3584}")
        a(f"buffer_load_dwordx4 v[{20+4*i}:{20+4*i+3}], v9, s[28:31], s51 offen")
    for j in range(8): a(f"v_mov_b32 v{140+j}, 0")
    for i in range(28):
        a(f"s_waitcnt vmcnt({27-i})")
        for r in range(4):
            a(f"v_lshlrev_b32 v11, 16, v{20+4*i+r}")
            a(f"v_and_b32 v12, s41, v{20+4*i+r}")
            a(f"v_add_f32 v{140+2*r}, v{140+2*r}, v11")
            a(f"v_add_f32 v{140+2*r+1}, v{140+2*r+1}, v12")
    a("v_lshlrev_b32 v11, 9, v7")
    a("v_lshl_add_u32 v11, v8, 5, v11")
    a("ds_write_b128 v11, v[140:143]")
    a("ds_write_b128 v11, v[144:147] offset:16")
    a("s_waitcnt lgkmcnt(0)")
    a("s_barrier")
    a("s_cmp_ge_u32 s38, 2")
    a("s_cbranch_scc1 K3_PF1")
    a("v_lshlrev_b32 v11, 2, v0")
    for i in range(16):
        a(f"ds_read_b32 v{20+i}, v11 offset:{i*512}")
    a("s_waitcnt lgkmcnt(0)")
    for i in range(1, 16): a(f"v_add_f32 v20, v20, v{20+i}")
    a("v_cvt_pk_bf16_f32 v24, v20, v20")
    a("v_and_b32 v22, s41, v24")
    a("v_sub_f32 v22, v20, v22")
    a("v_cvt_pk_bf16_f32 v25, v22, v22")
    a("v_lshlrev_b32 v11, 6, v8")
    a("v_lshl_add_u32 v11, v7, 3, v11")
    a("s_lshl_b32 s50, s39, 11")
    a("s_lshl_b32 s51, s37, 10")
    a("s_add_u32 s50, s50, s51")
    a(f"s_add_u32 s50, s50, {WS_CS}")
    a("buffer_store_dwordx2 v[24:25], v11, s[32:35], s50 offen sc1")
    a("s_lshl_b32 s50, s2, 7")
    a("s_lshl_b32 s51, s38, 2")
    a("s_add_u32 s50, s50, s51")
    a(f"s_add_u32 s50, s50, {WS_FLAG}")
    a("v_mov_b32 v26, 1")
    a("v_mov_b32 v27, 0")
    a("s_waitcnt vmcnt(0)")
    a("s_mov_b64 exec, 1")
    a("buffer_store_dword v26, v27, s[32:35], s50 offen sc1")
    a("s_mov_b64 exec, -1")
    a("K3_PF1:")
    a("s_barrier")
    a("K3_PF2:")
    a("s_lshr_b32 s60, s36, 3")
    a("s_lshl_b32 s60, s60, 2")
    a("s_add_u32 s60, s60, s38")
    a("s_mul_i32 s61, s60, 7168")
    a(f"v_lshlrev_b32 v10, 7, v{LANE}")
    a(f"v_mov_b32 v11, 0x7fff0000")
    a(f"v_cmp_gt_u32 vcc, 56, v{LANE}")
    a(f"v_cndmask_b32 v10, v11, v10, vcc")
    for i in range(10):
        a(f"s_add_u32 s62, s61, {4096*128 + i*16*7168}")
        a(f"buffer_load_dword v{150+2*i}, v10, s[20:23], s62 offen")
        a(f"buffer_load_dword v{151+2*i}, v10, s[24:27], s62 offen")
    for i in range(14):
        a(f"s_add_u32 s62, s61, {i*16*7168}")
        a(f"buffer_load_dword v{170+i}, v10, s[16:19], s62 offen")
    a("K3_END:")
    a("s_endpgm")
    a.fix_hazards()
    k = kd("k3_kernel", 256).replace("next_free_vgpr 256", "next_free_vgpr 506")
    return a.text(), k

K4_WREG = 40960
K4_LDS = 4 * K4_WREG

def gen_k4():
    a = Asm()
    head(a, "k4_kernel")
    a("s_cmp_ge_u32 s2, 224")
    a("s_cbranch_scc1 K4_END")
    stamp_init(a); stamp(a, 0, real=True); stamp(a, 1)
    a("s_load_dwordx4 s[8:11], s[0:1], 56")
    a("s_load_dwordx2 s[14:15], s[0:1], 80")
    LANE, M, HF, I16, G = 1, 2, 3, 4, 5
    a(f"v_and_b32 v{LANE}, 63, v0")
    a(f"v_lshrrev_b32 v6, 6, v0")
    a(f"v_readfirstlane_b32 s38, v6")
    a(f"v_and_b32 v{M}, 31, v{LANE}")
    a(f"v_lshrrev_b32 v{HF}, 5, v{LANE}")
    a(f"v_and_b32 v{I16}, 15, v{LANE}")
    a(f"v_lshrrev_b32 v{G}, 4, v{LANE}")
    a("s_mov_b32 s41, 0xffff0000")
    a("s_and_b32 s36, s2, 7")
    a("s_lshl_b32 s36, s36, 2")
    a("s_bfe_u32 s37, s2, 0x20003")
    a("s_add_u32 s36, s36, s37")
    a("s_lshr_b32 s37, s2, 5")
    a(f"v_lshrrev_b32 v7, 3, v{LANE}")
    a(f"v_and_b32 v8, 7, v{LANE}")
    a(f"v_lshrrev_b32 v9, 1, v7")
    a(f"v_and_b32 v9, 1, v9")
    a(f"v_lshlrev_b32 v9, 2, v9")
    a(f"v_xor_b32 v8, v8, v9")
    a(f"v_mul_u32_u24 v7, 896, v7")
    a(f"v_lshl_add_u32 v10, v8, 4, v7")
    a(f"v_lshlrev_b32 v11, 4, v{LANE}")
    a("s_waitcnt lgkmcnt(0)")
    srd(a, 20, 8, 1605632)
    srd(a, 24, 10, 1835008)
    srd(a, 32, 14, WS_SIZE)
    a("s_mul_i32 s46, s38, 401408")
    a("s_lshl_b32 s47, s37, 7")
    a("s_add_u32 s46, s46, s47")
    a(f"s_mul_i32 s47, s38, {K4_WREG}")
    a("s_mul_i32 s48, s36, 229376")
    a("s_mul_i32 s49, s38, 28672")
    a("s_add_u32 s48, s48, s49")
    a(f"s_add_u32 s48, s48, {WS_HH}")
    vm = VM(a)
    HH = 28
    a("s_bfe_u32 s52, s2, 0x20003")
    for g_ in range(4):
        a(f"s_add_u32 s53, s52, {g_}")
        a("s_and_b32 s53, s53, 3")
        a(f"s_mul_i32 s{56+g_}, s53, {7*16*896}")
        a(f"s_add_u32 s{56+g_}, s{56+g_}, s46")
        a(f"s_mul_i32 s{60+g_}, s53, 7168")
        a(f"s_add_u32 s{60+g_}, s{60+g_}, s48")
    def dma(ks):
        for i in range(2):
            a(f"s_add_u32 m0, s47, {(ks % 20)*2048 + i*1024}")
            a(f"s_add_u32 s50, s{56+ks//7}, {((ks%7)*16 + i*8)*896}")
            a(f"buffer_load_dwordx4 v10, s[20:23], s50 offen lds")
            vm.issue(f"k{ks}")
    def hload(ks):
        for m2 in range(2):
            a(f"s_add_u32 s50, s{60+ks//7}, {m2*114688 + (ks%7)*1024}")
            a(f"buffer_load_dwordx4 v[{HH+8*ks+4*m2}:{HH+8*ks+4*m2+3}], v11, s[32:35], s50 offen")
            vm.issue(f"k{ks}")
    PRE = 15
    for ks in range(PRE):
        dma(ks); hload(ks)
    a(f"v_lshrrev_b32 v7, 2, v{I16}")
    a(f"v_lshl_add_u32 v8, v{HF}, 2, v7")
    a(f"v_lshrrev_b32 v7, 1, v7")
    a(f"v_lshlrev_b32 v7, 3, v7")
    a(f"v_and_b32 v9, 1, v{G}")
    a(f"v_lshl_add_u32 v7, v9, 2, v7")
    a(f"v_and_b32 v9, 3, v{I16}")
    a(f"v_add_u32 v7, v7, v9")
    a(f"v_lshlrev_b32 v7, 3, v7")
    a(f"v_lshl_add_u32 v7, v8, 7, v7")
    a(f"v_add_u32 v12, s47, v7")
    a(f"v_xor_b32 v13, 64, v12")
    WF = 14
    def acc(n2, m2): return f"a[{32*n2+16*m2}:{32*n2+16*m2+15}]"
    def wf(ks, n2):
        b = 64 + (ks & 1) * 8 + 4 * n2
        return b
    def rd(ks):
        for n2 in range(2):
            b = wf(ks, n2)
            for e in range(2):
                a(f"ds_read_b64_tr_b16 a[{b+2*e}:{b+2*e+1}], v{12+n2} offset:{(ks % 20)*2048 + e*1024}")
    stamp(a, 2)
    vm.wait("k0")
    stamp(a, 3)
    rd(0)
    for ks in range(28):
        if ks + 1 < 28:
            vm.wait(f"k{ks+1}")
            rd(ks + 1)
            a("s_waitcnt lgkmcnt(4)")
        else:
            a("s_waitcnt lgkmcnt(0)")
        for n2 in range(2):
            for m2 in range(2):
                b = wf(ks, n2)
                c_ = "0" if ks == 0 else acc(n2, m2)
                a(f"v_mfma_f32_32x32x16_bf16 {acc(n2,m2)}, a[{b}:{b+3}], v[{HH+8*ks+4*m2}:{HH+8*ks+4*m2+3}], {c_}")
        nk = ks + PRE
        if nk < 28:
            dma(nk); hload(nk)
    stamp(a, 4)
    a("s_lshl_b32 s50, s36, 1")
    a("s_mul_i32 s50, s50, 28")
    a("s_lshl_b32 s51, s37, 2")
    a("s_add_u32 s50, s50, s51")
    a("s_add_u32 s50, s50, s38")
    a("s_lshl_b32 s50, s50, 10")
    a(f"s_add_u32 s50, s50, {WS_HF}")
    a(f"v_mul_u32_u24 v7, 28672, v{HF}")
    a(f"v_lshl_add_u32 v7, v{M}, 4, v7")
    a(f"buffer_load_dwordx4 v[14:17], v7, s[32:35], s50 offen")
    a(f"buffer_load_dwordx4 v[18:21], v7, s[32:35], s50 offen offset:512")
    a(f"v_mul_u32_u24 v7, 272, v{M}")
    a(f"v_lshl_add_u32 v7, v{HF}, 4, v7")
    a(f"v_add_u32 v7, s47, v7")
    for n2 in range(2):
        for m2 in range(2):
            for q in range(4):
                b = 32*n2 + 16*m2 + 4*q
                a(f"ds_write_b128 v7, a[{b}:{b+3}] offset:{m2*32*272 + n2*128 + q*32}")
    a("s_waitcnt lgkmcnt(0)")
    a("s_barrier")
    stamp(a, 5)
    a(f"v_mul_u32_u24 v7, 272, v{LANE}")
    a("s_lshl_b32 s50, s38, 6")
    a(f"v_add_u32 v7, s50, v7")
    a(f"v_add_u32 v8, {2*K4_WREG}, v7")
    for w in range(4):
        for e in range(4):
            base = 7 if w < 2 else 8
            a(f"ds_read_b128 v[{28+16*w+4*e}:{28+16*w+4*e+3}], v{base} offset:{(w&1)*K4_WREG + e*16}")
    a("s_waitcnt lgkmcnt(0)")
    for j in range(16):
        a(f"v_add_f32 v{28+j}, v{28+j}, v{44+j}")
        a(f"v_add_f32 v{60+j}, v{60+j}, v{76+j}")
    for j in range(16):
        a(f"v_add_f32 v{28+j}, v{28+j}, v{60+j}")
    a("s_waitcnt vmcnt(0)")
    for i in range(8):
        a(f"v_cvt_pk_bf16_f32 v44, v{28+2*i}, v{28+2*i+1}")
        a(f"v_lshlrev_b32 v45, 16, v44")
        a(f"v_and_b32 v46, s41, v44")
        a(f"v_lshlrev_b32 v47, 16, v{14+i}")
        a(f"v_and_b32 v48, s41, v{14+i}")
        a(f"v_add_f32 v45, v45, v47")
        a(f"v_add_f32 v46, v46, v48")
        a(f"v_cvt_pk_bf16_f32 v{60+i}, v45, v46")
    a("s_lshl_b32 s50, s36, 6")
    a(f"v_add_u32 v7, s50, v{LANE}")
    a(f"v_mul_u32_u24 v7, 896, v7")
    a("s_lshl_b32 s50, s37, 7")
    a("s_lshl_b32 s51, s38, 5")
    a("s_add_u32 s50, s50, s51")
    a(f"buffer_store_dwordx4 v[60:63], v7, s[24:27], s50 offen")
    a(f"buffer_store_dwordx4 v[64:67], v7, s[24:27], s50 offen offset:16")
    if STAMPS: a("s_waitcnt vmcnt(0)")
    stamp(a, 9)
    stamp_flush(a, 38, 32, 3)
    a("K4_END:")
    a("s_endpgm")
    a.fix_hazards()
    k = kd("k4_kernel", 256).replace("next_free_vgpr 256", "next_free_vgpr 336")
    return a.text(), k

def kernels():
    return [("k3", gen_k3, 256, 256, K3_LDS)]
```

```python
from asmfw import Asm
import os
import gen
from gen import *

L_CS = 0; L_FL = 448; L_SQ = 512; L_SM = 1536; L_WP = 2048
L_WQ = 4096
L_RING = 32768; L_SLOT = 24576
K1B_LDS = L_RING + 5 * L_SLOT
L_PHIK = L_RING; L_V = L_PHIK + 16384

def gen_k1b():
    a = Asm()
    head(a, "k1_kernel")
    a("s_cmp_ge_u32 s2, 256")
    a("s_cbranch_scc1 K1_END")
    stamp_init(a); stamp(a, 0, real=True); stamp(a, 1)
    a("s_load_dwordx4 s[4:7], s[0:1], 0")
    a("s_load_dwordx4 s[8:11], s[0:1], 16")
    a("s_load_dwordx4 s[12:15], s[0:1], 72")
    a("s_load_dwordx4 s[56:59], s[0:1], 40")
    a("s_load_dwordx2 s[68:69], s[0:1], 56")
    LANE, M, HF, I16, G = 1, 2, 3, 4, 5
    a(f"v_and_b32 v{LANE}, 63, v0")
    a(f"v_lshrrev_b32 v6, 6, v0")
    a(f"v_readfirstlane_b32 s38, v6")
    a(f"v_and_b32 v{M}, 31, v{LANE}")
    a(f"v_lshrrev_b32 v{HF}, 5, v{LANE}")
    a(f"v_and_b32 v{I16}, 15, v{LANE}")
    a(f"v_lshrrev_b32 v{G}, 4, v{LANE}")
    a("s_and_b32 s36, s2, 7")
    a("s_lshl_b32 s36, s36, 1")
    a("s_bfe_u32 s37, s2, 0x10003")
    a("s_add_u32 s36, s36, s37")
    a("s_lshr_b32 s37, s2, 4")
    a("s_and_b32 s39, s38, 3")
    a("s_lshr_b32 s40, s38, 2")
    a("s_mov_b32 s42, 0")
    a("s_mov_b32 s43, -1")
    a(f"s_mov_b32 s44, {LOG2E}")
    a("s_mov_b32 s45, 0x3f803f80")
    a("s_mov_b32 s41, 0xffff0000")
    a("s_and_b32 s67, s36, 1")
    a("s_mul_i32 s67, s67, 3")
    a("s_add_u32 s67, s67, s37")
    for _ in range(2):
        a("s_cmp_ge_u32 s67, 7")
        a("s_cselect_b32 s61, 7, 0")
        a("s_sub_u32 s67, s67, s61")
    a("s_lshl_b32 s46, s36, 7")
    a("s_lshl_b32 s47, s39, 5")
    a("s_add_u32 s46, s46, s47")
    a("s_mul_i32 s47, s46, 896")
    a("s_mul_i32 s48, s37, 56")
    a("s_and_b32 s48, s48, 0xfffffff0")
    a("s_mul_i32 s49, s39, 43008")
    a("s_add_u32 s48, s48, s49")
    for c in range(7):
        a(f"s_lshl_b32 s{60+c}, s67, 7")
        a(f"s_add_u32 s{60+c}, s{60+c}, s47")
        a(f"s_mul_i32 s{72+c}, s67, {64*2688}")
        a(f"s_add_u32 s{72+c}, s{72+c}, s48")
        if c < 6:
            a("s_add_u32 s67, s67, 1")
            a("s_cmp_ge_u32 s67, 7")
            a("s_cselect_b32 s67, 0, s67")
    a("s_cmp_eq_u32 s40, 1")
    a("s_cbranch_scc1 K1_Q")
    def srds():
        a("s_waitcnt lgkmcnt(0)")
        srd(a, 16, 4, 1835008); srd(a, 20, 6, 1204224); srd(a, 24, 8, 25088); srd(a, 28, 12, 256); srd(a, 32, 14, WS_SIZE)
    XV = 228; TB = 240
    def setup_late(q):
        a(f"v_lshrrev_b32 v7, 2, v{I16}")
        a(f"v_lshl_add_u32 v8, v{HF}, 3, v7")
        a(f"v_lshlrev_b32 v8, 7, v8")
        a(f"v_and_b32 v9, 1, v{G}")
        a(f"v_lshlrev_b32 v9, 2, v9")
        a(f"v_and_b32 v10, 3, v{I16}")
        a(f"v_add_u32 v9, v9, v10")
        a(f"v_lshl_add_u32 v8, v9, 3, v8")
        a("s_and_b32 s50, s37, 1")
        a("s_lshl_b32 s50, s50, 3")
        a(f"s_add_u32 s51, s50, {L_RING + 16384}")
        a(f"v_add_u32 v8, s51, v8")
        a(f"v_lshrrev_b32 v7, 1, v7")
        if q:
            a("s_and_b32 s51, s39, 1")
            a(f"v_xor_b32 v7, s51, v7")
            a(f"v_lshl_add_u32 v{TB}, v7, 6, v8")
            for st in range(1, 3): a(f"v_add_u32 v{TB+2*st}, {2*st*L_SLOT}, v{TB}")
            a(f"v_lshrrev_b32 v7, 2, v{I16}")
            a(f"v_lshl_add_u32 v7, v{HF}, 3, v7")
            a(f"v_lshlrev_b32 v7, 6, v7")
            a(f"v_lshl_add_u32 v7, v9, 3, v7")
            a(f"s_add_u32 s51, s50, {L_WQ}")
            a(f"v_add_u32 v246, s51, v7")
        else:
            a(f"v_lshl_add_u32 v{TB}, v7, 6, v8")
            a(f"v_xor_b32 v7, 1, v7")
            a(f"v_lshl_add_u32 v{TB+1}, v7, 6, v8")
            for st in range(1, 3):
                a(f"v_add_u32 v{TB+2*st}, {2*st*L_SLOT}, v{TB}")
                a(f"v_add_u32 v{TB+2*st+1}, {2*st*L_SLOT}, v{TB+1}")
        a("s_lshl_b32 s50, s39, 5")
        a(f"v_add_u32 v7, s50, v{M}")
        a(f"v_lshrrev_b32 v8, 1, v7")
        a(f"v_and_b32 v8, 7, v8")
        a(f"v_xor_b32 v8, v8, v{HF}")
        a(f"v_lshlrev_b32 v8, 4, v8")
        a(f"v_lshl_add_u32 v11, v7, 7, v8")
        for p in range(4):
            a(f"v_xor_b32 v7, {p*32}, v11")
            for st in range(3):
                a(f"v_add_u32 v{XV+4*st+p}, {L_RING + 2*st*L_SLOT}, v7")
        a(f"v_lshrrev_b32 v7, 2, v{I16}")
        a(f"v_lshl_add_u32 v7, v{HF}, 2, v7")
        a(f"v_mul_u32_u24 v7, 56, v7")
        a(f"v_lshl_add_u32 v12, v9, 3, v7")
        a("s_lshl_b32 s50, s39, 7")
        a(f"v_lshl_add_u32 v9, v{M}, 2, s50")
    LA = 2; NB = 3
    def pass1(q, vm, dma_ops, extra_ops):
        ns = 1 if q else 2
        WF = 46; SQ = 72
        a(f"v_mov_b32 v{SQ}, 0"); a(f"v_mov_b32 v{SQ+1}, 0")
        nr = 1 + 2 * ns
        def emit(op):
            for t_ in op[1]: a(t_)
            vm.issue(op[0])
        def xreg(kk): return 100 + 4 * kk if q else 34 + (kk % NB) * 4
        def reads(kk):
            c = kk // 4; slot = c % 5; p = kk % 4
            st = slot // 2; so = slot % 2
            xb = xreg(kk)
            a(f"ds_read_b128 v[{xb}:{xb+3}], v{XV+4*st+p} offset:{so*L_SLOT}")
            b = WF + (kk % NB) * ns * 4
            for i in range(ns):
                off = so * L_SLOT + p * 2048
                a(f"ds_read_b64_tr_b16 v[{b+4*i}:{b+4*i+1}], v{TB+2*st+i} offset:{off}")
                a(f"ds_read_b64_tr_b16 v[{b+4*i+2}:{b+4*i+3}], v{TB+2*st+i} offset:{off+512}")
        stamp(a, 2)
        vm.wait("c0")
        a("s_barrier")
        if q:
            a("s_cmp_lg_u32 s55, 0")
            a("s_cbranch_scc1 K1_Q3")
            a("s_lshl_b32 s50, s37, 2")
            a("s_add_u32 s50, s50, 64")
            a("v_mov_b32 v7, s50")
            a("s_mov_b64 exec, 1")
            a("buffer_store_dword v87, v7, s[28:31], 0 offen sc1")
            a("s_mov_b64 exec, -1")
            a("K1_Q3:")
        for c in range(2, 5):
            for op in dma_ops(c): emit(op)
        stamp(a, 3)
        queue = []
        for kk in range(LA): reads(kk)
        for kk in range(28):
            nk = kk + LA
            if nk < 28:
                if nk % 4 == 0:
                    c = nk // 4
                    while any(op[0] == f"c{c}" for op in queue): emit(queue.pop(0))
                    vm.wait(f"c{c}")
                    a("s_barrier")
                    if c in (2, 4): stamp(a, 3 + c // 2)
                    if c in (2, 3): queue += dma_ops(c + 3)
                    if c == 3: queue += extra_ops
                reads(nk)
            a(f"s_waitcnt lgkmcnt({min(28 - 1 - kk, LA) * nr})")
            b = WF + (kk % NB) * ns * 4
            xb = xreg(kk)
            c0 = "0" if kk == 0 else None
            if q:
                a(f"v_mfma_f32_32x32x16_bf16 v[212:227], v[{b}:{b+3}], v[80:83], " + (c0 or "v[212:227]"))
                for r in range(2):
                    a(f"v_lshlrev_b32 v10, 16, v{xb+r}")
                    a(f"v_and_b32 v11, s41, v{xb+r}")
                    a(f"v_fmac_f32 v{SQ}, v10, v10")
                    a(f"v_fmac_f32 v{SQ+1}, v11, v11")
            else:
                for r in range(4):
                    a(f"v_cndmask_b32 v{b+4+r}, v{b+4+r}, v92, s[52:53]")
                for i, AC in enumerate((100, 116)):
                    a(f"v_mfma_f32_32x32x16_bf16 v[{AC}:{AC+15}], v[{b+4*i}:{b+4*i+3}], v[{xb}:{xb+3}], " + (c0 or f"v[{AC}:{AC+15}]"))
                    a(f"v_lshlrev_b32 v10, 16, v{xb+2+i}")
                    a(f"v_and_b32 v11, s41, v{xb+2+i}")
                    a(f"v_fmac_f32 v{SQ}, v10, v10")
                    a(f"v_fmac_f32 v{SQ+1}, v11, v11")
            if queue: emit(queue.pop(0))
            if queue: emit(queue.pop(0))
        while queue: emit(queue.pop(0))
        stamp(a, 6)
        a(f"v_add_f32 v{SQ}, v{SQ}, v{SQ+1}")
        xhalf(a, "v_add_f32", SQ, SQ, 10, 11)
        a(f"ds_write_b32 v9, v{SQ} offset:{L_SQ + (512 if q else 0)}")
    def stats_reads(ST):
        a(f"ds_read_b32 v{ST}, v9 offset:{L_SM}")
        a(f"ds_read_b32 v{ST+1}, v9 offset:{L_SQ}")
        a(f"ds_read_b32 v{ST+2}, v9 offset:{L_SQ+512}")
    def wp_reads(WPF):
        for s_ in range(2):
            for e in range(2):
                a(f"ds_read_b64_tr_b16 v[{WPF+4*s_+2*e}:{WPF+4*s_+2*e+1}], v12 offset:{L_WP + (16*s_+8*e)*56}")
    def center_pack(ACC, CSV, NM, OUT):
        for i in range(8):
            a(f"v_fmac_f32 v{ACC+2*i}, v{CSV+2*i}, v{NM}")
            a(f"v_fmac_f32 v{ACC+2*i+1}, v{CSV+2*i+1}, v{NM}")
            a(f"v_cvt_pk_bf16_f32 v{OUT+i}, v{ACC+2*i}, v{ACC+2*i+1}")

    vmk = VM(a)
    a(f"v_lshrrev_b32 v7, 3, v{LANE}")
    a(f"v_and_b32 v8, 7, v{LANE}")
    a(f"v_lshrrev_b32 v9, 1, v7")
    a(f"v_and_b32 v9, 1, v9")
    a(f"v_lshlrev_b32 v9, 2, v9")
    a(f"v_xor_b32 v8, v8, v9")
    a(f"v_mul_u32_u24 v7, 2688, v7")
    a(f"v_lshrrev_b32 v9, 2, v8")
    a(f"v_mul_u32_u24 v9, 896, v9")
    a(f"v_and_b32 v8, 3, v8")
    a(f"v_lshlrev_b32 v8, 4, v8")
    a(f"v_add3_u32 v30, v7, v8, v9")
    a(f"v_add_u32 v30, 896, v30")
    a("s_lshl_b32 s49, s39, 11")
    srds()
    def dma_w(c):
        return [(f"c{c}", [f"s_add_u32 m0, s49, {L_RING + (c%5)*L_SLOT + 16384 + i*1024}",
                           f"s_add_u32 s50, s{72+c}, {i*8*2688}",
                           f"buffer_load_dwordx4 v30, s[20:23], s50 offen lds"]) for i in range(2)]
    for c in range(2):
        for op in dma_w(c):
            for t_ in op[1]: a(t_)
            vmk.issue(op[0])
    a("s_mul_i32 s50, s37, 1568")
    a("s_and_b32 s51, s39, 1")
    a("s_lshl_b32 s51, s51, 10")
    a("s_add_u32 s50, s50, s51")
    a(f"s_add_u32 m0, s51, {L_WP}")
    a(f"v_lshlrev_b32 v7, 4, v{LANE}")
    a("buffer_load_dwordx4 v7, s[24:27], s50 offen lds")
    vmk.issue("c1")
    setup_late(False)
    a(f"v_cmp_eq_u32 s[52:53], 28, v{M}")
    a("v_mov_b32 v92, s45")
    a("s_lshl_b32 s50, s39, 5")
    a(f"v_add_u32 v7, s50, v{M}")
    a(f"v_lshrrev_b32 v8, 1, v7")
    a(f"v_and_b32 v8, 7, v8")
    a(f"v_xor_b32 v8, v8, v{HF}")
    a(f"v_lshlrev_b32 v8, 3, v8")
    a(f"v_lshl_add_u32 v74, v7, 6, v8")
    a(f"v_lshrrev_b32 v8, 1, v7")
    a(f"v_and_b32 v8, 1, v8")
    a(f"v_lshlrev_b32 v8, 3, v8")
    a(f"v_and_b32 v10, 1, v7")
    a(f"v_or_b32 v8, v8, v10")
    a(f"v_lshrrev_b32 v10, 2, v7")
    a(f"v_and_b32 v10, 3, v10")
    a(f"v_lshl_or_b32 v8, v10, 1, v8")
    a(f"v_xor_b32 v8, v8, v{HF}")
    a(f"v_lshlrev_b32 v8, 3, v8")
    a(f"v_lshl_add_u32 v75, v7, 7, v8")
    a(f"v_lshrrev_b32 v7, 2, v{I16}")
    a(f"v_lshl_add_u32 v7, v{HF}, 3, v7")
    a(f"v_and_b32 v8, 1, v{G}")
    a(f"v_lshlrev_b32 v8, 2, v8")
    a(f"v_and_b32 v13, 3, v{I16}")
    a(f"v_add_u32 v8, v8, v13")
    for e in range(2):
        a(f"v_add_u32 v13, {4*e}, v7")
        a(f"v_lshrrev_b32 v10, 1, v13")
        a(f"v_xor_b32 v10, v10, v8")
        a(f"v_lshlrev_b32 v10, 3, v10")
        a(f"v_lshl_add_u32 v{76+e}, v13, 6, v10")
        a(f"v_lshrrev_b32 v10, 1, v13")
        a(f"v_and_b32 v10, 1, v10")
        a(f"v_lshlrev_b32 v10, 3, v10")
        a(f"v_and_b32 v11, 1, v13")
        a(f"v_or_b32 v10, v10, v11")
        a(f"v_lshrrev_b32 v11, 2, v13")
        a(f"v_lshl_or_b32 v10, v11, 1, v10")
        a(f"v_xor_b32 v10, v10, v8")
        a(f"s_lshl_b32 s50, s39, 3")
        a(f"v_xor_b32 v10, s50, v10")
        a(f"v_lshlrev_b32 v10, 3, v10")
        a(f"v_lshl_add_u32 v{78+e}, v13, 7, v10")
    a("s_lshl_b32 s50, s37, 13")
    a("s_lshl_b32 s51, s39, 7")
    a("s_add_u32 s50, s50, s51")
    a(f"v_lshlrev_b32 v80, 10, v{HF}")
    a(f"v_lshl_add_u32 v80, v{M}, 2, v80")
    a(f"v_add_u32 v80, s50, v80")
    a(f"v_add_u32 v81, 4096, v80")
    for r in range(4): a(f"v_mov_b32 v{82+r}, 0")
    a(f"ds_write_b128 v82, v[82:85] offset:{L_FL}")
    a(f"ds_write_b128 v82, v[82:85] offset:{L_FL+16}")
    a("s_lshl_b32 s50, s39, 2")
    a("v_mov_b32 v86, s50")
    a("v_mov_b32 v87, 1")
    a("s_waitcnt lgkmcnt(0)")
    AK, AV = 100, 116
    pass1(False, vmk, dma_w, [])
    a("s_mov_b64 exec, s[42:43]")
    a(f"ds_write_b32 v9, v{AV+12} offset:{L_SM}")
    a("s_mov_b64 exec, -1")
    a("s_waitcnt lgkmcnt(0)")
    a("s_barrier")
    stamp(a, 7)
    a("s_setprio 2")
    CK, CV = 34, 50
    a(f"v_lshlrev_b32 v8, 4, v{HF}")
    stats_reads(66)
    for sg, dst in ((1, CK), (2, CV)):
        for q_ in range(4):
            a(f"ds_read_b128 v[{dst+4*q_}:{dst+4*q_+3}], v8 offset:{L_CS + sg*128 + q_*32}")
    wp_reads(92)
    a("s_lshl_b32 s50, s2, 7")
    a(f"s_add_u32 s50, s50, {768*1024}")
    a("v_mov_b32 v13, 0")
    a(f"v_lshlrev_b32 v14, 2, v{LANE}")
    a("s_mov_b64 exec, 0xfff")
    a("buffer_store_dword v13, v14, s[32:35], s50 offen")
    a("s_mov_b64 exec, -1")
    a("s_lshl_b32 s50, s37, 2")
    a("s_add_u32 s50, s50, 64")
    a("v_mov_b32 v13, s50")
    a("buffer_load_dword v14, v13, s[28:31], 0 offen sc1")
    a("s_waitcnt lgkmcnt(12)")
    a("v_add_f32 v67, v67, v68")
    stats_finish(a, 66, 67, 68, 69, 70)
    a("s_waitcnt lgkmcnt(0)")
    KFR, VFR = 132, 140
    center_pack(AK, CK, 68, KFR)
    a(f"v_cndmask_b32 v{KFR+6}, v{KFR+6}, 0, s[42:43]")
    a(f"v_cndmask_b32 v{KFR+7}, v{KFR+7}, 0, s[42:43]")
    PK = 148
    a(f"v_mfma_f32_32x32x16_bf16 v[{PK}:{PK+15}], v[92:95], v[{KFR}:{KFR+3}], 0")
    a(f"v_mfma_f32_32x32x16_bf16 v[{PK}:{PK+15}], v[96:99], v[{KFR+4}:{KFR+7}], v[{PK}:{PK+15}]")
    center_pack(AV, CV, 68, VFR)
    a(f"v_lshrrev_b32 v9, 16, v70")
    a(f"v_mul_f32 v71, s44, v69")
    a(f"v_cndmask_b32 v{VFR+6}, v{VFR+6}, v9, s[42:43]")
    a(f"v_cndmask_b32 v{VFR+7}, v{VFR+7}, 0, s[42:43]")
    for q_ in range(4):
        a(f"v_xor_b32 v9, {q_*16}, v74")
        a(f"ds_write_b64 v9, v[{VFR+2*q_}:{VFR+2*q_+1}] offset:{L_V}")
    softmax_pm(a, PK, 164, 180, 34, 42, 50, 42, 71, 69)
    for t, src in ((0, 34), (1, 42)):
        for q_ in range(4):
            a(f"v_xor_b32 v9, {(8*t+2*q_)*8}, v75")
            a(f"ds_write_b64 v9, v[{src+2*q_}:{src+2*q_+1}] offset:{L_PHIK}")
    a("s_waitcnt lgkmcnt(0)")
    a(f"ds_write_b32 v86, v87 offset:{L_FL}")
    a("s_cmp_ge_u32 s39, 2")
    a("s_cbranch_scc1 K1_FIN")
    a("K1_LPOLL:")
    a(f"ds_read_b128 v[88:91], v82 offset:{L_FL}")
    a("s_waitcnt lgkmcnt(0)")
    a("v_and_b32 v88, v88, v89")
    a("v_and_b32 v90, v90, v91")
    a("v_and_b32 v88, v88, v90")
    a("v_readfirstlane_b32 s51, v88")
    a("s_cmp_eq_u32 s51, 0")
    a("s_cbranch_scc1 K1_LPOLL")
    stamp(a, 8)
    KV = 16
    for ks in range(8):
        b = 100 + ks * 8
        for e in range(2):
            a(f"ds_read_b64_tr_b16 v[{b+2*e}:{b+2*e+1}], v{76+e} offset:{L_V + ks*1024}")
        for e in range(2):
            a(f"ds_read_b64_tr_b16 v[{b+4+2*e}:{b+4+2*e+1}], v{78+e} offset:{L_PHIK + ks*2048}")
    for ks in range(8):
        b = 100 + ks * 8
        a(f"s_waitcnt lgkmcnt({min(15, (7-ks)*4)})")
        c = "0" if ks == 0 else f"v[{KV}:{KV+15}]"
        a(f"v_mfma_f32_32x32x16_bf16 v[{KV}:{KV+15}], v[{b}:{b+3}], v[{b+4}:{b+7}], {c}")
    a("s_waitcnt vmcnt(0)")
    a("v_readfirstlane_b32 s51, v14")
    a("s_cmp_lg_u32 s51, 0")
    a("s_cbranch_scc1 K1_GO")
    a("s_mov_b32 s50, 0")
    a("K1_POLL:")
    a("buffer_load_dword v14, v13, s[28:31], 0 offen sc1")
    a("s_add_u32 s50, s50, 1")
    a("s_waitcnt vmcnt(0)")
    a("v_readfirstlane_b32 s51, v14")
    a("s_cmp_gt_u32 s50, 0x400000")
    a("s_cbranch_scc1 K1_GO")
    a("s_cmp_eq_u32 s51, 0")
    a("s_cbranch_scc1 K1_POLL")
    a("K1_GO:")
    a("s_nop 7")
    for r in range(16):
        d = (r & 3) + 8 * (r >> 2); off = d * 256; base = 80
        if off >= 4096: off -= 4096; base = 81
        a(f"buffer_atomic_add_f32 v{KV+r}, v{base}, s[32:35], 0 offen offset:{WS_KV + off}")
    a("s_branch K1_FIN")

    a("K1_Q:")
    vmq = VM(a)
    a(f"v_lshrrev_b32 v7, 3, v{LANE}")
    a(f"v_and_b32 v8, 7, v{LANE}")
    a(f"v_lshrrev_b32 v9, 1, v7")
    a(f"v_xor_b32 v8, v8, v9")
    a(f"v_mul_u32_u24 v7, 896, v7")
    a(f"v_lshl_add_u32 v30, v8, 4, v7")
    a(f"v_xor_b32 v31, 64, v30")
    a(f"v_lshrrev_b32 v7, 2, v{LANE}")
    a(f"v_mul_u32_u24 v7, 2688, v7")
    a(f"v_and_b32 v8, 3, v{LANE}")
    a(f"v_lshl_add_u32 v32, v8, 4, v7")
    a("s_lshl_b32 s49, s39, 12")
    a("s_lshl_b32 s54, s39, 10")
    srds()
    a("s_or_b32 s55, s36, s39")
    a("s_cmp_lg_u32 s55, 0")
    a("s_cbranch_scc1 K1_Q2")
    a("s_lshl_b32 s50, s37, 13")
    a(f"v_lshl_add_u32 v7, v{LANE}, 4, s50")
    for r in range(4): a(f"v_mov_b32 v{34+r}, 0")
    a("v_add_u32 v8, 4096, v7")
    for i in range(4):
        a(f"buffer_store_dwordx4 v[34:37], v7, s[32:35], 0 offen offset:{WS_KV + i*1024} sc1")
        a(f"buffer_store_dwordx4 v[34:37], v8, s[32:35], 0 offen offset:{WS_KV + i*1024} sc1")
    a("K1_Q2:")
    def dma_x(c):
        return [(f"c{c}", [f"s_add_u32 m0, s49, {L_RING + (c%5)*L_SLOT + i*1024}",
                           f"s_add_u32 s50, s{60+c}, {i*8*896}",
                           f"buffer_load_dwordx4 v{30+(i&1)}, s[16:19], s50 offen lds"]) for i in range(4)]
    wq_ops = [("wq", [f"s_add_u32 m0, s54, {L_WQ + c*4096}", f"buffer_load_dwordx4 v32, s[20:23], s{72+c} offen lds"]) for c in range(7)]
    for c in range(2):
        for op in dma_x(c):
            for t_ in op[1]: a(t_)
            vmq.issue(op[0])
    setup_late(True)
    for r in range(4): a(f"v_mov_b32 v{80+r}, s45")
    a("s_lshl_b32 s50, s39, 2")
    a("v_mov_b32 v86, s50")
    a("v_mov_b32 v87, 1")
    a("v_mov_b32 v85, 0")
    pass1(True, vmq, dma_x, wq_ops)
    a("s_mov_b32 s54, 1")
    a("s_mov_b32 s55, 1")
    a("s_mov_b64 exec, s[54:55]")
    a("s_and_b32 s50, s39, 1")
    a("s_lshl_b32 s50, s50, 7")
    a(f"v_lshl_add_u32 v8, v{HF}, 4, s50")
    for q_ in range(4):
        a(f"ds_write_b128 v8, v[{212+4*q_}:{212+4*q_+3}] offset:{L_CS + 128 + q_*32}")
    a("s_mov_b64 exec, -1")
    a("s_waitcnt lgkmcnt(0)")
    a("s_barrier")
    stamp(a, 7)
    a("s_waitcnt vmcnt(0)")
    a(f"ds_write_b32 v86, v87 offset:{L_FL+16}")
    srd(a, 64, 10, 401408)
    a("s_lshr_b32 s60, s2, 3")
    a("s_lshl_b32 s60, s60, 2")
    a("s_add_u32 s60, s60, s39")
    a(f"v_lshlrev_b32 v247, 7, v{LANE}")
    a(f"v_mov_b32 v248, 0x7fff0000")
    a(f"v_cmp_gt_u32 vcc, 25, v{LANE}")
    a(f"v_cndmask_b32 v249, v248, v247, vcc")
    a("s_mul_i32 s61, s60, 3200")
    a("buffer_load_dword v250, v249, s[64:67], s61 offen")
    a(f"v_cmp_gt_u32 vcc, 32, v{LANE}")
    a(f"v_cndmask_b32 v249, v248, v247, vcc")
    a("s_lshl_b32 s61, s60, 12")
    srd(a, 64, 56, 1605632)
    a("buffer_load_dword v251, v249, s[64:67], s61 offen")
    srd(a, 64, 58, 1605632)
    a("buffer_load_dword v252, v249, s[64:67], s61 offen")
    a(f"v_cmp_gt_u32 vcc, 13, v{LANE}")
    a(f"v_cndmask_b32 v249, v248, v247, vcc")
    a("s_lshl_b32 s61, s2, 2")
    a("s_add_u32 s61, s61, s39")
    a("s_mul_i32 s61, s61, 1664")
    srd(a, 64, 68, 1605632)
    a("buffer_load_dword v253, v249, s[64:67], s61 offen")
    a("K1_QPOLL:")
    a(f"ds_read_b128 v[88:91], v85 offset:{L_FL+16}")
    a("s_waitcnt lgkmcnt(0)")
    a("v_and_b32 v88, v88, v89")
    a("v_and_b32 v90, v90, v91")
    a("v_and_b32 v88, v88, v90")
    a("v_readfirstlane_b32 s51, v88")
    a("s_cmp_eq_u32 s51, 0")
    a("s_cbranch_scc1 K1_QPOLL")
    AQ, ACS = 14, 212
    stats_reads(66)
    wp_reads(92)
    LQ = 4
    def qrd(kk):
        b = 34 + (kk % 6) * 4
        for e in range(2):
            a(f"ds_read_b64_tr_b16 v[{b+2*e}:{b+2*e+1}], v246 offset:{kk*1024 + e*256}")
    for kk in range(LQ): qrd(kk)
    fin = Asm()
    fin("v_add_f32 v67, v67, v68")
    stats_finish(fin, 66, 67, 68, 69, 70)
    fin(f"v_mul_f32 v71, s44, v69")
    fo = [i.text for i in fin.ins]
    for kk in range(28):
        if kk + LQ < 28: qrd(kk + LQ)
        a(f"s_waitcnt lgkmcnt({2*min(LQ, 27-kk)})")
        b = 34 + (kk % 6) * 4
        c0 = "0" if kk == 0 else None
        a(f"v_mfma_f32_32x32x16_bf16 v[{AQ}:{AQ+15}], v[{b}:{b+3}], v[{100+4*kk}:{100+4*kk+3}], " + (c0 or f"v[{AQ}:{AQ+15}]"))
        a(f"v_mfma_f32_32x32x16_bf16 v[{ACS}:{ACS+15}], v[{b}:{b+3}], v[80:83], " + (c0 or f"v[{ACS}:{ACS+15}]"))
        if fo: a(fo.pop(0))
    QFR = 132
    a("s_lshl_b32 s50, s36, 2")
    a("s_add_u32 s50, s50, s39")
    a("s_lshl_b32 s50, s50, 4")
    a("s_add_u32 s50, s50, s37")
    a("s_lshl_b32 s50, s50, 12")
    a(f"s_add_u32 s50, s50, {WS_PHIQ}")
    a(f"v_lshlrev_b32 v7, 4, v{LANE}")
    center_pack(AQ, ACS, 68, QFR)
    a(f"v_cndmask_b32 v{QFR+6}, v{QFR+6}, 0, s[42:43]")
    a(f"v_cndmask_b32 v{QFR+7}, v{QFR+7}, 0, s[42:43]")
    PQ = 148
    a(f"v_mfma_f32_32x32x16_bf16 v[{PQ}:{PQ+15}], v[92:95], v[{QFR}:{QFR+3}], 0")
    a(f"v_mfma_f32_32x32x16_bf16 v[{PQ}:{PQ+15}], v[96:99], v[{QFR+4}:{QFR+7}], v[{PQ}:{PQ+15}]")
    softmax_pm(a, PQ, 164, 180, 36, 44, 52, 42, 71)
    for s_ in range(4):
        a(f"buffer_store_dwordx4 v[{36+4*s_}:{36+4*s_+3}], v7, s[32:35], s50 offen offset:{s_*1024}")
    stamp(a, 8)
    a("K1_FIN:")
    if STAMPS: a("s_waitcnt vmcnt(0)")
    stamp(a, 9)
    stamp_flush(a, 38, 32)
    a("K1_END:")
    a("s_endpgm")
    a.fix_hazards()
    return a.text(), kd("k1_kernel", 256)
```

```python
from asmfw import Asm
import os
import gen
from gen import *

L_CS = 0; L_FL = 448; L_SQ = 512; L_SM = 1536; L_WP = 2048
L_WQ = 4096
L_RING = 32768; L_SLOT = 24576
K1B_LDS = L_RING + 5 * L_SLOT + 256
L_PHIK = L_RING; L_V = L_PHIK + 16384

def gen_k1b():
    a = Asm()
    head(a, "k1_kernel")
    a("s_cmp_ge_u32 s2, 256")
    a("s_cbranch_scc1 K1_END")
    stamp_init(a); stamp(a, 0, real=True); stamp(a, 1)
    a("s_getpc_b64 s[52:53]")
    a("K1_PC:")
    a("s_sub_u32 s52, s52, K1_PC-k1_kernel")
    a("s_subb_u32 s53, s53, 0")
    a("s_mov_b32 s54, K3_END-k1_kernel")
    a("s_mov_b32 s55, 0x00020000")
    a("s_lshr_b32 s50, s2, 3")
    a("s_lshl_b32 s50, s50, 11")
    a("v_lshrrev_b32 v254, 6, v0")
    a("v_and_b32 v255, 1, v0")
    a("v_lshl_add_u32 v254, v254, 1, v255")
    a("v_lshlrev_b32 v254, 7, v254")
    a("s_mov_b64 exec, 3")
    a("buffer_load_dword v255, v254, s[52:55], s50 offen")
    a("s_mov_b64 exec, -1")
    a("s_load_dwordx4 s[4:7], s[0:1], 0")
    a("s_load_dwordx4 s[8:11], s[0:1], 16")
    a("s_load_dwordx4 s[12:15], s[0:1], 72")
    a("s_load_dwordx4 s[56:59], s[0:1], 40")
    a("s_load_dwordx2 s[68:69], s[0:1], 56")
    LANE, M, HF, I16, G = 1, 2, 3, 4, 5
    a(f"v_and_b32 v{LANE}, 63, v0")
    a(f"v_lshrrev_b32 v6, 6, v0")
    a(f"v_readfirstlane_b32 s38, v6")
    a(f"v_and_b32 v{M}, 31, v{LANE}")
    a(f"v_lshrrev_b32 v{HF}, 5, v{LANE}")
    a(f"v_and_b32 v{I16}, 15, v{LANE}")
    a(f"v_lshrrev_b32 v{G}, 4, v{LANE}")
    a("s_and_b32 s36, s2, 7")
    a("s_lshl_b32 s36, s36, 1")
    a("s_bfe_u32 s37, s2, 0x10003")
    a("s_add_u32 s36, s36, s37")
    a("s_lshr_b32 s37, s2, 4")
    a("s_and_b32 s39, s38, 3")
    a("s_lshr_b32 s40, s38, 2")
    a("s_mov_b32 s42, 0")
    a("s_mov_b32 s43, -1")
    a(f"s_mov_b32 s44, {LOG2E}")
    a("s_mov_b32 s45, 0x3f803f80")
    a("s_mov_b32 s41, 0xffff0000")
    a("s_and_b32 s67, s36, 1")
    a("s_mul_i32 s67, s67, 3")
    a("s_add_u32 s67, s67, s37")
    for _ in range(2):
        a("s_cmp_ge_u32 s67, 7")
        a("s_cselect_b32 s61, 7, 0")
        a("s_sub_u32 s67, s67, s61")
    a("s_lshl_b32 s46, s36, 7")
    a("s_lshl_b32 s47, s39, 5")
    a("s_add_u32 s46, s46, s47")
    a("s_mul_i32 s47, s46, 896")
    a("s_mul_i32 s48, s37, 56")
    a("s_and_b32 s48, s48, 0xfffffff0")
    a("s_mul_i32 s49, s39, 43008")
    a("s_add_u32 s48, s48, s49")
    for c in range(7):
        a(f"s_lshl_b32 s{60+c}, s67, 7")
        a(f"s_add_u32 s{60+c}, s{60+c}, s47")
        a(f"s_mul_i32 s{72+c}, s67, {64*2688}")
        a(f"s_add_u32 s{72+c}, s{72+c}, s48")
        if c < 6:
            a("s_add_u32 s67, s67, 1")
            a("s_cmp_ge_u32 s67, 7")
            a("s_cselect_b32 s67, 0, s67")
    a("s_cmp_eq_u32 s40, 1")
    a("s_cbranch_scc1 K1_Q")
    def srds():
        a("s_waitcnt lgkmcnt(0)")
        srd(a, 16, 4, 1835008); srd(a, 20, 6, 1204224); srd(a, 24, 8, 25088); srd(a, 28, 12, 256); srd(a, 32, 14, WS_SIZE)
    XV = 228; TB = 240
    def setup_late(q):
        a(f"v_lshrrev_b32 v7, 2, v{I16}")
        a(f"v_lshl_add_u32 v8, v{HF}, 3, v7")
        a(f"v_lshlrev_b32 v8, 7, v8")
        a(f"v_and_b32 v9, 1, v{G}")
        a(f"v_lshlrev_b32 v9, 2, v9")
        a(f"v_and_b32 v10, 3, v{I16}")
        a(f"v_add_u32 v9, v9, v10")
        a(f"v_lshl_add_u32 v8, v9, 3, v8")
        a("s_and_b32 s50, s37, 1")
        a("s_lshl_b32 s50, s50, 3")
        a(f"s_add_u32 s51, s50, {L_RING + 16384}")
        a(f"v_add_u32 v8, s51, v8")
        a(f"v_lshrrev_b32 v7, 1, v7")
        if q:
            a("s_and_b32 s51, s39, 1")
            a(f"v_xor_b32 v7, s51, v7")
            a(f"v_lshl_add_u32 v{TB}, v7, 6, v8")
            for st in range(1, 3): a(f"v_add_u32 v{TB+2*st}, {2*st*L_SLOT}, v{TB}")
            a(f"v_lshrrev_b32 v7, 2, v{I16}")
            a(f"v_lshl_add_u32 v7, v{HF}, 3, v7")
            a(f"v_lshlrev_b32 v7, 6, v7")
            a(f"v_lshl_add_u32 v7, v9, 3, v7")
            a(f"s_add_u32 s51, s50, {L_WQ}")
            a(f"v_add_u32 v246, s51, v7")
        else:
            a(f"v_lshl_add_u32 v{TB}, v7, 6, v8")
            a(f"v_xor_b32 v7, 1, v7")
            a(f"v_lshl_add_u32 v{TB+1}, v7, 6, v8")
            for st in range(1, 3):
                a(f"v_add_u32 v{TB+2*st}, {2*st*L_SLOT}, v{TB}")
                a(f"v_add_u32 v{TB+2*st+1}, {2*st*L_SLOT}, v{TB+1}")
        a("s_lshl_b32 s50, s39, 5")
        a(f"v_add_u32 v7, s50, v{M}")
        a(f"v_lshrrev_b32 v8, 1, v7")
        a(f"v_and_b32 v8, 7, v8")
        a(f"v_xor_b32 v8, v8, v{HF}")
        a(f"v_lshlrev_b32 v8, 4, v8")
        a(f"v_lshl_add_u32 v11, v7, 7, v8")
        for p in range(4):
            a(f"v_xor_b32 v7, {p*32}, v11")
            for st in range(3):
                a(f"v_add_u32 v{XV+4*st+p}, {L_RING + 2*st*L_SLOT}, v7")
        a(f"v_lshrrev_b32 v7, 2, v{I16}")
        a(f"v_lshl_add_u32 v7, v{HF}, 2, v7")
        a(f"v_mul_u32_u24 v7, 56, v7")
        a(f"v_lshl_add_u32 v12, v9, 3, v7")
        a("s_lshl_b32 s50, s39, 7")
        a(f"v_lshl_add_u32 v9, v{M}, 2, s50")
    LA = 2; NB = 3
    def pass1(q, vm, dma_ops, extra_ops):
        ns = 1 if q else 2
        WF = 46; SQ = 72
        a(f"v_mov_b32 v{SQ}, 0"); a(f"v_mov_b32 v{SQ+1}, 0")
        nr = 1 + 2 * ns
        def emit(op):
            for t_ in op[1]: a(t_)
            vm.issue(op[0])
        def xreg(kk): return 100 + 4 * kk if q else 34 + (kk % NB) * 4
        def reads(kk):
            c = kk // 4; slot = c % 5; p = kk % 4
            st = slot // 2; so = slot % 2
            xb = xreg(kk)
            a(f"ds_read_b128 v[{xb}:{xb+3}], v{XV+4*st+p} offset:{so*L_SLOT}")
            b = WF + (kk % NB) * ns * 4
            for i in range(ns):
                off = so * L_SLOT + p * 2048
                a(f"ds_read_b64_tr_b16 v[{b+4*i}:{b+4*i+1}], v{TB+2*st+i} offset:{off}")
                a(f"ds_read_b64_tr_b16 v[{b+4*i+2}:{b+4*i+3}], v{TB+2*st+i} offset:{off+512}")
        stamp(a, 2)
        vm.wait("c0")
        a("s_barrier")
        if q:
            a("s_cmp_lg_u32 s55, 0")
            a("s_cbranch_scc1 K1_Q3")
            a("s_lshl_b32 s50, s37, 2")
            a("s_add_u32 s50, s50, 64")
            a("v_mov_b32 v7, s50")
            a("s_mov_b64 exec, 1")
            a("buffer_store_dword v87, v7, s[28:31], 0 offen sc1")
            a("s_mov_b64 exec, -1")
            a("K1_Q3:")
        for c in range(2, 5):
            for op in dma_ops(c): emit(op)
        stamp(a, 3)
        queue = []
        for kk in range(LA): reads(kk)
        for kk in range(28):
            nk = kk + LA
            if nk < 28:
                if nk % 4 == 0:
                    c = nk // 4
                    while any(op[0] == f"c{c}" for op in queue): emit(queue.pop(0))
                    vm.wait(f"c{c}")
                    a("s_barrier")
                    if c in (2, 4): stamp(a, 3 + c // 2)
                    if c in (2, 3): queue += dma_ops(c + 3)
                    if c == 3: queue += extra_ops
                reads(nk)
            a(f"s_waitcnt lgkmcnt({min(28 - 1 - kk, LA) * nr})")
            b = WF + (kk % NB) * ns * 4
            xb = xreg(kk)
            c0 = "0" if kk == 0 else None
            if q:
                a(f"v_mfma_f32_32x32x16_bf16 v[212:227], v[{b}:{b+3}], v[80:83], " + (c0 or "v[212:227]"))
                for r in range(2):
                    a(f"v_lshlrev_b32 v10, 16, v{xb+r}")
                    a(f"v_and_b32 v11, s41, v{xb+r}")
                    a(f"v_fmac_f32 v{SQ}, v10, v10")
                    a(f"v_fmac_f32 v{SQ+1}, v11, v11")
            else:
                for r in range(4):
                    a(f"v_cndmask_b32 v{b+4+r}, v{b+4+r}, v92, s[52:53]")
                for i, AC in enumerate((100, 116)):
                    a(f"v_mfma_f32_32x32x16_bf16 v[{AC}:{AC+15}], v[{b+4*i}:{b+4*i+3}], v[{xb}:{xb+3}], " + (c0 or f"v[{AC}:{AC+15}]"))
                    a(f"v_lshlrev_b32 v10, 16, v{xb+2+i}")
                    a(f"v_and_b32 v11, s41, v{xb+2+i}")
                    a(f"v_fmac_f32 v{SQ}, v10, v10")
                    a(f"v_fmac_f32 v{SQ+1}, v11, v11")
            if queue: emit(queue.pop(0))
            if queue: emit(queue.pop(0))
        while queue: emit(queue.pop(0))
        stamp(a, 6)
        a(f"v_add_f32 v{SQ}, v{SQ}, v{SQ+1}")
        xhalf(a, "v_add_f32", SQ, SQ, 10, 11)
        a(f"ds_write_b32 v9, v{SQ} offset:{L_SQ + (512 if q else 0)}")
    def stats_reads(ST):
        a(f"ds_read_b32 v{ST}, v9 offset:{L_SM}")
        a(f"ds_read_b32 v{ST+1}, v9 offset:{L_SQ}")
        a(f"ds_read_b32 v{ST+2}, v9 offset:{L_SQ+512}")
    def wp_reads(WPF):
        for s_ in range(2):
            for e in range(2):
                a(f"ds_read_b64_tr_b16 v[{WPF+4*s_+2*e}:{WPF+4*s_+2*e+1}], v12 offset:{L_WP + (16*s_+8*e)*56}")
    def center_pack(ACC, CSV, NM, OUT):
        for i in range(8):
            a(f"v_fmac_f32 v{ACC+2*i}, v{CSV+2*i}, v{NM}")
            a(f"v_fmac_f32 v{ACC+2*i+1}, v{CSV+2*i+1}, v{NM}")
            a(f"v_cvt_pk_bf16_f32 v{OUT+i}, v{ACC+2*i}, v{ACC+2*i+1}")

    vmk = VM(a)
    a(f"v_lshrrev_b32 v7, 3, v{LANE}")
    a(f"v_and_b32 v8, 7, v{LANE}")
    a(f"v_lshrrev_b32 v9, 1, v7")
    a(f"v_and_b32 v9, 1, v9")
    a(f"v_lshlrev_b32 v9, 2, v9")
    a(f"v_xor_b32 v8, v8, v9")
    a(f"v_mul_u32_u24 v7, 2688, v7")
    a(f"v_lshrrev_b32 v9, 2, v8")
    a(f"v_mul_u32_u24 v9, 896, v9")
    a(f"v_and_b32 v8, 3, v8")
    a(f"v_lshlrev_b32 v8, 4, v8")
    a(f"v_add3_u32 v30, v7, v8, v9")
    a(f"v_add_u32 v30, 896, v30")
    a("s_lshl_b32 s49, s39, 11")
    vmk.issue("cpf")
    srds()
    def dma_w(c):
        return [(f"c{c}", [f"s_add_u32 m0, s49, {L_RING + (c%5)*L_SLOT + 16384 + i*1024}",
                           f"s_add_u32 s50, s{72+c}, {i*8*2688}",
                           f"buffer_load_dwordx4 v30, s[20:23], s50 offen lds"]) for i in range(2)]
    for c in range(2):
        for op in dma_w(c):
            for t_ in op[1]: a(t_)
            vmk.issue(op[0])
    a("s_mul_i32 s50, s37, 1568")
    a("s_and_b32 s51, s39, 1")
    a("s_lshl_b32 s51, s51, 10")
    a("s_add_u32 s50, s50, s51")
    a(f"s_add_u32 m0, s51, {L_WP}")
    a(f"v_lshlrev_b32 v7, 4, v{LANE}")
    a("buffer_load_dwordx4 v7, s[24:27], s50 offen lds")
    vmk.issue("c1")
    setup_late(False)
    a(f"v_cmp_eq_u32 s[52:53], 28, v{M}")
    a("v_mov_b32 v92, s45")
    a("s_lshl_b32 s50, s39, 5")
    a(f"v_add_u32 v7, s50, v{M}")
    a(f"v_lshrrev_b32 v8, 1, v7")
    a(f"v_and_b32 v8, 7, v8")
    a(f"v_xor_b32 v8, v8, v{HF}")
    a(f"v_lshlrev_b32 v8, 3, v8")
    a(f"v_lshl_add_u32 v74, v7, 6, v8")
    a(f"v_lshrrev_b32 v8, 1, v7")
    a(f"v_and_b32 v8, 1, v8")
    a(f"v_lshlrev_b32 v8, 3, v8")
    a(f"v_and_b32 v10, 1, v7")
    a(f"v_or_b32 v8, v8, v10")
    a(f"v_lshrrev_b32 v10, 2, v7")
    a(f"v_and_b32 v10, 3, v10")
    a(f"v_lshl_or_b32 v8, v10, 1, v8")
    a(f"v_xor_b32 v8, v8, v{HF}")
    a(f"v_lshlrev_b32 v8, 3, v8")
    a(f"v_lshl_add_u32 v75, v7, 7, v8")
    a(f"v_lshrrev_b32 v7, 2, v{I16}")
    a(f"v_lshl_add_u32 v7, v{HF}, 3, v7")
    a(f"v_and_b32 v8, 1, v{G}")
    a(f"v_lshlrev_b32 v8, 2, v8")
    a(f"v_and_b32 v13, 3, v{I16}")
    a(f"v_add_u32 v8, v8, v13")
    for e in range(2):
        a(f"v_add_u32 v13, {4*e}, v7")
        a(f"v_lshrrev_b32 v10, 1, v13")
        a(f"v_xor_b32 v10, v10, v8")
        a(f"v_lshlrev_b32 v10, 3, v10")
        a(f"v_lshl_add_u32 v{76+e}, v13, 6, v10")
        a(f"v_lshrrev_b32 v10, 1, v13")
        a(f"v_and_b32 v10, 1, v10")
        a(f"v_lshlrev_b32 v10, 3, v10")
        a(f"v_and_b32 v11, 1, v13")
        a(f"v_or_b32 v10, v10, v11")
        a(f"v_lshrrev_b32 v11, 2, v13")
        a(f"v_lshl_or_b32 v10, v11, 1, v10")
        a(f"v_xor_b32 v10, v10, v8")
        a(f"s_lshl_b32 s50, s39, 3")
        a(f"v_xor_b32 v10, s50, v10")
        a(f"v_lshlrev_b32 v10, 3, v10")
        a(f"v_lshl_add_u32 v{78+e}, v13, 7, v10")
    a("s_lshl_b32 s50, s37, 13")
    a("s_lshl_b32 s51, s39, 7")
    a("s_add_u32 s50, s50, s51")
    a(f"v_lshlrev_b32 v80, 10, v{HF}")
    a(f"v_lshl_add_u32 v80, v{M}, 2, v80")
    a(f"v_add_u32 v80, s50, v80")
    a(f"v_add_u32 v81, 4096, v80")
    for r in range(4): a(f"v_mov_b32 v{82+r}, 0")
    a(f"ds_write_b128 v82, v[82:85] offset:{L_FL}")
    a(f"ds_write_b128 v82, v[82:85] offset:{L_FL+16}")
    a("s_lshl_b32 s50, s39, 2")
    a("v_mov_b32 v86, s50")
    a("v_mov_b32 v87, 1")
    a("s_waitcnt lgkmcnt(0)")
    AK, AV = 100, 116
    pass1(False, vmk, dma_w, [])
    a("s_mov_b64 exec, s[42:43]")
    a(f"ds_write_b32 v9, v{AV+12} offset:{L_SM}")
    a("s_mov_b64 exec, -1")
    a("s_waitcnt lgkmcnt(0)")
    a("s_barrier")
    stamp(a, 7)
    a("s_setprio 2")
    CK, CV = 34, 50
    a(f"v_lshlrev_b32 v8, 4, v{HF}")
    stats_reads(66)
    for sg, dst in ((1, CK), (2, CV)):
        for q_ in range(4):
            a(f"ds_read_b128 v[{dst+4*q_}:{dst+4*q_+3}], v8 offset:{L_CS + sg*128 + q_*32}")
    wp_reads(92)
    a("s_lshl_b32 s50, s2, 7")
    a(f"s_add_u32 s50, s50, {768*1024}")
    a("v_mov_b32 v13, 0")
    a(f"v_lshlrev_b32 v14, 2, v{LANE}")
    a("s_mov_b64 exec, 0xfff")
    a("buffer_store_dword v13, v14, s[32:35], s50 offen")
    a("s_mov_b64 exec, -1")
    a("s_lshl_b32 s50, s37, 2")
    a("s_add_u32 s50, s50, 64")
    a("v_mov_b32 v13, s50")
    a("buffer_load_dword v14, v13, s[28:31], 0 offen sc1")
    a("s_waitcnt lgkmcnt(12)")
    a("v_add_f32 v67, v67, v68")
    stats_finish(a, 66, 67, 68, 69, 70)
    a("s_waitcnt lgkmcnt(0)")
    KFR, VFR = 132, 140
    center_pack(AK, CK, 68, KFR)
    a(f"v_cndmask_b32 v{KFR+6}, v{KFR+6}, 0, s[42:43]")
    a(f"v_cndmask_b32 v{KFR+7}, v{KFR+7}, 0, s[42:43]")
    PK = 148
    a(f"v_mfma_f32_32x32x16_bf16 v[{PK}:{PK+15}], v[92:95], v[{KFR}:{KFR+3}], 0")
    a(f"v_mfma_f32_32x32x16_bf16 v[{PK}:{PK+15}], v[96:99], v[{KFR+4}:{KFR+7}], v[{PK}:{PK+15}]")
    center_pack(AV, CV, 68, VFR)
    a(f"v_lshrrev_b32 v9, 16, v70")
    a(f"v_mul_f32 v71, s44, v69")
    a(f"v_cndmask_b32 v{VFR+6}, v{VFR+6}, v9, s[42:43]")
    a(f"v_cndmask_b32 v{VFR+7}, v{VFR+7}, 0, s[42:43]")
    for q_ in range(4):
        a(f"v_xor_b32 v9, {q_*16}, v74")
        a(f"ds_write_b64 v9, v[{VFR+2*q_}:{VFR+2*q_+1}] offset:{L_V}")
    softmax_pm(a, PK, 164, 180, 34, 42, 50, 42, 71, 69)
    for t, src in ((0, 34), (1, 42)):
        for q_ in range(4):
            a(f"v_xor_b32 v9, {(8*t+2*q_)*8}, v75")
            a(f"ds_write_b64 v9, v[{src+2*q_}:{src+2*q_+1}] offset:{L_PHIK}")
    a("s_waitcnt lgkmcnt(0)")
    a(f"ds_write_b32 v86, v87 offset:{L_FL}")
    a("s_cmp_ge_u32 s39, 2")
    a("s_cbranch_scc1 K1_FIN")
    a("K1_LPOLL:")
    a(f"ds_read_b128 v[88:91], v82 offset:{L_FL}")
    a("s_waitcnt lgkmcnt(0)")
    a("v_and_b32 v88, v88, v89")
    a("v_and_b32 v90, v90, v91")
    a("v_and_b32 v88, v88, v90")
    a("v_readfirstlane_b32 s51, v88")
    a("s_cmp_eq_u32 s51, 0")
    a("s_cbranch_scc1 K1_LPOLL")
    stamp(a, 8)
    KV = 16
    for ks in range(8):
        b = 100 + ks * 8
        for e in range(2):
            a(f"ds_read_b64_tr_b16 v[{b+2*e}:{b+2*e+1}], v{76+e} offset:{L_V + ks*1024}")
        for e in range(2):
            a(f"ds_read_b64_tr_b16 v[{b+4+2*e}:{b+4+2*e+1}], v{78+e} offset:{L_PHIK + ks*2048}")
    for ks in range(8):
        b = 100 + ks * 8
        a(f"s_waitcnt lgkmcnt({min(15, (7-ks)*4)})")
        c = "0" if ks == 0 else f"v[{KV}:{KV+15}]"
        a(f"v_mfma_f32_32x32x16_bf16 v[{KV}:{KV+15}], v[{b}:{b+3}], v[{b+4}:{b+7}], {c}")
    a("s_waitcnt vmcnt(0)")
    a("v_readfirstlane_b32 s51, v14")
    a("s_cmp_lg_u32 s51, 0")
    a("s_cbranch_scc1 K1_GO")
    a("s_mov_b32 s50, 0")
    a("K1_POLL:")
    a("buffer_load_dword v14, v13, s[28:31], 0 offen sc1")
    a("s_add_u32 s50, s50, 1")
    a("s_waitcnt vmcnt(0)")
    a("v_readfirstlane_b32 s51, v14")
    a("s_cmp_gt_u32 s50, 0x400000")
    a("s_cbranch_scc1 K1_GO")
    a("s_cmp_eq_u32 s51, 0")
    a("s_cbranch_scc1 K1_POLL")
    a("K1_GO:")
    a("s_nop 7")
    for r in range(16):
        d = (r & 3) + 8 * (r >> 2); off = d * 256; base = 80
        if off >= 4096: off -= 4096; base = 81
        a(f"buffer_atomic_add_f32 v{KV+r}, v{base}, s[32:35], 0 offen offset:{WS_KV + off}")
    a("s_branch K1_FIN")

    a("K1_Q:")
    vmq = VM(a)
    vmq.issue("cpf")
    a(f"v_lshrrev_b32 v7, 3, v{LANE}")
    a(f"v_and_b32 v8, 7, v{LANE}")
    a(f"v_lshrrev_b32 v9, 1, v7")
    a(f"v_xor_b32 v8, v8, v9")
    a(f"v_mul_u32_u24 v7, 896, v7")
    a(f"v_lshl_add_u32 v30, v8, 4, v7")
    a(f"v_xor_b32 v31, 64, v30")
    a(f"v_lshrrev_b32 v7, 2, v{LANE}")
    a(f"v_mul_u32_u24 v7, 2688, v7")
    a(f"v_and_b32 v8, 3, v{LANE}")
    a(f"v_lshl_add_u32 v32, v8, 4, v7")
    a("s_lshl_b32 s49, s39, 12")
    a("s_lshl_b32 s54, s39, 10")
    srds()
    a("s_or_b32 s55, s36, s39")
    a("s_cmp_lg_u32 s55, 0")
    a("s_cbranch_scc1 K1_Q2")
    a("s_lshl_b32 s50, s37, 13")
    a(f"v_lshl_add_u32 v7, v{LANE}, 4, s50")
    for r in range(4): a(f"v_mov_b32 v{34+r}, 0")
    a("v_add_u32 v8, 4096, v7")
    for i in range(4):
        a(f"buffer_store_dwordx4 v[34:37], v7, s[32:35], 0 offen offset:{WS_KV + i*1024} sc1")
        a(f"buffer_store_dwordx4 v[34:37], v8, s[32:35], 0 offen offset:{WS_KV + i*1024} sc1")
    a("K1_Q2:")
    def dma_x(c):
        return [(f"c{c}", [f"s_add_u32 m0, s49, {L_RING + (c%5)*L_SLOT + i*1024}",
                           f"s_add_u32 s50, s{60+c}, {i*8*896}",
                           f"buffer_load_dwordx4 v{30+(i&1)}, s[16:19], s50 offen lds"]) for i in range(4)]
    wq_ops = [("wq", [f"s_add_u32 m0, s54, {L_WQ + c*4096}", f"buffer_load_dwordx4 v32, s[20:23], s{72+c} offen lds"]) for c in range(7)]
    for c in range(2):
        for op in dma_x(c):
            for t_ in op[1]: a(t_)
            vmq.issue(op[0])
    setup_late(True)
    for r in range(4): a(f"v_mov_b32 v{80+r}, s45")
    a("s_lshl_b32 s50, s39, 2")
    a("v_mov_b32 v86, s50")
    a("v_mov_b32 v87, 1")
    a("v_mov_b32 v85, 0")
    pass1(True, vmq, dma_x, wq_ops)
    a("s_mov_b32 s54, 1")
    a("s_mov_b32 s55, 1")
    a("s_mov_b64 exec, s[54:55]")
    a("s_and_b32 s50, s39, 1")
    a("s_lshl_b32 s50, s50, 7")
    a(f"v_lshl_add_u32 v8, v{HF}, 4, s50")
    for q_ in range(4):
        a(f"ds_write_b128 v8, v[{212+4*q_}:{212+4*q_+3}] offset:{L_CS + 128 + q_*32}")
    a("s_mov_b64 exec, -1")
    a("s_waitcnt lgkmcnt(0)")
    a("s_barrier")
    stamp(a, 7)
    a("s_waitcnt vmcnt(0)")
    a(f"ds_write_b32 v86, v87 offset:{L_FL+16}")
    srd(a, 64, 10, 401408)
    a("s_lshr_b32 s60, s2, 3")
    a("s_lshl_b32 s60, s60, 2")
    a("s_add_u32 s60, s60, s39")
    a(f"v_lshlrev_b32 v247, 7, v{LANE}")
    a(f"v_mov_b32 v248, 0x7fff0000")
    a(f"v_cmp_gt_u32 vcc, 25, v{LANE}")
    a(f"v_cndmask_b32 v249, v248, v247, vcc")
    a("s_mul_i32 s61, s60, 3200")
    a("buffer_load_dword v250, v249, s[64:67], s61 offen")
    a(f"v_cmp_gt_u32 vcc, 32, v{LANE}")
    a(f"v_cndmask_b32 v249, v248, v247, vcc")
    a("s_lshl_b32 s61, s60, 12")
    srd(a, 64, 56, 1605632)
    a("buffer_load_dword v251, v249, s[64:67], s61 offen")
    srd(a, 64, 58, 1605632)
    a("buffer_load_dword v252, v249, s[64:67], s61 offen")
    a(f"v_cmp_gt_u32 vcc, 13, v{LANE}")
    a(f"v_cndmask_b32 v249, v248, v247, vcc")
    a("s_lshl_b32 s61, s2, 2")
    a("s_add_u32 s61, s61, s39")
    a("s_mul_i32 s61, s61, 1664")
    srd(a, 64, 68, 1605632)
    a("buffer_load_dword v253, v249, s[64:67], s61 offen")
    a("K1_QPOLL:")
    a(f"ds_read_b128 v[88:91], v85 offset:{L_FL+16}")
    a("s_waitcnt lgkmcnt(0)")
    a("v_and_b32 v88, v88, v89")
    a("v_and_b32 v90, v90, v91")
    a("v_and_b32 v88, v88, v90")
    a("v_readfirstlane_b32 s51, v88")
    a("s_cmp_eq_u32 s51, 0")
    a("s_cbranch_scc1 K1_QPOLL")
    AQ, ACS = 14, 212
    stats_reads(66)
    wp_reads(92)
    LQ = 4
    def qrd(kk):
        b = 34 + (kk % 6) * 4
        for e in range(2):
            a(f"ds_read_b64_tr_b16 v[{b+2*e}:{b+2*e+1}], v246 offset:{kk*1024 + e*256}")
    for kk in range(LQ): qrd(kk)
    fin = Asm()
    fin("v_add_f32 v67, v67, v68")
    stats_finish(fin, 66, 67, 68, 69, 70)
    fin(f"v_mul_f32 v71, s44, v69")
    fo = [i.text for i in fin.ins]
    for kk in range(28):
        if kk + LQ < 28: qrd(kk + LQ)
        a(f"s_waitcnt lgkmcnt({2*min(LQ, 27-kk)})")
        b = 34 + (kk % 6) * 4
        c0 = "0" if kk == 0 else None
        a(f"v_mfma_f32_32x32x16_bf16 v[{AQ}:{AQ+15}], v[{b}:{b+3}], v[{100+4*kk}:{100+4*kk+3}], " + (c0 or f"v[{AQ}:{AQ+15}]"))
        a(f"v_mfma_f32_32x32x16_bf16 v[{ACS}:{ACS+15}], v[{b}:{b+3}], v[80:83], " + (c0 or f"v[{ACS}:{ACS+15}]"))
        if fo: a(fo.pop(0))
    QFR = 132
    a("s_lshl_b32 s50, s36, 2")
    a("s_add_u32 s50, s50, s39")
    a("s_lshl_b32 s50, s50, 4")
    a("s_add_u32 s50, s50, s37")
    a("s_lshl_b32 s50, s50, 12")
    a(f"s_add_u32 s50, s50, {WS_PHIQ}")
    a(f"v_lshlrev_b32 v7, 4, v{LANE}")
    center_pack(AQ, ACS, 68, QFR)
    a(f"v_cndmask_b32 v{QFR+6}, v{QFR+6}, 0, s[42:43]")
    a(f"v_cndmask_b32 v{QFR+7}, v{QFR+7}, 0, s[42:43]")
    PQ = 148
    a(f"v_mfma_f32_32x32x16_bf16 v[{PQ}:{PQ+15}], v[92:95], v[{QFR}:{QFR+3}], 0")
    a(f"v_mfma_f32_32x32x16_bf16 v[{PQ}:{PQ+15}], v[96:99], v[{QFR+4}:{QFR+7}], v[{PQ}:{PQ+15}]")
    softmax_pm(a, PQ, 164, 180, 36, 44, 52, 42, 71)
    for s_ in range(4):
        a(f"buffer_store_dwordx4 v[{36+4*s_}:{36+4*s_+3}], v7, s[32:35], s50 offen offset:{s_*1024}")
    stamp(a, 8)
    a("K1_FIN:")
    if STAMPS: a("s_waitcnt vmcnt(0)")
    stamp(a, 9)
    stamp_flush(a, 38, 32)
    a("K1_END:")
    a("s_endpgm")
    a.fix_hazards()
    return a.text(), kd("k1_kernel", 256)
```

```python
from asmfw import Asm
import os
import gen
from gen import *

L_CS = 0; L_FL = 448; L_SQ = 512; L_SM = 1536; L_WP = 2048
L_WQ = 4096
L_RING = 32768; L_SLOT = 24576
K1B_LDS = L_RING + 5 * L_SLOT + 256
L_PHIK = L_RING; L_V = L_PHIK + 16384

def gen_k1b():
    a = Asm()
    head(a, "k1_kernel")
    a("s_cmp_ge_u32 s2, 256")
    a("s_cbranch_scc1 K1_END")
    stamp_init(a); stamp(a, 0, real=True); stamp(a, 1)
    a("s_getpc_b64 s[52:53]")
    a("K1_PC:")
    a("s_sub_u32 s52, s52, K1_PC-k1_kernel")
    a("s_subb_u32 s53, s53, 0")
    a("s_mov_b32 s54, K3_END-k1_kernel")
    a("s_mov_b32 s55, 0x00020000")
    a("s_lshr_b32 s50, s2, 3")
    a("s_lshl_b32 s50, s50, 11")
    a("v_lshrrev_b32 v254, 6, v0")
    a("v_and_b32 v255, 1, v0")
    a("v_lshl_add_u32 v254, v254, 1, v255")
    a("v_lshlrev_b32 v254, 7, v254")
    a("s_mov_b64 exec, 3")
    a("buffer_load_dword v255, v254, s[52:55], s50 offen")
    a("s_mov_b64 exec, -1")
    a("s_load_dwordx4 s[4:7], s[0:1], 0")
    a("s_load_dwordx4 s[8:11], s[0:1], 16")
    a("s_load_dwordx4 s[12:15], s[0:1], 72")
    a("s_load_dwordx4 s[56:59], s[0:1], 40")
    a("s_load_dwordx2 s[68:69], s[0:1], 56")
    LANE, M, HF, I16, G = 1, 2, 3, 4, 5
    a(f"v_and_b32 v{LANE}, 63, v0")
    a(f"v_lshrrev_b32 v6, 6, v0")
    a(f"v_readfirstlane_b32 s38, v6")
    a(f"v_and_b32 v{M}, 31, v{LANE}")
    a(f"v_lshrrev_b32 v{HF}, 5, v{LANE}")
    a(f"v_and_b32 v{I16}, 15, v{LANE}")
    a(f"v_lshrrev_b32 v{G}, 4, v{LANE}")
    a("s_and_b32 s36, s2, 7")
    a("s_lshl_b32 s36, s36, 1")
    a("s_bfe_u32 s37, s2, 0x10003")
    a("s_add_u32 s36, s36, s37")
    a("s_lshr_b32 s37, s2, 4")
    a("s_and_b32 s39, s38, 3")
    a("s_lshr_b32 s40, s38, 2")
    a("s_mov_b32 s42, 0")
    a("s_mov_b32 s43, -1")
    a(f"s_mov_b32 s44, {LOG2E}")
    a("s_mov_b32 s45, 0x3f803f80")
    a("s_mov_b32 s41, 0xffff0000")
    a("s_and_b32 s67, s36, 1")
    a("s_mul_i32 s67, s67, 3")
    a("s_add_u32 s67, s67, s37")
    for _ in range(2):
        a("s_cmp_ge_u32 s67, 7")
        a("s_cselect_b32 s61, 7, 0")
        a("s_sub_u32 s67, s67, s61")
    a("s_lshl_b32 s46, s36, 7")
    a("s_lshl_b32 s47, s39, 5")
    a("s_add_u32 s46, s46, s47")
    a("s_mul_i32 s47, s46, 896")
    a("s_mul_i32 s48, s37, 56")
    a("s_and_b32 s48, s48, 0xfffffff0")
    a("s_mul_i32 s49, s39, 43008")
    a("s_add_u32 s48, s48, s49")
    for c in range(7):
        a(f"s_lshl_b32 s{60+c}, s67, 7")
        a(f"s_add_u32 s{60+c}, s{60+c}, s47")
        a(f"s_mul_i32 s{72+c}, s67, {64*2688}")
        a(f"s_add_u32 s{72+c}, s{72+c}, s48")
        if c < 6:
            a("s_add_u32 s67, s67, 1")
            a("s_cmp_ge_u32 s67, 7")
            a("s_cselect_b32 s67, 0, s67")
    a("s_cmp_eq_u32 s40, 1")
    a("s_cbranch_scc1 K1_Q")
    def srds():
        a("s_waitcnt lgkmcnt(0)")
        srd(a, 16, 4, 1835008); srd(a, 20, 6, 1204224); srd(a, 24, 8, 25088); srd(a, 28, 12, 256); srd(a, 32, 14, WS_SIZE)
    XV = 228; TB = 240
    def setup_late(q):
        a(f"v_lshrrev_b32 v7, 2, v{I16}")
        a(f"v_lshl_add_u32 v8, v{HF}, 3, v7")
        a(f"v_lshlrev_b32 v8, 7, v8")
        a(f"v_and_b32 v9, 1, v{G}")
        a(f"v_lshlrev_b32 v9, 2, v9")
        a(f"v_and_b32 v10, 3, v{I16}")
        a(f"v_add_u32 v9, v9, v10")
        a(f"v_lshl_add_u32 v8, v9, 3, v8")
        a("s_and_b32 s50, s37, 1")
        a("s_lshl_b32 s50, s50, 3")
        a(f"s_add_u32 s51, s50, {L_RING + 16384}")
        a(f"v_add_u32 v8, s51, v8")
        a(f"v_lshrrev_b32 v7, 1, v7")
        if q:
            a("s_and_b32 s51, s39, 1")
            a(f"v_xor_b32 v7, s51, v7")
            a(f"v_lshl_add_u32 v{TB}, v7, 6, v8")
            for st in range(1, 3): a(f"v_add_u32 v{TB+2*st}, {2*st*L_SLOT}, v{TB}")
            a(f"v_lshrrev_b32 v7, 2, v{I16}")
            a(f"v_lshl_add_u32 v7, v{HF}, 3, v7")
            a(f"v_lshlrev_b32 v7, 6, v7")
            a(f"v_lshl_add_u32 v7, v9, 3, v7")
            a(f"s_add_u32 s51, s50, {L_WQ}")
            a(f"v_add_u32 v246, s51, v7")
        else:
            a(f"v_lshl_add_u32 v{TB}, v7, 6, v8")
            a(f"v_xor_b32 v7, 1, v7")
            a(f"v_lshl_add_u32 v{TB+1}, v7, 6, v8")
            for st in range(1, 3):
                a(f"v_add_u32 v{TB+2*st}, {2*st*L_SLOT}, v{TB}")
                a(f"v_add_u32 v{TB+2*st+1}, {2*st*L_SLOT}, v{TB+1}")
        a("s_lshl_b32 s50, s39, 5")
        a(f"v_add_u32 v7, s50, v{M}")
        a(f"v_lshrrev_b32 v8, 1, v7")
        a(f"v_and_b32 v8, 7, v8")
        a(f"v_xor_b32 v8, v8, v{HF}")
        a(f"v_lshlrev_b32 v8, 4, v8")
        a(f"v_lshl_add_u32 v11, v7, 7, v8")
        for p in range(4):
            a(f"v_xor_b32 v7, {p*32}, v11")
            for st in range(3):
                a(f"v_add_u32 v{XV+4*st+p}, {L_RING + 2*st*L_SLOT}, v7")
        a(f"v_lshrrev_b32 v7, 2, v{I16}")
        a(f"v_lshl_add_u32 v7, v{HF}, 2, v7")
        a(f"v_mul_u32_u24 v7, 56, v7")
        a(f"v_lshl_add_u32 v12, v9, 3, v7")
        a("s_lshl_b32 s50, s39, 7")
        a(f"v_lshl_add_u32 v9, v{M}, 2, s50")
    LA = 2; NB = 3
    def pass1(q, vm, dma_ops, extra_ops):
        ns = 1 if q else 2
        WF = 46; SQ = 72
        a(f"v_mov_b32 v{SQ}, 0"); a(f"v_mov_b32 v{SQ+1}, 0")
        nr = 1 + 2 * ns
        def emit(op):
            for t_ in op[1]: a(t_)
            vm.issue(op[0])
        def xreg(kk): return 100 + 4 * kk if q else 34 + (kk % NB) * 4
        def reads(kk):
            c = kk // 4; slot = c % 5; p = kk % 4
            st = slot // 2; so = slot % 2
            xb = xreg(kk)
            a(f"ds_read_b128 v[{xb}:{xb+3}], v{XV+4*st+p} offset:{so*L_SLOT}")
            b = WF + (kk % NB) * ns * 4
            for i in range(ns):
                off = so * L_SLOT + p * 2048
                a(f"ds_read_b64_tr_b16 v[{b+4*i}:{b+4*i+1}], v{TB+2*st+i} offset:{off}")
                a(f"ds_read_b64_tr_b16 v[{b+4*i+2}:{b+4*i+3}], v{TB+2*st+i} offset:{off+512}")
        stamp(a, 2)
        vm.wait("c0")
        a("s_barrier")
        if q:
            a("s_cmp_lg_u32 s55, 0")
            a("s_cbranch_scc1 K1_Q3")
            a("s_lshl_b32 s50, s37, 2")
            a("s_add_u32 s50, s50, 64")
            a("v_mov_b32 v7, s50")
            a("s_mov_b64 exec, 1")
            a("buffer_store_dword v87, v7, s[28:31], 0 offen sc1")
            a("s_mov_b64 exec, -1")
            a("K1_Q3:")
        for c in range(2, 5):
            for op in dma_ops(c): emit(op)
        stamp(a, 3)
        queue = []
        for kk in range(LA): reads(kk)
        for kk in range(28):
            nk = kk + LA
            if nk < 28:
                if nk % 4 == 0:
                    c = nk // 4
                    while any(op[0] == f"c{c}" for op in queue): emit(queue.pop(0))
                    vm.wait(f"c{c}")
                    a("s_barrier")
                    if c in (2, 4): stamp(a, 3 + c // 2)
                    if c in (2, 3): queue += dma_ops(c + 3)
                    if c == 3: queue += extra_ops
                reads(nk)
            a(f"s_waitcnt lgkmcnt({min(28 - 1 - kk, LA) * nr})")
            b = WF + (kk % NB) * ns * 4
            xb = xreg(kk)
            c0 = "0" if kk == 0 else None
            if q:
                a(f"v_mfma_f32_32x32x16_bf16 v[212:227], v[{b}:{b+3}], v[80:83], " + (c0 or "v[212:227]"))
                for r in range(2):
                    a(f"v_lshlrev_b32 v10, 16, v{xb+r}")
                    a(f"v_and_b32 v11, s41, v{xb+r}")
                    a(f"v_fmac_f32 v{SQ}, v10, v10")
                    a(f"v_fmac_f32 v{SQ+1}, v11, v11")
            else:
                for r in range(4):
                    a(f"v_cndmask_b32 v{b+4+r}, v{b+4+r}, v92, s[52:53]")
                for i, AC in enumerate((100, 116)):
                    a(f"v_mfma_f32_32x32x16_bf16 v[{AC}:{AC+15}], v[{b+4*i}:{b+4*i+3}], v[{xb}:{xb+3}], " + (c0 or f"v[{AC}:{AC+15}]"))
                    a(f"v_lshlrev_b32 v10, 16, v{xb+2+i}")
                    a(f"v_and_b32 v11, s41, v{xb+2+i}")
                    a(f"v_fmac_f32 v{SQ}, v10, v10")
                    a(f"v_fmac_f32 v{SQ+1}, v11, v11")
            if queue: emit(queue.pop(0))
            if queue: emit(queue.pop(0))
        while queue: emit(queue.pop(0))
        stamp(a, 6)
        a(f"v_add_f32 v{SQ}, v{SQ}, v{SQ+1}")
        xhalf(a, "v_add_f32", SQ, SQ, 10, 11)
        a(f"ds_write_b32 v9, v{SQ} offset:{L_SQ + (512 if q else 0)}")
    def stats_reads(ST):
        a(f"ds_read_b32 v{ST}, v9 offset:{L_SM}")
        a(f"ds_read_b32 v{ST+1}, v9 offset:{L_SQ}")
        a(f"ds_read_b32 v{ST+2}, v9 offset:{L_SQ+512}")
    def wp_reads(WPF):
        for s_ in range(2):
            for e in range(2):
                a(f"ds_read_b64_tr_b16 v[{WPF+4*s_+2*e}:{WPF+4*s_+2*e+1}], v12 offset:{L_WP + (16*s_+8*e)*56}")
    def center_pack(ACC, CSV, NM, OUT):
        for i in range(8):
            a(f"v_fmac_f32 v{ACC+2*i}, v{CSV+2*i}, v{NM}")
            a(f"v_fmac_f32 v{ACC+2*i+1}, v{CSV+2*i+1}, v{NM}")
            a(f"v_cvt_pk_bf16_f32 v{OUT+i}, v{ACC+2*i}, v{ACC+2*i+1}")

    vmk = VM(a)
    a(f"v_lshrrev_b32 v7, 3, v{LANE}")
    a(f"v_and_b32 v8, 7, v{LANE}")
    a(f"v_lshrrev_b32 v9, 1, v7")
    a(f"v_and_b32 v9, 1, v9")
    a(f"v_lshlrev_b32 v9, 2, v9")
    a(f"v_xor_b32 v8, v8, v9")
    a(f"v_mul_u32_u24 v7, 2688, v7")
    a(f"v_lshrrev_b32 v9, 2, v8")
    a(f"v_mul_u32_u24 v9, 896, v9")
    a(f"v_and_b32 v8, 3, v8")
    a(f"v_lshlrev_b32 v8, 4, v8")
    a(f"v_add3_u32 v30, v7, v8, v9")
    a(f"v_add_u32 v30, 896, v30")
    a("s_lshl_b32 s49, s39, 11")
    vmk.issue("cpf")
    srds()
    def dma_w(c):
        return [(f"c{c}", [f"s_add_u32 m0, s49, {L_RING + (c%5)*L_SLOT + 16384 + i*1024}",
                           f"s_add_u32 s50, s{72+c}, {i*8*2688}",
                           f"buffer_load_dwordx4 v30, s[20:23], s50 offen lds"]) for i in range(2)]
    for c in range(2):
        for op in dma_w(c):
            for t_ in op[1]: a(t_)
            vmk.issue(op[0])
    a("s_mul_i32 s50, s37, 1568")
    a("s_and_b32 s51, s39, 1")
    a("s_lshl_b32 s51, s51, 10")
    a("s_add_u32 s50, s50, s51")
    a(f"s_add_u32 m0, s51, {L_WP}")
    a(f"v_lshlrev_b32 v7, 4, v{LANE}")
    a("buffer_load_dwordx4 v7, s[24:27], s50 offen lds")
    vmk.issue("c1")
    setup_late(False)
    a(f"v_cmp_eq_u32 s[52:53], 28, v{M}")
    a("v_mov_b32 v92, s45")
    a("s_lshl_b32 s50, s39, 5")
    a(f"v_add_u32 v7, s50, v{M}")
    a(f"v_lshrrev_b32 v8, 1, v7")
    a(f"v_and_b32 v8, 7, v8")
    a(f"v_xor_b32 v8, v8, v{HF}")
    a(f"v_lshlrev_b32 v8, 3, v8")
    a(f"v_lshl_add_u32 v74, v7, 6, v8")
    a(f"v_lshrrev_b32 v8, 1, v7")
    a(f"v_and_b32 v8, 1, v8")
    a(f"v_lshlrev_b32 v8, 3, v8")
    a(f"v_and_b32 v10, 1, v7")
    a(f"v_or_b32 v8, v8, v10")
    a(f"v_lshrrev_b32 v10, 2, v7")
    a(f"v_and_b32 v10, 3, v10")
    a(f"v_lshl_or_b32 v8, v10, 1, v8")
    a(f"v_xor_b32 v8, v8, v{HF}")
    a(f"v_lshlrev_b32 v8, 3, v8")
    a(f"v_lshl_add_u32 v75, v7, 7, v8")
    a(f"v_lshrrev_b32 v7, 2, v{I16}")
    a(f"v_lshl_add_u32 v7, v{HF}, 3, v7")
    a(f"v_and_b32 v8, 1, v{G}")
    a(f"v_lshlrev_b32 v8, 2, v8")
    a(f"v_and_b32 v13, 3, v{I16}")
    a(f"v_add_u32 v8, v8, v13")
    for e in range(2):
        a(f"v_add_u32 v13, {4*e}, v7")
        a(f"v_lshrrev_b32 v10, 1, v13")
        a(f"v_xor_b32 v10, v10, v8")
        a(f"v_lshlrev_b32 v10, 3, v10")
        a(f"v_lshl_add_u32 v{76+e}, v13, 6, v10")
        a(f"v_lshrrev_b32 v10, 1, v13")
        a(f"v_and_b32 v10, 1, v10")
        a(f"v_lshlrev_b32 v10, 3, v10")
        a(f"v_and_b32 v11, 1, v13")
        a(f"v_or_b32 v10, v10, v11")
        a(f"v_lshrrev_b32 v11, 2, v13")
        a(f"v_lshl_or_b32 v10, v11, 1, v10")
        a(f"v_xor_b32 v10, v10, v8")
        a(f"s_lshl_b32 s50, s39, 3")
        a(f"v_xor_b32 v10, s50, v10")
        a(f"v_lshlrev_b32 v10, 3, v10")
        a(f"v_lshl_add_u32 v{78+e}, v13, 7, v10")
    a("s_lshl_b32 s50, s37, 13")
    a("s_lshl_b32 s51, s39, 7")
    a("s_add_u32 s50, s50, s51")
    a(f"v_lshlrev_b32 v80, 10, v{HF}")
    a(f"v_lshl_add_u32 v80, v{M}, 2, v80")
    a(f"v_add_u32 v80, s50, v80")
    a(f"v_add_u32 v81, 4096, v80")
    for r in range(4): a(f"v_mov_b32 v{82+r}, 0")
    a(f"ds_write_b128 v82, v[82:85] offset:{L_FL}")
    a(f"ds_write_b128 v82, v[82:85] offset:{L_FL+16}")
    a("s_lshl_b32 s50, s39, 2")
    a("v_mov_b32 v86, s50")
    a("v_mov_b32 v87, 1")
    a("s_waitcnt lgkmcnt(0)")
    AK, AV = 100, 116
    pass1(False, vmk, dma_w, [])
    a("s_mov_b64 exec, s[42:43]")
    a(f"ds_write_b32 v9, v{AV+12} offset:{L_SM}")
    a("s_mov_b64 exec, -1")
    a("s_waitcnt lgkmcnt(0)")
    a("s_barrier")
    stamp(a, 7)
    a("s_setprio 2")
    CK, CV = 34, 50
    a(f"v_lshlrev_b32 v8, 4, v{HF}")
    stats_reads(66)
    for sg, dst in ((1, CK), (2, CV)):
        for q_ in range(4):
            a(f"ds_read_b128 v[{dst+4*q_}:{dst+4*q_+3}], v8 offset:{L_CS + sg*128 + q_*32}")
    wp_reads(92)
    a("s_lshl_b32 s50, s2, 7")
    a(f"s_add_u32 s50, s50, {768*1024}")
    a("v_mov_b32 v13, 0")
    a(f"v_lshlrev_b32 v14, 2, v{LANE}")
    a("s_mov_b64 exec, 0xfff")
    a("buffer_store_dword v13, v14, s[32:35], s50 offen")
    a("s_mov_b64 exec, -1")
    a("s_lshl_b32 s50, s37, 2")
    a("s_add_u32 s50, s50, 64")
    a("v_mov_b32 v13, s50")
    a("buffer_load_dword v14, v13, s[28:31], 0 offen sc1")
    a("s_waitcnt lgkmcnt(12)")
    a("v_add_f32 v67, v67, v68")
    stats_finish(a, 66, 67, 68, 69, 70)
    a("s_waitcnt lgkmcnt(0)")
    KFR, VFR = 132, 140
    center_pack(AK, CK, 68, KFR)
    a(f"v_cndmask_b32 v{KFR+6}, v{KFR+6}, 0, s[42:43]")
    a(f"v_cndmask_b32 v{KFR+7}, v{KFR+7}, 0, s[42:43]")
    PK = 148
    a(f"v_mfma_f32_32x32x16_bf16 v[{PK}:{PK+15}], v[92:95], v[{KFR}:{KFR+3}], 0")
    a(f"v_mfma_f32_32x32x16_bf16 v[{PK}:{PK+15}], v[96:99], v[{KFR+4}:{KFR+7}], v[{PK}:{PK+15}]")
    center_pack(AV, CV, 68, VFR)
    a(f"v_lshrrev_b32 v9, 16, v70")
    a(f"v_mul_f32 v71, s44, v69")
    a(f"v_cndmask_b32 v{VFR+6}, v{VFR+6}, v9, s[42:43]")
    a(f"v_cndmask_b32 v{VFR+7}, v{VFR+7}, 0, s[42:43]")
    for q_ in range(4):
        a(f"v_xor_b32 v9, {q_*16}, v74")
        a(f"ds_write_b64 v9, v[{VFR+2*q_}:{VFR+2*q_+1}] offset:{L_V}")
    softmax_pm(a, PK, 164, 180, 34, 42, 50, 42, 71, 69)
    for t, src in ((0, 34), (1, 42)):
        for q_ in range(4):
            a(f"v_xor_b32 v9, {(8*t+2*q_)*8}, v75")
            a(f"ds_write_b64 v9, v[{src+2*q_}:{src+2*q_+1}] offset:{L_PHIK}")
    a("s_waitcnt lgkmcnt(0)")
    a(f"ds_write_b32 v86, v87 offset:{L_FL}")
    a("s_cmp_ge_u32 s39, 2")
    a("s_cbranch_scc1 K1_PF2")
    a("K1_LPOLL:")
    a(f"ds_read_b128 v[88:91], v82 offset:{L_FL}")
    a("s_waitcnt lgkmcnt(0)")
    a("v_and_b32 v88, v88, v89")
    a("v_and_b32 v90, v90, v91")
    a("v_and_b32 v88, v88, v90")
    a("v_readfirstlane_b32 s51, v88")
    a("s_cmp_eq_u32 s51, 0")
    a("s_cbranch_scc1 K1_LPOLL")
    stamp(a, 8)
    KV = 16
    for ks in range(8):
        b = 100 + ks * 8
        for e in range(2):
            a(f"ds_read_b64_tr_b16 v[{b+2*e}:{b+2*e+1}], v{76+e} offset:{L_V + ks*1024}")
        for e in range(2):
            a(f"ds_read_b64_tr_b16 v[{b+4+2*e}:{b+4+2*e+1}], v{78+e} offset:{L_PHIK + ks*2048}")
    for ks in range(8):
        b = 100 + ks * 8
        a(f"s_waitcnt lgkmcnt({min(15, (7-ks)*4)})")
        c = "0" if ks == 0 else f"v[{KV}:{KV+15}]"
        a(f"v_mfma_f32_32x32x16_bf16 v[{KV}:{KV+15}], v[{b}:{b+3}], v[{b+4}:{b+7}], {c}")
    a("s_waitcnt vmcnt(0)")
    a("v_readfirstlane_b32 s51, v14")
    a("s_cmp_lg_u32 s51, 0")
    a("s_cbranch_scc1 K1_GO")
    a("s_mov_b32 s50, 0")
    a("K1_POLL:")
    a("buffer_load_dword v14, v13, s[28:31], 0 offen sc1")
    a("s_add_u32 s50, s50, 1")
    a("s_waitcnt vmcnt(0)")
    a("v_readfirstlane_b32 s51, v14")
    a("s_cmp_gt_u32 s50, 0x400000")
    a("s_cbranch_scc1 K1_GO")
    a("s_cmp_eq_u32 s51, 0")
    a("s_cbranch_scc1 K1_POLL")
    a("K1_GO:")
    a("s_nop 7")
    for r in range(16):
        d = (r & 3) + 8 * (r >> 2); off = d * 256; base = 80
        if off >= 4096: off -= 4096; base = 81
        a(f"buffer_atomic_add_f32 v{KV+r}, v{base}, s[32:35], 0 offen offset:{WS_KV + off}")
    a("s_branch K1_FIN")
    a("K1_PF2:")
    if int(os.environ.get("PF2", "0")):
        a("s_lshr_b32 s60, s2, 3")
        a("s_lshl_b32 s60, s60, 1")
        a("s_add_u32 s60, s60, s39")
        a("s_sub_u32 s60, s60, 2")
        a("s_lshl_b32 s61, s60, 13")
        a("s_add_u32 s61, s61, 524288")
        a(f"v_lshlrev_b32 v7, 7, v{LANE}")
        srd(a, 64, 56, 1605632)
        a("buffer_load_dword v8, v7, s[64:67], s61 offen")
        srd(a, 64, 58, 1605632)
        a("buffer_load_dword v9, v7, s[64:67], s61 offen")
    a("s_branch K1_FIN")

    a("K1_Q:")
    vmq = VM(a)
    vmq.issue("cpf")
    a(f"v_lshrrev_b32 v7, 3, v{LANE}")
    a(f"v_and_b32 v8, 7, v{LANE}")
    a(f"v_lshrrev_b32 v9, 1, v7")
    a(f"v_xor_b32 v8, v8, v9")
    a(f"v_mul_u32_u24 v7, 896, v7")
    a(f"v_lshl_add_u32 v30, v8, 4, v7")
    a(f"v_xor_b32 v31, 64, v30")
    a(f"v_lshrrev_b32 v7, 2, v{LANE}")
    a(f"v_mul_u32_u24 v7, 2688, v7")
    a(f"v_and_b32 v8, 3, v{LANE}")
    a(f"v_lshl_add_u32 v32, v8, 4, v7")
    a("s_lshl_b32 s49, s39, 12")
    a("s_lshl_b32 s54, s39, 10")
    srds()
    a("s_or_b32 s55, s36, s39")
    a("s_cmp_lg_u32 s55, 0")
    a("s_cbranch_scc1 K1_Q2")
    a("s_lshl_b32 s50, s37, 13")
    a(f"v_lshl_add_u32 v7, v{LANE}, 4, s50")
    for r in range(4): a(f"v_mov_b32 v{34+r}, 0")
    a("v_add_u32 v8, 4096, v7")
    for i in range(4):
        a(f"buffer_store_dwordx4 v[34:37], v7, s[32:35], 0 offen offset:{WS_KV + i*1024} sc1")
        a(f"buffer_store_dwordx4 v[34:37], v8, s[32:35], 0 offen offset:{WS_KV + i*1024} sc1")
    a("K1_Q2:")
    def dma_x(c):
        return [(f"c{c}", [f"s_add_u32 m0, s49, {L_RING + (c%5)*L_SLOT + i*1024}",
                           f"s_add_u32 s50, s{60+c}, {i*8*896}",
                           f"buffer_load_dwordx4 v{30+(i&1)}, s[16:19], s50 offen lds"]) for i in range(4)]
    wq_ops = [("wq", [f"s_add_u32 m0, s54, {L_WQ + c*4096}", f"buffer_load_dwordx4 v32, s[20:23], s{72+c} offen lds"]) for c in range(7)]
    for c in range(2):
        for op in dma_x(c):
            for t_ in op[1]: a(t_)
            vmq.issue(op[0])
    setup_late(True)
    for r in range(4): a(f"v_mov_b32 v{80+r}, s45")
    a("s_lshl_b32 s50, s39, 2")
    a("v_mov_b32 v86, s50")
    a("v_mov_b32 v87, 1")
    a("v_mov_b32 v85, 0")
    pass1(True, vmq, dma_x, wq_ops)
    a("s_mov_b32 s54, 1")
    a("s_mov_b32 s55, 1")
    a("s_mov_b64 exec, s[54:55]")
    a("s_and_b32 s50, s39, 1")
    a("s_lshl_b32 s50, s50, 7")
    a(f"v_lshl_add_u32 v8, v{HF}, 4, s50")
    for q_ in range(4):
        a(f"ds_write_b128 v8, v[{212+4*q_}:{212+4*q_+3}] offset:{L_CS + 128 + q_*32}")
    a("s_mov_b64 exec, -1")
    a("s_waitcnt lgkmcnt(0)")
    a("s_barrier")
    stamp(a, 7)
    a("s_waitcnt vmcnt(0)")
    a(f"ds_write_b32 v86, v87 offset:{L_FL+16}")
    srd(a, 64, 10, 401408)
    a("s_lshr_b32 s60, s2, 3")
    a("s_lshl_b32 s60, s60, 2")
    a("s_add_u32 s60, s60, s39")
    a(f"v_lshlrev_b32 v247, 7, v{LANE}")
    a(f"v_mov_b32 v248, 0x7fff0000")
    a(f"v_cmp_gt_u32 vcc, 25, v{LANE}")
    a(f"v_cndmask_b32 v249, v248, v247, vcc")
    a("s_mul_i32 s61, s60, 3200")
    a("buffer_load_dword v250, v249, s[64:67], s61 offen")
    a(f"v_cmp_gt_u32 vcc, 32, v{LANE}")
    a(f"v_cndmask_b32 v249, v248, v247, vcc")
    a("s_lshl_b32 s61, s60, 12")
    srd(a, 64, 56, 1605632)
    a("buffer_load_dword v251, v249, s[64:67], s61 offen")
    srd(a, 64, 58, 1605632)
    a("buffer_load_dword v252, v249, s[64:67], s61 offen")
    a(f"v_cmp_gt_u32 vcc, 13, v{LANE}")
    a(f"v_cndmask_b32 v249, v248, v247, vcc")
    a("s_lshl_b32 s61, s2, 2")
    a("s_add_u32 s61, s61, s39")
    a("s_mul_i32 s61, s61, 1664")
    srd(a, 64, 68, 1605632)
    a("buffer_load_dword v253, v249, s[64:67], s61 offen")
    a("K1_QPOLL:")
    a(f"ds_read_b128 v[88:91], v85 offset:{L_FL+16}")
    a("s_waitcnt lgkmcnt(0)")
    a("v_and_b32 v88, v88, v89")
    a("v_and_b32 v90, v90, v91")
    a("v_and_b32 v88, v88, v90")
    a("v_readfirstlane_b32 s51, v88")
    a("s_cmp_eq_u32 s51, 0")
    a("s_cbranch_scc1 K1_QPOLL")
    AQ, ACS = 14, 212
    stats_reads(66)
    wp_reads(92)
    LQ = 4
    def qrd(kk):
        b = 34 + (kk % 6) * 4
        for e in range(2):
            a(f"ds_read_b64_tr_b16 v[{b+2*e}:{b+2*e+1}], v246 offset:{kk*1024 + e*256}")
    for kk in range(LQ): qrd(kk)
    fin = Asm()
    fin("v_add_f32 v67, v67, v68")
    stats_finish(fin, 66, 67, 68, 69, 70)
    fin(f"v_mul_f32 v71, s44, v69")
    fo = [i.text for i in fin.ins]
    for kk in range(28):
        if kk + LQ < 28: qrd(kk + LQ)
        a(f"s_waitcnt lgkmcnt({2*min(LQ, 27-kk)})")
        b = 34 + (kk % 6) * 4
        c0 = "0" if kk == 0 else None
        a(f"v_mfma_f32_32x32x16_bf16 v[{AQ}:{AQ+15}], v[{b}:{b+3}], v[{100+4*kk}:{100+4*kk+3}], " + (c0 or f"v[{AQ}:{AQ+15}]"))
        a(f"v_mfma_f32_32x32x16_bf16 v[{ACS}:{ACS+15}], v[{b}:{b+3}], v[80:83], " + (c0 or f"v[{ACS}:{ACS+15}]"))
        if fo: a(fo.pop(0))
    QFR = 132
    a("s_lshl_b32 s50, s36, 2")
    a("s_add_u32 s50, s50, s39")
    a("s_lshl_b32 s50, s50, 4")
    a("s_add_u32 s50, s50, s37")
    a("s_lshl_b32 s50, s50, 12")
    a(f"s_add_u32 s50, s50, {WS_PHIQ}")
    a(f"v_lshlrev_b32 v7, 4, v{LANE}")
    center_pack(AQ, ACS, 68, QFR)
    a(f"v_cndmask_b32 v{QFR+6}, v{QFR+6}, 0, s[42:43]")
    a(f"v_cndmask_b32 v{QFR+7}, v{QFR+7}, 0, s[42:43]")
    PQ = 148
    a(f"v_mfma_f32_32x32x16_bf16 v[{PQ}:{PQ+15}], v[92:95], v[{QFR}:{QFR+3}], 0")
    a(f"v_mfma_f32_32x32x16_bf16 v[{PQ}:{PQ+15}], v[96:99], v[{QFR+4}:{QFR+7}], v[{PQ}:{PQ+15}]")
    softmax_pm(a, PQ, 164, 180, 36, 44, 52, 42, 71)
    for s_ in range(4):
        a(f"buffer_store_dwordx4 v[{36+4*s_}:{36+4*s_+3}], v7, s[32:35], s50 offen offset:{s_*1024}")
    stamp(a, 8)
    a("K1_FIN:")
    if STAMPS: a("s_waitcnt vmcnt(0)")
    stamp(a, 9)
    stamp_flush(a, 38, 32)
    a("K1_END:")
    a("s_endpgm")
    a.fix_hazards()
    return a.text(), kd("k1_kernel", 256)
```

```python
from asmfw import Asm
import os
import gen
from gen import *
WS_HF = WS_H

K3_SLOT = 16384
K3_NS   = 6
PFI = int(os.environ.get('PFI', '51'))
K3_LDS  = 163840
WS_FLAG = 768 * 1024

def gen_k3():
    a = Asm()
    head(a, "k3_kernel")
    a("s_cmp_ge_u32 s2, 256")
    a("s_cbranch_scc1 K3_END")
    stamp_init(a); stamp(a, 0, real=True); stamp(a, 1)
    a("s_load_dwordx4 s[8:11], s[0:1], 40")
    a("s_load_dwordx4 s[4:7], s[0:1], 56")
    a("s_load_dwordx2 s[14:15], s[0:1], 80")
    a("s_load_dwordx2 s[12:13], s[0:1], 24")
    a("s_load_dwordx2 s[42:43], s[0:1], 0")
    LANE, M, HF, I16, G = 1, 2, 3, 4, 5
    a(f"v_and_b32 v{LANE}, 63, v0")
    a(f"v_lshrrev_b32 v6, 6, v0")
    a(f"v_readfirstlane_b32 s38, v6")
    a(f"v_and_b32 v{M}, 31, v{LANE}")
    a(f"v_lshrrev_b32 v{HF}, 5, v{LANE}")
    a(f"v_and_b32 v{I16}, 15, v{LANE}")
    a(f"v_lshrrev_b32 v{G}, 4, v{LANE}")
    a("s_mov_b32 s41, 0xffff0000")
    a("s_cmp_ge_u32 s2, 224")
    a("s_cbranch_scc1 K3_PF")
    a("s_and_b32 s36, s2, 7")
    a("s_lshl_b32 s36, s36, 1")
    a("s_bfe_u32 s37, s2, 0x10003")
    a("s_add_u32 s36, s36, s37")
    a("s_lshr_b32 s37, s2, 4")
    a("s_and_b32 s39, s38, 1")
    a("s_lshr_b32 s40, s38, 1")
    a(f"v_lshrrev_b32 v7, 3, v{LANE}")
    a(f"v_and_b32 v8, 2, v7")
    a(f"v_add_u32 v8, s39, v8")
    a(f"v_lshlrev_b32 v8, 1, v8")
    a(f"v_and_b32 v9, 7, v{LANE}")
    a(f"v_xor_b32 v8, v8, v9")
    a(f"v_mul_u32_u24 v7, 3584, v7")
    a(f"v_lshl_add_u32 v10, v8, 4, v7")
    a(f"v_lshlrev_b32 v11, 4, v{LANE}")
    a("s_mul_i32 s46, s40, 114688")
    a("s_lshl_b32 s47, s37, 8")
    a("s_add_u32 s46, s46, s47")
    a("s_and_b32 s57, s36, 1")
    a("s_lshl_b32 s58, s57, 7")
    a("s_xor_b32 s59, s58, 128")
    a("s_add_u32 s56, s46, s59")
    a("s_add_u32 s46, s46, s58")
    a("s_lshl_b32 s47, s39, 13")
    a("s_lshl_b32 s48, s40, 12")
    a("s_add_u32 s47, s47, s48")
    a("s_lshl_b32 s48, s36, 2")
    a("s_add_u32 s48, s48, s38")
    a("s_mul_i32 s49, s48, 28672")
    a(f"s_add_u32 s49, s49, {WS_HF}")
    a("s_waitcnt lgkmcnt(0)")
    a("s_cmp_eq_u32 s39, 0")
    a("s_cselect_b32 s20, s8, s10")
    a("s_cselect_b32 s21, s9, s11")
    a("s_mov_b32 s22, 1605632")
    a("s_mov_b32 s23, 0x00020000")
    srd(a, 32, 14, WS_SIZE)
    vm = VM(a)
    def dma_ops(C):
        ph, c = C // 7, C % 7
        return [(f"c{C}", [f"s_add_u32 m0, s47, {(C % K3_NS)*K3_SLOT + i*1024}",
                           f"s_add_u32 s50, s{56 if ph else 46}, {(c*64 + i*8)*3584}",
                           f"buffer_load_dwordx4 v10, s[20:23], s50 offen lds"]) for i in range(4)]
    def h_ops(kk, tag):
        return [(tag, [f"s_add_u32 s50, s49, {kk*1024}",
                       f"buffer_load_dwordx4 a[{4*kk}:{4*kk+3}], v11, s[32:35], s50 offen sc1"])]
    def emit(op):
        for t_ in op[1]: a(t_)
        vm.issue(op[0])
    def chunk_ops(C):
        d = dma_ops(C)
        if C >= 7: return d
        out = []
        for i in range(4): out += ([d[i]] if C >= 4 else []) + h_ops(4*C + i, f"c{C}")
        return out
    a("s_lshr_b32 s60, s2, 3")
    a("s_lshl_b32 s61, s38, 15")
    for i in range(32):
        a(f"s_add_u32 s50, s60, {i}")
        a("s_and_b32 s50, s50, 31")
        a("s_lshl_b32 s50, s50, 10")
        a("s_add_u32 s50, s50, s61")
        a(f"buffer_load_dwordx4 v[{128+4*i}:{128+4*i+3}], v11, s[32:35], s50 offen offset:{WS_KV}")
        vm.issue(f"kv{i}")
    TM = 12
    a(f"v_and_b32 v7, 1, v{G}")
    a(f"v_lshrrev_b32 v8, 2, v{I16}")
    a(f"v_and_b32 v9, 2, v8")
    a(f"v_add_u32 v9, v9, v7")
    a(f"v_lshl_add_u32 v8, v{HF}, 3, v8")
    a(f"v_lshlrev_b32 v8, 7, v8")
    a(f"v_lshl_add_u32 v8, v7, 13, v8")
    a(f"v_and_b32 v7, 3, v{I16}")
    a(f"v_lshl_add_u32 v8, v7, 3, v8")
    a(f"v_lshl_add_u32 v8, v9, 5, v8")
    for t in range(4):
        a(f"v_xor_b32 v{TM+t}, {t*32}, v8")
        a(f"v_add_u32 v{TM+4+t}, 0x10000, v{TM+t}")
        a(f"v_add_u32 v{TM+8+t}, 0x20000, v{TM+t}")
    WF = 36
    def acc(t): return f"v[{128+16*t}:{128+16*t+15}]"
    def rd_ops(ph, kk, t, dst):
        C = ph * 7 + kk // 4; slot = C % K3_NS
        return [f"ds_read_b64_tr_b16 v[{dst+2*e}:{dst+2*e+1}], v{TM + 4*(slot//4) + t} offset:{(slot%4)*K3_SLOT + (kk%4)*2048 + e*512}" for e in range(2)]
    a(f"v_lshlrev_b32 v9, 6, v{M}")
    a(f"v_lshlrev_b32 v118, 3, v{M}")
    a(f"v_lshl_add_u32 v118, v{HF}, 14, v118")
    a(f"v_accvgpr_write_b32 a128, 0")
    a(f"v_accvgpr_write_b32 a129, 0")
    a("s_lshl_b32 s52, s48, 8")
    a(f"s_add_u32 s52, s52, {WS_ST}")
    a("s_lshl_b32 s53, s37, 11")
    a(f"s_add_u32 s53, s53, {WS_CS}")
    a("s_lshl_b32 s58, s57, 5")
    a("s_xor_b32 s59, s58, 32")
    a("s_add_u32 s55, s53, s59")
    a("s_add_u32 s53, s53, s58")
    misc = []
    for j in range(4):
        misc.append(("ms", [f"s_add_u32 s50, s52, {j*32768}", f"buffer_load_dwordx2 v[{100+2*j}:{100+2*j+1}], v118, s[32:35], s50 offen sc1"]))
    for j in range(4):
        misc.append(("ms", [f"buffer_load_dwordx4 a[{112+4*j}:{112+4*j+3}], v9, s[32:35], s{55 if j >= 2 else 53} offen offset:{(j&1)*16} sc1"]))
    a("s_mul_i32 s54, s48, 114688")
    a("s_lshl_b32 s51, s37, 13")
    a("s_add_u32 s54, s54, s51")
    a(f"s_add_u32 s54, s54, {WS_HH}")
    a("s_lshl_b32 s58, s57, 12")
    a("s_xor_b32 s59, s58, 4096")
    a("s_add_u32 s62, s54, s59")
    a("s_add_u32 s54, s54, s58")
    NM, RS, SD, NSC = 114, 115, 116, 117
    fin = Asm()
    fin(f"v_cmp_gt_u32 vcc, 32, v{LANE}")
    fin(f"v_cndmask_b32 v106, 0, v106, vcc")
    fin(f"v_cndmask_b32 v107, 0, v107, vcc")
    for j in range(1, 4):
        fin(f"v_add_f32 v100, v100, v{100+2*j}")
        fin(f"v_add_f32 v101, v101, v{100+2*j+1}")
    xhalf(fin, "v_add_f32", 100, 100, 102, 103)
    xhalf(fin, "v_add_f32", 101, 101, 104, 105)
    stats_finish(fin, 100, 101, NM, RS, SD)
    fin(f"v_mul_f32 v{NSC}, 0xbfb8aa3b, v{RS}")
    fin(f"v_lshrrev_b32 v104, 16, v{NM}")
    fin(f"v_cmp_gt_u32 vcc, 32, v{LANE}")
    fin(f"v_cndmask_b32 v104, 0, v104, vcc")
    fin(f"v_mov_b32 v105, v104")
    fin(f"v_mov_b32 v106, 0")
    fin(f"v_mov_b32 v107, 0")
    fin_ops = [i.text for i in fin.ins]
    deferred = []
    def ep_ops(t):
        A_ = 128 + 16 * t
        OUT = A_
        ep = [f"v_mul_f32 v{A_+r}, v{NSC}, v{A_+r}" for r in range(8)]
        ep += [f"v_exp_f32 v{A_+r}, v{A_+r}" for r in range(8)]
        ep += [f"v_fma_f32 v{A_+r}, v{A_+r}, v{SD}, v{SD}" for r in range(8)]
        ep += [f"v_rcp_f32 v{A_+r}, v{A_+r}" for r in range(8)]
        ep += [f"v_mul_f32 v{A_+8+r}, v{A_+8+r}, v{A_+r}" for r in range(8)]
        ep += [f"v_cvt_pk_bf16_f32 v{OUT+i}, v{A_+8+2*i}, v{A_+8+2*i+1}" for i in range(4)]
        st_ = (f"st{t}", f"s_add_u32 s50, s{62 if t >= 4 else 54}, {(t&3)*1024}", f"buffer_store_dwordx4 v[{OUT}:{OUT+3}], v11, s[32:35], s50 offen sc1")
        ep += [st_]
        return ep
    def emit_valu(vq, n):
        for _ in range(n):
            if not vq: return
            o = vq.pop(0)
            if isinstance(o, tuple):
                a(o[1]); a(o[2]); vm.issue(o[0])
            else: a(o)
    srd(a, 16, 12, 401408)
    srd(a, 28, 42, 1835008)
    srd(a, 24, 6, 1835008)
    a("s_and_b32 s64, s37, 1")
    a("s_lshl_b32 s65, s36, 1")
    a("s_add_u32 s64, s64, s65")
    a("s_lshr_b32 s65, s37, 1")
    a(f"v_lshrrev_b32 v7, 3, v{LANE}")
    a(f"v_and_b32 v8, 7, v{LANE}")
    a(f"v_lshrrev_b32 v27, 1, v7")
    a(f"v_and_b32 v27, 1, v27")
    a(f"v_lshlrev_b32 v27, 2, v27")
    a(f"v_xor_b32 v27, v8, v27")
    a(f"v_mul_u32_u24 v32, 896, v7")
    a(f"v_lshl_add_u32 v27, v27, 4, v32")
    a(f"v_lshl_add_u32 v32, v8, 4, v32")
    a(f"v_lshrrev_b32 v26, 1, v8")
    a(f"v_lshlrev_b32 v26, 10, v26")
    a(f"v_and_b32 v31, 1, v8")
    a(f"v_lshl_add_u32 v26, v31, 9, v26")
    a(f"v_lshl_add_u32 v26, v7, 4, v26")
    a("s_mul_i32 s63, s64, 57344")
    a("s_lshl_b32 s66, s65, 12")
    a("s_add_u32 s63, s63, s66")
    a("s_lshr_b32 s66, s38, 1")
    a("s_mul_i32 s66, s66, 28672")
    a("s_add_u32 s63, s63, s66")
    a("s_and_b32 s66, s38, 1")
    a("s_lshl_b32 s66, s66, 8")
    a("s_add_u32 s63, s63, s66")
    a(f"s_add_u32 s63, s63, {WS_HF}")
    a("s_lshl_b32 s66, s38, 4")
    a(f"v_add_u32 v31, s66, v7")
    a(f"v_mul_u32_u24 v31, 272, v31")
    a(f"v_lshl_add_u32 v31, v8, 5, v31")
    a(f"v_add_u32 v33, 49152, v31")
    a("s_lshl_b32 s76, s64, 6")
    a("s_add_u32 s76, s76, s66")
    a("s_mul_i32 s76, s76, 896")
    a("s_lshl_b32 s66, s65, 7")
    a("s_add_u32 s76, s76, s66")
    TR = [68, 69, 70, 71, 72, 73, 74, 75, 8, 9, 10, 11, 12, 13]
    a("s_mul_i32 s78, s38, 24576")
    a("s_lshl_b32 s79, s38, 14")
    a("s_add_u32 s79, s79, 98304")
    a(f"v_lshrrev_b32 v7, 2, v{I16}")
    a(f"v_lshl_add_u32 v8, v{HF}, 2, v7")
    a(f"v_lshrrev_b32 v7, 1, v7")
    a(f"v_lshlrev_b32 v7, 3, v7")
    a(f"v_and_b32 v30, 1, v{G}")
    a(f"v_lshl_add_u32 v7, v30, 2, v7")
    a(f"v_and_b32 v30, 3, v{I16}")
    a(f"v_add_u32 v7, v7, v30")
    a(f"v_lshlrev_b32 v7, 3, v7")
    a(f"v_lshl_add_u32 v7, v8, 7, v7")
    a(f"v_add_u32 v28, s78, v7")
    a(f"v_xor_b32 v29, 64, v28")
    a(f"v_add_u32 v24, s79, v7")
    a(f"v_xor_b32 v25, 64, v24")
    a(f"v_mul_u32_u24 v30, 272, v{M}")
    a(f"v_lshl_add_u32 v30, v{HF}, 4, v30")
    a(f"v_add_u32 v30, s78, v30")
    NREG = 8; NRES = 16
    def d_dma(ks):
        sb, lo = (79, (ks % 8) * 2048) if ks < NRES else (78, (ks - NRES) * 2048)
        return [(f"w{ks}", [f"s_add_u32 m0, s{sb}, {lo + i*1024}",
                            f"s_mul_i32 s50, s{TR[ks%14]}, 14",
                            f"s_add_u32 s50, s50, s{42 + ks//14}",
                            f"buffer_load_dwordx4 v{27 if i == 0 else 34}, s[16:19], s50 offen lds"]) for i in range(2)]
    def d_stage(ks):
        vm.wait(f"w{ks}")
        for n2 in range(2):
            for e in range(2):
                a(f"ds_read_b64_tr_b16 a[{130+8*ks+4*n2+2*e}:{130+8*ks+4*n2+2*e+1}], v{24+n2} offset:{(ks%8)*2048 + e*1024}")
    dstate = {"next_dma": 0, "next_stage": 0, "dma_at": {}, "stage_at": {}, "ops": []}
    def d_tick(i):
        st = dstate
        ks = st["next_stage"]
        if ks < NREG and 7 in st["dma_at"] and i >= 184:
            d_stage(ks); st["stage_at"][ks] = i; st["next_stage"] += 1
        if not st["ops"]:
            kd_ = st["next_dma"]
            if kd_ < NRES and (kd_ < 8 or (kd_ - 8 in st["stage_at"] and i - st["stage_at"][kd_ - 8] >= 9)):
                st["ops"] = d_dma(kd_); st["cur"] = kd_; st["next_dma"] += 1
        if st["ops"]:
            emit(st["ops"].pop(0))
            if not st["ops"]: st["dma_at"][st["cur"]] = i
    B_KV, B_RED, B_WO = 0, 65536, 102400
    a("s_mov_b32 s44, 0")
    a("s_mov_b32 s45, -1")
    a(f"v_lshrrev_b32 v7, 2, v{I16}")
    a(f"v_mul_u32_u24 v7, 1056, v7")
    a(f"v_and_b32 v8, 1, v{I16}")
    a(f"v_mul_u32_u24 v8, 528, v8")
    a(f"v_add_u32 v7, v7, v8")
    a(f"v_lshrrev_b32 v8, 1, v{I16}")
    a(f"v_and_b32 v8, 1, v8")
    a(f"v_lshl_add_u32 v7, v8, 3, v7")
    a(f"v_lshl_add_u32 v7, v{G}, 4, v7")
    a("s_mul_i32 s50, s38, 16896")
    a(f"v_add_u32 v34, s50, v7")
    a("s_lshl_b32 s66, s64, 1")
    a("s_add_u32 s66, s66, s39")
    a("s_lshl_b32 s66, s66, 4")
    a("s_lshl_b32 s50, s40, 3")
    a("s_add_u32 s66, s66, s50")
    a("s_lshl_b32 s66, s66, 12")
    a(f"s_add_u32 s66, s66, {WS_PHIQ}")
    a("s_mul_i32 s67, s38, 100352")
    a("s_lshl_b32 s50, s65, 7")
    a("s_add_u32 s67, s67, s50")
    a("s_mul_i32 s77, s38, 14336")
    bg = []
    for i in range(14):
        bg.append(("wo", [f"s_add_u32 m0, s77, {B_WO + i*1024}", f"s_add_u32 s50, s67, {i*8*896}", f"buffer_load_dwordx4 v27, s[16:19], s50 offen lds"]))
    bg.append(("wo", [f"s_mov_b32 m0, {B_WO + 448*128}", f"s_mov_b32 s50, {448*896}", f"buffer_load_dwordx4 v27, s[16:19], s50 offen lds"]))
    for i in range(32):
        bg.append((f"pq{i>>2}", [f"s_add_u32 s50, s66, {i*1024}", f"buffer_load_dwordx4 a[{4*i}:{4*i+3}], v11, s[32:35], s50 offen"]))
    bg.append(("x", ["buffer_load_dwordx4 v[120:123], v32, s[28:31], s76 offen"]))
    bg.append(("x", [f"s_add_u32 s50, s76, {8*896}", "buffer_load_dwordx4 v[124:127], v32, s[28:31], s50 offen"]))
    def emit_bg(n=1):
        for _ in range(n):
            if bg: emit(bg.pop(0))
    emit_bg(8)
    for i in range(32):
        if i >= 8: emit_bg()
        vm.wait(f"kv{i}")
        R = 128 + 4 * i
        a(f"v_cvt_pk_bf16_f32 v{R}, v{R}, v{R+1}")
        a(f"v_cvt_pk_bf16_f32 v{R+1}, v{R+2}, v{R+3}")
        a(f"s_add_u32 s50, s60, {i}")
        a("s_bfe_u32 s51, s50, 0x20003")
        a("s_mul_i32 s51, s51, 4224")
        a("s_and_b32 s50, s50, 7")
        a("s_lshl_b32 s50, s50, 6")
        a("s_add_u32 s50, s50, s51")
        a("v_add_u32 v35, s50, v34")
        a(f"ds_write_b64 v35, v[{R}:{R+1}] offset:{B_KV}")
    a("s_mul_i32 s50, s40, 33792")
    a(f"v_mul_u32_u24 v7, 528, v{HF}")
    a(f"v_lshl_add_u32 v7, v{M}, 4, v7")
    a(f"v_add_u32 v100, s50, v7")
    a("s_mul_i32 s50, s40, 28672")
    a(f"s_add_u32 s50, s50, {B_WO}")
    a("s_sub_u32 s50, s50, s78")
    a(f"v_add_u32 v101, s50, v28")
    a(f"v_xor_b32 v102, 64, v101")
    a("s_lshl_b32 s50, s39, 5")
    a(f"v_add_u32 v7, s50, v{M}")
    a(f"v_mul_u32_u24 v7, 272, v7")
    a(f"v_lshl_add_u32 v7, v{HF}, 4, v7")
    a("s_mul_i32 s50, s40, 17408")
    a(f"s_add_u32 s50, s50, {B_RED}")
    a(f"v_add_u32 v103, s50, v7")
    a(f"v_add_u32 v104, {B_RED}, v31")
    a(f"v_lshrrev_b32 v35, 3, v{LANE}")
    a(f"v_lshlrev_b32 v35, 3, v35")
    vm.wait("wo")
    a("s_waitcnt lgkmcnt(0)")
    a("s_barrier")
    def kvf_reads(hh):
        for s_ in range(4):
            a(f"ds_read_b128 v[{128+16*hh+4*s_}:{128+16*hh+4*s_+3}], v100 offset:{B_KV + hh*4224 + s_*1056}")
    def num_ops(hh):
        N = 36 + 16 * (hh & 1)
        return [f"v_mfma_f32_32x32x16_bf16 v[{N}:{N+15}], v[{128+16*hh+4*s_}:{128+16*hh+4*s_+3}], a[{16*hh+4*s_}:{16*hh+4*s_+3}], " + ("0" if s_ == 0 else f"v[{N}:{N+15}]") for s_ in range(4)]
    def o_ops(hh):
        N = 36 + 16 * (hh & 1); O = 128 + 16 * hh
        t = Asm()
        t(f"v_mov_b32 v105, v{N+12}")
        t(f"v_mov_b32 v106, v{N+12}")
        t(f"v_permlane32_swap_b32 v105, v106")
        bf16r(t, 106, 106)
        t(f"v_add_f32 v106, 0x358637bd, v106")
        bf16r(t, 106, 106)
        t(f"v_rcp_f32 v106, v106")
        for i in range(8):
            t(f"v_mul_f32 v{N+2*i}, v{N+2*i}, v106")
            t(f"v_mul_f32 v{N+2*i+1}, v{N+2*i+1}, v106")
            t(f"v_cvt_pk_bf16_f32 v{O+i}, v{N+2*i}, v{N+2*i+1}")
        t(f"v_cndmask_b32 v{O+6}, v{O+6}, 0, s[44:45]")
        t(f"v_cndmask_b32 v{O+7}, v{O+7}, 0, s[44:45]")
        return [i.text for i in t.ins]
    def wo_reads(hh):
        for s_ in range(2):
            for n2 in range(2):
                b = 68 + 16 * (hh & 1) + 8*s_ + 4*n2
                for e in range(2):
                    a(f"ds_read_b64_tr_b16 v[{b+2*e}:{b+2*e+1}], v{101+n2} offset:{(hh*28 + 16*s_ + 8*e)*128}")
    def wo_ops(hh):
        out = []
        for s_ in range(2):
            for n2 in range(2):
                b = 68 + 16 * (hh & 1) + 8*s_ + 4*n2
                c = "0" if (hh == 0 and s_ == 0) else f"a[{130+16*n2}:{130+16*n2+15}]"
                out.append(f"v_mfma_f32_32x32x16_bf16 a[{130+16*n2}:{130+16*n2+15}], v[{b}:{b+3}], v[{128+16*hh+4*s_}:{128+16*hh+4*s_+3}], {c}")
        return out
    for hh in range(8): kvf_reads(hh)
    emit_bg(4)
    a("s_waitcnt lgkmcnt(0)")
    a("s_barrier")
    wq = dma_ops(0) + dma_ops(1)
    vm.wait("pq0")
    for o in num_ops(0): a(o)
    for hh in range(9):
        if hh < 8: wo_reads(hh)
        emit_bg(3)
        if not bg and wq: emit(wq.pop(0)); emit(wq.pop(0))
        mf = []
        if hh >= 1:
            a(f"s_waitcnt lgkmcnt({8 if hh < 8 else 0})")
            mf += wo_ops(hh - 1)
        if hh + 1 < 8:
            vm.wait(f"pq{hh+1}")
            mf = num_ops(hh + 1)[:2] + mf[:2] + num_ops(hh + 1)[2:] + mf[2:]
        va = o_ops(hh) if hh < 8 else []
        per = (len(va) + max(1, len(mf)) - 1) // max(1, len(mf))
        for k_, m_ in enumerate(mf):
            a(m_)
            for o in va[k_*per:(k_+1)*per]: a(o)
        if not mf:
            for o in va: a(o)
    emit_bg(100)
    while wq: emit(wq.pop(0))
    for n2 in range(2):
        for q in range(4):
            a(f"ds_write_b128 v103, a[{130+16*n2+4*q}:{130+16*n2+4*q+3}] offset:{n2*128 + q*32}")
    a("s_lshl_b32 s61, s64, 6")
    a("s_lshl_b32 s50, s38, 4")
    a("s_add_u32 s61, s61, s50")
    a("s_lshl_b32 s61, s61, 3")
    a("s_lshl_b32 s50, s65, 14")
    a("s_add_u32 s61, s61, s50")
    a(f"s_add_u32 s61, s61, {WS_ST}")
    a("s_lshl_b32 s60, s2, 7")
    a("s_lshl_b32 s50, s38, 2")
    a("s_add_u32 s60, s60, s50")
    a(f"s_add_u32 s60, s60, {WS_FLAG + 16}")
    a(f"v_lshrrev_b32 v7, 1, v{LANE}")
    a(f"v_lshlrev_b32 v105, 12, v7")
    a("s_lshl_b32 s50, s40, 11")
    a("s_and_b32 s51, s2, 15")
    a("s_lshl_b32 s51, s51, 7")
    a("s_add_u32 s50, s50, s51")
    a("s_lshl_b32 s51, s39, 3")
    a("s_add_u32 s50, s50, s51")
    a("s_add_u32 s50, s50, 16")
    a(f"v_add_u32 v105, s50, v105")
    a(f"v_min_u32 v7, 8, v7")
    a(f"v_subrev_u32 v7, 7, v7")
    a(f"v_mul_u32_u24 v7, 1792, v7")
    a("s_add_u32 s50, s37, 224")
    a("s_lshl_b32 s50, s50, 7")
    a(f"v_add_u32 v7, s50, v7")
    a(f"v_cmp_gt_u32 vcc, 14, v{LANE}")
    a(f"v_cndmask_b32 v105, v7, v105, vcc")
    a(f"v_and_b32 v7, 1, v{LANE}")
    a(f"v_lshl_add_u32 v105, v7, 2, v105")
    a("s_waitcnt lgkmcnt(0)")
    a("s_barrier")
    for g2 in range(2):
        for hp_ in range(2):
            for e in range(2):
                a(f"ds_read_b128 v[{36+16*g2+8*hp_+4*e}:{36+16*g2+8*hp_+4*e+3}], v104 offset:{hp_*17408 + g2*8*272 + e*16}")
    vm.wait("x")
    a("s_mov_b32 s50, 0x01010101")
    a("s_mov_b32 s51, 0x01010101")
    for g2 in range(2):
        B_ = 36 + 16 * g2; T_ = 68 + 16 * g2
        a(f"s_waitcnt lgkmcnt({4 if g2 == 0 else 0})")
        for j in range(8): a(f"v_add_f32 v{B_+j}, v{B_+j}, v{B_+8+j}")
        for i in range(4): a(f"v_cvt_pk_bf16_f32 v{B_+8+i}, v{B_+2*i}, v{B_+2*i+1}")
        for i in range(4):
            a(f"v_lshlrev_b32 v{B_+2*i}, 16, v{B_+8+i}")
            a(f"v_and_b32 v{B_+2*i+1}, s41, v{B_+8+i}")
            a(f"v_lshlrev_b32 v{T_+2*i}, 16, v{120+4*g2+i}")
            a(f"v_and_b32 v{T_+2*i+1}, s41, v{120+4*g2+i}")
        for j in range(8): a(f"v_add_f32 v{B_+j}, v{B_+j}, v{T_+j}")
        for i in range(4): a(f"v_cvt_pk_bf16_f32 v{B_+8+i}, v{B_+2*i}, v{B_+2*i+1}")
        a(f"buffer_store_dwordx4 v[{B_+8}:{B_+11}], v26, s[32:35], s63 offen offset:{g2*128} sc1")
        a(f"v_add_f32 v{T_}, v{B_}, v{B_+1}")
        a(f"v_mul_f32 v{T_+1}, v{B_}, v{B_}")
        a(f"v_add_f32 v{T_+2}, v{B_+2}, v{B_+3}")
        a(f"v_mul_f32 v{T_+3}, v{B_+1}, v{B_+1}")
        for j in range(4, 8, 2):
            a(f"v_add_f32 v{T_}, v{T_}, v{B_+j}")
            a(f"v_add_f32 v{T_+2}, v{T_+2}, v{B_+j+1}")
        for j in range(2, 8, 2):
            a(f"v_fmac_f32 v{T_+1}, v{B_+j}, v{B_+j}")
            a(f"v_fmac_f32 v{T_+3}, v{B_+j+1}, v{B_+j+1}")
        a(f"v_add_f32 v{T_}, v{T_}, v{T_+2}")
        a(f"v_add_f32 v{T_+1}, v{T_+1}, v{T_+3}")
        for dpp in ("quad_perm:[1,0,3,2]", "quad_perm:[2,3,0,1]", "row_half_mirror"):
            a(f"v_add_f32_dpp v{T_}, v{T_}, v{T_} {dpp} row_mask:0xf bank_mask:0xf")
            a(f"v_add_f32_dpp v{T_+1}, v{T_+1}, v{T_+1} {dpp} row_mask:0xf bank_mask:0xf")
        a("s_mov_b64 exec, s[50:51]")
        a(f"buffer_store_dwordx2 v[{T_}:{T_+1}], v35, s[32:35], s61 offen offset:{g2*64} sc1")
        a("s_mov_b64 exec, -1")
    a("v_mov_b32 v106, 1")
    a("v_mov_b32 v107, 0")
    srd(a, 16, 4, 1605632)
    a("s_waitcnt vmcnt(0)")
    a("s_mov_b64 exec, 1")
    a("buffer_store_dword v106, v107, s[32:35], s60 offen sc1")
    a("s_mov_b64 exec, -1")
    for op in dma_ops(2) + dma_ops(3): emit(op)
    a("s_lshl_b32 s66, s65, 1")
    a("s_and_b32 s67, s64, 3")
    a("s_mul_i32 s67, s67, 3")
    a("s_add_u32 s66, s66, s67")
    a("s_cmp_ge_u32 s66, 14")
    a("s_cselect_b32 s67, 14, 0")
    a("s_sub_u32 s66, s66, s67")
    a("s_mul_i32 s77, s38, 14")
    for i in range(14):
        a("s_add_u32 s67, s66, s77")
        a("s_lshr_b32 s50, s67, 2")
        a("s_lshl_b32 s50, s50, 3")
        a("s_and_b32 s67, s67, 3")
        a("s_add_u32 s50, s50, s67")
        a(f"s_lshl_b32 s{TR[i]}, s50, 10")
        a("s_add_u32 s66, s66, 1")
        a("s_cmp_ge_u32 s66, 14")
        a("s_cselect_b32 s66, 0, s66")
    a("s_lshl_b32 s50, s65, 7")
    a("s_mul_i32 s42, s57, 57344")
    a("s_sub_u32 s43, 57344, s42")
    a("s_add_u32 s42, s42, s50")
    a("s_add_u32 s43, s43, s50")
    a("s_mul_i32 s50, s64, 229376")
    a(f"s_add_u32 s50, s50, {WS_HH}")
    a("s_lshl_b32 s66, s57, 12")
    a("s_sub_u32 s67, 4096, s66")
    a("s_add_u32 s66, s66, s50")
    a("s_add_u32 s67, s67, s50")
    a("v_add_u32 v34, 7168, v27")
    a("s_sub_u32 s60, s60, 16")
    a("s_and_b32 s61, s2, 15")
    a("s_lshl_b32 s61, s61, 7")
    a("s_and_b32 s50, s64, 1")
    a("s_lshl_b32 s50, s50, 3")
    a("s_add_u32 s61, s61, s50")
    a(f"s_add_u32 s61, s61, {WS_FLAG}")
    a(f"v_lshrrev_b32 v110, 1, v{LANE}")
    a(f"v_min_u32 v110, 13, v110")
    a(f"v_lshlrev_b32 v110, 11, v110")
    a(f"v_and_b32 v111, 1, v{LANE}")
    a(f"v_lshl_add_u32 v110, v111, 2, v110")
    a("v_mov_b32 v111, 1")
    a("v_mov_b32 v112, 0")
    a(f"s_mov_b32 s51, {WS_FLAG}")
    a("s_mov_b32 s50, 0")
    a("buffer_load_dword v107, v105, s[32:35], s51 offen sc1")
    a("s_sleep 4")
    a("buffer_load_dword v108, v105, s[32:35], s51 offen sc1")
    a("s_sleep 4")
    a("K3_POLLB:")
    a("buffer_load_dword v109, v105, s[32:35], s51 offen sc1")
    a("s_waitcnt vmcnt(2)")
    a("v_cmp_ne_u32 vcc, 1, v107")
    a("s_cmp_eq_u64 vcc, 0")
    a("s_cbranch_scc1 K3_POLLBX")
    a("buffer_load_dword v107, v105, s[32:35], s51 offen sc1")
    a("s_waitcnt vmcnt(2)")
    a("v_cmp_ne_u32 vcc, 1, v108")
    a("s_cmp_eq_u64 vcc, 0")
    a("s_cbranch_scc1 K3_POLLBX")
    a("buffer_load_dword v108, v105, s[32:35], s51 offen sc1")
    a("s_waitcnt vmcnt(2)")
    a("v_cmp_ne_u32 vcc, 1, v109")
    a("s_cmp_eq_u64 vcc, 0")
    a("s_cbranch_scc1 K3_POLLBX")
    a("s_add_u32 s50, s50, 1")
    a("s_cmp_lt_u32 s50, 0x200000")
    a("s_cbranch_scc1 K3_POLLB")
    a("K3_POLLBX:")
    vm = VM(a)
    NUP = int(os.environ.get('NUP', '3'))
    for C in range(NUP):
        for op in chunk_ops(C): emit(op)
    stamp(a, 2)
    vm.wait("c0")
    a("s_barrier")
    stamp(a, 3)
    NK1 = int(os.environ.get('NK1', '20'))
    VP1 = int(os.environ.get('VP1', '3')); VP2 = int(os.environ.get('VP2', '6'))
    seq = [(0, kk, t) for kk in range(28) for t in range(4)] + [(1, kk, t) for kk in range(NK1) for t in range(4)]
    seq += [(1, kk, t) for t in range(4) for kk in range(NK1, 28)]
    LAH = 7
    NBUF = 16
    queue = sum([chunk_ops(C) for C in range(NUP, 6)], [])
    late = []
    ready = {0}
    vq = []
    def need_chunk(C):
        nonlocal queue, late
        if C in ready: return
        if any(op[0] == f"c{C}" for op in late):
            queue += late; late = []
        while any(op[0] == f"c{C}" for op in queue): emit(queue.pop(0))
        vm.wait(f"c{C}")
        a("s_barrier")
        ready.add(C)
        if 6 <= C + 4 <= 13: late += chunk_ops(C + 4)
        if C == 2: late += misc
    def issue_reads(i):
        ph, kk, t = seq[i]
        need_chunk(ph * 7 + kk // 4)
        for o in rd_ops(ph, kk, t, WF + 4 * (i % NBUF)): a(o)
    for i in range(LAH): issue_reads(i)
    for i, (ph, kk, t) in enumerate(seq):
        if i + LAH < len(seq):
            issue_reads(i + LAH)
            if i % 2 == 0: a(f"s_waitcnt lgkmcnt({2*LAH-2})")
        elif i % 2 == 0:
            a(f"s_waitcnt lgkmcnt({max(0, 2*(len(seq)-2-i))})")
        T = ph * 4 + t
        b = WF + 4 * (i % NBUF)
        c_ = "0" if kk == 0 else acc(T)
        a(f"v_mfma_f32_32x32x16_bf16 {acc(T)}, v[{b}:{b+3}], a[{4*kk}:{4*kk+3}], {c_}")
        if kk == 27:
            a(f"v_mfma_f32_32x32x16_bf16 {acc(T)}, a[{112+2*T}:{112+2*T+3}], v[104:107], {acc(T)}")
            vq += ep_ops(T)
        if ph == 0 and kk == 22 and t == 0:
            vm.wait("ms")
            vq += fin_ops
        if i == 182:
            vm.wait("st3")
            a("s_mov_b64 exec, 1")
            a("buffer_store_dword v111, v112, s[32:35], s60 offen offset:32 sc1")
            a("s_mov_b64 exec, -1")
            vm.issue("fa")
        if i == 216:
            a("buffer_load_dword v113, v110, s[32:35], s61 offen offset:32 sc1")
            vm.issue("pa")
        if i == 112: stamp(a, 4)
        if i == 112 + 4 * NK1:
            stamp(a, 5)
        if i % 2 == 0 or i < int(os.environ.get('FASTI', '12')):
            if queue: emit(queue.pop(0))
            elif late: emit(late.pop(0))
            elif 9 in ready: d_tick(i)
        if not (kk == 27): emit_valu(vq, VP1 if i < 112 + 4 * NK1 else VP2)
    emit_valu(vq, 10000)
    while late: emit(late.pop(0))
    print("D staging state at end of C:", dstate["next_dma"], dstate["next_stage"])
    stamp(a, 6)
    assert dstate["next_dma"] == NRES and dstate["next_stage"] == NREG
    while dstate["ops"]: emit(dstate["ops"].pop(0))
    vm.wait("pa")
    a("v_cmp_ne_u32 vcc, 1, v113")
    a("s_cmp_eq_u64 vcc, 0")
    a("s_cbranch_scc1 K3_PAX")
    a("s_mov_b32 s53, 0")
    a("K3_PA:")
    a("buffer_load_dword v113, v110, s[32:35], s61 offen offset:32 sc1")
    a("s_add_u32 s53, s53, 1")
    a("s_waitcnt vmcnt(0)")
    a("v_cmp_ne_u32 vcc, 1, v113")
    a("s_cmp_gt_u32 s53, 0x400000")
    a("s_cbranch_scc1 K3_PAX")
    a("s_cmp_lg_u64 vcc, 0")
    a("s_cbranch_scc1 K3_PA")
    a("K3_PAX:")
    NH = 14
    def hh_ops(ks):
        return [(f"k{ks}", [f"s_add_u32 s50, s{TR[ks%14]}, s{66 + ks//14}"] + ([f"s_add_u32 s50, s50, 114688"] if m2 else []) +
                           [f"buffer_load_dwordx4 a[{(ks%NH)*8+4*m2}:{(ks%NH)*8+4*m2+3}], v11, s[32:35], s50 offen sc1"]) for m2 in range(2)]
    for ks in range(6):
        for op in hh_ops(ks): emit(op)
    vm.wait("st7")
    a("s_mov_b64 exec, 1")
    a("buffer_store_dword v111, v112, s[32:35], s60 offen sc1")
    a("s_mov_b64 exec, -1")
    vm.issue("fb")
    for ks in range(6, NH):
        for op in hh_ops(ks): emit(op)
    a("s_barrier")
    stamp(a, 7)
    def dacc(n2, m2): return f"v[{128+32*n2+16*m2}:{128+32*n2+16*m2+15}]"
    def drd(ks):
        if ks < NREG: return 0
        base, off = (24, (ks % 8) * 2048) if ks < NRES else (28, (ks - NRES) * 2048)
        for n2 in range(2):
            b = 36 + (ks & 1) * 8 + 4 * n2
            for e in range(2):
                a(f"ds_read_b64_tr_b16 v[{b+2*e}:{b+2*e+1}], v{base+n2} offset:{off + e*1024}")
        return 4
    wlate = []
    for ks in range(NRES, 28): wlate += d_dma(ks)
    PB = 8
    done_upto = -1
    for ks in range(28):
        n_ = 0
        if ks + 1 < 28: n_ = drd(ks + 1)
        if ks > done_upto: vm.wait(f"k{ks}")
        if ks >= NREG - 1: a(f"s_waitcnt lgkmcnt({n_})")
        for n2 in range(2):
            for m2 in range(2):
                wsrc = f"a[{130+8*ks+4*n2}:{130+8*ks+4*n2+3}]" if ks < NREG else f"v[{36+(ks&1)*8+4*n2}:{36+(ks&1)*8+4*n2+3}]"
                c_ = "0" if ks == 0 else dacc(n2, m2)
                a(f"v_mfma_f32_32x32x16_bf16 {dacc(n2,m2)}, {wsrc}, a[{(ks%NH)*8+4*m2}:{(ks%NH)*8+4*m2+3}], {c_}")
        if ks < PB:
            for _ in range(3): emit(wlate.pop(0))
        if ks == PB - 1:
            assert not wlate
            a("s_mov_b32 s53, 0")
            a("buffer_load_dword v113, v110, s[32:35], s61 offen sc1")
            a("buffer_load_dword v108, v110, s[32:35], s61 offen sc1")
            a("K3_POLL:")
            for ra, rb_ in ((109, 113), (113, 108), (108, 109)):
                a(f"buffer_load_dword v{ra}, v110, s[32:35], s61 offen sc1")
                a("s_waitcnt vmcnt(2)")
                a(f"v_cmp_ne_u32 vcc, 1, v{rb_}")
                a("s_cmp_eq_u64 vcc, 0")
                a("s_cbranch_scc1 K3_POLLX")
            a("s_add_u32 s53, s53, 1")
            a("s_cmp_lt_u32 s53, 0x200000")
            a("s_cbranch_scc1 K3_POLL")
            a("K3_POLLX:")
            vm = VM(a)
            done_upto = NH - 1
            for k2 in range(NH, NH + PB):
                for op in hh_ops(k2): emit(op)
        elif ks >= PB and ks + NH < 28:
            for op in hh_ops(ks + NH): emit(op)
        if ks + NH == 28:
            a(f"buffer_load_dwordx4 v[52:55], v26, s[32:35], s63 offen sc1")
            a(f"buffer_load_dwordx4 v[56:59], v26, s[32:35], s63 offen offset:128 sc1")
            vm.issue("res"); vm.issue("res")
    stamp(a, 8)
    for n2 in range(2):
        for m2 in range(2):
            for q in range(4):
                b = 128 + 32*n2 + 16*m2 + 4*q
                a(f"ds_write_b128 v30, v[{b}:{b+3}] offset:{m2*32*272 + n2*128 + q*32}")
    a("s_waitcnt lgkmcnt(0)")
    a("s_barrier")
    a("s_waitcnt vmcnt(0)")
    for g2 in range(2):
        for w in range(4):
            for e in range(2):
                a(f"ds_read_b128 v[{60+32*g2+8*w+4*e}:{60+32*g2+8*w+4*e+3}], v{31 if w < 2 else 33} offset:{(w&1)*24576 + g2*8*272 + e*16}")
    for g2 in range(2):
        B_ = 60 + 32 * g2
        a(f"s_waitcnt lgkmcnt({8 if g2 == 0 else 0})")
        for j in range(8):
            a(f"v_add_f32 v{B_+j}, v{B_+j}, v{B_+8+j}")
            a(f"v_add_f32 v{B_+16+j}, v{B_+16+j}, v{B_+24+j}")
        for j in range(8): a(f"v_add_f32 v{B_+j}, v{B_+j}, v{B_+16+j}")
        for i in range(4): a(f"v_cvt_pk_bf16_f32 v{B_+8+i}, v{B_+2*i}, v{B_+2*i+1}")
        for i in range(4):
            a(f"v_lshlrev_b32 v{B_+2*i}, 16, v{B_+8+i}")
            a(f"v_and_b32 v{B_+2*i+1}, s41, v{B_+8+i}")
            a(f"v_lshlrev_b32 v{B_+16+2*i}, 16, v{52+4*g2+i}")
            a(f"v_and_b32 v{B_+16+2*i+1}, s41, v{52+4*g2+i}")
        for j in range(8): a(f"v_add_f32 v{B_+j}, v{B_+j}, v{B_+16+j}")
        for i in range(4): a(f"v_cvt_pk_bf16_f32 v{B_+8+i}, v{B_+2*i}, v{B_+2*i+1}")
        a(f"s_add_u32 s50, s76, {g2*8*896}")
        a(f"buffer_store_dwordx4 v[{B_+8}:{B_+11}], v32, s[24:27], s50 offen")
    if STAMPS: a("s_waitcnt vmcnt(0)")
    stamp(a, 9)
    stamp_flush(a, 38, 32, 2)
    a("s_endpgm")
    a("K3_PF:")
    a("s_sub_u32 s36, s2, 224")
    a("s_waitcnt lgkmcnt(0)")
    srd(a, 16, 4, 1605632)
    srd(a, 20, 8, 1605632)
    srd(a, 24, 10, 1605632)
    srd(a, 32, 14, WS_SIZE)
    a("s_cmp_ge_u32 s36, 28")
    a("s_cbranch_scc1 K3_PF2")
    a("s_cmp_ge_u32 s36, 14")
    a("s_cselect_b32 s37, 1, 0")
    a("s_cselect_b32 s28, s10, s8")
    a("s_cselect_b32 s29, s11, s9")
    a("s_mov_b32 s30, 1605632")
    a("s_mov_b32 s31, 0x00020000")
    a("s_mul_i32 s39, s37, 14")
    a("s_sub_u32 s39, s36, s39")
    a("v_lshrrev_b32 v7, 4, v0")
    a("v_and_b32 v8, 15, v0")
    a("v_mul_u32_u24 v9, 3584, v7")
    a("v_lshl_add_u32 v9, v8, 4, v9")
    a("s_lshl_b32 s50, s39, 8")
    for i in range(28):
        a(f"s_add_u32 s51, s50, {i*16*3584}")
        a(f"buffer_load_dwordx4 v[{20+4*i}:{20+4*i+3}], v9, s[28:31], s51 offen")
    for j in range(8): a(f"v_mov_b32 v{140+j}, 0")
    for i in range(28):
        a(f"s_waitcnt vmcnt({27-i})")
        for r in range(4):
            a(f"v_lshlrev_b32 v11, 16, v{20+4*i+r}")
            a(f"v_and_b32 v12, s41, v{20+4*i+r}")
            a(f"v_add_f32 v{140+2*r}, v{140+2*r}, v11")
            a(f"v_add_f32 v{140+2*r+1}, v{140+2*r+1}, v12")
    a("v_lshlrev_b32 v11, 9, v7")
    a("v_lshl_add_u32 v11, v8, 5, v11")
    a("ds_write_b128 v11, v[140:143]")
    a("ds_write_b128 v11, v[144:147] offset:16")
    a("s_waitcnt lgkmcnt(0)")
    a("s_barrier")
    a("s_cmp_ge_u32 s38, 2")
    a("s_cbranch_scc1 K3_PF1")
    a("v_lshlrev_b32 v11, 2, v0")
    for i in range(16):
        a(f"ds_read_b32 v{20+i}, v11 offset:{i*512}")
    a("s_waitcnt lgkmcnt(0)")
    for i in range(1, 16): a(f"v_add_f32 v20, v20, v{20+i}")
    a("v_cvt_pk_bf16_f32 v24, v20, v20")
    a("v_and_b32 v22, s41, v24")
    a("v_sub_f32 v22, v20, v22")
    a("v_cvt_pk_bf16_f32 v25, v22, v22")
    a("v_lshlrev_b32 v11, 6, v8")
    a("v_lshl_add_u32 v11, v7, 3, v11")
    a("s_lshl_b32 s50, s39, 11")
    a("s_lshl_b32 s51, s37, 10")
    a("s_add_u32 s50, s50, s51")
    a(f"s_add_u32 s50, s50, {WS_CS}")
    a("buffer_store_dwordx2 v[24:25], v11, s[32:35], s50 offen sc1")
    a("s_lshl_b32 s50, s2, 7")
    a("s_lshl_b32 s51, s38, 2")
    a("s_add_u32 s50, s50, s51")
    a(f"s_add_u32 s50, s50, {WS_FLAG}")
    a("v_mov_b32 v26, 1")
    a("v_mov_b32 v27, 0")
    a("s_waitcnt vmcnt(0)")
    a("s_mov_b64 exec, 1")
    a("buffer_store_dword v26, v27, s[32:35], s50 offen sc1")
    a("s_mov_b64 exec, -1")
    a("K3_PF1:")
    a("s_barrier")
    a("K3_PF2:")
    a("s_lshr_b32 s60, s36, 3")
    a("s_lshl_b32 s60, s60, 2")
    a("s_add_u32 s60, s60, s38")
    a("s_mul_i32 s61, s60, 7168")
    a(f"v_lshlrev_b32 v10, 7, v{LANE}")
    a(f"v_mov_b32 v11, 0x7fff0000")
    a(f"v_cmp_gt_u32 vcc, 56, v{LANE}")
    a(f"v_cndmask_b32 v10, v11, v10, vcc")
    PF2 = int(os.environ.get("PF2", "0"))
    for i in range(5 if PF2 else 10):
        a(f"s_add_u32 s62, s61, {(8192 if PF2 else 4096)*128 + i*16*7168}")
        a(f"buffer_load_dword v{150+2*i}, v10, s[20:23], s62 offen")
        a(f"buffer_load_dword v{151+2*i}, v10, s[24:27], s62 offen")
    for i in range(14):
        a(f"s_add_u32 s62, s61, {i*16*7168}")
        a(f"buffer_load_dword v{170+i}, v10, s[16:19], s62 offen")
    a("K3_END:")
    a("s_endpgm")
    a.fix_hazards()
    k = kd("k3_kernel", 256).replace("next_free_vgpr 256", "next_free_vgpr 506")
    return a.text(), k

K4_WREG = 40960
K4_LDS = 4 * K4_WREG

def gen_k4():
    a = Asm()
    head(a, "k4_kernel")
    a("s_cmp_ge_u32 s2, 224")
    a("s_cbranch_scc1 K4_END")
    stamp_init(a); stamp(a, 0, real=True); stamp(a, 1)
    a("s_load_dwordx4 s[8:11], s[0:1], 56")
    a("s_load_dwordx2 s[14:15], s[0:1], 80")
    LANE, M, HF, I16, G = 1, 2, 3, 4, 5
    a(f"v_and_b32 v{LANE}, 63, v0")
    a(f"v_lshrrev_b32 v6, 6, v0")
    a(f"v_readfirstlane_b32 s38, v6")
    a(f"v_and_b32 v{M}, 31, v{LANE}")
    a(f"v_lshrrev_b32 v{HF}, 5, v{LANE}")
    a(f"v_and_b32 v{I16}, 15, v{LANE}")
    a(f"v_lshrrev_b32 v{G}, 4, v{LANE}")
    a("s_mov_b32 s41, 0xffff0000")
    a("s_and_b32 s36, s2, 7")
    a("s_lshl_b32 s36, s36, 2")
    a("s_bfe_u32 s37, s2, 0x20003")
    a("s_add_u32 s36, s36, s37")
    a("s_lshr_b32 s37, s2, 5")
    a(f"v_lshrrev_b32 v7, 3, v{LANE}")
    a(f"v_and_b32 v8, 7, v{LANE}")
    a(f"v_lshrrev_b32 v9, 1, v7")
    a(f"v_and_b32 v9, 1, v9")
    a(f"v_lshlrev_b32 v9, 2, v9")
    a(f"v_xor_b32 v8, v8, v9")
    a(f"v_mul_u32_u24 v7, 896, v7")
    a(f"v_lshl_add_u32 v10, v8, 4, v7")
    a(f"v_lshlrev_b32 v11, 4, v{LANE}")
    a("s_waitcnt lgkmcnt(0)")
    srd(a, 20, 8, 1605632)
    srd(a, 24, 10, 1835008)
    srd(a, 32, 14, WS_SIZE)
    a("s_mul_i32 s46, s38, 401408")
    a("s_lshl_b32 s47, s37, 7")
    a("s_add_u32 s46, s46, s47")
    a(f"s_mul_i32 s47, s38, {K4_WREG}")
    a("s_mul_i32 s48, s36, 229376")
    a("s_mul_i32 s49, s38, 28672")
    a("s_add_u32 s48, s48, s49")
    a(f"s_add_u32 s48, s48, {WS_HH}")
    vm = VM(a)
    HH = 28
    a("s_bfe_u32 s52, s2, 0x20003")
    for g_ in range(4):
        a(f"s_add_u32 s53, s52, {g_}")
        a("s_and_b32 s53, s53, 3")
        a(f"s_mul_i32 s{56+g_}, s53, {7*16*896}")
        a(f"s_add_u32 s{56+g_}, s{56+g_}, s46")
        a(f"s_mul_i32 s{60+g_}, s53, 7168")
        a(f"s_add_u32 s{60+g_}, s{60+g_}, s48")
    def dma(ks):
        for i in range(2):
            a(f"s_add_u32 m0, s47, {(ks % 20)*2048 + i*1024}")
            a(f"s_add_u32 s50, s{56+ks//7}, {((ks%7)*16 + i*8)*896}")
            a(f"buffer_load_dwordx4 v10, s[20:23], s50 offen lds")
            vm.issue(f"k{ks}")
    def hload(ks):
        for m2 in range(2):
            a(f"s_add_u32 s50, s{60+ks//7}, {m2*114688 + (ks%7)*1024}")
            a(f"buffer_load_dwordx4 v[{HH+8*ks+4*m2}:{HH+8*ks+4*m2+3}], v11, s[32:35], s50 offen")
            vm.issue(f"k{ks}")
    PRE = 15
    for ks in range(PRE):
        dma(ks); hload(ks)
    a(f"v_lshrrev_b32 v7, 2, v{I16}")
    a(f"v_lshl_add_u32 v8, v{HF}, 2, v7")
    a(f"v_lshrrev_b32 v7, 1, v7")
    a(f"v_lshlrev_b32 v7, 3, v7")
    a(f"v_and_b32 v9, 1, v{G}")
    a(f"v_lshl_add_u32 v7, v9, 2, v7")
    a(f"v_and_b32 v9, 3, v{I16}")
    a(f"v_add_u32 v7, v7, v9")
    a(f"v_lshlrev_b32 v7, 3, v7")
    a(f"v_lshl_add_u32 v7, v8, 7, v7")
    a(f"v_add_u32 v12, s47, v7")
    a(f"v_xor_b32 v13, 64, v12")
    WF = 14
    def acc(n2, m2): return f"a[{32*n2+16*m2}:{32*n2+16*m2+15}]"
    def wf(ks, n2):
        b = 64 + (ks & 1) * 8 + 4 * n2
        return b
    def rd(ks):
        for n2 in range(2):
            b = wf(ks, n2)
            for e in range(2):
                a(f"ds_read_b64_tr_b16 a[{b+2*e}:{b+2*e+1}], v{12+n2} offset:{(ks % 20)*2048 + e*1024}")
    stamp(a, 2)
    vm.wait("k0")
    stamp(a, 3)
    rd(0)
    for ks in range(28):
        if ks + 1 < 28:
            vm.wait(f"k{ks+1}")
            rd(ks + 1)
            a("s_waitcnt lgkmcnt(4)")
        else:
            a("s_waitcnt lgkmcnt(0)")
        for n2 in range(2):
            for m2 in range(2):
                b = wf(ks, n2)
                c_ = "0" if ks == 0 else acc(n2, m2)
                a(f"v_mfma_f32_32x32x16_bf16 {acc(n2,m2)}, a[{b}:{b+3}], v[{HH+8*ks+4*m2}:{HH+8*ks+4*m2+3}], {c_}")
        nk = ks + PRE
        if nk < 28:
            dma(nk); hload(nk)
    stamp(a, 4)
    a("s_lshl_b32 s50, s36, 1")
    a("s_mul_i32 s50, s50, 28")
    a("s_lshl_b32 s51, s37, 2")
    a("s_add_u32 s50, s50, s51")
    a("s_add_u32 s50, s50, s38")
    a("s_lshl_b32 s50, s50, 10")
    a(f"s_add_u32 s50, s50, {WS_HF}")
    a(f"v_mul_u32_u24 v7, 28672, v{HF}")
    a(f"v_lshl_add_u32 v7, v{M}, 4, v7")
    a(f"buffer_load_dwordx4 v[14:17], v7, s[32:35], s50 offen")
    a(f"buffer_load_dwordx4 v[18:21], v7, s[32:35], s50 offen offset:512")
    a(f"v_mul_u32_u24 v7, 272, v{M}")
    a(f"v_lshl_add_u32 v7, v{HF}, 4, v7")
    a(f"v_add_u32 v7, s47, v7")
    for n2 in range(2):
        for m2 in range(2):
            for q in range(4):
                b = 32*n2 + 16*m2 + 4*q
                a(f"ds_write_b128 v7, a[{b}:{b+3}] offset:{m2*32*272 + n2*128 + q*32}")
    a("s_waitcnt lgkmcnt(0)")
    a("s_barrier")
    stamp(a, 5)
    a(f"v_mul_u32_u24 v7, 272, v{LANE}")
    a("s_lshl_b32 s50, s38, 6")
    a(f"v_add_u32 v7, s50, v7")
    a(f"v_add_u32 v8, {2*K4_WREG}, v7")
    for w in range(4):
        for e in range(4):
            base = 7 if w < 2 else 8
            a(f"ds_read_b128 v[{28+16*w+4*e}:{28+16*w+4*e+3}], v{base} offset:{(w&1)*K4_WREG + e*16}")
    a("s_waitcnt lgkmcnt(0)")
    for j in range(16):
        a(f"v_add_f32 v{28+j}, v{28+j}, v{44+j}")
        a(f"v_add_f32 v{60+j}, v{60+j}, v{76+j}")
    for j in range(16):
        a(f"v_add_f32 v{28+j}, v{28+j}, v{60+j}")
    a("s_waitcnt vmcnt(0)")
    for i in range(8):
        a(f"v_cvt_pk_bf16_f32 v44, v{28+2*i}, v{28+2*i+1}")
        a(f"v_lshlrev_b32 v45, 16, v44")
        a(f"v_and_b32 v46, s41, v44")
        a(f"v_lshlrev_b32 v47, 16, v{14+i}")
        a(f"v_and_b32 v48, s41, v{14+i}")
        a(f"v_add_f32 v45, v45, v47")
        a(f"v_add_f32 v46, v46, v48")
        a(f"v_cvt_pk_bf16_f32 v{60+i}, v45, v46")
    a("s_lshl_b32 s50, s36, 6")
    a(f"v_add_u32 v7, s50, v{LANE}")
    a(f"v_mul_u32_u24 v7, 896, v7")
    a("s_lshl_b32 s50, s37, 7")
    a("s_lshl_b32 s51, s38, 5")
    a("s_add_u32 s50, s50, s51")
    a(f"buffer_store_dwordx4 v[60:63], v7, s[24:27], s50 offen")
    a(f"buffer_store_dwordx4 v[64:67], v7, s[24:27], s50 offen offset:16")
    if STAMPS: a("s_waitcnt vmcnt(0)")
    stamp(a, 9)
    stamp_flush(a, 38, 32, 3)
    a("K4_END:")
    a("s_endpgm")
    a.fix_hazards()
    k = kd("k4_kernel", 256).replace("next_free_vgpr 256", "next_free_vgpr 336")
    return a.text(), k

def kernels():
    return [("k3", gen_k3, 256, 256, K3_LDS)]
```
